```python
import torch

def _softmax(x, axis=-1):
    return torch.softmax(x, dim=axis)
def _gelu(x):
    return torch.nn.functional.gelu(x, approximate="tanh")
def _silu(x):
    return torch.nn.functional.silu(x)
def _sigmoid(x):
    return torch.sigmoid(x)
def _layernorm(x, axis=-1, eps=1e-5):
    m = x.mean(dim=axis, keepdim=True)
    v = x.var(dim=axis, keepdim=True, unbiased=False)
    return (x - m) / torch.sqrt(v + eps)
def _scatter_add(tgt, idx, src, axis=0):
    return tgt.clone().index_add_(axis, idx, src)
def _segment_sum(src, seg, n):
    out = torch.zeros((n,) + src.shape[1:], dtype=src.dtype)
    return out.index_add_(0, seg, src)
def _pad(x, pw):
    flat = tuple(v for pair in reversed(pw) for v in pair)
    return torch.nn.functional.pad(x, flat)

kernel_name = 'interleave_layers__ssm_conv_h3__dense_activation_relu__prompt'

def setup_inputs():

    _w = (lambda a: (lambda t: t.to(torch.bfloat16) if t.is_floating_point() else t)(torch.as_tensor(a)))
    def _A_setup():
        B, S, D = 1, 2048, 640
        ks = 4
        return {
            "q": _w((lambda *s: torch.randn(*s, dtype=torch.bfloat16) * 0.05)(B, S, D)),
            "k": _w((lambda *s: torch.randn(*s, dtype=torch.bfloat16) * 0.8)(B, S, D)),
            "v": _w((lambda *s: torch.randn(*s, dtype=torch.bfloat16) * 0.8)(B, S, D)),
            "shift_k": _w((lambda *s: torch.randn(*s, dtype=torch.bfloat16) * 0.8)(D, ks) * 0.5),
            "ssm_k": _w((lambda *s: torch.randn(*s, dtype=torch.bfloat16) * 0.8)(D, S) * (1.0 / S ** 0.5)),
            "ssm_D": _w((lambda *s: torch.randn(*s, dtype=torch.bfloat16) * 0.8)(D)),
        }
    _A_in = _A_setup()

    def _B_setup():
        B, S, D, Dff = 1, 2048, 640, 1728
        return {
            "x": _w((lambda *s: torch.randn(*s, dtype=torch.bfloat16) * 0.05)(B, S, D)),
            "w1": _w((lambda *s: torch.randn(*s, dtype=torch.bfloat16) * 0.1)(D, Dff)),
            "w2": _w((lambda *s: torch.randn(*s, dtype=torch.bfloat16) * 0.1)(Dff, D)),
        }
    _B_in = _B_setup()

    return {
        "A_q": _A_in["q"],
        "A_k": _A_in["k"],
        "A_v": _A_in["v"],
        "A_shift_k": _A_in["shift_k"],
        "A_ssm_k": _A_in["ssm_k"],
        "A_ssm_D": _A_in["ssm_D"],
        "B_x": _B_in["x"],
        "B_w1": _B_in["w1"],
        "B_w2": _B_in["w2"],
    }

def reference(A_q, A_k, A_v, A_shift_k, A_ssm_k, A_ssm_D, B_x, B_w1, B_w2):
    def _A_ref(q, k, v, shift_k, ssm_k, ssm_D):
        B, S, D = q.shape
        ks = shift_k.shape[-1]
        k_pad = _pad(k, ((0, 0), (ks - 1, 0), (0, 0)))
        k_shift = torch.zeros_like(k)
        for t in range(ks):
            k_shift = k_shift + k_pad[:, t:t + S, :] * shift_k[:, ks - 1 - t][None, None, :]
        kv = k_shift * v
        L = 2 * S
        kv_pad = _pad(kv, ((0, 0), (0, S), (0, 0)))
        kf_pad = _pad(ssm_k, ((0, 0), (0, S)))
        kv_f = (lambda x, axes=(-2,-1): torch.fft.rfft2(x.float(), dim=axes))(kv_pad[:, None, :, :], axes=(1, 2))
        kf_f = (lambda x, axes=(-2,-1): torch.fft.rfft2(x.float(), dim=axes))(kf_pad[:, None, :], axes=(1, 2))
        kf_f = (lambda x, *d: x.permute(*d))(kf_f, 1, 2, 0)
        y_f = kv_f * kf_f[None, :, :, :]
        y = (lambda x, s, axes=(-2,-1): torch.fft.irfft2(x, s=s, dim=axes).to(torch.bfloat16))(y_f, (1, L), axes=(1, 2))[:, 0, :S, :]
        y = y + kv * ssm_D[None, None, :]
        return q * y

    def _B_ref(x, w1, w2):
        h = torch.einsum("bsd,df->bsf", x, w1)
        zero = torch.zeros_like(h)
        h = torch.maximum(h, zero)
        return torch.einsum("bsf,fd->bsd", h, w2)

    x = A_q
    x = x + _A_ref(_layernorm(x, axis=-1), A_k, A_v, A_shift_k, A_ssm_k, A_ssm_D)
    x = x + _B_ref(_layernorm(x, axis=-1), B_w1, B_w2)
    x = x + _A_ref(_layernorm(x, axis=-1), A_k, A_v, A_shift_k, A_ssm_k, A_ssm_D)
    x = x + _B_ref(_layernorm(x, axis=-1), B_w1, B_w2)
    return x
```

```python
import re

REG_RE = re.compile(r'\b([vas])(\d+)\b|\b([vas])\[(\d+):(\d+)\]|\b(vcc|exec|m0|scc)\b')

def regs_of(tok):
    out = []
    for m in REG_RE.finditer(tok):
        if m.group(1):
            out.append(m.group(1) + m.group(2))
        elif m.group(3):
            for i in range(int(m.group(4)), int(m.group(5)) + 1):
                out.append(m.group(3) + str(i))
        else:
            out.append(m.group(6))
    return out

TRANS = ("v_exp_", "v_log_", "v_rcp_", "v_rsq_", "v_sqrt_", "v_sin_", "v_cos_")

class Ins:
    __slots__ = ("text", "op", "kind", "wr", "rd", "mfma_c", "mfma_ab", "passes", "dpp", "nops", "is_label", "stdata", "lds_dma")
    def __init__(self, text):
        self.text = text
        self.is_label = False
        self.wr = set(); self.rd = set(); self.mfma_c = set(); self.mfma_ab = set()
        self.passes = 0; self.dpp = False; self.nops = 1; self.stdata = set(); self.lds_dma = False
        t = text.strip()
        if t.endswith(":") or t.startswith("."):
            self.is_label = t.endswith(":")
            self.op = ""; self.kind = "label" if self.is_label else "dir"; self.nops = 0
            return
        t = t.split(";")[0].strip()
        parts = t.split(None, 1)
        op = parts[0]; self.op = op
        rest = parts[1] if len(parts) > 1 else ""
        ops = []; depth = 0; cur = ""
        for ch in rest:
            if ch in "[(": depth += 1
            if ch in "])": depth -= 1
            if ch == "," and depth == 0:
                ops.append(cur.strip()); cur = ""
            else:
                cur += ch
        if cur.strip(): ops.append(cur.strip())
        R = lambda i: set(regs_of(ops[i].split()[0])) if i < len(ops) and ops[i] else set()
        allr = lambda i0: set(x for i in range(i0, len(ops)) for x in regs_of(ops[i].split()[0] if ops[i] else ""))
        if op == "s_nop":
            self.kind = "nop"; self.nops = int(ops[0], 0) + 1
        elif op.startswith("v_mfma"):
            self.kind = "mfma"
            self.wr = R(0); self.mfma_ab = R(1) | R(2); self.mfma_c = R(3)
            self.rd = self.mfma_ab | self.mfma_c
            self.passes = 8 if "32x32" in op else 4
        elif op.startswith("v_"):
            self.kind = "valu"
            self.dpp = ("_dpp" in op) or ("row_" in rest) or ("quad_perm" in rest) or ("wave_" in rest)
            if op.startswith("v_cmp"):
                self.wr = R(0); self.rd = allr(1)
                if op.startswith("v_cmpx"): self.wr |= {"exec"}
            elif op.startswith("v_permlane") and "swap" in op:
                self.wr = R(0) | R(1); self.rd = R(0) | R(1)
            elif op.startswith(("v_add_co", "v_sub_co", "v_subrev_co")):
                self.wr = R(0) | R(1); self.rd = allr(2)
            elif op.startswith(("v_addc_co", "v_subb_co")):
                self.wr = R(0) | R(1); self.rd = allr(2)
            elif op.startswith(("v_fmac", "v_mac", "v_dot2c", "v_pk_fmac")):
                self.wr = R(0); self.rd = allr(0)
            elif op.startswith("v_cndmask") and len(ops) == 3:
                self.wr = R(0); self.rd = allr(1) | {"vcc"}
            elif op.startswith("v_writelane"):
                self.wr = R(0); self.rd = allr(0)
            else:
                self.wr = R(0); self.rd = allr(1)
                if "dst_unused:UNUSED_PRESERVE" in rest or self.dpp: self.rd |= R(0)
            self.rd |= {"exec"}
        elif op.startswith("ds_"):
            self.kind = "ds"
            if op.startswith(("ds_read", "ds_bpermute", "ds_permute", "ds_swizzle")) or "_rtn" in op:
                self.wr = R(0); self.rd = allr(1)
            else:
                self.rd = allr(0); self.stdata = allr(1)
        elif op.startswith(("global_", "buffer_", "flat_")):
            self.kind = "vmem"
            is_lds = (" lds" in (" " + rest)) or "_lds_" in op
            self.lds_dma = is_lds
            if op in ("buffer_wbl2", "buffer_inv"):
                pass
            elif is_lds:
                self.rd = allr(0) | {"m0"}
            elif "load" in op:
                self.wr = R(0); self.rd = allr(1)
            elif "atomic" in op:
                if " sc0" in (" " + rest):
                    self.wr = R(0); self.rd = allr(1)
                else:
                    self.rd = allr(0)
            else:
                self.rd = allr(0)
                if op.startswith("global_"): data = R(1)
                else: data = R(0)
                self.stdata = data if ("x4" in op or "x3" in op) else set()
        elif op.startswith("s_"):
            self.kind = "salu"
            if op.startswith(("s_cmp", "s_bitcmp")):
                self.rd = allr(0); self.wr = {"scc"}
            elif op.startswith(("s_cbranch", "s_branch")):
                self.kind = "branch"
            elif op in ("s_waitcnt", "s_barrier", "s_sleep", "s_setprio", "s_endpgm", "s_sethalt"):
                self.kind = "misc"
            elif op.startswith("s_load") or op.startswith("s_buffer_load") or op in ("s_memtime", "s_memrealtime"):
                self.kind = "smem"; self.wr = R(0); self.rd = allr(1)
            elif "saveexec" in op:
                self.wr = R(0) | {"exec"}; self.rd = allr(1) | {"exec"}
            else:
                self.wr = R(0); self.rd = allr(1)
        else:
            raise ValueError("unknown instruction: " + text)

def need_states(p, c):
    n = 0
    if p.kind == "valu":
        vw = set(r for r in p.wr if r[0] in "va" and r not in ("vcc",))
        sw = set(r for r in p.wr if (r[0] == "s" and r != "scc") or r == "vcc")
        if c.kind == "mfma" and vw & c.rd: n = max(n, 2)
        if c.kind == "vmem" and sw & c.rd: n = max(n, 5)
        if c.kind == "valu":
            if sw & c.rd:
                if c.op.startswith(("v_readlane", "v_writelane")): n = max(n, 4)
                else: n = max(n, 2)
            if c.op.startswith(("v_readlane", "v_readfirstlane")) and vw & c.rd: n = max(n, 1)
            if c.dpp and vw & c.rd: n = max(n, 2)
            if c.op.startswith("v_permlane") and vw & c.rd: n = max(n, 2)
            if p.op.startswith(TRANS) and vw & c.rd: n = max(n, 1)
            if ("sdwa" in p.op or "dst_sel" in p.text) and vw & (c.rd | c.wr): n = max(n, 1)
            if "exec" in p.wr: n = max(n, 4 if c.op.startswith(("v_readlane", "v_readfirstlane", "v_writelane", "v_permlane")) else (5 if c.dpp else 2))
        if c.kind == "mfma" and "exec" in p.wr: n = max(n, 4)
        if c.kind == "branch" and ("vcc" in p.wr) and "vcc" in c.op: n = max(n, 0)
    elif p.kind == "mfma":
        P = p.passes
        t_c_overlap = {4: 6, 8: 10}[P]; t_ab = {4: 8, 8: 12}[P]; t_war = {4: 3, 8: 7}[P]
        if c.kind == "mfma":
            if p.wr & c.mfma_ab: n = max(n, t_ab)
            if p.wr & c.mfma_c and not (p.wr == c.mfma_c and p.passes == c.passes): n = max(n, t_c_overlap)
            if p.wr & c.wr and not (p.wr == c.mfma_c): n = max(n, t_c_overlap)
        elif c.kind in ("valu", "vmem", "ds"):
            if p.wr & (c.rd | c.wr): n = max(n, t_ab)
            if c.kind == "valu" and p.mfma_c & c.wr: n = max(n, t_war)
    elif p.kind == "salu":
        if "m0" in p.wr and (c.lds_dma or "addtid" in c.op): n = max(n, 1)
        if "exec" in p.wr and c.kind == "valu" and c.dpp: n = max(n, 0)
    elif p.kind in ("vmem",):
        if p.stdata and c.kind == "valu" and p.stdata & c.wr: n = max(n, 2)
        if p.stdata and c.kind in ("vmem", "ds", "mfma") and p.stdata & c.wr: n = max(n, 1)
    elif p.kind == "ds":
        if p.stdata and len(p.stdata) >= 3 and c.kind == "valu" and p.stdata & c.wr: n = max(n, 2)
    return n

MAXW = 14
def fix_hazards(ins_list):
    out = []
    added = 0
    def pending_flush():
        need = 0; dist = 0
        for p in reversed(out):
            if p.kind in ("label", "dir"): continue
            w = 0
            if p.kind == "mfma": w = {4: 8, 8: 12}[p.passes]
            elif p.kind == "valu":
                if any((r[0] == "s" and r != "scc") or r == "vcc" for r in p.wr): w = 5
                else: w = 2
                if "exec" in p.wr: w = 5
            elif p.kind == "vmem" and p.stdata: w = 2
            elif p.kind == "salu" and "m0" in p.wr: w = 1
            need = max(need, w - dist)
            dist += p.nops
            if dist >= MAXW: break
        return need
    for c in ins_list:
        if c.kind in ("label", "branch"):
            nb = pending_flush() if not getattr(c, "text", "").strip().endswith("; nohaz") else 0
            while nb > 0:
                k = min(nb, 16); out.append(Ins("    s_nop %d" % (k - 1))); nb -= k; added += k
            out.append(c); continue
        if c.kind == "dir":
            out.append(c); continue
        need = 0; dist = 0
        for p in reversed(out):
            if p.kind in ("label",): break
            if p.kind == "dir": continue
            n = need_states(p, c)
            need = max(need, n - dist)
            dist += p.nops
            if dist >= MAXW: break
        while need > 0:
            k = min(need, 16); out.append(Ins("    s_nop %d" % (k - 1))); need -= k; added += k
        out.append(c)
    return out, added

class Gen:
    def __init__(self):
        self.ins = []
        self.uid = 0
        self.vmq = []
        self.lgq = []
    def __call__(self, s):
        for l in s.split("\n"):
            l = l.strip()
            if not l or l.startswith(";"): continue
            self.ins.append(Ins(l if (l.endswith(":") or l.startswith(".")) else "    " + l))
    def label(self, base="L"):
        self.uid += 1
        return "%s_%d" % (base, self.uid)
    def vm(self, s, tag=None):
        self(s); self.vmq.append(tag)
    def lg(self, s, tag=None):
        self(s); self.lgq.append(tag)
    def _wait(self, q, tags, name, maxn):
        if not isinstance(tags, (list, tuple, set)): tags = [tags]
        last = -1
        for i, t in enumerate(q):
            if t in tags: last = i
        if last < 0: return
        n = len(q) - 1 - last
        n = min(n, maxn)
        self("s_waitcnt %s(%d)" % (name, n))
        del q[:len(q) - n]
    def vm_wait(self, tags): self._wait(self.vmq, tags, "vmcnt", 63)
    def lg_wait(self, tags): self._wait(self.lgq, tags, "lgkmcnt", 15)
    def vm_wait_all(self):
        self("s_waitcnt vmcnt(0)"); self.vmq = []
    def lg_wait_all(self):
        self("s_waitcnt lgkmcnt(0)"); self.lgq = []
    def wait_all(self):
        self("s_waitcnt vmcnt(0) lgkmcnt(0)"); self.vmq = []; self.lgq = []
    def text(self, fix=True):
        ins = self.ins
        added = 0
        if fix: ins, added = fix_hazards(ins)
        return "\n".join(i.text for i in ins) + "\n", added

def vr(b, n=1, k="v"):
    return "%s%d" % (k, b) if n == 1 else "%s[%d:%d]" % (k, b, b + n - 1)
def ar(b, n=1): return vr(b, n, "a")
def sr(b, n=1): return vr(b, n, "s")
```

```python
import sys
sys.path.insert(0, "work")
from gen import *

KNAME = "interleave_layers__ssm_conv_h3__dense_activation_relu__prompt_kernel"

WS_LFLAG = 0x0
WS_GFLAG = 0x400
WS_STAT  = 0x1000
STAT_SZ  = 2048 * 64
WS_UR    = 0x100000
WS_YT    = 0x400000
WS_XF1   = 0x700000
WS_XF3   = 0xA00000
WS_HF1   = 0x1000000
WS_HF2   = 0x1800000

KC_STRIDE = 4160
SLOT = 8 * KC_STRIDE + 4608
U_OFF = 8 * KC_STRIDE
LDS_T = 3 * SLOT
T_STRIDE = 144
LDS_W1 = 0
W1_STRIDE = 224
LDS_SCR = 640 * W1_STRIDE
LDS_TOTAL = 163840

S_G, S_J, S_W, S_MODE = 4, 5, 6, 7
SRD_A, SRD_B = 8, 12
P_Q, P_K, P_V, P_SK, P_SSM, P_D, P_W1 = 16, 18, 20, 22, 24, 26, 30
P_W2, P_OUT, P_DBG, P_WS = 32, 34, 36, 38
S_RB, S_CS, S_RT, S_CT, S_UOFF = 40, 41, 42, 43, 44
S_MASK = 45
S_XCC = 46
S_CH = 47
S_HASCH = 48
S_DVAL = 49
S_T0 = 50
S_LFLAG = 64
S_TMPP = 66
S_TMPQ = 68
S_SLOT = 70
S_PHASE_TMO = 71
S_HSTEP = 72
S_XFB = 86
S_HFB = 88
S_STB = 90
S_SAVE = 92
S_TS = 94

V_TID, V_LANE, V_L15, V_G = 0, 1, 2, 3
V_CS = 184
V_Y = 212
V_X = 222
V_W2X = 232

def w2reg(f):
    return ar(4 * f, 4) if f < 64 else vr(V_W2X + 4 * (f - 64), 4)
def w2reg2(f, h):
    return ar(4 * f + 2 * h, 2) if f < 64 else vr(V_W2X + 4 * (f - 64) + 2 * h, 2)

TIMEOUT = 400000

class K(Gen):
    def __init__(self, opts):
        super().__init__()
        self.o = opts
        self.nstamp = 0

    def stamp(self, idx):
        if not self.o.get("stamps"): return
        L = self.label("L_st")
        self("s_cmp_lg_u32 s%d, 0" % S_W)
        self("s_cbranch_scc1 %s" % L)
        self("s_memrealtime s[%d:%d]" % (S_TS, S_TS + 1))
        self("s_waitcnt lgkmcnt(0)")
        self("v_mov_b32 v180, s%d" % S_TS)
        self("s_lshl_b32 s3, s2, 7")
        self("s_add_u32 s3, s3, %d" % (0xF0000 + 4 * idx))
        self("v_mov_b32 v181, s3")
        self("global_store_dword v181, v180, s[%d:%d]" % (P_WS, P_WS + 1))
        self("%s:" % L)
        self("s_waitcnt vmcnt(0)" if self.o.get("stamp_drain", True) else "s_nop 0")
        self.vmq = []

    def rnd_pair(self, p, t):
        self("v_cvt_pk_bf16_f32 v%d, v%d, v%d" % (t, p, p + 1))
        self("v_lshlrev_b32 v%d, 16, v%d" % (p, t))
        self("v_and_b32 v%d, s%d, v%d" % (p + 1, S_MASK, t))
    def unpack(self, dst, src):
        self("v_lshlrev_b32 v%d, 16, v%d" % (dst, src))
        self("v_and_b32 v%d, s%d, v%d" % (dst + 1, S_MASK, src))
    def rnd1(self, r, t):
        self("v_cvt_pk_bf16_f32 v%d, v%d, v%d" % (t, r, r))
        self("v_lshlrev_b32 v%d, 16, v%d" % (r, t))
    def xg_sum(self, r, t):
        self("v_mov_b32 v%d, v%d" % (t, r))
        self("v_permlane16_swap_b32 v%d, v%d" % (r, t))
        self("v_add_f32 v%d, v%d, v%d" % (r, r, t))
        self("v_mov_b32 v%d, v%d" % (t, r))
        self("v_permlane32_swap_b32 v%d, v%d" % (r, t))
        self("v_add_f32 v%d, v%d, v%d" % (r, r, t))
    def srd(self, q, ptr, nbytes, add_sgpr=None):
        if add_sgpr is None:
            self("s_mov_b32 s%d, s%d" % (q, ptr))
            self("s_and_b32 s%d, s%d, 0xffff" % (q + 1, ptr + 1))
        else:
            self("s_add_u32 s%d, s%d, s%d" % (q, ptr, add_sgpr))
            self("s_addc_u32 s%d, s%d, 0" % (q + 1, ptr + 1))
            self("s_and_b32 s%d, s%d, 0xffff" % (q + 1, q + 1))
        self("s_mov_b32 s%d, %d" % (q + 2, nbytes))
        self("s_mov_b32 s%d, 0x20000" % (q + 3))
    def addr_pair(self, dst, ptr, const=0, add_sgpr=None):
        self("s_add_u32 s%d, s%d, %d" % (dst, ptr, const))
        self("s_addc_u32 s%d, s%d, 0" % (dst + 1, ptr + 1))
        if add_sgpr is not None:
            self("s_add_u32 s%d, s%d, s%d" % (dst, dst, add_sgpr))
            self("s_addc_u32 s%d, s%d, 0" % (dst + 1, dst + 1))
    def handoff_stores(self, lines, tagname="st"):
        Ls, Ld = self.label("L_slow"), self.label("L_sd")
        self("s_cmp_eq_u32 s%d, 0" % S_MODE)
        self("s_cbranch_scc0 %s" % Ls)
        for l in lines: self(l)
        self("s_branch %s" % Ld)
        self("%s:" % Ls)
        for l in lines: self(l + " sc0 sc1")
        self("%s:" % Ld)
        for l in lines: self.vmq.append(tagname)

    def poll(self, base_pair, voff, val, vtmp, abort):
        L = self.label("L_poll")
        self("s_mov_b32 s%d, %d" % (S_PHASE_TMO, TIMEOUT))
        self("%s:" % L)
        self("global_load_dword v%d, v%d, s[%d:%d] sc1" % (vtmp, voff, base_pair, base_pair + 1))
        self("s_sub_u32 s%d, s%d, 1" % (S_PHASE_TMO, S_PHASE_TMO))
        self("s_cmp_eq_u32 s%d, 0" % S_PHASE_TMO)
        self("s_cbranch_scc1 %s" % abort)
        self("s_waitcnt vmcnt(0)")
        self("v_cmp_gt_u32 vcc, %d, v%d" % (val, vtmp))
        self("s_cbranch_vccnz %s" % L)

    def local_barrier(self, phase, vt=176):
        self.wait_all()
        self("s_barrier")
        Lskip = self.label("L_lb")
        self("s_cmp_lg_u32 s%d, 0" % S_W)
        self("s_cbranch_scc1 %s" % Lskip)
        self("v_mov_b32 v%d, %d" % (vt, phase))
        self("s_lshl_b32 s3, s%d, 2" % S_J)
        self("v_mov_b32 v%d, s3" % (vt + 1))
        self("v_and_b32 v%d, 31, v%d" % (vt + 2, V_LANE))
        self("v_lshlrev_b32 v%d, 2, v%d" % (vt + 2, vt + 2))
        Ls, Ld = self.label("L_fs"), self.label("L_fd")
        self("s_mov_b64 s[%d:%d], exec" % (S_SAVE, S_SAVE + 1))
        self("s_mov_b64 exec, 1")
        self("s_cmp_eq_u32 s%d, 0" % S_MODE)
        self("s_cbranch_scc0 %s" % Ls)
        self("global_store_dword v%d, v%d, s[%d:%d]" % (vt + 1, vt, S_LFLAG, S_LFLAG + 1))
        self("s_branch %s" % Ld)
        self("%s:" % Ls)
        self("global_store_dword v%d, v%d, s[%d:%d] sc0 sc1" % (vt + 1, vt, S_LFLAG, S_LFLAG + 1))
        self("%s:" % Ld)
        self("s_mov_b64 exec, s[%d:%d]" % (S_SAVE, S_SAVE + 1))
        self.poll(S_LFLAG, vt + 2, phase, vt + 3, "L_abort")
        self("%s:" % Lskip)
        self("s_barrier")
        self.vmq = []; self.lgq = []

    def prologue(self):
        self("s_cmp_ge_u32 s2, 256")
        self("s_cbranch_scc1 L_end")
        self("s_load_dwordx16 s[16:31], s[0:1], 0")
        self("s_load_dwordx8 s[32:39], s[0:1], 64")
        self("s_and_b32 s%d, s2, 7" % S_G)
        self("s_lshr_b32 s%d, s2, 3" % S_J)
        self("v_lshrrev_b32 v4, 6, v0")
        self("v_readfirstlane_b32 s%d, v4" % S_W)
        self("v_and_b32 v%d, 63, v0" % V_LANE)
        self("v_and_b32 v%d, 15, v0" % V_L15)
        self("v_bfe_u32 v%d, v0, 4, 2" % V_G)
        self("s_getreg_b32 s%d, hwreg(HW_REG_XCC_ID, 0, 4)" % S_XCC)
        self("s_mov_b32 s%d, 0xffff0000" % S_MASK)
        self("s_lshr_b32 s%d, s%d, 3" % (S_RB, S_J))
        self("s_and_b32 s%d, s%d, 7" % (S_CS, S_J))
        self("s_lshr_b32 s%d, s%d, 4" % (S_RT, S_J))
        self("s_and_b32 s%d, s%d, 15" % (S_CT, S_J))
        self("s_mul_i32 s3, s%d, %d" % (S_CT, 11 * 4370))
        self("s_lshr_b32 s3, s3, 16")
        self("s_mul_i32 s%d, s%d, 6" % (S_UOFF, S_CT))
        self("s_add_u32 s%d, s%d, s3" % (S_UOFF, S_UOFF))
        self("s_mov_b32 s%d, 0" % S_MODE)
        self("s_waitcnt lgkmcnt(0)")
        self("s_lshl_b32 s3, s%d, 7" % S_G)
        self.addr_pair(S_LFLAG, P_WS, WS_LFLAG, 3)
        L = self.label("L_hs")
        self("s_cmp_lg_u32 s%d, 0" % S_W)
        self("s_cbranch_scc1 %s" % L)
        self("s_mov_b64 s[%d:%d], exec" % (S_SAVE, S_SAVE + 1))
        self("s_mov_b64 exec, 1")
        self("s_lshl_b32 s3, s%d, 2" % S_J)
        self("v_mov_b32 v4, s3")
        self("v_mov_b32 v5, 0")
        self("global_store_dword v4, v5, s[%d:%d] sc0 sc1" % (S_LFLAG, S_LFLAG + 1))
        self("global_store_dword v4, v5, s[%d:%d] offset:%d sc0 sc1" % (S_LFLAG, S_LFLAG + 1, WS_GFLAG - WS_LFLAG))
        self("s_lshl_b32 s3, s%d, 5" % S_G)
        self("s_add_u32 s3, s3, s%d" % S_J)
        self("v_mov_b32 v6, s3")
        self("s_or_b32 s3, s%d, 0x10" % S_XCC)
        self("v_mov_b32 v7, s3")
        self("s_waitcnt vmcnt(0)")
        self("global_store_byte v6, v7, s[%d:%d] sc0 sc1" % (P_DBG, P_DBG + 1))
        self("s_mov_b64 exec, s[%d:%d]" % (S_SAVE, S_SAVE + 1))
        self("%s:" % L)

    def handshake_check(self, vt=176):
        L = self.label("L_hc")
        self("s_cmp_lg_u32 s%d, 0" % S_W)
        self("s_cbranch_scc1 %s" % L)
        self("v_and_b32 v%d, 7, v%d" % (vt, V_LANE))
        self("v_lshlrev_b32 v%d, 2, v%d" % (vt, vt))
        self("s_lshl_b32 s3, s%d, 5" % S_G)
        self("s_lshl_b32 s%d, s%d, 5" % (S_T0, S_CS))
        self("v_mov_b32 v%d, s3" % (vt + 1))
        self("v_mov_b32 v%d, s%d" % (vt + 2, S_T0))
        self("v_and_b32 v%d, 8, v%d" % (vt + 3, V_LANE))
        self("v_cmp_eq_u32 vcc, 0, v%d" % (vt + 3))
        self("v_cndmask_b32 v%d, v%d, v%d, vcc" % (vt + 1, vt + 2, vt + 1))
        self("v_add_u32 v%d, v%d, v%d" % (vt, vt, vt + 1))
        Lp = self.label("L_hp")
        self("s_mov_b32 s%d, %d" % (S_PHASE_TMO, TIMEOUT))
        self("%s:" % Lp)
        self("global_load_dword v%d, v%d, s[%d:%d] sc1" % (vt + 1, vt, P_DBG, P_DBG + 1))
        self("s_sub_u32 s%d, s%d, 1" % (S_PHASE_TMO, S_PHASE_TMO))
        self("s_cmp_eq_u32 s%d, 0" % S_PHASE_TMO)
        self("s_cbranch_scc1 L_abort")
        self("s_waitcnt vmcnt(0)")
        self("v_and_b32 v%d, 0x10101010, v%d" % (vt + 2, vt + 1))
        self("v_cmp_ne_u32 vcc, 0x10101010, v%d" % (vt + 2))
        self("s_cbranch_vccnz %s" % Lp)
        self("s_or_b32 s3, s%d, 0x10" % S_XCC)
        self("s_mul_i32 s3, s3, 0x01010101")
        self("v_cmp_ne_u32 vcc, s3, v%d" % (vt + 1))
        self("s_nop 1")
        self("s_and_b32 s3, vcc_lo, 0xff")
        self("s_cmp_lg_u32 s3, 0")
        self("s_cselect_b32 s%d, 1, 0" % S_MODE)
        if self.o.get("force_slow"):
            self("s_mov_b32 s%d, 1" % S_MODE)
        self("v_mov_b32 v%d, s%d" % (vt, S_MODE))
        self("v_mov_b32 v%d, %d" % (vt + 1, LDS_TOTAL - 16))
        self("ds_write_b32 v%d, v%d" % (vt + 1, vt))
        self("s_waitcnt lgkmcnt(0)")
        self("%s:" % L)
        self("s_barrier")
        self("v_mov_b32 v%d, %d" % (vt + 1, LDS_TOTAL - 16))
        self("ds_read_b32 v%d, v%d" % (vt, vt + 1))
        self("s_waitcnt lgkmcnt(0)")
        self("v_readfirstlane_b32 s%d, v%d" % (S_MODE, vt))
        self.lgq = []

    def prep_loads(self):
        KR, VR, TAP, RAW = 4, 34, 46, 66
        self.KR, self.VR, self.TAP, self.RAW = KR, VR, TAP, RAW
        c10, rp, off = 100, 101, 102
        self("v_and_b32 v%d, 7, v0" % c10)
        self("v_lshrrev_b32 v%d, 3, v0" % rp)
        self("s_lshl_b32 s3, s%d, 6" % S_J)
        self("s_sub_u32 s3, s3, 3")
        self("v_lshlrev_b32 v%d, 1, v%d" % (off, rp))
        self("v_add_u32 v%d, s3, v%d" % (off, off))
        self("s_movk_i32 s%d, 1280" % S_T0)
        self("v_mul_lo_u32 v%d, v%d, s%d" % (off, off, S_T0))
        self("s_mul_i32 s3, s%d, 160" % S_G)
        self("v_mul_u32_u24 v%d, 20, v%d" % (off + 1, c10))
        self("v_add3_u32 v%d, v%d, v%d, s3" % (off, off, off + 1))
        self.srd(SRD_A, P_K, 2621440)
        self.srd(SRD_B, P_V, 2621440)
        offs = [off]
        for r in range(1, 5):
            self("v_add_u32 v%d, %d, v%d" % (off + 1 + r, 1280 * r, off))
            offs.append(off + 1 + r)
        for r in range(5):
            self.vm("buffer_load_dwordx4 %s, v%d, s[%d:%d], 0 offen" % (vr(KR + 6 * r, 4), offs[r], SRD_A, SRD_A + 3), "k")
            self.vm("buffer_load_dword v%d, v%d, s[%d:%d], 0 offen offset:16" % (KR + 6 * r + 4, offs[r], SRD_A, SRD_A + 3), "k")
        for r in range(2):
            self.vm("buffer_load_dwordx4 %s, v%d, s[%d:%d], 0 offen" % (vr(VR + 6 * r, 4), offs[3 + r], SRD_B, SRD_B + 3), "v")
            self.vm("buffer_load_dword v%d, v%d, s[%d:%d], 0 offen offset:16" % (VR + 6 * r + 4, offs[3 + r], SRD_B, SRD_B + 3), "v")
        t = off + 7
        self("s_mul_i32 s3, s%d, 640" % S_G)
        self("v_mul_u32_u24 v%d, 80, v%d" % (t, c10))
        self("v_add_u32 v%d, s3, v%d" % (t, t))
        for i in range(5):
            self.vm("global_load_dwordx4 %s, v%d, s[%d:%d] offset:%d" % (vr(TAP + 4 * i, 4), t, P_SK, P_SK + 1, 16 * i), "tap")
        t2 = off + 8
        self("s_lshl_b32 s3, s%d, 8" % S_G)
        self("s_lshl_b32 s%d, s%d, 6" % (S_T0, S_RB))
        self("s_add_u32 s3, s3, s%d" % S_T0)
        self("s_lshl_b32 s%d, s%d, 4" % (S_T0, S_W))
        self("s_add_u32 s3, s3, s%d" % S_T0)
        self("v_add_u32 v%d, s3, v%d" % (t2, V_L15))
        self("v_mul_u32_u24 v%d, 1280, v%d" % (t2, t2))
        self("s_mul_i32 s3, s%d, 160" % S_CS)
        self("v_lshlrev_b32 v%d, 3, v%d" % (t2 + 1, V_G))
        self("v_add3_u32 v%d, v%d, v%d, s3" % (t2, t2, t2 + 1))
        for u in range(5):
            self.vm("global_load_dwordx2 %s, v%d, s[%d:%d] offset:%d" % (vr(V_X + 2 * u, 2), t2, P_Q, P_Q + 1, 32 * u), "q")
        self("s_lshl_b32 s3, s%d, 5" % S_W)
        self("s_add_u32 s3, s3, s%d" % S_J)
        self("s_cmp_lt_u32 s3, 80")
        self("s_cselect_b32 s%d, 1, 0" % S_HASCH)
        self("s_cselect_b32 s3, s3, 0")
        self("s_mul_i32 s%d, s%d, 80" % (S_CH, S_G))
        self("s_add_u32 s%d, s%d, s3" % (S_CH, S_CH))
        self("s_mul_i32 s%d, s%d, %d" % (S_SLOT, S_W, SLOT))
        self("s_cmp_lt_u32 s%d, 3" % S_W)
        self("s_cselect_b32 s%d, s%d, 0" % (S_SLOT, S_SLOT))
        self("s_lshl_b32 s3, s%d, 1" % S_CH)
        self("s_and_b32 s3, s3, 0xfffffffc")
        self("s_load_dword s%d, s[%d:%d], s3" % (S_DVAL, P_D, P_D + 1))
        self("s_lshl_b32 s3, s%d, 12" % S_CH)
        self.srd(SRD_A + 0, P_SSM, 4096, add_sgpr=3) if False else None
        self.RAWSRD = 52
        self.srd(52, P_SSM, 4096, add_sgpr=3)
        a = off + 10
        self("v_lshlrev_b32 v%d, 4, v%d" % (a, V_LANE))
        for r in range(4):
            self("v_add_u32 v%d, %d, v%d" % (a + 1, (1024 * r - 16) & 0xffffffff, a))
            self.vm("buffer_load_dwordx4 %s, v%d, s[52:55], 0 offen" % (vr(RAW + 8 * r, 4), a + 1), "raw")
            self.vm("buffer_load_dwordx4 %s, v%d, s[52:55], 0 offen offset:%d" % (vr(RAW + 8 * r + 4, 4), a, 1024 * r), "raw")

    def prep_compute(self):
        KR, VR, TAP = self.KR, self.VR, self.TAP
        Kp, Tp, Vp = 110, 120, 128
        A0, A1, P0, P1, t0, t1 = 132, 134, 136, 138, 140, 141
        O0, O1 = 142, 143
        lad = 144
        self("v_and_b32 v%d, 7, v0" % lad)
        self("v_mul_u32_u24 v%d, %d, v%d" % (lad, 10 * T_STRIDE, lad))
        self("v_lshrrev_b32 v%d, 3, v0" % (lad + 1))
        self("v_lshlrev_b32 v%d, 2, v%d" % (lad + 1, lad + 1))
        self("v_sub_u32 v%d, v%d, v%d" % (lad, lad, lad + 1))
        self("v_add_u32 v%d, %d, v%d" % (lad, LDS_T + 124, lad))
        self.vm_wait(["k", "v", "tap"])
        for i in range(5):
            for r in range(5): self.unpack(Kp + 2 * r, KR + 6 * r + i)
            for t in range(4):
                s0 = TAP + 4 * i + (t >> 1); s1 = s0 + 2
                if t & 1:
                    self("v_and_b32 v%d, s%d, v%d" % (Tp + 2 * t, S_MASK, s0))
                    self("v_and_b32 v%d, s%d, v%d" % (Tp + 2 * t + 1, S_MASK, s1))
                else:
                    self("v_lshlrev_b32 v%d, 16, v%d" % (Tp + 2 * t, s0))
                    self("v_lshlrev_b32 v%d, 16, v%d" % (Tp + 2 * t + 1, s1))
            for r in range(2): self.unpack(Vp + 2 * r, VR + 6 * r + i)
            pk = lambda op, d, a, b: self("v_pk_%s_f32 %s, %s, %s" % (op, vr(d, 2), vr(a, 2), vr(b, 2)))
            pk("mul", A0, Kp + 0, Tp + 6); pk("mul", A1, Kp + 2, Tp + 6)
            self.rnd_pair(A0, t0); self.rnd_pair(A1, t1)
            for step in range(1, 4):
                T = Tp + 2 * (3 - step)
                pk("mul", P0, Kp + 2 * step, T); pk("mul", P1, Kp + 2 * (step + 1), T)
                self.rnd_pair(P0, t0); self.rnd_pair(P1, t1)
                pk("add", A0, A0, P0); pk("add", A1, A1, P1)
                self.rnd_pair(A0, t0); self.rnd_pair(A1, t1)
            pk("mul", A0, A0, Vp + 0); pk("mul", A1, A1, Vp + 2)
            self("v_cvt_pk_bf16_f32 v%d, v%d, v%d" % (O0, A1, A0))
            self("v_cvt_pk_bf16_f32 v%d, v%d, v%d" % (O1, A1 + 1, A0 + 1))
            self.lg("ds_write_b32 v%d, v%d offset:%d" % (lad, O0, (2 * i) * T_STRIDE), "tw")
            self.lg("ds_write_b32 v%d, v%d offset:%d" % (lad, O1, (2 * i + 1) * T_STRIDE), "tw")

    def tile_stats(self, xf, stat_off, tmp):
        s, t = tmp, tmp + 2
        d = tmp + 4
        pk = lambda op, dd, a, b: self("v_pk_%s_f32 %s, %s, %s" % (op, vr(dd, 2), vr(a, 2), vr(b, 2)))
        pk("add", s, xf, xf + 2)
        for i in range(2, 10): pk("add", s, s, xf + 2 * i)
        self("v_add_f32 v%d, v%d, v%d" % (s, s, s + 1))
        self.xg_sum(s, t)
        self("v_mul_f32 v%d, %r, v%d" % (s, 1.0 / 80.0, s)) if False else self("v_mul_f32 v%d, 0x3c4ccccd, v%d" % (s, s))
        self("v_mov_b32 v%d, v%d" % (s + 1, s))
        for i in range(10):
            self("v_pk_add_f32 %s, %s, %s neg_lo:[0,1] neg_hi:[0,1]" % (vr(d + 2 * i, 2), vr(xf + 2 * i, 2), vr(s, 2)))
        m2 = tmp + 24
        pk("mul", m2, d, d)
        for i in range(1, 10):
            self("v_pk_fma_f32 %s, %s, %s, %s" % (vr(m2, 2), vr(d + 2 * i, 2), vr(d + 2 * i, 2), vr(m2, 2)))
        self("v_add_f32 v%d, v%d, v%d" % (s + 1, m2, m2 + 1))
        self.xg_sum(s + 1, t)
        a = t
        self("s_lshl_b32 s3, s%d, 8" % S_G)
        self("s_lshl_b32 s%d, s%d, 6" % (S_T0, S_RB))
        self("s_add_u32 s3, s3, s%d" % S_T0)
        self("s_lshl_b32 s%d, s%d, 4" % (S_T0, S_W))
        self("s_add_u32 s3, s3, s%d" % S_T0)
        self("s_lshl_b32 s3, s3, 6")
        self("s_lshl_b32 s%d, s%d, 3" % (S_T0, S_CS))
        self("s_add_u32 s3, s3, s%d" % S_T0)
        self("s_add_u32 s3, s3, %d" % stat_off)
        self("v_lshlrev_b32 v%d, 6, v%d" % (a, V_L15))
        self("v_add_u32 v%d, s3, v%d" % (a, a))
        self("s_mov_b64 s[%d:%d], exec" % (S_SAVE, S_SAVE + 1))
        self("s_mov_b64 exec, 0xffff")
        self.handoff_stores(["global_store_dwordx2 v%d, %s, s[%d:%d]" % (a, vr(s, 2), P_WS, P_WS + 1)], "stat")
        self("s_mov_b64 exec, s[%d:%d]" % (S_SAVE, S_SAVE + 1))

    def row_stats(self, stat_off, rowbase_sgpr_expr, tmp, out_m, out_rs):
        a = tmp + 6
        self("s_lshl_b32 s3, s3, 6")
        self("s_add_u32 s3, s3, %d" % stat_off)
        self("v_lshlrev_b32 v%d, 6, v%d" % (a, V_L15))
        self("v_lshl_add_u32 v%d, v%d, 4, v%d" % (a, V_G, a))
        self("v_add_u32 v%d, s3, v%d" % (a, a))
        tag = "rs%d" % tmp
        self.vm("global_load_dwordx4 %s, v%d, s[%d:%d] sc1" % (vr(tmp, 4), a, P_WS, P_WS + 1), tag)
        return tag
    def row_stats_finish(self, tag, tmp, out_m, out_rs):
        self.vm_wait(tag)
        m0, q0, m1, q1 = tmp, tmp + 1, tmp + 2, tmp + 3
        s, t = tmp + 4, tmp + 5
        self("v_add_f32 v%d, v%d, v%d" % (s, m0, m1))
        self.xg_sum(s, t)
        self("v_mul_f32 v%d, 0x3e000000, v%d" % (s, s))
        self("v_sub_f32 v%d, v%d, v%d" % (m0, m0, s))
        self("v_sub_f32 v%d, v%d, v%d" % (m1, m1, s))
        self("v_mul_f32 v%d, v%d, v%d" % (m0, m0, m0))
        self("v_fmac_f32 v%d, v%d, v%d" % (m0, m1, m1))
        self("v_add_f32 v%d, v%d, v%d" % (q0, q0, q1))
        self("v_mov_b32 v%d, 0x42a00000" % t)
        self("v_fmac_f32 v%d, v%d, v%d" % (q0, m0, t))
        self.xg_sum(q0, t)
        self("v_mul_f32 v%d, 0x3acccccd, v%d" % (q0, q0))
        self.rnd1(q0, t)
        self("v_add_f32 v%d, 0x3727c5ac, v%d" % (q0, q0))
        self.rnd1(q0, t)
        self("v_sqrt_f32 v%d, v%d" % (q0, q0))
        self("s_nop 0")
        self.rnd1(q0, t)
        self("v_rcp_f32 v%d, v%d" % (out_rs, q0))
        self.rnd1(s, t)
        self("v_mov_b32 v%d, v%d" % (out_m, s))

    def prep_store_ur(self):
        self.lg_wait_all()
        self("s_barrier")
        a, b = 100, 101
        self("v_lshrrev_b32 v%d, 3, v0" % a)
        self("v_and_b32 v%d, 7, v0" % b)
        self("v_lshlrev_b32 v%d, 4, v%d" % (b, b))
        self("v_mul_u32_u24 v%d, %d, v%d" % (102, T_STRIDE, a))
        self("v_add3_u32 v%d, v%d, v%d, %d" % (102, 102, b, 0))
        self("v_add_u32 v%d, %d, v%d" % (102, LDS_T, 102))
        self("s_mul_i32 s3, s%d, %d" % (S_G, 80 * 4096))
        self("s_sub_u32 s%d, 31, s%d" % (S_T0, S_J))
        self("s_lshl_b32 s%d, s%d, 7" % (S_T0, S_T0))
        self("s_add_u32 s3, s3, s%d" % S_T0)
        self("s_add_u32 s3, s3, %d" % WS_UR)
        self("v_lshlrev_b32 v%d, 12, v%d" % (103, a))
        self("v_add3_u32 v%d, v%d, v%d, s3" % (103, 103, b))
        for r in range(2):
            self.lg("ds_read_b128 %s, v102 offset:%d" % (vr(104 + 4 * r, 4), 32 * T_STRIDE * r), "tr")
        L = self.label("L_ur")
        self("s_cmp_ge_u32 s%d, 2" % S_W)
        self("s_cbranch_scc1 %s" % L)
        self("ds_read_b128 v[112:115], v102 offset:%d" % (32 * T_STRIDE * 2))
        self("%s:" % L)
        self.lg_wait_all()
        self("v_add_u32 v116, %d, v103" % (32 * 4096))
        self("v_add_u32 v117, %d, v103" % (64 * 4096))
        self.handoff_stores(["global_store_dwordx4 v103, v[104:107], s[%d:%d]" % (P_WS, P_WS + 1),
                             "global_store_dwordx4 v116, v[108:111], s[%d:%d]" % (P_WS, P_WS + 1)], "ur")
        L = self.label("L_ur2")
        self("s_cmp_ge_u32 s%d, 2" % S_W)
        self("s_cbranch_scc1 %s" % L)
        q = list(self.vmq)
        self.handoff_stores(["global_store_dwordx4 v117, v[112:115], s[%d:%d]" % (P_WS, P_WS + 1)], "ur")
        self.vmq = q
        self("%s:" % L)

    def build_kcopies(self):
        RAW = self.RAW
        A, B, C = 110, 116, 122
        ad, z = 128, 130
        L = self.label("L_kc")
        self.vm_wait("raw")
        self("s_cmp_eq_u32 s%d, 0" % S_HASCH)
        self("s_cbranch_scc1 %s" % L)
        self("v_lshlrev_b32 v%d, 4, v%d" % (ad, V_LANE))
        self("s_add_u32 s3, s%d, 16" % S_SLOT)
        self("v_add_u32 v%d, s3, v%d" % (ad, ad))
        for r in range(4):
            R = RAW + 8 * r
            for i in range(6):
                self("v_alignbit_b32 v%d, v%d, v%d, 16" % (A + i, R + i + 1, R + i))
            for i in range(6):
                self("v_alignbit_b32 v%d, v%d, v%d, 16" % (B + i, R + i + 2, R + i + 1))
            for i in range(6):
                self("v_mov_b32 v%d, v%d" % (C + i, R + i + 1))
            src = {0: A, 1: C, 2: B, 3: R + 2, 4: A + 2, 5: C + 2, 6: B + 2, 7: R + 4}
            for c in range(8):
                off = c * KC_STRIDE + 1024 * r
                self("ds_write_b128 v%d, %s offset:%d" % (ad, vr(src[c], 4), off))
            self("s_waitcnt lgkmcnt(0)")
        for i in range(4): self("v_mov_b32 v%d, 0" % (z + i))
        self("v_mul_u32_u24 v%d, %d, v%d" % (ad, KC_STRIDE, V_LANE))
        self("v_add_u32 v%d, s%d, v%d" % (ad, S_SLOT, ad))
        self("s_mov_b64 s[%d:%d], exec" % (S_SAVE, S_SAVE + 1))
        self("s_mov_b64 exec, 0xff")
        self("ds_write_b128 v%d, %s" % (ad, vr(z, 4)))
        self("s_mov_b64 exec, 0x3fffffff")
        self("v_lshlrev_b32 v%d, 4, v%d" % (ad, V_LANE))
        self("s_add_u32 s3, s%d, %d" % (S_SLOT, U_OFF + 4096))
        self("v_add_u32 v%d, s3, v%d" % (ad, ad))
        self("ds_write_b128 v%d, %s" % (ad, vr(z, 4)))
        self("s_mov_b64 exec, s[%d:%d]" % (S_SAVE, S_SAVE + 1))
        self("s_waitcnt lgkmcnt(0)")
        self("%s:" % L)
        self.lgq = []

    def conv(self):
        Lskip = self.label("L_conv_skip")
        self("s_cmp_eq_u32 s%d, 0" % S_HASCH)
        self("s_cbranch_scc1 %s" % Lskip)
        self("s_and_b32 s3, s%d, 1" % S_CH)
        self("s_lshl_b32 s%d, s%d, 16" % (S_T0, S_DVAL))
        self("s_and_b32 s%d, s%d, 0xffff0000" % (S_DVAL, S_DVAL))
        self("s_cmp_eq_u32 s3, 0")
        self("s_cselect_b32 s%d, s%d, s%d" % (S_DVAL, S_T0, S_DVAL))
        self("s_lshl_b32 s3, s%d, 12" % S_CH)
        self.addr_pair(S_TMPP, P_WS, WS_UR, 3)
        a = 164
        self("v_lshlrev_b32 v%d, 4, v%d" % (a, V_LANE))
        for r in range(4):
            self("s_add_u32 s3, s%d, %d" % (S_SLOT, U_OFF + 1024 * r))
            self("s_mov_b32 m0, s3")
            self("v_add_u32 v%d, %d, v%d" % (a + 1, 1024 * r, a))
            self.vm("global_load_lds_dwordx4 v%d, s[%d:%d] sc1" % (a + 1, S_TMPP, S_TMPP + 1), "u")
        vA, vB = 166, 167
        self("v_and_b32 v%d, 7, v%d" % (vA, V_L15))
        self("v_mul_u32_u24 v%d, %d, v%d" % (vA, KC_STRIDE, vA))
        self("v_lshrrev_b32 v%d, 3, v%d" % (168, V_L15))
        self("v_add_u32 v%d, v%d, v%d" % (168, 168, V_G))
        self("v_lshl_add_u32 v%d, v%d, 4, v%d" % (vA, 168, vA))
        self("v_add_u32 v%d, s%d, v%d" % (vA, S_SLOT, vA))
        self("v_lshlrev_b32 v%d, 5, v%d" % (vB, V_L15))
        self("v_lshlrev_b32 v%d, 4, v%d" % (168, V_G))
        self("v_sub_u32 v%d, v%d, v%d" % (vB, 168, vB))
        self("s_add_u32 s3, s%d, %d" % (S_SLOT, U_OFF + 4064 - 3584))
        self("v_add_u32 v%d, s3, v%d" % (vB, vB))
        ACC = 4
        FA = [36, 100]
        FB = [68, 132]
        for b in range(8):
            for r in range(4): self("v_mov_b32 v%d, 0" % (ACC + 4 * b + r))
        self.vm_wait("u")
        def loads(tau, buf):
            l = []
            for i in range(8):
                l.append(("ds_read_b128 %s, v%d offset:%d" % (vr(FA[buf] + 4 * i, 4), vA, 64 * tau + 512 * i), "cA%d_%d" % (tau, i)))
                l.append(("ds_read_b128 %s, v%d offset:%d" % (vr(FB[buf] + 4 * i, 4), vB, 3584 - 512 * i + 64 * tau), "cB%d_%d" % (tau, i)))
            return l
        for t, tag in loads(0, 0): self.lg(t, tag)
        for tau in range(8):
            buf = tau & 1
            nxt = loads(tau + 1, buf ^ 1) if tau < 7 else []
            self.lg_wait_all()
            pairs = [(i, m) for s_ in range(8) for i in range(s_ + 1) for m in [s_ - i]]
            pairs = sorted(pairs, key=lambda p: (p[0], p[1]))
            k = 0
            for (i, m) in pairs:
                be = i + m
                self("v_mfma_f32_16x16x32_bf16 %s, %s, %s, %s" % (vr(ACC + 4 * be, 4), vr(FA[buf] + 4 * i, 4), vr(FB[buf] + 4 * m, 4), vr(ACC + 4 * be, 4)))
                if k < len(nxt) and True:
                    self.lg(*nxt[k])
                k += 1
        ua = 168
        self("v_lshlrev_b32 v%d, 5, v%d" % (ua, V_L15))
        self("v_lshl_add_u32 v%d, v%d, 3, v%d" % (ua, V_G, ua))
        self("s_add_u32 s3, s%d, %d" % (S_SLOT, U_OFF + 4088 - 3584))
        self("v_sub_u32 v%d, s3, v%d" % (ua, ua))
        UQ = 36
        for b in range(8):
            self.lg("ds_read_b64 %s, v%d offset:%d" % (vr(UQ + 2 * b, 2), ua, 3584 - 512 * b), "uq")
        sa = 169
        self("s_lshl_b32 s3, s%d, 12" % S_CH)
        self("s_add_u32 s3, s3, %d" % WS_YT)
        self("v_lshlrev_b32 v%d, 5, v%d" % (sa, V_L15))
        self("v_lshl_add_u32 v%d, v%d, 3, v%d" % (sa, V_G, sa))
        self("v_add_u32 v%d, s3, v%d" % (sa, sa))
        self("v_mov_b32 v170, s%d" % S_DVAL)
        self("v_mov_b32 v171, s%d" % S_DVAL)
        self.lg_wait_all()
        U, t, O = 56, 60, 64
        for b in range(8):
            d0, d1 = UQ + 2 * b, UQ + 2 * b + 1
            A = ACC + 4 * b
            self("v_and_b32 v%d, s%d, v%d" % (U + 0, S_MASK, d1))
            self("v_lshlrev_b32 v%d, 16, v%d" % (U + 1, d1))
            self("v_and_b32 v%d, s%d, v%d" % (U + 2, S_MASK, d0))
            self("v_lshlrev_b32 v%d, 16, v%d" % (U + 3, d0))
            self("v_pk_mul_f32 %s, %s, v[170:171]" % (vr(U, 2), vr(U, 2)))
            self("v_pk_mul_f32 %s, %s, v[170:171]" % (vr(U + 2, 2), vr(U + 2, 2)))
            self.rnd_pair(U, t); self.rnd_pair(U + 2, t + 1)
            self.rnd_pair(A, t); self.rnd_pair(A + 2, t + 1)
            self("v_pk_add_f32 %s, %s, %s" % (vr(A, 2), vr(A, 2), vr(U, 2)))
            self("v_pk_add_f32 %s, %s, %s" % (vr(A + 2, 2), vr(A + 2, 2), vr(U + 2, 2)))
            o = O + 2 * b
            self("v_cvt_pk_bf16_f32 v%d, v%d, v%d" % (o, A, A + 1))
            self("v_cvt_pk_bf16_f32 v%d, v%d, v%d" % (o + 1, A + 2, A + 3))
            self("global_store_dwordx2 v%d, %s, s[%d:%d] offset:%d sc0 sc1" % (sa, vr(o, 2), P_WS, P_WS + 1, 512 * b))
        self("%s:" % Lskip)
        self.vmq = []; self.lgq = []

    def global_barrier(self, vt=176):
        self.wait_all()
        self("s_barrier")
        Lskip = self.label("L_gb")
        self("s_cmp_lg_u32 s%d, 0" % S_W)
        self("s_cbranch_scc1 %s" % Lskip)
        self("v_mov_b32 v%d, 1" % vt)
        self("s_lshl_b32 s3, s%d, 2" % S_J)
        self("s_add_u32 s3, s3, %d" % (WS_GFLAG - WS_LFLAG))
        self("v_mov_b32 v%d, s3" % (vt + 1))
        self("s_mov_b64 s[%d:%d], exec" % (S_SAVE, S_SAVE + 1))
        self("s_mov_b64 exec, 1")
        self("global_store_dword v%d, v%d, s[%d:%d] sc0 sc1" % (vt + 1, vt, S_LFLAG, S_LFLAG + 1))
        self("s_mov_b64 exec, s[%d:%d]" % (S_SAVE, S_SAVE + 1))
        self("s_lshl_b32 s3, s%d, 7" % S_CS)
        self.addr_pair(S_TMPP, P_WS, WS_GFLAG, 3)
        self("v_and_b32 v%d, 31, v%d" % (vt + 2, V_LANE))
        self("v_lshlrev_b32 v%d, 2, v%d" % (vt + 2, vt + 2))
        self.poll(S_TMPP, vt + 2, 1, vt + 3, "L_abort")
        self("%s:" % Lskip)
        self("s_barrier")
        self.vmq = []; self.lgq = []

    def w1_dma(self):
        self.srd(SRD_A, P_W1, 640 * 3456)
        c, row, cc, off = 164, 165, 166, 167
        self("s_lshl_b32 s3, s%d, 6" % S_W)
        self("v_add_u32 v%d, s3, v%d" % (c, V_LANE))
        self("s_mov_b32 s%d, %d" % (S_T0, (1 << 32) // 14 + 1))
        self("s_lshl_b32 s%d, s%d, 5" % (S_T0 + 1, S_UOFF))
        self("s_movk_i32 s%d, 3456" % (S_T0 + 2))
        self("s_lshl_b32 s%d, s%d, 10" % (S_T0 + 3, S_W))
        for it in range(35):
            self("v_mul_hi_u32 v%d, v%d, s%d" % (row, c, S_T0))
            self("v_mul_u32_u24 v%d, 14, v%d" % (cc, row))
            self("v_sub_u32 v%d, v%d, v%d" % (cc, c, cc))
            self("v_mul_lo_u32 v%d, v%d, s%d" % (off, row, S_T0 + 2))
            self("v_lshl_add_u32 v%d, v%d, 4, v%d" % (off, cc, off))
            self("s_add_u32 s3, s%d, %d" % (S_T0 + 3, LDS_W1 + 4096 * it))
            self("s_mov_b32 m0, s3")
            self("v_add_u32 v%d, 256, v%d" % (c, c))
            self.vm("buffer_load_dwordx4 v%d, s[%d:%d], s%d offen lds" % (off, SRD_A, SRD_A + 3, S_T0 + 1), "w1")

    def y_tile_load(self):
        self("s_mul_i32 s3, s%d, %d" % (S_CS, 80 * 4096))
        self("s_lshl_b32 s%d, s%d, 9" % (S_T0, S_G))
        self("s_add_u32 s3, s3, s%d" % S_T0)
        self("s_lshl_b32 s%d, s%d, 7" % (S_T0, S_RB))
        self("s_add_u32 s3, s3, s%d" % S_T0)
        self.addr_pair(S_TMPP, P_WS, WS_YT, 3)
        a, b = 164, 165
        self("v_lshrrev_b32 v%d, 3, v%d" % (a, V_LANE))
        self("v_lshlrev_b32 v%d, 12, v%d" % (a, a))
        self("v_and_b32 v%d, 7, v%d" % (b, V_LANE))
        self("v_lshl_add_u32 v%d, v%d, 4, v%d" % (a, b, a))
        self("s_lshl_b32 s3, s%d, 15" % S_W)
        self("v_add_u32 v%d, s3, v%d" % (a, a))
        self("s_lshl_b32 s%d, s%d, 10" % (S_T0, S_W))
        for k in range(3):
            L = None
            if k == 2:
                L = self.label("L_y")
                self("s_cmp_ge_u32 s%d, 2" % S_W)
                self("s_cbranch_scc1 %s" % L)
            self("s_add_u32 s3, s%d, %d" % (S_T0, LDS_SCR + 4096 * k))
            self("s_mov_b32 m0, s3")
            self("v_add_u32 v%d, %d, v%d" % (b, 4 * 8 * 4096 * k, a))
            self("global_load_lds_dwordx4 v%d, s[%d:%d] sc1" % (b, S_TMPP, S_TMPP + 1))
            if L: self("%s:" % L)
        self.vm_wait_all()
        self("s_barrier")
        self("v_bfe_u32 v%d, v%d, 2, 2" % (a, V_LANE))
        self("v_lshl_add_u32 v%d, v%d, 2, v%d" % (a, V_G, a))
        self("v_lshlrev_b32 v%d, 7, v%d" % (a, a))
        self("v_and_b32 v%d, 3, v%d" % (b, V_LANE))
        self("v_lshl_add_u32 v%d, v%d, 3, v%d" % (a, b, a))
        self("s_lshl_b32 s3, s%d, 5" % S_W)
        self("s_add_u32 s3, s3, %d" % LDS_SCR)
        self("v_add_u32 v%d, s3, v%d" % (a, a))
        for u in range(5):
            self.lg("ds_read_b64_tr_b16 %s, v%d offset:%d" % (vr(V_Y + 2 * u, 2), a, 16 * 128 * u), "ytr")

    def unpack_tile(self, dst, src):
        for i in range(10): self.unpack(dst + 2 * i, src + i)

    def mixer_update(self, mimic, m, rs, xf, tmp):
        yf = tmp
        t = tmp + 20
        d = tmp + 22
        self.unpack_tile(yf, V_Y)
        for i in range(10):
            X, Y = xf + 2 * i, yf + 2 * i
            self("v_pk_add_f32 %s, %s, %s op_sel_hi:[1,0] neg_lo:[0,1] neg_hi:[0,1]" % (vr(d, 2), vr(X, 2), vr(m, 2)))
            if mimic: self.rnd_pair(d, t)
            self("v_pk_mul_f32 %s, %s, %s op_sel_hi:[1,0]" % (vr(d, 2), vr(d, 2), vr(rs, 2)))
            if mimic: self.rnd_pair(d, t)
            self("v_pk_mul_f32 %s, %s, %s" % (vr(d, 2), vr(d, 2), vr(Y, 2)))
            if mimic: self.rnd_pair(d, t)
            self("v_pk_add_f32 %s, %s, %s" % (vr(X, 2), vr(X, 2), vr(d, 2)))
            self("v_cvt_pk_bf16_f32 v%d, v%d, v%d" % (V_X + i, X, X + 1))
            self.unpack(X, V_X + i)

    def store_xf(self, ws_off):
        self("s_lshl_b32 s3, s%d, 4" % S_G)
        self("s_lshl_b32 s%d, s%d, 2" % (S_T0, S_RB))
        self("s_add_u32 s3, s3, s%d" % S_T0)
        self("s_add_u32 s3, s3, s%d" % S_W)
        self("s_mul_i32 s3, s3, %d" % (20 * 1024))
        self("s_add_u32 s3, s3, %d" % ws_off)
        a = 164
        self("v_lshlrev_b32 v%d, 4, v%d" % (a, V_LANE))
        self("v_add_u32 v%d, s3, v%d" % (a, a))
        self("s_mul_i32 s%d, s%d, 5" % (S_T0, S_CS))
        lines = []
        for u in range(5):
            self("s_add_u32 s%d, s%d, %d" % (S_T0 + 1, S_T0, u))
            self("s_lshr_b32 s%d, s%d, 1" % (S_T0 + 2, S_T0 + 1))
            self("s_lshl_b32 s%d, s%d, 10" % (S_T0 + 2, S_T0 + 2))
            self("s_and_b32 s%d, s%d, 1" % (S_T0 + 1, S_T0 + 1))
            self("s_lshl_b32 s%d, s%d, 3" % (S_T0 + 1, S_T0 + 1))
            self("s_add_u32 s%d, s%d, s%d" % (S_T0 + 1, S_T0 + 1, S_T0 + 2))
            self("v_add_u32 v%d, s%d, v%d" % (a + 1 + u, S_T0 + 1, a))
            lines.append("global_store_dwordx2 v%d, %s, s[%d:%d]" % (a + 1 + u, vr(V_X + 2 * u, 2), P_WS, P_WS + 1))
        self.handoff_stores(lines, "xf")

    def own_rowbase(self):
        self("s_lshl_b32 s3, s%d, 8" % S_G)
        self("s_lshl_b32 s%d, s%d, 6" % (S_T0, S_RB))
        self("s_add_u32 s3, s3, s%d" % S_T0)
        self("s_lshl_b32 s%d, s%d, 4" % (S_T0, S_W))
        self("s_add_u32 s3, s3, s%d" % S_T0)

    def rw1(self):
        XF, M, RS, TMP = 4, 24, 26, 28
        self.own_rowbase()
        tag = self.row_stats(WS_STAT + 0 * STAT_SZ, None, 60, M, RS)
        self.y_tile_load()
        self.row_stats_finish(tag, 60, M, RS) if False else None
        self.vmq = [tag]
        self.row_stats_finish(tag, 60, M, RS)
        self.unpack_tile(XF, V_X)
        self.lg_wait_all()
        self.mixer_update(self.o.get("mimic_a1", True), M, RS, XF, TMP)
        self.tile_stats(XF, WS_STAT + 1 * STAT_SZ, TMP)
        self.store_xf(WS_XF1)

    def colsum(self):
        a, ones, acc, fr = 164, 100, 104, 112
        for i in range(4): self("v_mov_b32 v%d, 0x3f803f80" % (ones + i))
        for i in range(8): self("v_mov_b32 v%d, 0" % (acc + i))
        self.w1_lane_addr(a)
        self("s_lshl_b32 s3, s%d, 6" % S_W)
        self("v_add_u32 v%d, s3, v%d" % (a, a))
        for t in range(20):
            for i in range(2):
                for h in range(2):
                    self.lg("ds_read_b64_tr_b16 %s, v%d offset:%d" % (vr(fr + 4 * i + 2 * h, 2), a, h * 16 * W1_STRIDE + 32 * i), "csf")
            self("v_add_u32 v%d, %d, v%d" % (a, 32 * W1_STRIDE, a))
            self.lg_wait_all()
            for i in range(2):
                self("v_mfma_f32_16x16x32_bf16 %s, %s, %s, %s" % (vr(acc + 4 * i, 4), vr(fr + 4 * i, 4), vr(ones, 4), vr(acc + 4 * i, 4)))
        b = 120
        self("v_lshlrev_b32 v%d, 4, v%d" % (b, V_G))
        self("s_lshl_b32 s3, s%d, 7" % S_W)
        self("s_add_u32 s3, s3, %d" % (LDS_SCR + 16384))
        self("v_add_u32 v%d, s3, v%d" % (b, b))
        self("v_cmp_eq_u32 vcc, 0, v%d" % V_L15)
        self("s_and_saveexec_b64 s[%d:%d], vcc" % (S_SAVE, S_SAVE + 1))
        self("ds_write_b128 v%d, %s" % (b, vr(acc, 4)))
        self("ds_write_b128 v%d, %s offset:64" % (b, vr(acc + 4, 4)))
        self("s_mov_b64 exec, s[%d:%d]" % (S_SAVE, S_SAVE + 1))
        self.lg_wait_all()
        self("s_barrier")
        self("v_lshlrev_b32 v%d, 4, v%d" % (b, V_G))
        self("v_add_u32 v%d, %d, v%d" % (b, LDS_SCR + 16384, b))
        for u in range(7):
            self.lg("ds_read_b128 %s, v%d offset:%d" % (vr(V_CS + 4 * u, 4), b, 64 * u), "cs")
        self.lg_wait_all()

    def w1_lane_addr(self, a):
        self("v_bfe_u32 v%d, v%d, 2, 2" % (a, V_LANE))
        self("v_lshl_add_u32 v%d, v%d, 2, v%d" % (a, V_G, a))
        self("v_mul_u32_u24 v%d, %d, v%d" % (a, W1_STRIDE, a))
        self("v_and_b32 v%d, 3, v%d" % (a + 1, V_LANE))
        self("v_lshl_add_u32 v%d, v%d, 3, v%d" % (a, a + 1, a))
        if LDS_W1: self("v_add_u32 v%d, %d, v%d" % (a, LDS_W1, a))

    def g1(self, xf_off, hf_off, stat_off):
        ACC = 4
        AF = [60, 88]
        XR = 116
        DEPTH = 7
        la, xa = 172, 183
        ST = 174
        self("s_lshl_b32 s3, s%d, 4" % S_G)
        self("s_lshl_b32 s%d, s%d, 3" % (S_T0, S_RT))
        self("s_add_u32 s3, s3, s%d" % S_T0)
        self("s_lshl_b32 s%d, s%d, 1" % (S_T0, S_W))
        self("s_add_u32 s3, s3, s%d" % S_T0)
        self("s_mov_b32 s%d, s3" % (S_T0 + 4))
        self("s_mul_i32 s3, s3, %d" % (20 * 1024))
        self.addr_pair(S_XFB, P_WS, xf_off, 3)
        self.addr_pair(S_TMPQ, S_XFB, 20 * 1024)
        self("v_lshlrev_b32 v%d, 4, v%d" % (xa, V_LANE))
        def xload(t):
            for rho in range(2):
                base = S_XFB if rho == 0 else S_TMPQ
                d = XR + ((t % DEPTH) * 2 + rho) * 4
                self.vm("global_load_dwordx4 %s, v%d, s[%d:%d] offset:%d sc1" % (vr(d, 4), xa, base, base + 1, (t % 4) * 1024), "x%d" % t)
            if t % 4 == 3: self("v_add_u32 v%d, 4096, v%d" % (xa, xa))
        tags = []
        for rho in range(2):
            self("s_add_u32 s3, s%d, %d" % (S_T0 + 4, rho))
            self("s_lshl_b32 s3, s3, 4")
            self("s_lshl_b32 s3, s3, 6")
            self("s_add_u32 s3, s3, %d" % stat_off)
            self("v_lshlrev_b32 v%d, 6, v%d" % (182, V_L15))
            self("v_lshl_add_u32 v%d, v%d, 4, v%d" % (182, V_G, 182))
            self("v_add_u32 v%d, s3, v%d" % (182, 182))
            self.vm("global_load_dwordx4 %s, v182, s[%d:%d] sc1" % (vr(ST + 4 * rho, 4), P_WS, P_WS + 1), "st%d" % rho)
        for t in range(DEPTH): xload(t)
        self.w1_lane_addr(la)
        def aloads(t, buf):
            l = []
            for i in range(7):
                for h in range(2):
                    l.append(("ds_read_b64_tr_b16 %s, v%d offset:%d" % (vr(AF[buf] + 4 * i + 2 * h, 2), la, h * 16 * W1_STRIDE + 32 * i), "a%d" % t))
            return l
        for x in aloads(0, 0): self.lg(*x)
        self("v_add_u32 v%d, %d, v%d" % (la, 32 * W1_STRIDE, la))
        for i in range(56): self("v_mov_b32 v%d, 0" % (ACC + i))
        for t in range(20):
            buf = t & 1
            nxt = aloads(t + 1, buf ^ 1) if t < 19 else []
            self.lg_wait_all()
            self.vm_wait("x%d" % t)
            k = 0
            for i in range(7):
                for rho in range(2):
                    acc = ACC + (rho * 7 + i) * 4
                    self("v_mfma_f32_16x16x32_bf16 %s, %s, %s, %s" % (vr(acc, 4), vr(AF[buf] + 4 * i, 4), vr(XR + ((t % DEPTH) * 2 + rho) * 4, 4), vr(acc, 4)))
                    n_here = 2 if k < 4 else 1
                    for _ in range(n_here):
                        if nxt: self.lg(*nxt.pop(0))
                    k += 1
            if t < 19: self("v_add_u32 v%d, %d, v%d" % (la, 32 * W1_STRIDE, la))
            if t + DEPTH < 20: xload(t + DEPTH)
        M = [60, 64]; RS = [62, 66]
        for rho in range(2):
            for i in range(4): self("v_mov_b32 v%d, v%d" % (72 + i, ST + 4 * rho + i)) if False else None
        self.vm_wait(["st0", "st1"])
        for rho in range(2):
            for i in range(4): self("v_mov_b32 v%d, v%d" % (72 + i, ST + 4 * rho + i))
            self.vmq.append("dummy")
            self.row_stats_finish("none", 72, M[rho], RS[rho])
            self.vmq.pop()
        ha = 80
        self("s_mul_i32 s3, s%d, %d" % (S_T0 + 4, 54 * 1024))
        self("s_add_u32 s3, s3, %d" % hf_off)
        self("v_lshlrev_b32 v%d, 4, v%d" % (ha, V_LANE))
        self("v_add_u32 v%d, s3, v%d" % (ha, ha))
        lines = []
        O = 100
        AD = 130
        for i in range(7):
            self("s_add_u32 s%d, s%d, %d" % (S_T0 + 1, S_UOFF, i))
            self("s_lshr_b32 s%d, s%d, 1" % (S_T0 + 2, S_T0 + 1))
            self("s_lshl_b32 s%d, s%d, 10" % (S_T0 + 2, S_T0 + 2))
            self("s_and_b32 s%d, s%d, 1" % (S_T0 + 1, S_T0 + 1))
            self("s_lshl_b32 s%d, s%d, 3" % (S_T0 + 1, S_T0 + 1))
            self("s_add_u32 s%d, s%d, s%d" % (S_T0 + 1, S_T0 + 1, S_T0 + 2))
            self("v_add_u32 v%d, s%d, v%d" % (AD + i, S_T0 + 1, ha))
            self("v_add_u32 v%d, %d, v%d" % (AD + 7 + i, 54 * 1024, AD + i))
        for rho in range(2):
            for i in range(7):
                acc = ACC + (rho * 7 + i) * 4
                for p in range(2):
                    A = acc + 2 * p; C = V_CS + 4 * i + 2 * p
                    self("v_pk_fma_f32 %s, %s, %s, %s op_sel_hi:[1,0,1] neg_lo:[0,1,0] neg_hi:[0,1,0]" % (vr(A, 2), vr(C, 2), vr(M[rho], 2), vr(A, 2)))
                    self("v_pk_mul_f32 %s, %s, %s op_sel_hi:[1,0]" % (vr(A, 2), vr(A, 2), vr(RS[rho], 2)))
                    o = O + (rho * 7 + i) * 2 + p
                    self("v_cvt_pk_bf16_f32 v%d, v%d, v%d" % (o, A, A + 1))
                    self("v_pk_max_i16 v%d, v%d, 0" % (o, o))
                lines.append("global_store_dwordx2 v%d, %s, s[%d:%d]" % (AD + rho * 7 + i, vr(O + (rho * 7 + i) * 2, 2), P_WS, P_WS + 1))
        self.handoff_stores(lines, "h")

    def w2_setup(self):
        self.srd(56, P_W2, 1728 * 1280)
        c, row = 170, 171
        self.W2OFF = 164
        self("s_mov_b32 s%d, %d" % (S_T0, (1 << 32) // 10 + 1))
        self("s_mul_i32 s3, s%d, 160" % S_CS)
        for i in range(5):
            self("v_add_u32 v%d, %d, v%d" % (c, 64 * i, V_LANE))
            self("v_mul_hi_u32 v%d, v%d, s%d" % (row, c, S_T0))
            self("v_mul_u32_u24 v%d, 10, v%d" % (self.W2OFF + i, row))
            self("v_sub_u32 v%d, v%d, v%d" % (c, c, self.W2OFF + i))
            self("v_lshlrev_b32 v%d, 4, v%d" % (c, c))
            self("v_mul_u32_u24 v%d, 1280, v%d" % (row, row))
            self("v_add3_u32 v%d, v%d, v%d, s3" % (self.W2OFF + i, row, c))
        self.W2LA = 169
        self("v_bfe_u32 v%d, v%d, 2, 2" % (c, V_LANE))
        self("v_lshl_add_u32 v%d, v%d, 2, v%d" % (c, V_G, c))
        self("v_mul_u32_u24 v%d, 160, v%d" % (c, c))
        self("v_and_b32 v%d, 3, v%d" % (row, V_LANE))
        self("v_lshl_add_u32 v%d, v%d, 3, v%d" % (self.W2LA, row, c))
        self("s_mul_i32 s3, s%d, 5120" % S_W)
        self("s_add_u32 s60, s3, %d" % LDS_SCR)
        self("v_add_u32 v%d, s60, v%d" % (self.W2LA, self.W2LA))
        self("s_mul_i32 s61, s%d, %d" % (S_W, 14 * 32 * 1280))
    def w2_job_issue(self, s):
        self("s_add_u32 s62, s61, %d" % (s * 32 * 1280))
        for i in range(5):
            self("s_add_u32 s3, s60, %d" % (1024 * i))
            self("s_mov_b32 m0, s3")
            self("s_nop 0")
            self.vm("buffer_load_dwordx4 v%d, s[56:59], s62 offen lds" % (self.W2OFF + i), "w2j%d" % s)
    def w2_job_read(self, s):
        self.vm_wait("w2j%d" % s)
        for i in range(5):
            for h in range(2):
                self.lg("ds_read_b64_tr_b16 %s, v%d offset:%d" % (w2reg2(s * 5 + i, h), self.W2LA, h * 16 * 160 + 32 * i), "w2r")
    def w2_load_simple(self):
        self.w2_setup()
        for s in range(14):
            self.w2_job_issue(s)
            self.w2_job_read(s)
            self.lg_wait_all()

    def g2(self, hf_off):
        ACC = [4, 24]
        HR = 44
        ha = 100
        ra = 104
        RES = 108
        self("v_mov_b32 v110, 0")
        self("s_mul_i32 s3, s%d, 5120" % S_W)
        self("s_add_u32 s3, s3, %d" % LDS_SCR)
        self("v_lshlrev_b32 v111, 2, v%d" % V_LANE)
        self("v_add_u32 v111, s3, v111")
        for i in range(20): self.lg("ds_write_b32 v111, v110 offset:%d" % (256 * i), "z")
        for s in range(14):
            self("s_mul_i32 s3, s%d, 14" % S_W)
            self("s_add_u32 s3, s3, %d" % s)
            self("s_min_u32 s3, s3, 53")
            self("s_lshl_b32 s%d, s3, 10" % (S_HSTEP + s))
        self.srd(SRD_A, P_WS, 0x10000000 - 0)
        for k in range(4):
            self("s_add_u32 s3, s%d, %d" % (S_W, 1 + k))
            self("s_and_b32 s3, s3, 3")
            self("s_mul_i32 s%d, s3, 5120" % (S_T0 + 5 + k))
            self("s_lshl_b32 s%d, s%d, 4" % (S_T0, S_G))
            self("s_add_u32 s3, s3, s%d" % S_T0)
            self("s_lshl_b32 s%d, s%d, 2" % (S_T0, S_RB))
            self("s_add_u32 s3, s3, s%d" % S_T0)
            self("s_mul_i32 s3, s3, %d" % (54 * 1024))
            self("s_add_u32 s3, s3, %d" % hf_off)
            self("v_lshlrev_b32 v%d, 4, v%d" % (ha + k, V_LANE))
            self("v_add_u32 v%d, s3, v%d" % (ha + k, ha + k))
            self("v_lshlrev_b32 v%d, 2, v%d" % (ra + k, V_LANE))
            self("s_add_u32 s3, s%d, %d" % (S_T0 + 5 + k, LDS_SCR))
            self("v_add_u32 v%d, s3, v%d" % (ra + k, ra + k))
        self.lg_wait_all()
        self("s_barrier")
        def hload(p):
            k, s = divmod(p, 14)
            self.vm("buffer_load_dwordx4 %s, v%d, s[%d:%d], s%d offen sc1" % (vr(HR + 4 * s, 4), ha + k, SRD_A, SRD_A + 3, S_HSTEP + s), "h%d" % p)
        for p in range(14): hload(p)
        pend = []
        for k in range(4):
            acc = ACC[k & 1]
            for s in range(14):
                p = 14 * k + s
                self.vm_wait("h%d" % p)
                for i in range(5):
                    c = vr(acc + 4 * i, 4) if s > 0 else "0"
                    self("v_mfma_f32_16x16x32_bf16 %s, %s, %s, %s" % (vr(acc + 4 * i, 4), w2reg(s * 5 + i), vr(HR + 4 * s, 4), c))
                    if s >= 2 and pend and i % 2 == 0:
                        self.lg(pend.pop(0), "radd")
                if p + 14 < 56: hload(p + 14)
            if k < 3:
                pend = ["ds_add_f32 v%d, v%d offset:%d" % (ra + k, acc + j, 256 * j) for j in range(20)]
        assert not pend
        self.lg_wait_all()
        self("s_barrier")
        for j in range(0, 20, 2):
            self.lg("ds_read2st64_b32 %s, v%d offset0:%d offset1:%d" % (vr(RES + j, 2), ra + 3, j, j + 1), "rr")
        self.lg_wait_all()
        acc = ACC[1]
        for j in range(0, 20, 2):
            self("v_pk_add_f32 %s, %s, %s" % (vr(RES + j, 2), vr(RES + j, 2), vr(acc + j, 2)))
        return RES

    def residual_add(self, RES, XF):
        t = 178
        self.unpack_tile(XF, V_X)
        for i in range(10):
            self.rnd_pair(RES + 2 * i, t)
            self("v_pk_add_f32 %s, %s, %s" % (vr(XF + 2 * i, 2), vr(XF + 2 * i, 2), vr(RES + 2 * i, 2)))
            self("v_cvt_pk_bf16_f32 v%d, v%d, v%d" % (V_X + i, XF + 2 * i, XF + 2 * i + 1))
            self.unpack(XF + 2 * i, V_X + i)

    def store_out(self):
        t2 = 164
        self.own_rowbase()
        self("v_add_u32 v%d, s3, v%d" % (t2, V_L15))
        self("v_mul_u32_u24 v%d, 1280, v%d" % (t2, t2))
        self("s_mul_i32 s3, s%d, 160" % S_CS)
        self("v_lshlrev_b32 v%d, 3, v%d" % (t2 + 1, V_G))
        self("v_add3_u32 v%d, v%d, v%d, s3" % (t2, t2, t2 + 1))
        for u in range(5):
            self.vm("global_store_dwordx2 v%d, %s, s[%d:%d] offset:%d" % (t2, vr(V_X + 2 * u, 2), P_OUT, P_OUT + 1, 32 * u), "out")

    def build(self):
        o = self.o
        stop = o.get("stop", 99)
        self.prologue()
        self.stamp(0)
        self.prep_loads()
        self.prep_compute()
        self.vm_wait("q")
        self.unpack_tile(110, V_X)
        self.handshake_check()
        self.stamp(1)
        self.tile_stats(110, WS_STAT + 0 * STAT_SZ, 132)
        self.prep_store_ur()
        self.build_kcopies()
        self.local_barrier(1)
        self.stamp(2)
        if stop >= 2:
            self.conv()
            self.stamp(3)
            self.wait_all()
            self("s_barrier")
            if stop >= 3: self.w1_dma()
            self.global_barrier()
            self.stamp(4)
        if stop >= 3:
            self.rw1()
            self.colsum()
            self.local_barrier(2)
            self.stamp(5)
        if stop >= 4:
            self.g1(WS_XF1, WS_HF1, WS_STAT + 1 * STAT_SZ)
            self.stamp(6)
            self.vm_wait_all()
            self.w2_load_simple()
            self.local_barrier(3)
            self.stamp(7)
        if stop >= 5:
            RES = self.g2(WS_HF1)
            self.stamp(8)
            XF = 4
            self.residual_add(RES, XF)
            self.tile_stats(XF, WS_STAT + 2 * STAT_SZ, 28)
            self.local_barrier(4)
            self.stamp(9)
            self.own_rowbase()
            tag = self.row_stats(WS_STAT + 2 * STAT_SZ, None, 60, 24, 26)
            self.row_stats_finish(tag, 60, 24, 26)
            self.mixer_update(o.get("mimic_a2", False), 24, 26, XF, 28)
            self.tile_stats(XF, WS_STAT + 3 * STAT_SZ, 28)
            self.store_xf(WS_XF3)
            self.local_barrier(5)
            self.stamp(10)
        if stop >= 6:
            self.g1(WS_XF3, WS_HF2, WS_STAT + 3 * STAT_SZ)
            self.stamp(11)
            self.local_barrier(6)
            self.stamp(12)
            RES = self.g2(WS_HF2)
            self.stamp(13)
            self.residual_add(RES, 4)
        self.store_out()
        self.stamp(14)
        self("s_waitcnt vmcnt(0)")
        self("s_branch L_end")
        self("L_abort:")
        self("L_end:")
        self("s_endpgm")

def make(opts):
    k = K(opts)
    k.build()
    body, added = k.text()
    hdr = open("interleave_layers__ssm_conv_h3__dense_activation_relu__prompt.s.ref").read().split("\n")
    head = [l for l in hdr if l.startswith(";") and "@launch" not in l and "Override launch" not in l and "grid=ceil" not in l]
    head = head[:14]
    txt = "\n".join(head) + "\n"
    txt += "; @launch grid=(256,1,1) block=(256,1,1) lds=%d\n" % LDS_TOTAL
    txt += '.amdgcn_target "amdgcn-amd-amdhsa--gfx950"\n.text\n.globl %s\n.p2align 8\n.type %s,@function\n%s:\n' % (KNAME, KNAME, KNAME)
    txt += body
    txt += """.section .rodata,"a"
.p2align 6
.amdhsa_kernel %s
  .amdhsa_next_free_vgpr 512
  .amdhsa_next_free_sgpr 102
  .amdhsa_accum_offset 256
  .amdhsa_group_segment_fixed_size 0
  .amdhsa_kernarg_size 96
  .amdhsa_user_sgpr_count 2
  .amdhsa_user_sgpr_kernarg_segment_ptr 1
  .amdhsa_system_sgpr_workgroup_id_x 1
.end_amdhsa_kernel
""" % KNAME
    return txt, added, len(k.ins)

if __name__ == "__main__":
    import argparse, json
    ap = argparse.ArgumentParser()
    ap.add_argument("-o", default="interleave_layers__ssm_conv_h3__dense_activation_relu__prompt.s")
    ap.add_argument("--opts", default="{}")
    a = ap.parse_args()
    txt, added, n = make(json.loads(a.opts))
    open(a.o, "w").write(txt)
    print("wrote", a.o, "instructions", n, "nop states added", added, "bytes", len(txt))
```

```python
import sys
sys.path.insert(0, "work")
from gen import *

KNAME = "interleave_layers__ssm_conv_h3__dense_activation_relu__prompt_kernel"

WS_EPOCH = 0x0
WS_XCCF  = 0x400
WS_LFLAG = 0x1000
WS_YFLAG = 0x2000
WS_PKFLAG = 0x3000
WS_STAT  = 0x100000
STAT_SZ  = 0x40000
WS_UR    = 0x200000
WS_YT    = 0x500000
WS_W1P   = 0x800000
WS_W2P   = 0xB00000
WP_SZ    = 2211840
WS_XF1   = 0xE00000
WS_XF3   = 0x1100000
WS_HF1   = 0x1400000
WS_HF2   = 0x1B00000
WS_STAMP = 0x2200000
KX = 0x5BD1E995
TAG0 = 0x9E3779B9

KC_STRIDE = 4160
SLOT = 8 * KC_STRIDE + 4608
U_OFF = 8 * KC_STRIDE
LDS_T = 3 * SLOT
T_STRIDE = 144
LDS_W1 = 0
LDS_SCR = 140 * 1024
LDS_TOTAL = 163840
LDS_MODE = LDS_TOTAL - 16
LDS_CSX = LDS_SCR + 16384

S_G, S_J, S_W, S_MODE = 4, 5, 6, 7
SRD_A, SRD_B = 8, 12
P_Q, P_K, P_V, P_SK, P_SSM, P_D, P_W1 = 16, 18, 20, 22, 24, 26, 30
P_W2, P_OUT, P_DBG, P_WS = 32, 34, 36, 38
S_TAG = 28
S_KX = 29
S_RB, S_CS, S_RT, S_CT, S_UOFF = 40, 41, 42, 43, 44
S_MASK = 45
S_XCC = 46
S_CH = 47
S_HASCH = 48
S_DVAL = 49
S_T0 = 50
SRD_W2 = 56
S_W2B = 60
S_RU0 = 63
S_LFLAG = 64
S_TMPP = 66
S_TMPQ = 68
S_SLOT = 70
S_TMO = 71
S_HSTEP = 72
S_XFB = 86
S_M2 = 88
S_SAVE = 92
S_TS = 94

V_TID, V_LANE, V_L15, V_G = 0, 1, 2, 3
V_STAMP = 173
V_CS = 184
V_Y = 212
V_X = 222
V_W2X = 232

def w2reg(f):
    return ar(4 * f, 4) if f < 64 else vr(V_W2X + 4 * (f - 64), 4)

TIMEOUT = 400000

class K(Gen):
    def __init__(self, opts):
        super().__init__()
        self.o = opts
        self.bgq = []

    def stamp(self, idx):
        if not self.o.get("stamps"): return
        self("s_memtime s[%d:%d]" % (S_TS, S_TS + 1))
        self("s_waitcnt lgkmcnt(0)")
        self("v_writelane_b32 v%d, s%d, %d" % (V_STAMP, S_TS, idx))
        self.lgq = []
    def stamp_dump(self):
        if not self.o.get("stamps"): return
        self("s_lshl_b32 s3, s2, 2")
        self("s_add_u32 s3, s3, s%d" % S_W)
        self("s_lshl_b32 s3, s3, 8")
        self("s_add_u32 s3, s3, %d" % WS_STAMP)
        self("v_lshlrev_b32 v180, 2, v%d" % V_LANE)
        self("v_add_u32 v180, s3, v180")
        self("global_store_dword v180, v%d, s[%d:%d]" % (V_STAMP, P_WS, P_WS + 1))
    def bg_add(self, items): self.bgq.extend(items)
    def bg_step(self, n=1):
        q = self.bgq
        while n > 0 and q:
            it = q.pop(0)
            if callable(it): it()
            elif isinstance(it, tuple):
                kind, text, tag = it
                (self.vm if kind == "vm" else self.lg)(text, tag)
            else: self(it)
            n -= 1
    def bg_flush(self): self.bg_step(1 << 30)
    def if_wave(self, w, eq=True):
        L = self.label("L_iw")
        self("s_cmp_%s_u32 s%d, %d" % ("lg" if eq else "eq", S_W, w))
        self("s_cbranch_scc1 %s" % L)
        return L
    def close(self, L): self("%s:" % L)
    def exec_set(self, mask):
        self("s_mov_b64 s[%d:%d], exec" % (S_SAVE, S_SAVE + 1))
        self("s_mov_b64 exec, %s" % mask)
    def exec_restore(self): self("s_mov_b64 exec, s[%d:%d]" % (S_SAVE, S_SAVE + 1))
    def rnd_pair(self, p, t):
        self("v_cvt_pk_bf16_f32 v%d, v%d, v%d" % (t, p, p + 1))
        self("v_lshlrev_b32 v%d, 16, v%d" % (p, t))
        self("v_and_b32 v%d, s%d, v%d" % (p + 1, S_MASK, t))
    def unpack(self, dst, src):
        self("v_lshlrev_b32 v%d, 16, v%d" % (dst, src))
        self("v_and_b32 v%d, s%d, v%d" % (dst + 1, S_MASK, src))
    def unpack_tile(self, dst, src):
        for i in range(10): self.unpack(dst + 2 * i, src + i)
    def rnd1(self, r, t):
        self("v_cvt_pk_bf16_f32 v%d, v%d, v%d" % (t, r, r))
        self("v_lshlrev_b32 v%d, 16, v%d" % (r, t))
    def xg_sum(self, r, t):
        self("v_mov_b32 v%d, v%d" % (t, r))
        self("v_permlane16_swap_b32 v%d, v%d" % (r, t))
        self("v_add_f32 v%d, v%d, v%d" % (r, r, t))
        self("v_mov_b32 v%d, v%d" % (t, r))
        self("v_permlane32_swap_b32 v%d, v%d" % (r, t))
        self("v_add_f32 v%d, v%d, v%d" % (r, r, t))
    def srd(self, q, ptr, nbytes, const=0, add_sgpr=None):
        self("s_add_u32 s%d, s%d, %d" % (q, ptr, const))
        self("s_addc_u32 s%d, s%d, 0" % (q + 1, ptr + 1))
        if add_sgpr is not None:
            self("s_add_u32 s%d, s%d, s%d" % (q, q, add_sgpr))
            self("s_addc_u32 s%d, s%d, 0" % (q + 1, q + 1))
        self("s_and_b32 s%d, s%d, 0xffff" % (q + 1, q + 1))
        self("s_mov_b32 s%d, %d" % (q + 2, nbytes))
        self("s_mov_b32 s%d, 0x20000" % (q + 3))
    def addr_pair(self, dst, ptr, const=0, add_sgpr=None):
        self("s_add_u32 s%d, s%d, %d" % (dst, ptr, const))
        self("s_addc_u32 s%d, s%d, 0" % (dst + 1, ptr + 1))
        if add_sgpr is not None:
            self("s_add_u32 s%d, s%d, s%d" % (dst, dst, add_sgpr))
            self("s_addc_u32 s%d, s%d, 0" % (dst + 1, dst + 1))
    def handoff_stores(self, lines, tagname="st", record=True):
        Ls, Ld = self.label("L_slow"), self.label("L_sd")
        self("s_cmp_eq_u32 s%d, 0" % S_MODE)
        self("s_cbranch_scc0 %s" % Ls)
        for l in lines: self(l)
        self("s_branch %s" % Ld)
        self("%s:" % Ls)
        for l in lines: self(l + " sc0 sc1")
        self("%s:" % Ld)
        if record:
            for l in lines: self.vmq.append(tagname)
    def rowbase(self):
        self("s_lshl_b32 s3, s%d, 8" % S_G)
        self("s_lshl_b32 s%d, s%d, 6" % (S_T0, S_RB))
        self("s_add_u32 s3, s3, s%d" % S_T0)
        self("s_lshl_b32 s%d, s%d, 4" % (S_T0, S_W))
        self("s_add_u32 s3, s3, s%d" % S_T0)

    def flag_store(self, base_pair, off_sgpr, val, device, vt=176):
        if isinstance(val, int): self("s_add_u32 s3, s%d, %d" % (S_TAG, val))
        else: self("s_add_u32 s3, s%d, %s" % (S_TAG, val))
        self("v_mov_b32 v%d, s3" % vt)
        self("s_xor_b32 s3, s3, s%d" % S_KX)
        self("v_mov_b32 v%d, s3" % (vt + 1))
        self("v_mov_b32 v%d, s%d" % (vt + 2, off_sgpr))
        self.exec_set("1")
        line = "global_store_dwordx2 v%d, %s, s[%d:%d]" % (vt + 2, vr(vt, 2), base_pair, base_pair + 1)
        if device: self(line + " sc0 sc1")
        else: self.handoff_stores([line], record=False)
        self.exec_restore()
    def pair_bad(self, w0, w1, lo, span, t, acc=None):
        self("v_subrev_u32 v%d, s%d, v%d" % (t, lo, w0))
        self("v_cmp_lt_u32 vcc, %d, v%d" % (span, t))
        self("v_xor_b32 v%d, v%d, v%d" % (t, w0, w1))
        self("v_cmp_ne_u32 s[%d:%d], s%d, v%d" % (S_M2, S_M2 + 1, S_KX, t))
        self("s_or_b64 s[%d:%d], vcc, s[%d:%d]" % (S_M2, S_M2 + 1, S_M2, S_M2 + 1))
    def poll_pairs(self, base_pair, voff, lo, span, vt, npair=1):
        L = self.label("L_poll")
        self("s_add_u32 s%d, s%d, %d" % (S_T0 + 5, S_TAG, lo))
        self("s_mov_b32 s%d, %d" % (S_TMO, TIMEOUT))
        self("%s:" % L)
        if npair == 1:
            self("global_load_dwordx2 %s, v%d, s[%d:%d] sc1" % (vr(vt, 2), voff, base_pair, base_pair + 1))
        else:
            for k in range(npair // 2):
                self("global_load_dwordx4 %s, v%d, s[%d:%d] offset:%d sc1" % (vr(vt + 4 * k, 4), voff, base_pair, base_pair + 1, 16 * k))
        self("s_sub_u32 s%d, s%d, 1" % (S_TMO, S_TMO))
        self("s_cmp_eq_u32 s%d, 0" % S_TMO)
        self("s_cbranch_scc1 L_abort")
        self("s_waitcnt vmcnt(0)")
        for k in range(npair):
            self.pair_bad(vt + 2 * k, vt + 2 * k + 1, S_T0 + 5, span, vt + 2 * npair)
            self("s_cbranch_scc1 %s" % L)

    def barrier_arrive(self, phase, drain=True, wave=0):
        if drain: self.wait_all()
        self("s_barrier")
        L = self.if_wave(wave)
        self("s_lshl_b32 s%d, s%d, 3" % (S_T0, S_J))
        self.flag_store(S_LFLAG, S_T0, phase, device=False)
        self.close(L)
    def barrier_wait(self, phase, wave=0, vt=176):
        L = self.if_wave(wave)
        self("v_and_b32 v%d, 31, v%d" % (vt + 4, V_LANE))
        self("v_lshlrev_b32 v%d, 3, v%d" % (vt + 4, vt + 4))
        self.poll_pairs(S_LFLAG, vt + 4, phase, 7 - phase, vt)
        self.close(L)
        self("s_barrier")

    def prologue(self):
        self("s_cmp_ge_u32 s2, 256")
        self("s_cbranch_scc1 L_end")
        self("s_load_dwordx16 s[16:31], s[0:1], 0")
        self("s_load_dwordx8 s[32:39], s[0:1], 64")
        self("s_and_b32 s%d, s2, 7" % S_G)
        self("s_lshr_b32 s%d, s2, 3" % S_J)
        self("v_lshrrev_b32 v4, 6, v0")
        self("v_readfirstlane_b32 s%d, v4" % S_W)
        self("v_and_b32 v%d, 63, v0" % V_LANE)
        self("v_and_b32 v%d, 15, v0" % V_L15)
        self("v_bfe_u32 v%d, v0, 4, 2" % V_G)
        self("s_getreg_b32 s%d, hwreg(HW_REG_XCC_ID, 0, 4)" % S_XCC)
        self("s_mov_b32 s%d, 0xffff0000" % S_MASK)
        self("s_lshr_b32 s%d, s%d, 3" % (S_RB, S_J))
        self("s_and_b32 s%d, s%d, 7" % (S_CS, S_J))
        self("s_lshr_b32 s%d, s%d, 4" % (S_RT, S_J))
        self("s_and_b32 s%d, s%d, 15" % (S_CT, S_J))
        self("s_mul_i32 s3, s%d, %d" % (S_CT, 11 * 4370))
        self("s_lshr_b32 s3, s3, 16")
        self("s_mul_i32 s%d, s%d, 6" % (S_UOFF, S_CT))
        self("s_add_u32 s%d, s%d, s3" % (S_UOFF, S_UOFF))
        self("s_mov_b32 s%d, 0" % S_MODE)
        self("s_waitcnt lgkmcnt(0)")
        self("s_load_dword s%d, s[%d:%d], %d" % (S_TAG, P_WS, P_WS + 1, WS_EPOCH))
        self("s_mov_b32 s%d, 0x%x" % (S_KX, KX))
        self("s_lshl_b32 s3, s%d, 8" % S_G)
        self.addr_pair(S_LFLAG, P_WS, WS_LFLAG, 3)

    def repack_decode(self, T, src, pitch, dst):
        L2, Ld = self.label("L_rp2"), self.label("L_rpd")
        a, b = S_T0, S_T0 + 1
        self("s_cmp_ge_u32 s%d, 540" % T)
        self("s_cbranch_scc1 %s" % L2)
        self("s_mul_hi_u32 s%d, s%d, %d" % (a, T, (1 << 32) // 27 + 1))
        self("s_mul_i32 s%d, s%d, 27" % (b, a))
        self("s_sub_u32 s%d, s%d, s%d" % (b, T, b))
        self("s_mul_i32 s3, s%d, %d" % (a, 32 * 3456))
        self("s_lshl_b32 s%d, s%d, 7" % (pitch, b))
        self("s_add_u32 s3, s3, s%d" % pitch)
        self.addr_pair(src, P_W1, 0, 3)
        self("s_mul_i32 s3, s%d, 108" % a)
        self("s_lshl_b32 s%d, s%d, 2" % (b, b))
        self("s_add_u32 s3, s3, s%d" % b)
        self("s_lshl_b32 s3, s3, 10")
        self("s_add_u32 s%d, s3, %d" % (dst, WS_W1P))
        self("s_movk_i32 s%d, 3456" % pitch)
        self("s_branch %s" % Ld)
        self("%s:" % L2)
        self("s_sub_u32 s3, s%d, 540" % T)
        self("s_mul_hi_u32 s%d, s3, %d" % (a, (1 << 32) // 10 + 1))
        self("s_mul_i32 s%d, s%d, 10" % (b, a))
        self("s_sub_u32 s%d, s3, s%d" % (b, b))
        self("s_mul_i32 s3, s%d, %d" % (a, 32 * 1280))
        self("s_lshl_b32 s%d, s%d, 7" % (pitch, b))
        self("s_add_u32 s3, s3, s%d" % pitch)
        self.addr_pair(src, P_W2, 0, 3)
        self("s_mul_i32 s3, s%d, 40" % a)
        self("s_lshl_b32 s%d, s%d, 2" % (b, b))
        self("s_add_u32 s3, s3, s%d" % b)
        self("s_lshl_b32 s3, s3, 10")
        self("s_add_u32 s%d, s3, %d" % (dst, WS_W2P))
        self("s_movk_i32 s%d, 1280" % pitch)
        self("%s:" % Ld)
    def repack_issue(self):
        T, T2 = 72, 73
        self.RP = dict(src1=74, pitch1=76, dst1=77, src2=78, pitch2=80, dst2=81, has2=82, lds=83)
        R = self.RP
        self("s_lshl_b32 s%d, s2, 2" % T)
        self("s_add_u32 s%d, s%d, s%d" % (T, T, S_W))
        self("s_cmp_lt_u32 s%d, 56" % T)
        self("s_cselect_b32 s%d, 1, 0" % R["has2"])
        self("s_lshl_b32 s%d, s%d, 13" % (R["lds"], S_W))
        self.repack_decode(T, R["src1"], R["pitch1"], R["dst1"])
        row, ch, off = 100, 101, 102
        self("v_lshrrev_b32 v%d, 3, v%d" % (row, V_LANE))
        self("v_and_b32 v%d, 7, v%d" % (ch, V_LANE))
        self("v_lshlrev_b32 v%d, 4, v%d" % (ch, ch))
        def dma(src, pitch, ldsoff, rec):
            self("v_mul_lo_u32 v%d, v%d, s%d" % (off, row, pitch))
            self("v_add_u32 v%d, v%d, v%d" % (off, off, ch))
            self("s_lshl_b32 s%d, s%d, 3" % (S_T0, pitch))
            for r in range(4):
                self("s_add_u32 m0, s%d, %d" % (R["lds"], ldsoff + 1024 * r))
                if r: self("v_add_u32 v%d, s%d, v%d" % (off, S_T0, off))
                t = "global_load_lds_dwordx4 v%d, s[%d:%d]" % (off, src, src + 1)
                if rec: self.vm(t, "rp")
                else: self(t)
        L = self.label("L_rp1")
        self("s_cmp_eq_u32 s%d, 0" % R["has2"])
        self("s_cbranch_scc1 %s" % L)
        self("s_add_u32 s%d, s%d, 1024" % (T2, T))
        self.repack_decode(T2, R["src2"], R["pitch2"], R["dst2"])
        dma(R["src2"], R["pitch2"], 4096, False)
        self("%s:" % L)
        dma(R["src1"], R["pitch1"], 0, True)
    def repack_finish(self):
        R = self.RP
        a, F, sa = 100, 104, 101
        self.vm_wait("rp")
        self("v_bfe_u32 v%d, v%d, 2, 2" % (a, V_LANE))
        self("v_lshl_add_u32 v%d, v%d, 2, v%d" % (a, V_G, a))
        self("v_lshlrev_b32 v%d, 7, v%d" % (a, a))
        self("v_and_b32 v%d, 3, v%d" % (sa, V_LANE))
        self("v_lshl_add_u32 v%d, v%d, 3, v%d" % (a, sa, a))
        self("v_add_u32 v%d, s%d, v%d" % (a, R["lds"], a))
        def one(ldsoff, dst, rec):
            for u in range(4):
                for h in range(2):
                    self("ds_read_b64_tr_b16 %s, v%d offset:%d" % (vr(F + 4 * u + 2 * h, 2), a, ldsoff + h * 2048 + 32 * u))
            self("v_lshlrev_b32 v%d, 4, v%d" % (sa, V_LANE))
            self("v_add_u32 v%d, s%d, v%d" % (sa, dst, sa))
            self("s_waitcnt lgkmcnt(0)")
            for u in range(4):
                t = "global_store_dwordx4 v%d, %s, s[%d:%d] offset:%d sc0 sc1" % (sa, vr(F + 4 * u, 4), P_WS, P_WS + 1, 1024 * u)
                if rec: self.vm(t, "rpst")
                else: self(t)
        L = self.label("L_rf2")
        self("s_cmp_eq_u32 s%d, 0" % R["has2"])
        self("s_cbranch_scc1 %s" % L)
        one(4096, R["dst2"], False)
        self("s_nop 1")
        self("%s:" % L)
        one(0, R["dst1"], True)
        self.lgq = []

    def prep_loads(self):
        KR, VR, TAP, RAW = 4, 34, 46, 66
        self.KR, self.VR, self.TAP, self.RAW = KR, VR, TAP, RAW
        c10, rp, off = 110, 111, 112
        self("v_and_b32 v%d, 7, v0" % c10)
        self("v_lshrrev_b32 v%d, 3, v0" % rp)
        self("s_lshl_b32 s3, s%d, 6" % S_J)
        self("s_sub_u32 s3, s3, 3")
        self("v_lshlrev_b32 v%d, 1, v%d" % (off, rp))
        self("v_add_u32 v%d, s3, v%d" % (off, off))
        self("s_movk_i32 s%d, 1280" % S_T0)
        self("v_mul_lo_u32 v%d, v%d, s%d" % (off, off, S_T0))
        self("s_mul_i32 s3, s%d, 160" % S_G)
        self("v_mul_u32_u24 v%d, 20, v%d" % (off + 1, c10))
        self("v_add3_u32 v%d, v%d, v%d, s3" % (off, off, off + 1))
        self.srd(SRD_A, P_K, 2621440)
        self.srd(SRD_B, P_V, 2621440)
        offs = [off]
        for r in range(1, 5):
            self("v_add_u32 v%d, %d, v%d" % (off + 1 + r, 1280 * r, off))
            offs.append(off + 1 + r)
        for r in range(5):
            self.vm("buffer_load_dwordx4 %s, v%d, s[%d:%d], 0 offen" % (vr(KR + 6 * r, 4), offs[r], SRD_A, SRD_A + 3), "k")
            self.vm("buffer_load_dword v%d, v%d, s[%d:%d], 0 offen offset:16" % (KR + 6 * r + 4, offs[r], SRD_A, SRD_A + 3), "k")
        for r in range(2):
            self.vm("buffer_load_dwordx4 %s, v%d, s[%d:%d], 0 offen" % (vr(VR + 6 * r, 4), offs[3 + r], SRD_B, SRD_B + 3), "v")
            self.vm("buffer_load_dword v%d, v%d, s[%d:%d], 0 offen offset:16" % (VR + 6 * r + 4, offs[3 + r], SRD_B, SRD_B + 3), "v")
        t = off + 7
        self("s_mul_i32 s3, s%d, 640" % S_G)
        self("v_mul_u32_u24 v%d, 80, v%d" % (t, c10))
        self("v_add_u32 v%d, s3, v%d" % (t, t))
        for i in range(5):
            self.vm("global_load_dwordx4 %s, v%d, s[%d:%d] offset:%d" % (vr(TAP + 4 * i, 4), t, P_SK, P_SK + 1, 16 * i), "tap")
        t2 = off + 8
        self.rowbase()
        self("v_add_u32 v%d, s3, v%d" % (t2, V_L15))
        self("v_mul_u32_u24 v%d, 1280, v%d" % (t2, t2))
        self("s_mul_i32 s3, s%d, 160" % S_CS)
        self("v_lshlrev_b32 v%d, 3, v%d" % (t2 + 1, V_G))
        self("v_add3_u32 v%d, v%d, v%d, s3" % (t2, t2, t2 + 1))
        for u in range(5):
            self.vm("global_load_dwordx2 %s, v%d, s[%d:%d] offset:%d" % (vr(V_X + 2 * u, 2), t2, P_Q, P_Q + 1, 32 * u), "q")
        self("s_lshl_b32 s3, s%d, 5" % S_W)
        self("s_add_u32 s3, s3, s%d" % S_J)
        self("s_cmp_lt_u32 s3, 80")
        self("s_cselect_b32 s%d, 1, 0" % S_HASCH)
        self("s_cselect_b32 s3, s3, 0")
        self("s_mul_i32 s%d, s%d, 80" % (S_CH, S_G))
        self("s_add_u32 s%d, s%d, s3" % (S_CH, S_CH))
        self("s_mul_i32 s%d, s%d, %d" % (S_SLOT, S_W, SLOT))
        self("s_cmp_lt_u32 s%d, 3" % S_W)
        self("s_cselect_b32 s%d, s%d, 0" % (S_SLOT, S_SLOT))
        self("s_lshl_b32 s3, s%d, 1" % S_CH)
        self("s_and_b32 s3, s3, 0xfffffffc")
        self("s_load_dword s%d, s[%d:%d], s3" % (S_DVAL, P_D, P_D + 1))
        self("s_lshl_b32 s3, s%d, 12" % S_CH)
        self.srd(52, P_SSM, 4096, add_sgpr=3)
        a = off + 10
        self("v_lshlrev_b32 v%d, 4, v%d" % (a, V_LANE))
        for r in range(4):
            self("v_add_u32 v%d, %d, v%d" % (a + 1, (1024 * r - 16) & 0xffffffff, a))
            self.vm("buffer_load_dwordx4 %s, v%d, s[52:55], 0 offen" % (vr(RAW + 8 * r, 4), a + 1), "raw")
            self.vm("buffer_load_dwordx4 %s, v%d, s[52:55], 0 offen offset:%d" % (vr(RAW + 8 * r + 4, 4), a, 1024 * r), "raw")
        self("s_waitcnt lgkmcnt(0)")
        self("s_add_u32 s%d, s%d, 0x%x" % (S_TAG, S_TAG, TAG0))
        L = self.if_wave(0)
        self("s_lshl_b32 s%d, s%d, 8" % (S_T0, S_G))
        self("s_lshl_b32 s%d, s%d, 3" % (S_T0 + 1, S_J))
        self("s_add_u32 s%d, s%d, s%d" % (S_T0, S_T0, S_T0 + 1))
        self("s_add_u32 s%d, s%d, %d" % (S_T0, S_T0, WS_XCCF))
        self.flag_store(P_WS, S_T0, "s%d" % S_XCC, device=True)
        self.close(L)

    def prep_compute(self):
        KR, VR, TAP = self.KR, self.VR, self.TAP
        Kp, Tp, Vp = 124, 134, 142
        A0, A1, P0, P1, t0, t1 = 146, 148, 150, 152, 154, 155
        O0, O1 = 156, 157
        lad = 158
        self("v_and_b32 v%d, 7, v0" % lad)
        self("v_mul_u32_u24 v%d, %d, v%d" % (lad, 10 * T_STRIDE, lad))
        self("v_lshrrev_b32 v%d, 3, v0" % (lad + 1))
        self("v_lshlrev_b32 v%d, 2, v%d" % (lad + 1, lad + 1))
        self("v_sub_u32 v%d, v%d, v%d" % (lad, lad, lad + 1))
        self("v_add_u32 v%d, %d, v%d" % (lad, LDS_T + 124, lad))
        self.vm_wait(["k", "v", "tap"])
        self.stamp(39)
        pk = lambda op, d, a, b: self("v_pk_%s_f32 %s, %s, %s" % (op, vr(d, 2), vr(a, 2), vr(b, 2)))
        for i in range(5):
            for r in range(5): self.unpack(Kp + 2 * r, KR + 6 * r + i)
            for t in range(4):
                s0 = TAP + 4 * i + (t >> 1); s1 = s0 + 2
                if t & 1:
                    self("v_and_b32 v%d, s%d, v%d" % (Tp + 2 * t, S_MASK, s0))
                    self("v_and_b32 v%d, s%d, v%d" % (Tp + 2 * t + 1, S_MASK, s1))
                else:
                    self("v_lshlrev_b32 v%d, 16, v%d" % (Tp + 2 * t, s0))
                    self("v_lshlrev_b32 v%d, 16, v%d" % (Tp + 2 * t + 1, s1))
            for r in range(2): self.unpack(Vp + 2 * r, VR + 6 * r + i)
            pk("mul", A0, Kp + 0, Tp + 6); pk("mul", A1, Kp + 2, Tp + 6)
            self.rnd_pair(A0, t0); self.rnd_pair(A1, t1)
            for step in range(1, 4):
                T = Tp + 2 * (3 - step)
                pk("mul", P0, Kp + 2 * step, T); pk("mul", P1, Kp + 2 * (step + 1), T)
                self.rnd_pair(P0, t0); self.rnd_pair(P1, t1)
                pk("add", A0, A0, P0); pk("add", A1, A1, P1)
                self.rnd_pair(A0, t0); self.rnd_pair(A1, t1)
            pk("mul", A0, A0, Vp + 0); pk("mul", A1, A1, Vp + 2)
            self("v_cvt_pk_bf16_f32 v%d, v%d, v%d" % (O0, A1, A0))
            self("v_cvt_pk_bf16_f32 v%d, v%d, v%d" % (O1, A1 + 1, A0 + 1))
            self.lg("ds_write_b32 v%d, v%d offset:%d" % (lad, O0, (2 * i) * T_STRIDE), "tw")
            self.lg("ds_write_b32 v%d, v%d offset:%d" % (lad, O1, (2 * i + 1) * T_STRIDE), "tw")

    def mode_check(self, vt=176):
        L = self.if_wave(0)
        self("s_lshl_b32 s3, s%d, 8" % S_G)
        self.addr_pair(S_TMPP, P_WS, WS_XCCF, 3)
        self("v_and_b32 v%d, 31, v%d" % (vt + 4, V_LANE))
        self("v_lshlrev_b32 v%d, 3, v%d" % (vt + 4, vt + 4))
        self.poll_pairs(S_TMPP, vt + 4, 0, 7, vt)
        self("s_add_u32 s3, s%d, s%d" % (S_TAG, S_XCC))
        self("v_cmp_ne_u32 vcc, s3, v%d" % vt)
        self("s_nop 1")
        self("s_cmp_lg_u64 vcc, 0")
        self("s_cselect_b32 s%d, 1, 0" % S_MODE)
        if self.o.get("force_slow"): self("s_mov_b32 s%d, 1" % S_MODE)
        self("v_mov_b32 v%d, s%d" % (vt, S_MODE))
        self("v_mov_b32 v%d, %d" % (vt + 1, LDS_MODE))
        self("ds_write_b32 v%d, v%d" % (vt + 1, vt))
        self.close(L)
    def mode_fetch(self, vt=176):
        self("v_mov_b32 v%d, %d" % (vt + 1, LDS_MODE))
        self("ds_read_b32 v%d, v%d" % (vt, vt + 1))
        self("s_waitcnt lgkmcnt(0)")
        self("v_readfirstlane_b32 s%d, v%d" % (S_MODE, vt))
        self.lgq = []

    def tile_stats(self, xf, buf, tmp):
        s, t = tmp, tmp + 4
        d = tmp + 6
        m2 = tmp + 26
        pk = lambda op, dd, a, b: self("v_pk_%s_f32 %s, %s, %s" % (op, vr(dd, 2), vr(a, 2), vr(b, 2)))
        pk("add", s, xf, xf + 2)
        for i in range(2, 10): pk("add", s, s, xf + 2 * i)
        self("v_add_f32 v%d, v%d, v%d" % (s, s, s + 1))
        self.xg_sum(s, t)
        self("v_mul_f32 v%d, 0x3c4ccccd, v%d" % (s, s))
        for i in range(10):
            self("v_pk_add_f32 %s, %s, %s op_sel_hi:[1,0] neg_lo:[0,1] neg_hi:[0,1]" % (vr(d + 2 * i, 2), vr(xf + 2 * i, 2), vr(s, 2)))
        pk("mul", m2, d, d)
        for i in range(1, 10):
            self("v_pk_fma_f32 %s, %s, %s, %s" % (vr(m2, 2), vr(d + 2 * i, 2), vr(d + 2 * i, 2), vr(m2, 2)))
        self("v_add_f32 v%d, v%d, v%d" % (s + 1, m2, m2 + 1))
        self.xg_sum(s + 1, t)
        self("s_add_u32 s3, s%d, %d" % (S_TAG, buf))
        self("v_mov_b32 v%d, s3" % (s + 2))
        self("s_xor_b32 s3, s3, s%d" % S_KX)
        self("v_mov_b32 v%d, s3" % (s + 3))
        self.rowbase()
        self("s_lshl_b32 s3, s3, 7")
        self("s_lshl_b32 s%d, s%d, 4" % (S_T0, S_CS))
        self("s_add_u32 s3, s3, s%d" % S_T0)
        self("s_add_u32 s3, s3, %d" % (WS_STAT + buf * STAT_SZ))
        self("v_lshlrev_b32 v%d, 7, v%d" % (t, V_L15))
        self("v_add_u32 v%d, s3, v%d" % (t, t))
        self.exec_set("0xffff")
        self.handoff_stores(["global_store_dwordx4 v%d, %s, s[%d:%d]" % (t, vr(s, 4), P_WS, P_WS + 1)], "stat")
        self.exec_restore()
    def row_stats_issue(self, buf, tmp):
        a = tmp + 8
        self.rowbase()
        self("s_lshl_b32 s3, s3, 7")
        self("s_add_u32 s3, s3, %d" % (WS_STAT + buf * STAT_SZ))
        self("v_lshlrev_b32 v%d, 7, v%d" % (a, V_L15))
        self("v_lshl_add_u32 v%d, v%d, 5, v%d" % (a, V_G, a))
        self("v_add_u32 v%d, s3, v%d" % (a, a))
        for k in range(2):
            self.vm("global_load_dwordx4 %s, v%d, s[%d:%d] offset:%d sc1" % (vr(tmp + 4 * k, 4), a, P_WS, P_WS + 1, 16 * k), "rs")
    def row_stats_validate(self, buf, tmp):
        Lr, Lo = self.label("L_rsr"), self.label("L_rso")
        self("s_add_u32 s%d, s%d, %d" % (S_T0 + 5, S_TAG, buf))
        self("s_mov_b32 s%d, %d" % (S_TMO, TIMEOUT))
        self("%s:" % Lr)
        self.pair_bad(tmp + 2, tmp + 3, S_T0 + 5, 0, tmp + 9)
        self("s_mov_b64 s[%d:%d], s[%d:%d]" % (S_TMPQ, S_TMPQ + 1, S_M2, S_M2 + 1))
        self.pair_bad(tmp + 6, tmp + 7, S_T0 + 5, 0, tmp + 9)
        self("s_or_b64 s[%d:%d], s[%d:%d], s[%d:%d]" % (S_M2, S_M2 + 1, S_M2, S_M2 + 1, S_TMPQ, S_TMPQ + 1))
        self("s_cbranch_scc0 %s" % Lo)
        self("s_sub_u32 s%d, s%d, 1" % (S_TMO, S_TMO))
        self("s_cmp_eq_u32 s%d, 0" % S_TMO)
        self("s_cbranch_scc1 L_abort")
        for k in range(2):
            self("global_load_dwordx4 %s, v%d, s[%d:%d] offset:%d sc1" % (vr(tmp + 4 * k, 4), tmp + 8, P_WS, P_WS + 1, 16 * k))
        self("s_waitcnt vmcnt(0)")
        self("s_branch %s" % Lr)
        self("%s:" % Lo)
        self("v_mov_b32 v%d, v%d" % (tmp + 2, tmp + 4))
        self("v_mov_b32 v%d, v%d" % (tmp + 3, tmp + 5))
    def row_stats_finish_items(self, tmp, out_m, out_rs):
        m0, q0, m1, q1 = tmp, tmp + 1, tmp + 2, tmp + 3
        s, t = tmp + 4, tmp + 5
        g = Gen()
        def xs(r):
            g("v_mov_b32 v%d, v%d" % (t, r)); g("v_permlane16_swap_b32 v%d, v%d" % (r, t)); g("v_add_f32 v%d, v%d, v%d" % (r, r, t))
            g("v_mov_b32 v%d, v%d" % (t, r)); g("v_permlane32_swap_b32 v%d, v%d" % (r, t)); g("v_add_f32 v%d, v%d, v%d" % (r, r, t))
        def r1(r):
            g("v_cvt_pk_bf16_f32 v%d, v%d, v%d" % (t, r, r)); g("v_lshlrev_b32 v%d, 16, v%d" % (r, t))
        g("v_add_f32 v%d, v%d, v%d" % (s, m0, m1)); xs(s)
        g("v_mul_f32 v%d, 0x3e000000, v%d" % (s, s))
        g("v_sub_f32 v%d, v%d, v%d" % (m0, m0, s)); g("v_sub_f32 v%d, v%d, v%d" % (m1, m1, s))
        g("v_mul_f32 v%d, v%d, v%d" % (m0, m0, m0)); g("v_fmac_f32 v%d, v%d, v%d" % (m0, m1, m1))
        g("v_add_f32 v%d, v%d, v%d" % (q0, q0, q1))
        g("v_mov_b32 v%d, 0x42a00000" % t); g("v_fmac_f32 v%d, v%d, v%d" % (q0, m0, t)); xs(q0)
        g("v_mul_f32 v%d, 0x3acccccd, v%d" % (q0, q0)); r1(q0)
        g("v_add_f32 v%d, 0x3727c5ac, v%d" % (q0, q0)); r1(q0)
        g("v_sqrt_f32 v%d, v%d" % (q0, q0)); g("s_nop 0"); r1(q0)
        g("v_rcp_f32 v%d, v%d" % (out_rs, q0)); r1(s)
        g("v_mov_b32 v%d, v%d" % (out_m, s))
        return [i.text.strip() for i in g.ins]
    def row_stats_finish(self, tmp, out_m, out_rs):
        for l in self.row_stats_finish_items(tmp, out_m, out_rs): self(l)

    def prep_store_ur(self):
        a, b = 100, 101
        self("v_lshrrev_b32 v%d, 3, v0" % a)
        self("v_and_b32 v%d, 7, v0" % b)
        self("v_lshlrev_b32 v%d, 4, v%d" % (b, b))
        self("v_mul_u32_u24 v%d, %d, v%d" % (102, T_STRIDE, a))
        self("v_add3_u32 v%d, v%d, v%d, 0" % (102, 102, b))
        self("v_add_u32 v%d, %d, v%d" % (102, LDS_T, 102))
        self("s_mul_i32 s3, s%d, %d" % (S_G, 80 * 4096))
        self("s_sub_u32 s%d, 31, s%d" % (S_T0, S_J))
        self("s_lshl_b32 s%d, s%d, 7" % (S_T0, S_T0))
        self("s_add_u32 s3, s3, s%d" % S_T0)
        self("s_add_u32 s3, s3, %d" % WS_UR)
        self("v_lshlrev_b32 v%d, 12, v%d" % (103, a))
        self("v_add3_u32 v%d, v%d, v%d, s3" % (103, 103, b))
        for r in range(2):
            self("ds_read_b128 %s, v102 offset:%d" % (vr(104 + 4 * r, 4), 32 * T_STRIDE * r))
        L = self.label("L_ur")
        self("s_cmp_ge_u32 s%d, 2" % S_W)
        self("s_cbranch_scc1 %s" % L)
        self("ds_read_b128 v[112:115], v102 offset:%d" % (32 * T_STRIDE * 2))
        self("%s:" % L)
        self("v_add_u32 v116, %d, v103" % (32 * 4096))
        self("v_add_u32 v117, %d, v103" % (64 * 4096))
        self("s_waitcnt lgkmcnt(0)")
        self.handoff_stores(["global_store_dwordx4 v103, v[104:107], s[%d:%d]" % (P_WS, P_WS + 1),
                             "global_store_dwordx4 v116, v[108:111], s[%d:%d]" % (P_WS, P_WS + 1)], "ur")
        L = self.label("L_ur2")
        self("s_cmp_ge_u32 s%d, 2" % S_W)
        self("s_cbranch_scc1 %s" % L)
        self.handoff_stores(["global_store_dwordx4 v117, v[112:115], s[%d:%d]" % (P_WS, P_WS + 1)], "ur", record=False)
        self("%s:" % L)
        self.lgq = []

    def build_kcopies(self):
        RAW = self.RAW
        SETS = [(110, 116, 122), (134, 140, 146)]
        ad, z = 128, 130
        L = self.label("L_kc")
        self("s_cmp_eq_u32 s%d, 0" % S_HASCH)
        self("s_cbranch_scc1 %s" % L)
        self("v_lshlrev_b32 v%d, 4, v%d" % (ad, V_LANE))
        self("s_add_u32 s3, s%d, 16" % S_SLOT)
        self("v_add_u32 v%d, s3, v%d" % (ad, ad))
        for r in range(4):
            R = RAW + 8 * r
            A, B, C = SETS[r & 1]
            if r >= 2: self("s_waitcnt lgkmcnt(8)")
            for i in range(6):
                self("v_alignbit_b32 v%d, v%d, v%d, 16" % (A + i, R + i + 1, R + i))
            for i in range(6):
                self("v_alignbit_b32 v%d, v%d, v%d, 16" % (B + i, R + i + 2, R + i + 1))
            for i in range(6):
                self("v_mov_b32 v%d, v%d" % (C + i, R + i + 1))
            src = {0: A, 1: C, 2: B, 3: R + 2, 4: A + 2, 5: C + 2, 6: B + 2, 7: R + 4}
            for c in range(8):
                self("ds_write_b128 v%d, %s offset:%d" % (ad, vr(src[c], 4), c * KC_STRIDE + 1024 * r))
        for i in range(4): self("v_mov_b32 v%d, 0" % (z + i))
        self("v_mul_u32_u24 v%d, %d, v%d" % (ad + 1, KC_STRIDE, V_LANE))
        self("v_add_u32 v%d, s%d, v%d" % (ad + 1, S_SLOT, ad + 1))
        self.exec_set("0xff")
        self("ds_write_b128 v%d, %s" % (ad + 1, vr(z, 4)))
        self("s_mov_b64 exec, 0x3fffffff")
        self("v_lshlrev_b32 v%d, 4, v%d" % (ad + 1, V_LANE))
        self("s_add_u32 s3, s%d, %d" % (S_SLOT, U_OFF + 4096))
        self("v_add_u32 v%d, s3, v%d" % (ad + 1, ad + 1))
        self("ds_write_b128 v%d, %s" % (ad + 1, vr(z, 4)))
        self.exec_restore()
        self("%s:" % L)
        self("s_waitcnt lgkmcnt(0)")
        self.lgq = []

    def conv(self):
        Lskip = self.label("L_conv_skip"); Ldone = self.label("L_conv_done")
        self("s_cmp_eq_u32 s%d, 0" % S_HASCH)
        self("s_cbranch_scc1 %s" % Lskip)
        self("s_lshl_b32 s3, s%d, 12" % S_CH)
        self.addr_pair(S_TMPP, P_WS, WS_UR, 3)
        a = 164
        self("v_lshlrev_b32 v%d, 4, v%d" % (a, V_LANE))
        for r in range(4):
            self("s_add_u32 m0, s%d, %d" % (S_SLOT, U_OFF + 1024 * r))
            self("v_add_u32 v%d, %d, v%d" % (a + 1, 1024 * r, a))
            self.vm("global_load_lds_dwordx4 v%d, s[%d:%d] sc1" % (a + 1, S_TMPP, S_TMPP + 1), "u")
        self("s_and_b32 s3, s%d, 1" % S_CH)
        self("s_lshl_b32 s%d, s%d, 16" % (S_T0, S_DVAL))
        self("s_and_b32 s%d, s%d, 0xffff0000" % (S_DVAL, S_DVAL))
        self("s_cmp_eq_u32 s3, 0")
        self("s_cselect_b32 s%d, s%d, s%d" % (S_DVAL, S_T0, S_DVAL))
        vA, vB = 166, 167
        self("v_and_b32 v%d, 7, v%d" % (vA, V_L15))
        self("v_mul_u32_u24 v%d, %d, v%d" % (vA, KC_STRIDE, vA))
        self("v_lshrrev_b32 v%d, 3, v%d" % (168, V_L15))
        self("v_add_u32 v%d, v%d, v%d" % (168, 168, V_G))
        self("v_lshl_add_u32 v%d, v%d, 4, v%d" % (vA, 168, vA))
        self("v_add_u32 v%d, s%d, v%d" % (vA, S_SLOT, vA))
        self("v_lshlrev_b32 v%d, 5, v%d" % (vB, V_L15))
        self("v_lshlrev_b32 v%d, 4, v%d" % (168, V_G))
        self("v_sub_u32 v%d, v%d, v%d" % (vB, 168, vB))
        self("s_add_u32 s3, s%d, %d" % (S_SLOT, U_OFF + 4064 - 3584))
        self("v_add_u32 v%d, s3, v%d" % (vB, vB))
        ACC = 4; FA = [36, 100]; FB = [68, 132]
        def loadsA(tau, buf):
            return [("lg", "ds_read_b128 %s, v%d offset:%d" % (vr(FA[buf] + 4 * i, 4), vA, 64 * tau + 512 * i), "cA") for i in range(8)]
        def loadsB(tau, buf):
            return [("lg", "ds_read_b128 %s, v%d offset:%d" % (vr(FB[buf] + 4 * i, 4), vB, 3584 - 512 * i + 64 * tau), "cB") for i in range(8)]
        self.bg_add(loadsA(0, 0)); self.bg_flush()
        ua, sa = 168, 169
        self("v_lshlrev_b32 v%d, 5, v%d" % (sa, V_L15))
        self("v_lshl_add_u32 v%d, v%d, 3, v%d" % (sa, V_G, sa))
        self("s_add_u32 s3, s%d, %d" % (S_SLOT, U_OFF + 4088 - 3584))
        self("v_sub_u32 v%d, s3, v%d" % (ua, sa))
        self("s_lshl_b32 s3, s%d, 12" % S_CH)
        self("s_add_u32 s3, s3, %d" % WS_YT)
        self("v_add_u32 v%d, s3, v%d" % (sa, sa))
        self("v_mov_b32 v170, s%d" % S_DVAL)
        self.vm_wait("u")
        self.stamp(7)
        self.bg_add(loadsB(0, 0)); self.bg_flush()
        for tau in range(8):
            buf = tau & 1
            self.lg_wait_all()
            if tau < 7:
                la, lb = loadsA(tau + 1, buf ^ 1), loadsB(tau + 1, buf ^ 1)
                for x, y in zip(la, lb): self.bg_add([x, y])
            pairs = sorted([(i, be - i) for be in range(8) for i in range(be + 1)])
            first = set()
            for kk, (i, m) in enumerate(pairs):
                be = i + m
                c = vr(ACC + 4 * be, 4) if (tau > 0 or be in first) else "0"
                first.add(be)
                self("v_mfma_f32_16x16x32_bf16 %s, %s, %s, %s" % (vr(ACC + 4 * be, 4), vr(FA[buf] + 4 * i, 4), vr(FB[buf] + 4 * m, 4), c))
                self.bg_step(1)
            self.bg_flush()
        self.stamp(8)
        UQ = 36
        for b in range(8):
            self.lg("ds_read_b64 %s, v%d offset:%d" % (vr(UQ + 2 * b, 2), ua, 3584 - 512 * b), "uq")
        self.lg_wait_all()
        U, t, O = 56, 60, 64
        for b in range(8):
            d0, d1 = UQ + 2 * b, UQ + 2 * b + 1
            A = ACC + 4 * b
            self("v_and_b32 v%d, s%d, v%d" % (U + 0, S_MASK, d1))
            self("v_lshlrev_b32 v%d, 16, v%d" % (U + 1, d1))
            self("v_and_b32 v%d, s%d, v%d" % (U + 2, S_MASK, d0))
            self("v_lshlrev_b32 v%d, 16, v%d" % (U + 3, d0))
            self("v_pk_mul_f32 %s, %s, v[170:171] op_sel_hi:[1,0]" % (vr(U, 2), vr(U, 2)))
            self("v_pk_mul_f32 %s, %s, v[170:171] op_sel_hi:[1,0]" % (vr(U + 2, 2), vr(U + 2, 2)))
            self.rnd_pair(U, t); self.rnd_pair(U + 2, t + 1)
            self.rnd_pair(A, t); self.rnd_pair(A + 2, t + 1)
            self("v_pk_add_f32 %s, %s, %s" % (vr(A, 2), vr(A, 2), vr(U, 2)))
            self("v_pk_add_f32 %s, %s, %s" % (vr(A + 2, 2), vr(A + 2, 2), vr(U + 2, 2)))
            o = O + 2 * b
            self("v_cvt_pk_bf16_f32 v%d, v%d, v%d" % (o, A, A + 1))
            self("v_cvt_pk_bf16_f32 v%d, v%d, v%d" % (o + 1, A + 2, A + 3))
            self("global_store_dwordx2 v%d, %s, s[%d:%d] offset:%d sc0 sc1" % (sa, vr(o, 2), P_WS, P_WS + 1, 512 * b))
        self("s_branch %s" % Ldone)
        self("%s:" % Lskip)
        L3 = self.if_wave(3)
        self.weights_prefetch()
        self.close(L3)
        self("%s:" % Ldone)
        self.vmq = []; self.lgq = []

    def weights_prefetch(self):
        a, d = 174, 190
        self.addr_pair(S_TMPP, P_WS, WS_PKFLAG)
        self("v_lshlrev_b32 v%d, 5, v%d" % (a, V_LANE))
        self.poll_pairs(S_TMPP, a, 1, 0, 176 + 0, npair=4) if False else None
        self.poll_pairs(S_TMPP, a, 1, 0, 4, npair=4)
        self.stamp(40)
        for base in (WS_W1P, WS_W2P):
            self.srd(SRD_A, P_WS, WP_SZ, const=base)
            self("s_mul_i32 s3, s%d, 69120" % S_J)
            self("v_lshlrev_b32 v%d, 7, v%d" % (a, V_LANE))
            self("v_add_u32 v%d, s3, v%d" % (a, a))
            for i in range(9):
                if i == 8: self.exec_set("0xfffffff")
                self("buffer_load_dword v%d, v%d, s[%d:%d], 0 offen" % (d, a, SRD_A, SRD_A + 3))
                if i < 8: self("v_add_u32 v%d, 8192, v%d" % (a, a))
            self.exec_restore()

    def w1_dma(self):
        self.srd(SRD_A, P_WS, WP_SZ, const=WS_W1P)
        a = 164
        self("v_lshlrev_b32 v%d, 4, v%d" % (a, V_LANE))
        so, lo = S_T0, S_T0 + 1
        self("s_mul_i32 s%d, s%d, 108" % (so, S_W))
        self("s_add_u32 s%d, s%d, s%d" % (so, so, S_UOFF))
        self("s_lshl_b32 s%d, s%d, 10" % (so, so))
        self("s_mul_i32 s%d, s%d, 7168" % (lo, S_W))
        for it in range(7):
            L = None
            if it == 6:
                L = self.label("L_w1l")
                self("s_cmp_eq_u32 s%d, 2" % S_W)
                self("s_cbranch_scc1 %s" % L)
            self("s_add_u32 m0, s%d, %d" % (lo, LDS_W1 + it * 3 * 7168))
            self("s_add_u32 s3, s%d, %d" % (so, it * 3 * 108 * 1024))
            for i in range(4):
                self("buffer_load_dwordx4 v%d, s[%d:%d], s3 offen offset:%d lds" % (a, SRD_A, SRD_A + 3, 1024 * i))
            self("s_add_u32 m0, s%d, %d" % (lo, LDS_W1 + it * 3 * 7168 + 4096))
            self("s_add_u32 s3, s3, 4096")
            for i in range(3):
                self("buffer_load_dwordx4 v%d, s[%d:%d], s3 offen offset:%d lds" % (a, SRD_A, SRD_A + 3, 1024 * i))
            if L: self("%s:" % L)
    def w2_setup(self):
        self.srd(SRD_W2, P_WS, WP_SZ, const=WS_W2P)
        self("s_mul_i32 s3, s%d, %d" % (S_W, 14 * 40))
        self("s_mul_i32 s%d, s%d, 5" % (S_T0, S_CS))
        self("s_add_u32 s3, s3, s%d" % S_T0)
        self("s_lshl_b32 s%d, s3, 10" % S_W2B)
    def w2_items(self, f0, f1, vlane16):
        it = []
        last = None
        for f in range(f0, f1):
            s, i = divmod(f, 5)
            key = (s, i == 4)
            if key != last:
                it.append("s_add_u32 s61, s%d, %d" % (S_W2B, s * 40 * 1024 + (4096 if i == 4 else 0)))
                last = key
            it.append(("vm", "buffer_load_dwordx4 %s, v%d, s[%d:%d], s61 offen offset:%d" % (w2reg(f), vlane16, SRD_W2, SRD_W2 + 3, 0 if i == 4 else 1024 * i), "w2"))
        return it

    def post_conv(self):
        QN = V_CS
        self.wait_all()
        self("s_barrier")
        self.stamp(10)
        L = self.if_wave(3)
        self("s_lshl_b32 s%d, s%d, 8" % (S_T0, S_G))
        self("s_lshl_b32 s%d, s%d, 3" % (S_T0 + 1, S_J))
        self("s_add_u32 s%d, s%d, s%d" % (S_T0, S_T0, S_T0 + 1))
        self("s_add_u32 s%d, s%d, %d" % (S_T0, S_T0, WS_YFLAG))
        self.flag_store(P_WS, S_T0, 1, device=True)
        self.close(L)
        self.row_stats_issue(0, 60)
        L = self.if_wave(3, eq=False)
        self.w1_dma()
        self.close(L)
        self.stamp(11)
        La, Lb = self.label("L_qa"), self.label("L_qb")
        self("s_cmp_eq_u32 s%d, 3" % S_W)
        self("s_cbranch_scc1 %s" % La)
        self("s_waitcnt vmcnt(42)")
        self("s_branch %s" % Lb)
        self("%s:" % La)
        self("s_waitcnt vmcnt(0)")
        self("%s:" % Lb)
        self.vmq = []
        self.row_stats_validate(0, 60)
        self.row_stats_finish(60, 24, 26)
        XF, d, t = 4, 28, 30
        self.unpack_tile(XF, V_X)
        for i in range(10):
            self("v_pk_add_f32 %s, %s, v[24:25] op_sel_hi:[1,0] neg_lo:[0,1] neg_hi:[0,1]" % (vr(d, 2), vr(XF + 2 * i, 2)))
            self.rnd_pair(d, t)
            self("v_pk_mul_f32 %s, %s, v[26:27] op_sel_hi:[1,0]" % (vr(d, 2), vr(d, 2)))
            self("v_cvt_pk_bf16_f32 v%d, v%d, v%d" % (QN + i, d, d + 1))
        Ly = self.if_wave(3)
        self("s_lshl_b32 s3, s%d, 8" % S_CS)
        self.addr_pair(S_TMPP, P_WS, WS_YFLAG, 3)
        self("v_and_b32 v180, 31, v%d" % V_LANE)
        self("v_lshlrev_b32 v180, 3, v180")
        self.poll_pairs(S_TMPP, 180, 1, 0, 176)
        self.stamp(41)
        self("s_mul_i32 s3, s%d, %d" % (S_CS, 80 * 4096))
        self("s_lshl_b32 s%d, s%d, 9" % (S_T0, S_G))
        self("s_add_u32 s3, s3, s%d" % S_T0)
        self("s_lshl_b32 s%d, s%d, 7" % (S_T0, S_RB))
        self("s_add_u32 s3, s3, s%d" % S_T0)
        self.addr_pair(S_TMPP, P_WS, WS_YT, 3)
        a, b = 164, 165
        self("v_lshrrev_b32 v%d, 3, v%d" % (a, V_LANE))
        self("v_lshlrev_b32 v%d, 12, v%d" % (a, a))
        self("v_and_b32 v%d, 7, v%d" % (b, V_LANE))
        self("v_lshl_add_u32 v%d, v%d, 4, v%d" % (a, b, a))
        for k in range(10):
            self("s_mov_b32 m0, %d" % (LDS_SCR + 1024 * k))
            self("v_add_u32 v%d, %d, v%d" % (b, 8 * 4096 * k, a))
            self("global_load_lds_dwordx4 v%d, s[%d:%d] sc1" % (b, S_TMPP, S_TMPP + 1))
        self("s_waitcnt vmcnt(0)")
        self.close(Ly)
        self("s_barrier")
        self.stamp(12)
        a, b = 164, 165
        self("v_bfe_u32 v%d, v%d, 2, 2" % (a, V_LANE))
        self("v_lshl_add_u32 v%d, v%d, 2, v%d" % (a, V_G, a))
        self("v_lshlrev_b32 v%d, 7, v%d" % (a, a))
        self("v_and_b32 v%d, 3, v%d" % (b, V_LANE))
        self("v_lshl_add_u32 v%d, v%d, 3, v%d" % (a, b, a))
        self("s_lshl_b32 s3, s%d, 5" % S_W)
        self("s_add_u32 s3, s3, %d" % LDS_SCR)
        self("v_add_u32 v%d, s3, v%d" % (a, a))
        for u in range(5):
            self.lg("ds_read_b64_tr_b16 %s, v%d offset:%d" % (vr(V_Y + 2 * u, 2), a, 16 * 128 * u), "ytr")
        self.xf_store_setup(WS_XF1)
        yf, qf = 32, 34
        self.lg_wait_all()
        for i in range(10):
            self.unpack(yf, V_Y + i)
            self.unpack(qf, QN + i)
            self("v_pk_mul_f32 %s, %s, %s" % (vr(d, 2), vr(yf, 2), vr(qf, 2)))
            self.rnd_pair(d, t)
            self("v_pk_add_f32 %s, %s, %s" % (vr(XF + 2 * i, 2), vr(XF + 2 * i, 2), vr(d, 2)))
            self("v_cvt_pk_bf16_f32 v%d, v%d, v%d" % (V_X + i, XF + 2 * i, XF + 2 * i + 1))
            self.unpack(XF + 2 * i, V_X + i)
        self.xf_store()
        self.tile_stats(XF, 1, 28)

    def xf_store_setup(self, ws_off):
        self("s_lshl_b32 s3, s%d, 4" % S_G)
        self("s_lshl_b32 s%d, s%d, 2" % (S_T0, S_RB))
        self("s_add_u32 s3, s3, s%d" % S_T0)
        self("s_add_u32 s3, s3, s%d" % S_W)
        self("s_mul_i32 s3, s3, %d" % (20 * 1024))
        self("s_add_u32 s3, s3, %d" % ws_off)
        a = 170
        self("v_lshlrev_b32 v%d, 4, v%d" % (a, V_LANE))
        self("v_add_u32 v%d, s3, v%d" % (a, a))
        self("s_mul_i32 s%d, s%d, 5" % (S_T0, S_CS))
        for u in range(5):
            self("s_add_u32 s%d, s%d, %d" % (S_T0 + 1, S_T0, u))
            self("s_lshr_b32 s%d, s%d, 1" % (S_T0 + 2, S_T0 + 1))
            self("s_lshl_b32 s%d, s%d, 10" % (S_T0 + 2, S_T0 + 2))
            self("s_and_b32 s%d, s%d, 1" % (S_T0 + 1, S_T0 + 1))
            self("s_lshl_b32 s%d, s%d, 3" % (S_T0 + 1, S_T0 + 1))
            self("s_add_u32 s%d, s%d, s%d" % (S_T0 + 1, S_T0 + 1, S_T0 + 2))
            self("v_add_u32 v%d, s%d, v%d" % (165 + u, S_T0 + 1, a))
    def xf_store(self):
        self.handoff_stores(["global_store_dwordx2 v%d, %s, s[%d:%d]" % (165 + u, vr(V_X + 2 * u, 2), P_WS, P_WS + 1) for u in range(5)], "xf")

    def mixer_update(self, m, rs, xf, tmp):
        yf, d = tmp, tmp + 2
        for i in range(10):
            X = xf + 2 * i
            self.unpack(yf, V_Y + i)
            self("v_pk_add_f32 %s, %s, %s op_sel_hi:[1,0] neg_lo:[0,1] neg_hi:[0,1]" % (vr(d, 2), vr(X, 2), vr(m, 2)))
            self("v_pk_mul_f32 %s, %s, %s op_sel_hi:[1,0]" % (vr(d, 2), vr(d, 2), vr(rs, 2)))
            self("v_pk_fma_f32 %s, %s, %s, %s" % (vr(X, 2), vr(d, 2), vr(yf, 2), vr(X, 2)))
            self("v_cvt_pk_bf16_f32 v%d, v%d, v%d" % (V_X + i, X, X + 1))
            self.unpack(X, V_X + i)

    def colsum(self):
        a, ones, acc = 164, 100, 104
        FR = [112, 120, 128, 136]
        for i in range(4): self("v_mov_b32 v%d, 0x3f803f80" % (ones + i))
        self("v_lshlrev_b32 v%d, 4, v%d" % (a, V_LANE))
        self("s_lshl_b32 s3, s%d, 11" % S_W)
        self("v_add_u32 v%d, s3, v%d" % (a, a))
        self("v_add_u32 v%d, %d, v%d" % (a + 1, 8 * 7168, a))
        self("v_add_u32 v%d, %d, v%d" % (a + 2, 16 * 7168, a))
        def loads(t):
            for i in range(2):
                self.lg("ds_read_b128 %s, v%d offset:%d" % (vr(FR[t % 4] + 4 * i, 4), a + (t // 8), (t % 8) * 7168 + 1024 * i), "cs%d" % t)
        for t in range(3): loads(t)
        for t in range(20):
            if t + 3 < 20: loads(t + 3)
            self.lg_wait("cs%d" % t)
            for i in range(2):
                c = vr(acc + 4 * i, 4) if t else "0"
                self("v_mfma_f32_16x16x32_bf16 %s, %s, %s, %s" % (vr(acc + 4 * i, 4), vr(FR[t % 4] + 4 * i, 4), vr(ones, 4), c))
        b = 144
        self("v_lshlrev_b32 v%d, 4, v%d" % (b, V_G))
        self("s_lshl_b32 s3, s%d, 7" % S_W)
        self("s_add_u32 s3, s3, %d" % LDS_CSX)
        self("v_add_u32 v%d, s3, v%d" % (b, b))
        self("v_cmp_eq_u32 vcc, 0, v%d" % V_L15)
        self("s_and_saveexec_b64 s[%d:%d], vcc" % (S_SAVE, S_SAVE + 1))
        self("ds_write_b128 v%d, %s" % (b, vr(acc, 4)))
        self("ds_write_b128 v%d, %s offset:64" % (b, vr(acc + 4, 4)))
        self.exec_restore()
        self.lg_wait_all()
    def colsum_fetch(self):
        b = 144
        self("v_lshlrev_b32 v%d, 4, v%d" % (b, V_G))
        self("v_add_u32 v%d, %d, v%d" % (b, LDS_CSX, b))
        for u in range(7):
            self.lg("ds_read_b128 %s, v%d offset:%d" % (vr(V_CS + 4 * u, 4), b, 64 * u), "cs")

    G1_ACC = 4; G1_AF = [60, 88]; G1_XR = 116; G1_DEPTH = 7; G1_LA = 172; G1_XA = 183; G1_ST = 174; G1_L16 = 182
    def g1_aloads(self, t, buf):
        return [("lg", "ds_read_b128 %s, v%d offset:%d" % (vr(self.G1_AF[buf] + 4 * i, 4), self.G1_LA, 1024 * i), "a%d" % t) for i in range(7)]
    def g1_setup(self, xf_off, hf_off):
        self("s_lshl_b32 s3, s%d, 4" % S_G)
        self("s_lshl_b32 s%d, s%d, 3" % (S_T0, S_RT))
        self("s_add_u32 s3, s3, s%d" % S_T0)
        self("s_lshl_b32 s%d, s%d, 1" % (S_T0, S_W))
        self("s_add_u32 s%d, s3, s%d" % (S_RU0, S_T0))
        self("s_mul_i32 s3, s%d, %d" % (S_RU0, 20 * 1024))
        self.addr_pair(S_XFB, P_WS, xf_off, 3)
        self.addr_pair(S_TMPQ, S_XFB, 20 * 1024)
        self("v_lshlrev_b32 v%d, 4, v%d" % (self.G1_XA, V_LANE))
        self("v_lshlrev_b32 v%d, 4, v%d" % (self.G1_L16, V_LANE))
        self("s_mul_i32 s%d, s%d, %d" % (S_T0 + 3, S_RU0, 54 * 1024))
        self("s_add_u32 s%d, s%d, %d" % (S_T0 + 3, S_T0 + 3, hf_off))
        for i in range(7):
            self("s_add_u32 s%d, s%d, %d" % (S_T0 + 1, S_UOFF, i))
            self("s_lshr_b32 s%d, s%d, 1" % (S_T0 + 2, S_T0 + 1))
            self("s_lshl_b32 s%d, s%d, 10" % (S_T0 + 2, S_T0 + 2))
            self("s_and_b32 s%d, s%d, 1" % (S_T0 + 1, S_T0 + 1))
            self("s_lshl_b32 s%d, s%d, 3" % (S_T0 + 1, S_T0 + 1))
            self("s_add_u32 s%d, s%d, s%d" % (S_T0 + 1, S_T0 + 1, S_T0 + 2))
            self("s_add_u32 s%d, s%d, s%d" % (S_T0 + 1, S_T0 + 1, S_T0 + 3))
            self("s_add_u32 s%d, s%d, s%d" % (72 + 2 * i, P_WS, S_T0 + 1))
            self("s_addc_u32 s%d, s%d, 0" % (73 + 2 * i, P_WS + 1))
        self("v_lshlrev_b32 v%d, 4, v%d" % (self.G1_LA, V_LANE))
        if LDS_W1: self("v_add_u32 v%d, %d, v%d" % (self.G1_LA, LDS_W1, self.G1_LA))
        for x in self.g1_aloads(0, 0): self.lg(x[1], x[2])
        self("v_add_u32 v%d, 7168, v%d" % (self.G1_LA, self.G1_LA))
    def g1_main(self, statbuf, sb=None, w2range=None):
        ACC, AF, XR, DEPTH, la, xa, ST = self.G1_ACC, self.G1_AF, self.G1_XR, self.G1_DEPTH, self.G1_LA, self.G1_XA, self.G1_ST
        def xload(t):
            for rho in range(2):
                base = S_XFB if rho == 0 else S_TMPQ
                d = XR + ((t % DEPTH) * 2 + rho) * 4
                self.vm("global_load_dwordx4 %s, v%d, s[%d:%d] offset:%d sc1" % (vr(d, 4), xa, base, base + 1, (t % 4) * 1024), "x%d" % t)
            if t % 4 == 3: self("v_add_u32 v%d, 4096, v%d" % (xa, xa))
        for t in range(3): xload(t)
        sa = 59
        self("s_lshl_b32 s3, s%d, 11" % S_RU0)
        self("s_add_u32 s3, s3, %d" % (WS_STAT + statbuf * STAT_SZ))
        self("v_lshlrev_b32 v%d, 7, v%d" % (sa, V_L15))
        self("v_lshl_add_u32 v%d, v%d, 5, v%d" % (sa, V_G, sa))
        self("v_add_u32 v%d, s3, v%d" % (sa, sa))
        for rho in range(2):
            for k in range(2):
                self.vm("global_load_dwordx2 %s, v%d, s[%d:%d] offset:%d sc1" % (vr(ST + 4 * rho + 2 * k, 2), sa, P_WS, P_WS + 1, 2048 * rho + 16 * k), "st")
        for t in range(3, DEPTH): xload(t)
        w2items = self.w2_items(w2range[0], w2range[1], self.G1_L16) if w2range else []
        nper = -(-len(w2items) // 16)
        for t in range(20):
            if t == 1 and sb: self.stamp(sb)
            buf = t & 1
            nxt = self.g1_aloads(t + 1, buf ^ 1) if t < 19 else []
            self.lg_wait_all()
            self.vm_wait("x%d" % t)
            self.bg_add(nxt)
            if t >= 1:
                self.bg_add(w2items[:nper]); w2items = w2items[nper:]
            nbg = len(self.bgq); done = 0
            k = 0
            for i in range(7):
                for rho in range(2):
                    acc = ACC + (rho * 7 + i) * 4
                    c = vr(acc, 4) if t else "0"
                    self("v_mfma_f32_16x16x32_bf16 %s, %s, %s, %s" % (vr(acc, 4), vr(AF[buf] + 4 * i, 4), vr(XR + ((t % DEPTH) * 2 + rho) * 4, 4), c))
                    k += 1
                    want = min(nbg, -(-nbg * k // 11))
                    self.bg_step(want - done); done = want
            self.bg_flush()
            if t < 19: self("v_add_u32 v%d, 7168, v%d" % (la, la))
            if t + DEPTH < 20: xload(t + DEPTH)
        if sb: self.stamp(sb + 1)
        M = [60, 64]; RS = [62, 66]
        self.vm_wait("st")
        for rho in range(2):
            for i in range(4): self("v_mov_b32 v%d, v%d" % (72 + i, ST + 4 * rho + i))
            self.row_stats_finish(72, M[rho], RS[rho])
        ha = 80
        self("v_add_u32 v%d, %d, v%d" % (ha, 54 * 1024, self.G1_L16))
        HA = [self.G1_L16, ha]
        lines = []
        O = 100
        for rho in range(2):
            for i in range(7):
                acc = ACC + (rho * 7 + i) * 4
                for p in range(2):
                    A = acc + 2 * p; C = V_CS + 4 * i + 2 * p
                    self("v_pk_fma_f32 %s, %s, %s, %s op_sel_hi:[1,0,1] neg_lo:[0,1,0] neg_hi:[0,1,0]" % (vr(A, 2), vr(C, 2), vr(M[rho], 2), vr(A, 2)))
                    self("v_pk_mul_f32 %s, %s, %s op_sel_hi:[1,0]" % (vr(A, 2), vr(A, 2), vr(RS[rho], 2)))
                    o = O + (rho * 7 + i) * 2 + p
                    self("v_cvt_pk_bf16_f32 v%d, v%d, v%d" % (o, A, A + 1))
                    self("v_pk_max_i16 v%d, v%d, 0" % (o, o))
                lines.append("global_store_dwordx2 v%d, %s, s[%d:%d]" % (HA[rho], vr(O + (rho * 7 + i) * 2, 2), 72 + 2 * i, 73 + 2 * i))
        self.handoff_stores(lines, "h")

    G2_ACC = [4, 24]; G2_HR = 44; G2_HA = 100; G2_RA = 104; G2_TMP = 108; G2_SUM = 128
    def g2_setup(self, hf_off):
        ha, ra = self.G2_HA, self.G2_RA
        for s in range(14):
            self("s_mul_i32 s3, s%d, 14" % S_W)
            self("s_add_u32 s3, s3, %d" % s)
            self("s_min_u32 s3, s3, 53")
            self("s_lshl_b32 s%d, s3, 10" % (S_HSTEP + s))
        self.srd(SRD_A, P_WS, 0x10000000)
        for k in range(4):
            self("s_add_u32 s3, s%d, %d" % (S_W, 1 + k))
            self("s_and_b32 s3, s3, 3")
            self("s_mul_i32 s%d, s3, 5120" % (S_T0 + 1))
            self("s_lshl_b32 s%d, s%d, 4" % (S_T0, S_G))
            self("s_add_u32 s3, s3, s%d" % S_T0)
            self("s_lshl_b32 s%d, s%d, 2" % (S_T0, S_RB))
            self("s_add_u32 s3, s3, s%d" % S_T0)
            self("s_mul_i32 s3, s3, %d" % (54 * 1024))
            self("s_add_u32 s3, s3, %d" % hf_off)
            self("v_lshlrev_b32 v%d, 4, v%d" % (ha + k, V_LANE))
            self("v_add_u32 v%d, s3, v%d" % (ha + k, ha + k))
            self("v_lshlrev_b32 v%d, 4, v%d" % (ra + k, V_LANE))
            self("s_add_u32 s3, s%d, %d" % (S_T0 + 1, LDS_SCR))
            self("v_add_u32 v%d, s3, v%d" % (ra + k, ra + k))
    def g2_main(self, sb=None):
        ACC, HR, ha, ra, TMP, SUM = self.G2_ACC, self.G2_HR, self.G2_HA, self.G2_RA, self.G2_TMP, self.G2_SUM
        def hload(p):
            k, s = divmod(p, 14)
            self.vm("buffer_load_dwordx4 %s, v%d, s[%d:%d], s%d offen sc1" % (vr(HR + 4 * s, 4), ha + k, SRD_A, SRD_A + 3, S_HSTEP + s), "h%d" % p)
        for p in range(14): hload(p)
        if sb: self.stamp(sb)
        for k in range(4):
            acc = ACC[k & 1]; prev = ACC[(k & 1) ^ 1]
            for s in range(14):
                p = 14 * k + s
                if k > 0:
                    if s == 1:
                        self.bg_add([("lg", "ds_write_b128 v%d, %s offset:%d" % (ra + k - 1, vr(prev + 4 * i, 4), 1024 * i), "rw") for i in range(5)])
                    if s == 4:
                        self.bg_flush(); self.lg_wait_all(); self("s_barrier")
                        self.bg_add([("lg", "ds_read_b128 %s, v%d offset:%d" % (vr(TMP + 4 * i, 4), ra + 3, 1024 * i), "rr") for i in range(5)])
                    if s == 8:
                        self.bg_flush(); self.lg_wait_all(); self("s_barrier")
                        if k == 1:
                            self.bg_add(["v_mov_b32 v%d, v%d" % (SUM + j, TMP + j) for j in range(20)])
                        else:
                            self.bg_add(["v_pk_add_f32 %s, %s, %s" % (vr(SUM + j, 2), vr(SUM + j, 2), vr(TMP + j, 2)) for j in range(0, 20, 2)])
                self.vm_wait("h%d" % p)
                for i in range(5):
                    c = vr(acc + 4 * i, 4) if s > 0 else "0"
                    self("v_mfma_f32_16x16x32_bf16 %s, %s, %s, %s" % (vr(acc + 4 * i, 4), w2reg(s * 5 + i), vr(HR + 4 * s, 4), c))
                    self.bg_step(1)
                if p + 14 < 56: hload(p + 14)
            self.bg_flush()
        if sb: self.stamp(sb + 1)
        acc = ACC[1]
        for j in range(0, 20, 2):
            self("v_pk_add_f32 %s, %s, %s" % (vr(SUM + j, 2), vr(SUM + j, 2), vr(acc + j, 2)))
        return SUM

    def residual_add(self, RES, XF):
        t = 178
        self.unpack_tile(XF, V_X)
        for i in range(10):
            self.rnd_pair(RES + 2 * i, t)
            self("v_pk_add_f32 %s, %s, %s" % (vr(XF + 2 * i, 2), vr(XF + 2 * i, 2), vr(RES + 2 * i, 2)))
            self("v_cvt_pk_bf16_f32 v%d, v%d, v%d" % (V_X + i, XF + 2 * i, XF + 2 * i + 1))
            self.unpack(XF + 2 * i, V_X + i)

    def store_out(self):
        t2 = 164
        self.rowbase()
        self("v_add_u32 v%d, s3, v%d" % (t2, V_L15))
        self("v_mul_u32_u24 v%d, 1280, v%d" % (t2, t2))
        self("s_mul_i32 s3, s%d, 160" % S_CS)
        self("v_lshlrev_b32 v%d, 3, v%d" % (t2 + 1, V_G))
        self("v_add3_u32 v%d, v%d, v%d, s3" % (t2, t2, t2 + 1))
        for u in range(5):
            self.vm("global_store_dwordx2 v%d, %s, s[%d:%d] offset:%d" % (t2, vr(V_X + 2 * u, 2), P_OUT, P_OUT + 1, 32 * u), "out")

    def epoch_update(self):
        L = self.label("L_ep")
        self("s_add_u32 s3, s2, s%d" % S_W)
        self("s_cmp_lg_u32 s3, 0")
        self("s_cbranch_scc1 %s" % L)
        self("s_sub_u32 s3, s%d, 0x%x" % (S_TAG, TAG0))
        self("s_add_u32 s3, s3, 16")
        self("v_mov_b32 v176, s3")
        self("v_mov_b32 v177, %d" % WS_EPOCH)
        self.exec_set("1")
        self("global_store_dword v177, v176, s[%d:%d] sc0 sc1" % (P_WS, P_WS + 1))
        self.exec_restore()
        self("%s:" % L)

    def build(self):
        o = self.o
        self.prologue()
        if o.get("stamps"): self("v_mov_b32 v%d, 0" % V_STAMP)
        self.stamp(0)
        self.repack_issue()
        self.prep_loads()
        self.stamp(38)
        self.repack_finish()
        self.stamp(1)
        self.prep_compute()
        self.stamp(2)
        self.mode_check()
        self.vm_wait("rpst")
        self.lg_wait_all()
        self("s_barrier")
        L = self.if_wave(3)
        self("s_lshl_b32 s%d, s%d, 8" % (S_T0, S_G))
        self("s_lshl_b32 s%d, s%d, 3" % (S_T0 + 1, S_J))
        self("s_add_u32 s%d, s%d, s%d" % (S_T0, S_T0, S_T0 + 1))
        self("s_add_u32 s%d, s%d, %d" % (S_T0, S_T0, WS_PKFLAG))
        self.flag_store(P_WS, S_T0, 1, device=True)
        self.close(L)
        self.mode_fetch()
        self.stamp(3)
        self.prep_store_ur()
        self.unpack_tile(124, V_X)
        self.tile_stats(124, 0, 144)
        self.stamp(4)
        self.barrier_arrive(1)
        self.build_kcopies()
        self.stamp(5)
        self.barrier_wait(1)
        self.stamp(6)
        self.vmq = []; self.lgq = []
        self.conv()
        self.stamp(9)
        self.post_conv()
        self.stamp(13)
        self.barrier_arrive(2)
        self.w2_setup()
        n0, n1 = o.get("w2a", 20), o.get("w2b", 45)
        self("v_lshlrev_b32 v182, 4, v%d" % V_LANE)
        self.bg_add(self.w2_items(0, n0, 182)); self.bg_flush()
        self.colsum()
        self("s_barrier")
        self.colsum_fetch()
        self.stamp(14)
        self.g1_setup(WS_XF1, WS_HF1)
        self.lg_wait_all()
        self.barrier_wait(2)
        self.stamp(15)
        self.g1_main(1, 16, w2range=(n0, n1))
        self.stamp(18)
        self.barrier_arrive(3)
        self("v_lshlrev_b32 v182, 4, v%d" % V_LANE)
        self.bg_add(self.w2_items(n1, 70, 182)); self.bg_flush()
        self.g2_setup(WS_HF1)
        self.barrier_wait(3)
        self.stamp(21)
        RES = self.g2_main(22)
        self.stamp(24)
        XF = 4
        self.residual_add(RES, XF)
        self.tile_stats(XF, 2, 28)
        self.row_stats_issue(2, 60)
        self.xf_store_setup(WS_XF3)
        self.stamp(25)
        self.vm_wait("rs")
        self.row_stats_validate(2, 60)
        self.stamp(26)
        self.row_stats_finish(60, 24, 26)
        self.mixer_update(24, 26, XF, 28)
        self.xf_store()
        self.tile_stats(XF, 3, 28)
        self.stamp(27)
        self.barrier_arrive(4)
        self.g1_setup(WS_XF3, WS_HF2)
        self.barrier_wait(4)
        self.stamp(28)
        self.g1_main(3, 29)
        self.stamp(31)
        self.barrier_arrive(5)
        self.g2_setup(WS_HF2)
        self.barrier_wait(5)
        self.stamp(32)
        RES = self.g2_main(33)
        self.stamp(35)
        self.residual_add(RES, 4)
        self.store_out()
        self.epoch_update()
        self.stamp(36)
        self("s_waitcnt vmcnt(0)")
        self.stamp(37)
        self.stamp_dump()
        self("s_waitcnt vmcnt(0)")
        self("s_branch L_end")
        self("L_abort:")
        self("L_end:")
        self("s_endpgm")

def make(opts):
    k = K(opts)
    k.build()
    body, added = k.text()
    hdr = open("interleave_layers__ssm_conv_h3__dense_activation_relu__prompt.s.ref").read().split("\n")
    head = [l for l in hdr if l.startswith(";") and "@launch" not in l and "Override launch" not in l and "grid=ceil" not in l][:13]
    txt = "\n".join(head) + "\n"
    txt += "; @launch grid=(256,1,1) block=(256,1,1) lds=%d\n" % LDS_TOTAL
    txt += '.amdgcn_target "amdgcn-amd-amdhsa--gfx950"\n.text\n.globl %s\n.p2align 8\n.type %s,@function\n%s:\n' % (KNAME, KNAME, KNAME)
    txt += body
    txt += """.section .rodata,"a"
.p2align 6
.amdhsa_kernel %s
  .amdhsa_next_free_vgpr 512
  .amdhsa_next_free_sgpr 102
  .amdhsa_accum_offset 256
  .amdhsa_group_segment_fixed_size 0
  .amdhsa_kernarg_size 96
  .amdhsa_user_sgpr_count 2
  .amdhsa_user_sgpr_kernarg_segment_ptr 1
  .amdhsa_system_sgpr_workgroup_id_x 1
.end_amdhsa_kernel
""" % KNAME
    return txt, added, len(k.ins)

if __name__ == "__main__":
    import argparse, json
    ap = argparse.ArgumentParser()
    ap.add_argument("-o", default="interleave_layers__ssm_conv_h3__dense_activation_relu__prompt.s")
    ap.add_argument("--opts", default="{}")
    a = ap.parse_args()
    txt, added, n = make(json.loads(a.opts))
    open(a.o, "w").write(txt)
    print("wrote", a.o, "instructions", n, "nop states added", added, "bytes", len(txt))
```

```python
import sys
sys.path.insert(0, "work")
from gen import *

KNAME = "interleave_layers__ssm_conv_h3__dense_activation_relu__prompt_kernel"

WS_EPOCH = 0x0
WS_XCCF  = 0x400
WS_LFLAG = 0x1000
WS_YFLAG = 0x2000
WS_PKFLAG = 0x3000
WS_STAT  = 0x100000
STAT_SZ  = 0x40000
WS_UR    = 0x200000
WS_YT    = 0x500000
WS_W1P   = 0x800000
WS_W2P   = 0xB00000
WP_SZ    = 2211840
WS_XF1   = 0xE00000
WS_XF3   = 0x1100000
WS_HF1   = 0x1400000
WS_HF2   = 0x1B00000
WS_STAMP = 0x2200000
KX = 0x5BD1E995
TAG0 = 0x9E3779B9

KC_STRIDE = 4160
SLOT = 8 * KC_STRIDE + 4608
U_OFF = 8 * KC_STRIDE
LDS_T = 3 * SLOT
T_STRIDE = 144
LDS_W1 = 0
LDS_SCR = 140 * 1024
LDS_TOTAL = 163840
LDS_MODE = LDS_TOTAL - 16
LDS_CSX = LDS_SCR + 16384

S_G, S_J, S_W, S_MODE = 4, 5, 6, 7
SRD_A, SRD_B = 8, 12
P_Q, P_K, P_V, P_SK, P_SSM, P_D, P_W1 = 16, 18, 20, 22, 24, 26, 30
P_W2, P_OUT, P_DBG, P_WS = 32, 34, 36, 38
S_TAG = 28
S_KX = 29
S_RB, S_CS, S_RT, S_CT, S_UOFF = 40, 41, 42, 43, 44
S_MASK = 45
S_XCC = 46
S_CH = 47
S_HASCH = 48
S_DVAL = 49
S_T0 = 50
SRD_W2 = 56
S_W2B = 60
S_RU0 = 63
S_LFLAG = 64
S_TMPP = 66
S_TMPQ = 68
S_SLOT = 70
S_TMO = 71
S_HSTEP = 72
S_XFB = 86
S_M2 = 88
S_XO1, S_XO3, S_HO2 = 90, 91, 96
S_SAVE = 92
S_TS = 94

V_TID, V_LANE, V_L15, V_G = 0, 1, 2, 3
V_STAMP = 173
V_CS = 184
V_Y = 212
V_X = 222
V_W2X = 232

def w2reg(f):
    return ar(4 * f, 4) if f < 64 else vr(V_W2X + 4 * (f - 64), 4)

TIMEOUT = 400000

class K(Gen):
    def __init__(self, opts):
        super().__init__()
        self.o = opts
        self.bgq = []

    def stamp(self, idx):
        if not self.o.get("stamps"): return
        self("s_memtime s[%d:%d]" % (S_TS, S_TS + 1))
        self("s_waitcnt lgkmcnt(0)")
        self("v_writelane_b32 v%d, s%d, %d" % (V_STAMP, S_TS, idx))
        self.lgq = []
    def stamp_dump(self):
        if not self.o.get("stamps"): return
        self("s_lshl_b32 s3, s2, 2")
        self("s_add_u32 s3, s3, s%d" % S_W)
        self("s_lshl_b32 s3, s3, 8")
        self("s_add_u32 s3, s3, %d" % WS_STAMP)
        self("v_lshlrev_b32 v180, 2, v%d" % V_LANE)
        self("v_add_u32 v180, s3, v180")
        self("global_store_dword v180, v%d, s[%d:%d]" % (V_STAMP, P_WS, P_WS + 1))
    def bg_add(self, items): self.bgq.extend(items)
    def bg_step(self, n=1):
        q = self.bgq
        while n > 0 and q:
            it = q.pop(0)
            if callable(it): it()
            elif isinstance(it, tuple):
                kind, text, tag = it
                (self.vm if kind == "vm" else self.lg)(text, tag)
            else: self(it)
            n -= 1
    def bg_flush(self): self.bg_step(1 << 30)
    def if_wave(self, w, eq=True):
        L = self.label("L_iw")
        self("s_cmp_%s_u32 s%d, %d" % ("lg" if eq else "eq", S_W, w))
        self("s_cbranch_scc1 %s" % L)
        return L
    def close(self, L): self("%s:" % L)
    def exec_set(self, mask):
        self("s_mov_b64 s[%d:%d], exec" % (S_SAVE, S_SAVE + 1))
        self("s_mov_b64 exec, %s" % mask)
    def exec_restore(self): self("s_mov_b64 exec, s[%d:%d]" % (S_SAVE, S_SAVE + 1))
    def rnd_pair(self, p, t):
        self("v_cvt_pk_bf16_f32 v%d, v%d, v%d" % (t, p, p + 1))
        self("v_lshlrev_b32 v%d, 16, v%d" % (p, t))
        self("v_and_b32 v%d, s%d, v%d" % (p + 1, S_MASK, t))
    def unpack(self, dst, src):
        self("v_lshlrev_b32 v%d, 16, v%d" % (dst, src))
        self("v_and_b32 v%d, s%d, v%d" % (dst + 1, S_MASK, src))
    def unpack_tile(self, dst, src):
        for i in range(10): self.unpack(dst + 2 * i, src + i)
    def rnd1(self, r, t):
        self("v_cvt_pk_bf16_f32 v%d, v%d, v%d" % (t, r, r))
        self("v_lshlrev_b32 v%d, 16, v%d" % (r, t))
    def xg_sum(self, r, t):
        self("v_mov_b32 v%d, v%d" % (t, r))
        self("v_permlane16_swap_b32 v%d, v%d" % (r, t))
        self("v_add_f32 v%d, v%d, v%d" % (r, r, t))
        self("v_mov_b32 v%d, v%d" % (t, r))
        self("v_permlane32_swap_b32 v%d, v%d" % (r, t))
        self("v_add_f32 v%d, v%d, v%d" % (r, r, t))
    def srd(self, q, ptr, nbytes, const=0, add_sgpr=None):
        self("s_add_u32 s%d, s%d, %d" % (q, ptr, const))
        self("s_addc_u32 s%d, s%d, 0" % (q + 1, ptr + 1))
        if add_sgpr is not None:
            self("s_add_u32 s%d, s%d, s%d" % (q, q, add_sgpr))
            self("s_addc_u32 s%d, s%d, 0" % (q + 1, q + 1))
        self("s_and_b32 s%d, s%d, 0xffff" % (q + 1, q + 1))
        self("s_mov_b32 s%d, %d" % (q + 2, nbytes))
        self("s_mov_b32 s%d, 0x20000" % (q + 3))
    def addr_pair(self, dst, ptr, const=0, add_sgpr=None):
        self("s_add_u32 s%d, s%d, %d" % (dst, ptr, const))
        self("s_addc_u32 s%d, s%d, 0" % (dst + 1, ptr + 1))
        if add_sgpr is not None:
            self("s_add_u32 s%d, s%d, s%d" % (dst, dst, add_sgpr))
            self("s_addc_u32 s%d, s%d, 0" % (dst + 1, dst + 1))
    def handoff_stores(self, lines, tagname="st", record=True):
        Ls, Ld = self.label("L_slow"), self.label("L_sd")
        self("s_cmp_eq_u32 s%d, 0" % S_MODE)
        self("s_cbranch_scc0 %s" % Ls)
        for l in lines: self(l)
        self("s_branch %s" % Ld)
        self("%s:" % Ls)
        for l in lines: self(l + " sc0 sc1")
        self("%s:" % Ld)
        if record:
            for l in lines: self.vmq.append(tagname)
    def rowbase(self):
        self("s_lshl_b32 s3, s%d, 8" % S_G)
        self("s_lshl_b32 s%d, s%d, 6" % (S_T0, S_RB))
        self("s_add_u32 s3, s3, s%d" % S_T0)
        self("s_lshl_b32 s%d, s%d, 4" % (S_T0, S_W))
        self("s_add_u32 s3, s3, s%d" % S_T0)

    def flag_store(self, base_pair, off_sgpr, val, device, vt=176):
        if isinstance(val, int): self("s_add_u32 s3, s%d, %d" % (S_TAG, val))
        else: self("s_add_u32 s3, s%d, %s" % (S_TAG, val))
        self("v_mov_b32 v%d, s3" % vt)
        self("s_xor_b32 s3, s3, s%d" % S_KX)
        self("v_mov_b32 v%d, s3" % (vt + 1))
        self("v_mov_b32 v%d, s%d" % (vt + 2, off_sgpr))
        self.exec_set("1")
        line = "global_store_dwordx2 v%d, %s, s[%d:%d]" % (vt + 2, vr(vt, 2), base_pair, base_pair + 1)
        if device: self(line + " sc0 sc1")
        else: self.handoff_stores([line], record=False)
        self.exec_restore()
    def pair_bad(self, w0, w1, lo, span, t, acc=None):
        self("v_subrev_u32 v%d, s%d, v%d" % (t, lo, w0))
        self("v_cmp_lt_u32 vcc, %d, v%d" % (span, t))
        self("v_xor_b32 v%d, v%d, v%d" % (t, w0, w1))
        self("v_cmp_ne_u32 s[%d:%d], s%d, v%d" % (S_M2, S_M2 + 1, S_KX, t))
        self("s_or_b64 s[%d:%d], vcc, s[%d:%d]" % (S_M2, S_M2 + 1, S_M2, S_M2 + 1))
    def poll_pairs(self, base_pair, voff, lo, span, vt, npair=1):
        L = self.label("L_poll")
        self("s_add_u32 s%d, s%d, %d" % (S_T0 + 5, S_TAG, lo))
        self("s_mov_b32 s%d, %d" % (S_TMO, TIMEOUT))
        self("%s:" % L)
        if npair == 1:
            self("global_load_dwordx2 %s, v%d, s[%d:%d] sc1" % (vr(vt, 2), voff, base_pair, base_pair + 1))
        else:
            for k in range(npair // 2):
                self("global_load_dwordx4 %s, v%d, s[%d:%d] offset:%d sc1" % (vr(vt + 4 * k, 4), voff, base_pair, base_pair + 1, 16 * k))
        self("s_sub_u32 s%d, s%d, 1" % (S_TMO, S_TMO))
        self("s_cmp_eq_u32 s%d, 0" % S_TMO)
        self("s_cbranch_scc1 L_abort")
        self("s_waitcnt vmcnt(0)")
        for k in range(npair):
            self.pair_bad(vt + 2 * k, vt + 2 * k + 1, S_T0 + 5, span, vt + 2 * npair)
            self("s_cbranch_scc1 %s" % L)

    def barrier_arrive(self, phase, drain=True, wave=0):
        if drain: self.wait_all()
        self("s_barrier")
        L = self.if_wave(wave)
        self("s_lshl_b32 s%d, s%d, 3" % (S_T0, S_J))
        self.flag_store(S_LFLAG, S_T0, phase, device=False)
        self.close(L)
    def pk_wait(self):
        L = self.if_wave(3)
        self.addr_pair(S_TMPP, P_WS, WS_PKFLAG)
        self("v_lshlrev_b32 v174, 5, v%d" % V_LANE)
        self.poll_pairs(S_TMPP, 174, 1, 0, 4, npair=4)
        self.stamp(40)
        self.close(L)
    def barrier_wait(self, phase, wave=0, vt=176):
        L = self.if_wave(wave)
        self("v_and_b32 v%d, 31, v%d" % (vt + 4, V_LANE))
        self("v_lshlrev_b32 v%d, 3, v%d" % (vt + 4, vt + 4))
        self.poll_pairs(S_LFLAG, vt + 4, phase, 7 - phase, vt)
        self.close(L)
        self("s_barrier")

    def prologue(self):
        self("s_cmp_ge_u32 s2, 256")
        self("s_cbranch_scc1 L_end")
        self("s_load_dwordx16 s[16:31], s[0:1], 0")
        self("s_load_dwordx8 s[32:39], s[0:1], 64")
        self("s_and_b32 s%d, s2, 7" % S_G)
        self("s_lshr_b32 s%d, s2, 3" % S_J)
        self("v_lshrrev_b32 v4, 6, v0")
        self("v_readfirstlane_b32 s%d, v4" % S_W)
        self("v_and_b32 v%d, 63, v0" % V_LANE)
        self("v_and_b32 v%d, 15, v0" % V_L15)
        self("v_bfe_u32 v%d, v0, 4, 2" % V_G)
        self("s_getreg_b32 s%d, hwreg(HW_REG_XCC_ID, 0, 4)" % S_XCC)
        self("s_mov_b32 s%d, 0xffff0000" % S_MASK)
        self("s_lshr_b32 s%d, s%d, 3" % (S_RB, S_J))
        self("s_and_b32 s%d, s%d, 7" % (S_CS, S_J))
        self("s_lshr_b32 s%d, s%d, 4" % (S_RT, S_J))
        self("s_and_b32 s%d, s%d, 15" % (S_CT, S_J))
        self("s_mul_i32 s3, s%d, %d" % (S_CT, 11 * 4370))
        self("s_lshr_b32 s3, s3, 16")
        self("s_mul_i32 s%d, s%d, 6" % (S_UOFF, S_CT))
        self("s_add_u32 s%d, s%d, s3" % (S_UOFF, S_UOFF))
        self("s_mov_b32 s%d, 0" % S_MODE)
        self("s_waitcnt lgkmcnt(0)")
        wsb = self.o.get("wsbase", 0)
        if wsb:
            self("s_add_u32 s%d, s%d, 0x%x" % (P_WS, P_WS, wsb))
            self("s_addc_u32 s%d, s%d, 0" % (P_WS + 1, P_WS + 1))
        self("s_load_dword s%d, s[%d:%d], %d" % (S_TAG, P_WS, P_WS + 1, WS_EPOCH))
        self("s_mov_b32 s%d, 0x%x" % (S_KX, KX))
        self("s_lshl_b32 s3, s%d, 8" % S_G)
        self.addr_pair(S_LFLAG, P_WS, WS_LFLAG, 3)

    def repack_decode(self, T, src, pitch, dst):
        L2, Ld = self.label("L_rp2"), self.label("L_rpd")
        a, b = S_T0, S_T0 + 1
        self("s_cmp_ge_u32 s%d, 540" % T)
        self("s_cbranch_scc1 %s" % L2)
        self("s_mul_hi_u32 s%d, s%d, %d" % (a, T, (1 << 32) // 27 + 1))
        self("s_mul_i32 s%d, s%d, 27" % (b, a))
        self("s_sub_u32 s%d, s%d, s%d" % (b, T, b))
        self("s_mul_i32 s3, s%d, %d" % (a, 32 * 3456))
        self("s_lshl_b32 s%d, s%d, 7" % (pitch, b))
        self("s_add_u32 s3, s3, s%d" % pitch)
        self.addr_pair(src, P_W1, 0, 3)
        self("s_mul_i32 s3, s%d, 108" % a)
        self("s_lshl_b32 s%d, s%d, 2" % (b, b))
        self("s_add_u32 s3, s3, s%d" % b)
        self("s_lshl_b32 s3, s3, 10")
        self("s_add_u32 s%d, s3, %d" % (dst, WS_W1P))
        self("s_movk_i32 s%d, 3456" % pitch)
        self("s_branch %s" % Ld)
        self("%s:" % L2)
        self("s_sub_u32 s3, s%d, 540" % T)
        self("s_mul_hi_u32 s%d, s3, %d" % (a, (1 << 32) // 10 + 1))
        self("s_mul_i32 s%d, s%d, 10" % (b, a))
        self("s_sub_u32 s%d, s3, s%d" % (b, b))
        self("s_mul_i32 s3, s%d, %d" % (a, 32 * 1280))
        self("s_lshl_b32 s%d, s%d, 7" % (pitch, b))
        self("s_add_u32 s3, s3, s%d" % pitch)
        self.addr_pair(src, P_W2, 0, 3)
        self("s_mul_i32 s3, s%d, 40" % a)
        self("s_lshl_b32 s%d, s%d, 2" % (b, b))
        self("s_add_u32 s3, s3, s%d" % b)
        self("s_lshl_b32 s3, s3, 10")
        self("s_add_u32 s%d, s3, %d" % (dst, WS_W2P))
        self("s_movk_i32 s%d, 1280" % pitch)
        self("%s:" % Ld)
    def repack_issue(self):
        T, T2 = 72, 73
        self.RP = dict(src1=74, pitch1=76, dst1=77, src2=78, pitch2=80, dst2=81, has2=82, lds=83)
        R = self.RP
        self("s_lshl_b32 s%d, s2, 2" % T)
        self("s_add_u32 s%d, s%d, s%d" % (T, T, S_W))
        self("s_cmp_lt_u32 s%d, 56" % T)
        self("s_cselect_b32 s%d, 1, 0" % R["has2"])
        self("s_lshl_b32 s%d, s%d, 13" % (R["lds"], S_W))
        self.repack_decode(T, R["src1"], R["pitch1"], R["dst1"])
        row, ch, off = 100, 101, 102
        self("v_lshrrev_b32 v%d, 3, v%d" % (row, V_LANE))
        self("v_and_b32 v%d, 7, v%d" % (ch, V_LANE))
        self("v_lshlrev_b32 v%d, 4, v%d" % (ch, ch))
        def dma(src, pitch, ldsoff, rec):
            self("v_mul_lo_u32 v%d, v%d, s%d" % (off, row, pitch))
            self("v_add_u32 v%d, v%d, v%d" % (off, off, ch))
            self("s_lshl_b32 s%d, s%d, 3" % (S_T0, pitch))
            for r in range(4):
                self("s_add_u32 m0, s%d, %d" % (R["lds"], ldsoff + 1024 * r))
                if r: self("v_add_u32 v%d, s%d, v%d" % (off, S_T0, off))
                t = "global_load_lds_dwordx4 v%d, s[%d:%d]" % (off, src, src + 1)
                if rec: self.vm(t, "rp")
                else: self(t)
        L = self.label("L_rp1")
        self("s_cmp_eq_u32 s%d, 0" % R["has2"])
        self("s_cbranch_scc1 %s" % L)
        self("s_add_u32 s%d, s%d, 1024" % (T2, T))
        self.repack_decode(T2, R["src2"], R["pitch2"], R["dst2"])
        dma(R["src2"], R["pitch2"], 4096, False)
        self("%s:" % L)
        dma(R["src1"], R["pitch1"], 0, True)
    def repack_finish(self):
        R = self.RP
        a, F, sa = 100, 104, 101
        self.vm_wait("rp")
        self("v_bfe_u32 v%d, v%d, 2, 2" % (a, V_LANE))
        self("v_lshl_add_u32 v%d, v%d, 2, v%d" % (a, V_G, a))
        self("v_lshlrev_b32 v%d, 7, v%d" % (a, a))
        self("v_and_b32 v%d, 3, v%d" % (sa, V_LANE))
        self("v_lshl_add_u32 v%d, v%d, 3, v%d" % (a, sa, a))
        self("v_add_u32 v%d, s%d, v%d" % (a, R["lds"], a))
        def one(ldsoff, dst, rec):
            for u in range(4):
                for h in range(2):
                    self("ds_read_b64_tr_b16 %s, v%d offset:%d" % (vr(F + 4 * u + 2 * h, 2), a, ldsoff + h * 2048 + 32 * u))
            self("v_lshlrev_b32 v%d, 4, v%d" % (sa, V_LANE))
            self("v_add_u32 v%d, s%d, v%d" % (sa, dst, sa))
            self("s_waitcnt lgkmcnt(0)")
            for u in range(4):
                t = "global_store_dwordx4 v%d, %s, s[%d:%d] offset:%d sc0 sc1" % (sa, vr(F + 4 * u, 4), P_WS, P_WS + 1, 1024 * u)
                if rec: self.vm(t, "rpst")
                else: self(t)
        L = self.label("L_rf2")
        self("s_cmp_eq_u32 s%d, 0" % R["has2"])
        self("s_cbranch_scc1 %s" % L)
        one(4096, R["dst2"], False)
        self("s_nop 1")
        self("%s:" % L)
        one(0, R["dst1"], True)
        self.lgq = []

    def prep_loads(self):
        KR, VR, TAP, RAW = 4, 34, 46, 66
        self.KR, self.VR, self.TAP, self.RAW = KR, VR, TAP, RAW
        c10, rp, off = 110, 111, 112
        self("v_and_b32 v%d, 7, v0" % c10)
        self("v_lshrrev_b32 v%d, 3, v0" % rp)
        self("s_lshl_b32 s3, s%d, 6" % S_J)
        self("s_sub_u32 s3, s3, 3")
        self("v_lshlrev_b32 v%d, 1, v%d" % (off, rp))
        self("v_add_u32 v%d, s3, v%d" % (off, off))
        self("s_movk_i32 s%d, 1280" % S_T0)
        self("v_mul_lo_u32 v%d, v%d, s%d" % (off, off, S_T0))
        self("s_mul_i32 s3, s%d, 160" % S_G)
        self("v_mul_u32_u24 v%d, 20, v%d" % (off + 1, c10))
        self("v_add3_u32 v%d, v%d, v%d, s3" % (off, off, off + 1))
        self.srd(SRD_A, P_K, 2621440)
        self.srd(SRD_B, P_V, 2621440)
        offs = [off]
        for r in range(1, 5):
            self("v_add_u32 v%d, %d, v%d" % (off + 1 + r, 1280 * r, off))
            offs.append(off + 1 + r)
        for r in range(5):
            self.vm("buffer_load_dwordx4 %s, v%d, s[%d:%d], 0 offen" % (vr(KR + 6 * r, 4), offs[r], SRD_A, SRD_A + 3), "k")
            self.vm("buffer_load_dword v%d, v%d, s[%d:%d], 0 offen offset:16" % (KR + 6 * r + 4, offs[r], SRD_A, SRD_A + 3), "k")
        for r in range(2):
            self.vm("buffer_load_dwordx4 %s, v%d, s[%d:%d], 0 offen" % (vr(VR + 6 * r, 4), offs[3 + r], SRD_B, SRD_B + 3), "v")
            self.vm("buffer_load_dword v%d, v%d, s[%d:%d], 0 offen offset:16" % (VR + 6 * r + 4, offs[3 + r], SRD_B, SRD_B + 3), "v")
        t = off + 7
        self("s_mul_i32 s3, s%d, 640" % S_G)
        self("v_mul_u32_u24 v%d, 80, v%d" % (t, c10))
        self("v_add_u32 v%d, s3, v%d" % (t, t))
        for i in range(5):
            self.vm("global_load_dwordx4 %s, v%d, s[%d:%d] offset:%d" % (vr(TAP + 4 * i, 4), t, P_SK, P_SK + 1, 16 * i), "tap")
        t2 = off + 8
        self.rowbase()
        self("v_add_u32 v%d, s3, v%d" % (t2, V_L15))
        self("v_mul_u32_u24 v%d, 1280, v%d" % (t2, t2))
        self("s_mul_i32 s3, s%d, 160" % S_CS)
        self("v_lshlrev_b32 v%d, 3, v%d" % (t2 + 1, V_G))
        self("v_add3_u32 v%d, v%d, v%d, s3" % (t2, t2, t2 + 1))
        for u in range(5):
            self.vm("global_load_dwordx2 %s, v%d, s[%d:%d] offset:%d" % (vr(V_X + 2 * u, 2), t2, P_Q, P_Q + 1, 32 * u), "q")
        self("s_lshl_b32 s3, s%d, 5" % S_W)
        self("s_add_u32 s3, s3, s%d" % S_J)
        self("s_cmp_lt_u32 s3, 80")
        self("s_cselect_b32 s%d, 1, 0" % S_HASCH)
        self("s_cselect_b32 s3, s3, 0")
        self("s_mul_i32 s%d, s%d, 80" % (S_CH, S_G))
        self("s_add_u32 s%d, s%d, s3" % (S_CH, S_CH))
        self("s_mul_i32 s%d, s%d, %d" % (S_SLOT, S_W, SLOT))
        self("s_cmp_lt_u32 s%d, 3" % S_W)
        self("s_cselect_b32 s%d, s%d, 0" % (S_SLOT, S_SLOT))
        self("s_lshl_b32 s3, s%d, 1" % S_CH)
        self("s_and_b32 s3, s3, 0xfffffffc")
        self("s_load_dword s%d, s[%d:%d], s3" % (S_DVAL, P_D, P_D + 1))
        self("s_lshl_b32 s3, s%d, 12" % S_CH)
        self.srd(52, P_SSM, 4096, add_sgpr=3)
        a = off + 10
        self("v_lshlrev_b32 v%d, 4, v%d" % (a, V_LANE))
        for r in range(4):
            self("v_add_u32 v%d, %d, v%d" % (a + 1, (1024 * r - 16) & 0xffffffff, a))
            self.vm("buffer_load_dwordx4 %s, v%d, s[52:55], 0 offen" % (vr(RAW + 8 * r, 4), a + 1), "raw")
            self.vm("buffer_load_dwordx4 %s, v%d, s[52:55], 0 offen offset:%d" % (vr(RAW + 8 * r + 4, 4), a, 1024 * r), "raw")
        La, Lb = self.label("L_pt"), self.label("L_ptd")
        self("s_cmp_ge_u32 s%d, 2" % S_W)
        self("s_cbranch_scc1 %s" % La)
        self("s_lshl_b32 s3, s%d, 6" % S_W)
        self("v_add_u32 v%d, s3, v%d" % (a, V_LANE))
        self("v_min_u32 v%d, 79, v%d" % (a, a))
        self("v_lshlrev_b32 v%d, 12, v%d" % (a, a))
        self("s_mul_i32 s3, s%d, %d" % (S_G, 80 * 4096))
        self("s_sub_u32 s%d, 31, s%d" % (S_T0, S_J))
        self("s_lshl_b32 s%d, s%d, 7" % (S_T0, S_T0))
        self("s_add_u32 s3, s3, s%d" % S_T0)
        self("s_add_u32 s3, s3, %d" % WS_UR)
        self("v_add_u32 v%d, s3, v%d" % (a, a))
        self("global_load_dword v%d, v%d, s[%d:%d]" % (a + 1, a, P_WS, P_WS + 1))
        self("s_branch %s" % Lb)
        self("%s:" % La)
        self("s_lshl_b32 s3, s%d, 8" % S_G)
        self("s_lshl_b32 s%d, s%d, 6" % (S_T0, S_RB))
        self("s_add_u32 s3, s3, s%d" % S_T0)
        self("s_lshl_b32 s%d, s%d, 3" % (S_T0, S_CS))
        self("s_add_u32 s3, s3, s%d" % S_T0)
        self("v_and_b32 v%d, 7, v%d" % (a, V_LANE))
        self("v_add_u32 v%d, s3, v%d" % (a, a))
        self("v_lshlrev_b32 v%d, 7, v%d" % (a, a))
        self("v_bfe_u32 v%d, v%d, 3, 1" % (a + 1, V_LANE))
        self("s_sub_u32 s3, s%d, 2" % S_W)
        self("s_lshl_b32 s3, s3, 1")
        self("v_add_u32 v%d, s3, v%d" % (a + 1, a + 1))
        self("v_mul_u32_u24 v%d, %d, v%d" % (a + 1, STAT_SZ, a + 1))
        self("v_add3_u32 v%d, v%d, v%d, %s" % (a, a, a + 1, "s%d" % S_T0)) if False else None
        self("v_add_u32 v%d, v%d, v%d" % (a, a, a + 1))
        self("v_add_u32 v%d, %d, v%d" % (a, WS_STAT, a))
        self("global_load_dword v%d, v%d, s[%d:%d]" % (a + 1, a, P_WS, P_WS + 1))
        self("v_and_b32 v%d, 1, v%d" % (a, V_LANE))
        self("v_lshlrev_b32 v%d, 7, v%d" % (a, a))
        self("global_load_dword v%d, v%d, s[%d:%d]" % (a + 1, a, S_LFLAG, S_LFLAG + 1))
        self("%s:" % Lb)
        self("s_waitcnt lgkmcnt(0)")
        self("s_add_u32 s%d, s%d, 0x%x" % (S_TAG, S_TAG, TAG0))
        L = self.if_wave(0)
        self("s_lshl_b32 s%d, s%d, 8" % (S_T0, S_G))
        self("s_lshl_b32 s%d, s%d, 3" % (S_T0 + 1, S_J))
        self("s_add_u32 s%d, s%d, s%d" % (S_T0, S_T0, S_T0 + 1))
        self("s_add_u32 s%d, s%d, %d" % (S_T0, S_T0, WS_XCCF))
        self.flag_store(P_WS, S_T0, "s%d" % S_XCC, device=True)
        self.close(L)

    def prep_compute(self):
        KR, VR, TAP = self.KR, self.VR, self.TAP
        Kp, Tp, Vp = 124, 134, 142
        A0, A1, P0, P1, t0, t1 = 146, 148, 150, 152, 154, 155
        O0, O1 = 156, 157
        lad = 158
        self("v_and_b32 v%d, 7, v0" % lad)
        self("v_mul_u32_u24 v%d, %d, v%d" % (lad, 10 * T_STRIDE, lad))
        self("v_lshrrev_b32 v%d, 3, v0" % (lad + 1))
        self("v_lshlrev_b32 v%d, 2, v%d" % (lad + 1, lad + 1))
        self("v_sub_u32 v%d, v%d, v%d" % (lad, lad, lad + 1))
        self("v_add_u32 v%d, %d, v%d" % (lad, LDS_T + 124, lad))
        self.vm_wait(["k", "v", "tap"])
        self.stamp(39)
        pk = lambda op, d, a, b: self("v_pk_%s_f32 %s, %s, %s" % (op, vr(d, 2), vr(a, 2), vr(b, 2)))
        for i in range(5):
            for r in range(5): self.unpack(Kp + 2 * r, KR + 6 * r + i)
            for t in range(4):
                s0 = TAP + 4 * i + (t >> 1); s1 = s0 + 2
                if t & 1:
                    self("v_and_b32 v%d, s%d, v%d" % (Tp + 2 * t, S_MASK, s0))
                    self("v_and_b32 v%d, s%d, v%d" % (Tp + 2 * t + 1, S_MASK, s1))
                else:
                    self("v_lshlrev_b32 v%d, 16, v%d" % (Tp + 2 * t, s0))
                    self("v_lshlrev_b32 v%d, 16, v%d" % (Tp + 2 * t + 1, s1))
            for r in range(2): self.unpack(Vp + 2 * r, VR + 6 * r + i)
            pk("mul", A0, Kp + 0, Tp + 6); pk("mul", A1, Kp + 2, Tp + 6)
            self.rnd_pair(A0, t0); self.rnd_pair(A1, t1)
            for step in range(1, 4):
                T = Tp + 2 * (3 - step)
                pk("mul", P0, Kp + 2 * step, T); pk("mul", P1, Kp + 2 * (step + 1), T)
                self.rnd_pair(P0, t0); self.rnd_pair(P1, t1)
                pk("add", A0, A0, P0); pk("add", A1, A1, P1)
                self.rnd_pair(A0, t0); self.rnd_pair(A1, t1)
            pk("mul", A0, A0, Vp + 0); pk("mul", A1, A1, Vp + 2)
            self("v_cvt_pk_bf16_f32 v%d, v%d, v%d" % (O0, A1, A0))
            self("v_cvt_pk_bf16_f32 v%d, v%d, v%d" % (O1, A1 + 1, A0 + 1))
            self.lg("ds_write_b32 v%d, v%d offset:%d" % (lad, O0, (2 * i) * T_STRIDE), "tw")
            self.lg("ds_write_b32 v%d, v%d offset:%d" % (lad, O1, (2 * i + 1) * T_STRIDE), "tw")

    def mode_check(self, vt=176):
        L = self.if_wave(0)
        self("s_lshl_b32 s3, s%d, 8" % S_G)
        self.addr_pair(S_TMPP, P_WS, WS_XCCF, 3)
        self("v_and_b32 v%d, 31, v%d" % (vt + 4, V_LANE))
        self("v_lshlrev_b32 v%d, 3, v%d" % (vt + 4, vt + 4))
        self.poll_pairs(S_TMPP, vt + 4, 0, 7, vt)
        self("s_add_u32 s3, s%d, s%d" % (S_TAG, S_XCC))
        self("v_cmp_ne_u32 vcc, s3, v%d" % vt)
        self("s_nop 1")
        self("s_cmp_lg_u64 vcc, 0")
        self("s_cselect_b32 s%d, 1, 0" % S_MODE)
        if self.o.get("force_slow"): self("s_mov_b32 s%d, 1" % S_MODE)
        self("v_mov_b32 v%d, s%d" % (vt, S_MODE))
        self("v_mov_b32 v%d, %d" % (vt + 1, LDS_MODE))
        self("ds_write_b32 v%d, v%d" % (vt + 1, vt))
        self.close(L)
    def mode_fetch(self, vt=176):
        self("v_mov_b32 v%d, %d" % (vt + 1, LDS_MODE))
        self("ds_read_b32 v%d, v%d" % (vt, vt + 1))
        self("s_waitcnt lgkmcnt(0)")
        self("v_readfirstlane_b32 s%d, v%d" % (S_MODE, vt))
        self.lgq = []
        alias = self.o.get("alias", 1)
        self("s_mov_b32 s%d, %d" % (S_XO1, WS_UR if alias else WS_XF1))
        self("s_mov_b32 s%d, %d" % (S_XO3, WS_UR if alias else WS_XF3))
        self("s_mov_b32 s%d, %d" % (S_HO2, WS_HF1 if alias else WS_HF2))
        L = self.label("L_al")
        self("s_cmp_eq_u32 s%d, 0" % S_MODE)
        self("s_cbranch_scc1 %s" % L)
        self("s_mov_b32 s%d, %d" % (S_XO1, WS_XF1))
        self("s_mov_b32 s%d, %d" % (S_XO3, WS_XF3))
        self("s_mov_b32 s%d, %d" % (S_HO2, WS_HF2))
        self("%s:" % L)

    def tile_stats(self, xf, buf, tmp):
        s, t = tmp, tmp + 4
        d = tmp + 6
        m2 = tmp + 26
        pk = lambda op, dd, a, b: self("v_pk_%s_f32 %s, %s, %s" % (op, vr(dd, 2), vr(a, 2), vr(b, 2)))
        pk("add", s, xf, xf + 2)
        for i in range(2, 10): pk("add", s, s, xf + 2 * i)
        self("v_add_f32 v%d, v%d, v%d" % (s, s, s + 1))
        self.xg_sum(s, t)
        self("v_mul_f32 v%d, 0x3c4ccccd, v%d" % (s, s))
        for i in range(10):
            self("v_pk_add_f32 %s, %s, %s op_sel_hi:[1,0] neg_lo:[0,1] neg_hi:[0,1]" % (vr(d + 2 * i, 2), vr(xf + 2 * i, 2), vr(s, 2)))
        pk("mul", m2, d, d)
        for i in range(1, 10):
            self("v_pk_fma_f32 %s, %s, %s, %s" % (vr(m2, 2), vr(d + 2 * i, 2), vr(d + 2 * i, 2), vr(m2, 2)))
        self("v_add_f32 v%d, v%d, v%d" % (s + 1, m2, m2 + 1))
        self.xg_sum(s + 1, t)
        self("s_add_u32 s3, s%d, %d" % (S_TAG, buf))
        self("v_mov_b32 v%d, s3" % (s + 2))
        self("s_xor_b32 s3, s3, s%d" % S_KX)
        self("v_mov_b32 v%d, s3" % (s + 3))
        self.rowbase()
        self("s_lshl_b32 s3, s3, 7")
        self("s_lshl_b32 s%d, s%d, 4" % (S_T0, S_CS))
        self("s_add_u32 s3, s3, s%d" % S_T0)
        self("s_add_u32 s3, s3, %d" % (WS_STAT + buf * STAT_SZ))
        self("v_lshlrev_b32 v%d, 7, v%d" % (t, V_L15))
        self("v_add_u32 v%d, s3, v%d" % (t, t))
        self.exec_set("0xffff")
        self.handoff_stores(["global_store_dwordx4 v%d, %s, s[%d:%d]" % (t, vr(s, 4), P_WS, P_WS + 1)], "stat")
        self.exec_restore()
    def row_stats_issue(self, buf, tmp):
        a = tmp + 8
        self.rowbase()
        self("s_lshl_b32 s3, s3, 7")
        self("s_add_u32 s3, s3, %d" % (WS_STAT + buf * STAT_SZ))
        self("v_lshlrev_b32 v%d, 7, v%d" % (a, V_L15))
        self("v_lshl_add_u32 v%d, v%d, 5, v%d" % (a, V_G, a))
        self("v_add_u32 v%d, s3, v%d" % (a, a))
        for k in range(2):
            self.vm("global_load_dwordx4 %s, v%d, s[%d:%d] offset:%d sc1" % (vr(tmp + 4 * k, 4), a, P_WS, P_WS + 1, 16 * k), "rs")
    def row_stats_validate(self, buf, tmp):
        Lr, Lo = self.label("L_rsr"), self.label("L_rso")
        self("s_add_u32 s%d, s%d, %d" % (S_T0 + 5, S_TAG, buf))
        self("s_mov_b32 s%d, %d" % (S_TMO, TIMEOUT))
        self("%s:" % Lr)
        self.pair_bad(tmp + 2, tmp + 3, S_T0 + 5, 0, tmp + 9)
        self("s_mov_b64 s[%d:%d], s[%d:%d]" % (S_TMPQ, S_TMPQ + 1, S_M2, S_M2 + 1))
        self.pair_bad(tmp + 6, tmp + 7, S_T0 + 5, 0, tmp + 9)
        self("s_or_b64 s[%d:%d], s[%d:%d], s[%d:%d]" % (S_M2, S_M2 + 1, S_M2, S_M2 + 1, S_TMPQ, S_TMPQ + 1))
        self("s_cbranch_scc0 %s" % Lo)
        self("s_sub_u32 s%d, s%d, 1" % (S_TMO, S_TMO))
        self("s_cmp_eq_u32 s%d, 0" % S_TMO)
        self("s_cbranch_scc1 L_abort")
        for k in range(2):
            self("global_load_dwordx4 %s, v%d, s[%d:%d] offset:%d sc1" % (vr(tmp + 4 * k, 4), tmp + 8, P_WS, P_WS + 1, 16 * k))
        self("s_waitcnt vmcnt(0)")
        self("s_branch %s" % Lr)
        self("%s:" % Lo)
        self("v_mov_b32 v%d, v%d" % (tmp + 2, tmp + 4))
        self("v_mov_b32 v%d, v%d" % (tmp + 3, tmp + 5))
    def row_stats_finish_items(self, tmp, out_m, out_rs):
        m0, q0, m1, q1 = tmp, tmp + 1, tmp + 2, tmp + 3
        s, t = tmp + 4, tmp + 5
        g = Gen()
        def xs(r):
            g("v_mov_b32 v%d, v%d" % (t, r)); g("v_permlane16_swap_b32 v%d, v%d" % (r, t)); g("v_add_f32 v%d, v%d, v%d" % (r, r, t))
            g("v_mov_b32 v%d, v%d" % (t, r)); g("v_permlane32_swap_b32 v%d, v%d" % (r, t)); g("v_add_f32 v%d, v%d, v%d" % (r, r, t))
        def r1(r):
            g("v_cvt_pk_bf16_f32 v%d, v%d, v%d" % (t, r, r)); g("v_lshlrev_b32 v%d, 16, v%d" % (r, t))
        g("v_add_f32 v%d, v%d, v%d" % (s, m0, m1)); xs(s)
        g("v_mul_f32 v%d, 0x3e000000, v%d" % (s, s))
        g("v_sub_f32 v%d, v%d, v%d" % (m0, m0, s)); g("v_sub_f32 v%d, v%d, v%d" % (m1, m1, s))
        g("v_mul_f32 v%d, v%d, v%d" % (m0, m0, m0)); g("v_fmac_f32 v%d, v%d, v%d" % (m0, m1, m1))
        g("v_add_f32 v%d, v%d, v%d" % (q0, q0, q1))
        g("v_mov_b32 v%d, 0x42a00000" % t); g("v_fmac_f32 v%d, v%d, v%d" % (q0, m0, t)); xs(q0)
        g("v_mul_f32 v%d, 0x3acccccd, v%d" % (q0, q0)); r1(q0)
        g("v_add_f32 v%d, 0x3727c5ac, v%d" % (q0, q0)); r1(q0)
        g("v_sqrt_f32 v%d, v%d" % (q0, q0)); g("s_nop 0"); r1(q0)
        g("v_rcp_f32 v%d, v%d" % (out_rs, q0)); r1(s)
        g("v_mov_b32 v%d, v%d" % (out_m, s))
        return [i.text.strip() for i in g.ins]
    def row_stats_finish(self, tmp, out_m, out_rs):
        for l in self.row_stats_finish_items(tmp, out_m, out_rs): self(l)

    def prep_store_ur(self):
        a, b = 100, 101
        self("v_lshrrev_b32 v%d, 3, v0" % a)
        self("v_and_b32 v%d, 7, v0" % b)
        self("v_lshlrev_b32 v%d, 4, v%d" % (b, b))
        self("v_mul_u32_u24 v%d, %d, v%d" % (102, T_STRIDE, a))
        self("v_add3_u32 v%d, v%d, v%d, 0" % (102, 102, b))
        self("v_add_u32 v%d, %d, v%d" % (102, LDS_T, 102))
        self("s_mul_i32 s3, s%d, %d" % (S_G, 80 * 4096))
        self("s_sub_u32 s%d, 31, s%d" % (S_T0, S_J))
        self("s_lshl_b32 s%d, s%d, 7" % (S_T0, S_T0))
        self("s_add_u32 s3, s3, s%d" % S_T0)
        self("s_add_u32 s3, s3, %d" % WS_UR)
        self("v_lshlrev_b32 v%d, 12, v%d" % (103, a))
        self("v_add3_u32 v%d, v%d, v%d, s3" % (103, 103, b))
        for r in range(2):
            self("ds_read_b128 %s, v102 offset:%d" % (vr(104 + 4 * r, 4), 32 * T_STRIDE * r))
        L = self.label("L_ur")
        self("s_cmp_ge_u32 s%d, 2" % S_W)
        self("s_cbranch_scc1 %s" % L)
        self("ds_read_b128 v[112:115], v102 offset:%d" % (32 * T_STRIDE * 2))
        self("%s:" % L)
        self("v_add_u32 v116, %d, v103" % (32 * 4096))
        self("v_add_u32 v117, %d, v103" % (64 * 4096))
        self("s_waitcnt lgkmcnt(0)")
        self.handoff_stores(["global_store_dwordx4 v103, v[104:107], s[%d:%d]" % (P_WS, P_WS + 1),
                             "global_store_dwordx4 v116, v[108:111], s[%d:%d]" % (P_WS, P_WS + 1)], "ur")
        L = self.label("L_ur2")
        self("s_cmp_ge_u32 s%d, 2" % S_W)
        self("s_cbranch_scc1 %s" % L)
        self.handoff_stores(["global_store_dwordx4 v117, v[112:115], s[%d:%d]" % (P_WS, P_WS + 1)], "ur", record=False)
        self("%s:" % L)
        self.lgq = []

    def build_kcopies(self):
        RAW = self.RAW
        SETS = [(110, 116, 122), (134, 140, 146)]
        ad, z = 128, 130
        L = self.label("L_kc")
        self("s_cmp_eq_u32 s%d, 0" % S_HASCH)
        self("s_cbranch_scc1 %s" % L)
        self("v_lshlrev_b32 v%d, 4, v%d" % (ad, V_LANE))
        self("s_add_u32 s3, s%d, 16" % S_SLOT)
        self("v_add_u32 v%d, s3, v%d" % (ad, ad))
        for r in range(4):
            R = RAW + 8 * r
            A, B, C = SETS[r & 1]
            if r >= 2: self("s_waitcnt lgkmcnt(8)")
            for i in range(6):
                self("v_alignbit_b32 v%d, v%d, v%d, 16" % (A + i, R + i + 1, R + i))
            for i in range(6):
                self("v_alignbit_b32 v%d, v%d, v%d, 16" % (B + i, R + i + 2, R + i + 1))
            for i in range(6):
                self("v_mov_b32 v%d, v%d" % (C + i, R + i + 1))
            src = {0: A, 1: C, 2: B, 3: R + 2, 4: A + 2, 5: C + 2, 6: B + 2, 7: R + 4}
            for c in range(8):
                self("ds_write_b128 v%d, %s offset:%d" % (ad, vr(src[c], 4), c * KC_STRIDE + 1024 * r))
        for i in range(4): self("v_mov_b32 v%d, 0" % (z + i))
        self("v_mul_u32_u24 v%d, %d, v%d" % (ad + 1, KC_STRIDE, V_LANE))
        self("v_add_u32 v%d, s%d, v%d" % (ad + 1, S_SLOT, ad + 1))
        self.exec_set("0xff")
        self("ds_write_b128 v%d, %s" % (ad + 1, vr(z, 4)))
        self("s_mov_b64 exec, 0x3fffffff")
        self("v_lshlrev_b32 v%d, 4, v%d" % (ad + 1, V_LANE))
        self("s_add_u32 s3, s%d, %d" % (S_SLOT, U_OFF + 4096))
        self("v_add_u32 v%d, s3, v%d" % (ad + 1, ad + 1))
        self("ds_write_b128 v%d, %s" % (ad + 1, vr(z, 4)))
        self.exec_restore()
        self("%s:" % L)
        self("s_waitcnt lgkmcnt(0)")
        self.lgq = []

    def conv(self):
        Lskip = self.label("L_conv_skip"); Ldone = self.label("L_conv_done")
        self("s_cmp_eq_u32 s%d, 0" % S_HASCH)
        self("s_cbranch_scc1 %s" % Lskip)
        self("s_lshl_b32 s3, s%d, 12" % S_CH)
        self.addr_pair(S_TMPP, P_WS, WS_UR, 3)
        a = 164
        self("v_lshlrev_b32 v%d, 4, v%d" % (a, V_LANE))
        for r in range(4):
            self("s_add_u32 m0, s%d, %d" % (S_SLOT, U_OFF + 1024 * r))
            self("v_add_u32 v%d, %d, v%d" % (a + 1, 1024 * r, a))
            self.vm("global_load_lds_dwordx4 v%d, s[%d:%d]" % (a + 1, S_TMPP, S_TMPP + 1), "u")
        self("s_and_b32 s3, s%d, 1" % S_CH)
        self("s_lshl_b32 s%d, s%d, 16" % (S_T0, S_DVAL))
        self("s_and_b32 s%d, s%d, 0xffff0000" % (S_DVAL, S_DVAL))
        self("s_cmp_eq_u32 s3, 0")
        self("s_cselect_b32 s%d, s%d, s%d" % (S_DVAL, S_T0, S_DVAL))
        vA, vB = 166, 167
        self("v_and_b32 v%d, 7, v%d" % (vA, V_L15))
        self("v_mul_u32_u24 v%d, %d, v%d" % (vA, KC_STRIDE, vA))
        self("v_lshrrev_b32 v%d, 3, v%d" % (168, V_L15))
        self("v_add_u32 v%d, v%d, v%d" % (168, 168, V_G))
        self("v_lshl_add_u32 v%d, v%d, 4, v%d" % (vA, 168, vA))
        self("v_add_u32 v%d, s%d, v%d" % (vA, S_SLOT, vA))
        self("v_lshlrev_b32 v%d, 5, v%d" % (vB, V_L15))
        self("v_lshlrev_b32 v%d, 4, v%d" % (168, V_G))
        self("v_sub_u32 v%d, v%d, v%d" % (vB, 168, vB))
        self("s_add_u32 s3, s%d, %d" % (S_SLOT, U_OFF + 4064 - 3584))
        self("v_add_u32 v%d, s3, v%d" % (vB, vB))
        ACC = 4; FA = [36, 100]; FB = [68, 132]
        def loadsA(tau, buf):
            return [("lg", "ds_read_b128 %s, v%d offset:%d" % (vr(FA[buf] + 4 * i, 4), vA, 64 * tau + 512 * i), "cA") for i in range(8)]
        def loadsB(tau, buf):
            return [("lg", "ds_read_b128 %s, v%d offset:%d" % (vr(FB[buf] + 4 * i, 4), vB, 3584 - 512 * i + 64 * tau), "cB") for i in range(8)]
        self.bg_add(loadsA(0, 0)); self.bg_flush()
        ua, sa = 168, 169
        self("v_lshlrev_b32 v%d, 5, v%d" % (sa, V_L15))
        self("v_lshl_add_u32 v%d, v%d, 3, v%d" % (sa, V_G, sa))
        self("s_add_u32 s3, s%d, %d" % (S_SLOT, U_OFF + 4088 - 3584))
        self("v_sub_u32 v%d, s3, v%d" % (ua, sa))
        self("s_lshl_b32 s3, s%d, 12" % S_CH)
        self("s_add_u32 s3, s3, %d" % WS_YT)
        self("v_and_b32 v%d, 1, v%d" % (170, V_G))
        self("v_lshlrev_b32 v%d, 9, v%d" % (170, 170))
        self("v_lshrrev_b32 v%d, 1, v%d" % (171, V_G))
        self("v_lshl_add_u32 v%d, v%d, 4, v%d" % (170, 171, 170))
        self("v_lshl_add_u32 v%d, v%d, 5, v%d" % (sa, V_L15, 170))
        self("v_add_u32 v%d, s3, v%d" % (sa, sa))
        self("v_mov_b32 v170, s%d" % S_DVAL)
        self("v_lshlrev_b32 v171, 4, v%d" % V_LANE)
        self.vm_wait("u")
        self.stamp(7)
        self.bg_add(loadsB(0, 0)); self.bg_flush()
        for tau in range(8):
            buf = tau & 1
            self.lg_wait_all()
            if tau < 7:
                la, lb = loadsA(tau + 1, buf ^ 1), loadsB(tau + 1, buf ^ 1)
                for x, y in zip(la, lb): self.bg_add([x, y])
            n2 = self.o.get("w2conv", 70)
            f0, f1 = min(n2, 10 * tau), min(n2, 10 * tau + 10)
            self.bg_add(self.w2_items(f0, f1, 171))
            pairs = sorted([(i, be - i) for be in range(8) for i in range(be + 1)])
            first = set()
            for kk, (i, m) in enumerate(pairs):
                be = i + m
                c = vr(ACC + 4 * be, 4) if (tau > 0 or be in first) else "0"
                first.add(be)
                self("v_mfma_f32_16x16x32_bf16 %s, %s, %s, %s" % (vr(ACC + 4 * be, 4), vr(FA[buf] + 4 * i, 4), vr(FB[buf] + 4 * m, 4), c))
                self.bg_step(1)
            self.bg_flush()
        self.stamp(8)
        UQ = 36
        for b in range(8):
            self.lg("ds_read_b64 %s, v%d offset:%d" % (vr(UQ + 2 * b, 2), ua, 3584 - 512 * b), "uq")
        self.lg_wait_all()
        U, t, O = 56, 60, 64
        for b in range(8):
            d0, d1 = UQ + 2 * b, UQ + 2 * b + 1
            A = ACC + 4 * b
            self("v_and_b32 v%d, s%d, v%d" % (U + 0, S_MASK, d1))
            self("v_lshlrev_b32 v%d, 16, v%d" % (U + 1, d1))
            self("v_and_b32 v%d, s%d, v%d" % (U + 2, S_MASK, d0))
            self("v_lshlrev_b32 v%d, 16, v%d" % (U + 3, d0))
            self("v_pk_mul_f32 %s, %s, v[170:171] op_sel_hi:[1,0]" % (vr(U, 2), vr(U, 2)))
            self("v_pk_mul_f32 %s, %s, v[170:171] op_sel_hi:[1,0]" % (vr(U + 2, 2), vr(U + 2, 2)))
            self.rnd_pair(U, t); self.rnd_pair(U + 2, t + 1)
            self.rnd_pair(A, t); self.rnd_pair(A + 2, t + 1)
            self("v_pk_add_f32 %s, %s, %s" % (vr(A, 2), vr(A, 2), vr(U, 2)))
            self("v_pk_add_f32 %s, %s, %s" % (vr(A + 2, 2), vr(A + 2, 2), vr(U + 2, 2)))
            o = O + 2 * b
            self("v_cvt_pk_bf16_f32 v%d, v%d, v%d" % (o, A, A + 1))
            self("v_cvt_pk_bf16_f32 v%d, v%d, v%d" % (o + 1, A + 2, A + 3))
            if b & 1:
                self("v_permlane16_swap_b32 v%d, v%d" % (o - 2, o))
                self("v_permlane16_swap_b32 v%d, v%d" % (o - 1, o + 1))
                self("global_store_dwordx4 v%d, %s, s[%d:%d] offset:%d sc0 sc1" % (sa, vr(o - 2, 4), P_WS, P_WS + 1, 512 * (b - 1)))
        self("s_branch %s" % Ldone)
        self("%s:" % Lskip)
        self("v_lshlrev_b32 v171, 4, v%d" % V_LANE)
        n2 = self.o.get("w2conv", 70)
        for f0 in range(0, n2, 35):
            self.bg_add(self.w2_items(f0, min(n2, f0 + 35), 171)); self.bg_flush()
            self("s_waitcnt vmcnt(20)")
        self("%s:" % Ldone)
        self.vmq = []; self.lgq = []

    def weights_prefetch(self):
        a, d = 174, 190
        self.addr_pair(S_TMPP, P_WS, WS_PKFLAG)
        self("v_lshlrev_b32 v%d, 5, v%d" % (a, V_LANE))
        self.poll_pairs(S_TMPP, a, 1, 0, 176 + 0, npair=4) if False else None
        self.poll_pairs(S_TMPP, a, 1, 0, 4, npair=4)
        self.stamp(40)
        for base in (WS_W1P, WS_W2P):
            self.srd(SRD_A, P_WS, WP_SZ, const=base)
            self("s_mul_i32 s3, s%d, 69120" % S_J)
            self("v_lshlrev_b32 v%d, 7, v%d" % (a, V_LANE))
            self("v_add_u32 v%d, s3, v%d" % (a, a))
            for i in range(9):
                if i == 8: self.exec_set("0xfffffff")
                self("buffer_load_dword v%d, v%d, s[%d:%d], 0 offen" % (d, a, SRD_A, SRD_A + 3))
                if i < 8: self("v_add_u32 v%d, 8192, v%d" % (a, a))
            self.exec_restore()

    def w1_dma(self, its):
        self.srd(SRD_B, P_WS, WP_SZ, const=WS_W1P)
        a = 163
        self("v_lshlrev_b32 v%d, 4, v%d" % (a, V_LANE))
        so, lo = S_T0, S_T0 + 1
        self("s_mul_i32 s%d, s%d, 108" % (so, S_W))
        self("s_add_u32 s%d, s%d, s%d" % (so, so, S_UOFF))
        self("s_lshl_b32 s%d, s%d, 10" % (so, so))
        self("s_mul_i32 s%d, s%d, 7168" % (lo, S_W))
        for it in its:
            L = None
            if it == 6:
                L = self.label("L_w1l")
                self("s_cmp_eq_u32 s%d, 2" % S_W)
                self("s_cbranch_scc1 %s" % L)
            self("s_add_u32 m0, s%d, %d" % (lo, LDS_W1 + it * 3 * 7168))
            self("s_add_u32 s3, s%d, %d" % (so, it * 3 * 108 * 1024))
            for i in range(4):
                self("buffer_load_dwordx4 v%d, s[%d:%d], s3 offen offset:%d lds" % (a, SRD_B, SRD_B + 3, 1024 * i))
            self("s_add_u32 m0, s%d, %d" % (lo, LDS_W1 + it * 3 * 7168 + 4096))
            self("s_add_u32 s3, s3, 4096")
            for i in range(3):
                self("buffer_load_dwordx4 v%d, s[%d:%d], s3 offen offset:%d lds" % (a, SRD_B, SRD_B + 3, 1024 * i))
            if L: self("%s:" % L)
    def w2_setup(self):
        self.srd(SRD_W2, P_WS, WP_SZ, const=WS_W2P)
        self("s_mul_i32 s3, s%d, %d" % (S_W, 14 * 40))
        self("s_mul_i32 s%d, s%d, 5" % (S_T0, S_CS))
        self("s_add_u32 s3, s3, s%d" % S_T0)
        self("s_lshl_b32 s%d, s3, 10" % S_W2B)
    def w2_items(self, f0, f1, vlane16):
        it = []
        last = None
        for f in range(f0, f1):
            s, i = divmod(f, 5)
            key = (s, i == 4)
            if key != last:
                it.append("s_add_u32 s61, s%d, %d" % (S_W2B, s * 40 * 1024 + (4096 if i == 4 else 0)))
                last = key
            it.append(("vm", "buffer_load_dwordx4 %s, v%d, s[%d:%d], s61 offen offset:%d" % (w2reg(f), vlane16, SRD_W2, SRD_W2 + 3, 0 if i == 4 else 1024 * i), "w2"))
        return it

    def post_conv(self):
        QN = V_CS
        self.wait_all()
        self("s_barrier")
        self.stamp(10)
        L = self.if_wave(3)
        self("s_lshl_b32 s%d, s%d, 8" % (S_T0, S_G))
        self("s_lshl_b32 s%d, s%d, 3" % (S_T0 + 1, S_J))
        self("s_add_u32 s%d, s%d, s%d" % (S_T0, S_T0, S_T0 + 1))
        self("s_add_u32 s%d, s%d, %d" % (S_T0, S_T0, WS_YFLAG))
        self.flag_store(P_WS, S_T0, 1, device=True)
        self.close(L)
        self.row_stats_issue(0, 60)
        c1, c2 = self.o.get("w1c1", 4), self.o.get("w1c2", 5)
        L = self.if_wave(3, eq=False)
        self.w1_dma(range(0, c1))
        self.close(L)
        self.stamp(11)
        La, Lb = self.label("L_qa"), self.label("L_qb")
        self("s_cmp_eq_u32 s%d, 3" % S_W)
        self("s_cbranch_scc1 %s" % La)
        self("s_waitcnt vmcnt(%d)" % (7 * c1))
        self("s_branch %s" % Lb)
        self("%s:" % La)
        self("s_waitcnt vmcnt(0)")
        self("%s:" % Lb)
        self.vmq = []
        self.row_stats_validate(0, 60)
        self.row_stats_finish(60, 24, 26)
        XF, d, t = 4, 28, 30
        self.unpack_tile(XF, V_X)
        for i in range(10):
            self("v_pk_add_f32 %s, %s, v[24:25] op_sel_hi:[1,0] neg_lo:[0,1] neg_hi:[0,1]" % (vr(d, 2), vr(XF + 2 * i, 2)))
            self.rnd_pair(d, t)
            self("v_pk_mul_f32 %s, %s, v[26:27] op_sel_hi:[1,0]" % (vr(d, 2), vr(d, 2)))
            self("v_cvt_pk_bf16_f32 v%d, v%d, v%d" % (QN + i, d, d + 1))
        Ly = self.if_wave(3)
        self.addr_pair(S_TMPP, P_WS, WS_YFLAG)
        self("s_lshl_b32 s3, s%d, 8" % S_CS)
        self("s_lshl_b32 s%d, s%d, 8" % (S_T0, S_G))
        self("v_mov_b32 v181, s3")
        self("v_mov_b32 v180, s%d" % S_T0)
        self("v_cmp_gt_u32 vcc, 32, v%d" % V_LANE)
        self("v_cndmask_b32 v181, v180, v181, vcc")
        self("v_and_b32 v180, 31, v%d" % V_LANE)
        self("v_lshl_add_u32 v180, v180, 3, v181")
        self.poll_pairs(S_TMPP, 180, 1, 0, 176)
        self.stamp(41)
        self("s_mul_i32 s3, s%d, %d" % (S_CS, 80 * 4096))
        self("s_lshl_b32 s%d, s%d, 9" % (S_T0, S_G))
        self("s_add_u32 s3, s3, s%d" % S_T0)
        self("s_lshl_b32 s%d, s%d, 7" % (S_T0, S_RB))
        self("s_add_u32 s3, s3, s%d" % S_T0)
        self.addr_pair(S_TMPP, P_WS, WS_YT, 3)
        a, b = 164, 165
        self("v_lshrrev_b32 v%d, 3, v%d" % (a, V_LANE))
        self("v_lshlrev_b32 v%d, 12, v%d" % (a, a))
        self("v_and_b32 v%d, 7, v%d" % (b, V_LANE))
        self("v_lshl_add_u32 v%d, v%d, 4, v%d" % (a, b, a))
        for k in range(10):
            self("s_mov_b32 m0, %d" % (LDS_SCR + 1024 * k))
            self("v_add_u32 v%d, %d, v%d" % (b, 8 * 4096 * k, a))
            self("global_load_lds_dwordx4 v%d, s[%d:%d]" % (b, S_TMPP, S_TMPP + 1))
        self("s_waitcnt vmcnt(0)")
        self.close(Ly)
        self("s_barrier")
        self.stamp(12)
        L = self.if_wave(3, eq=False)
        self.w1_dma(range(c1, c2))
        self.close(L)
        a, b = 164, 165
        self("v_bfe_u32 v%d, v%d, 2, 2" % (a, V_LANE))
        self("v_lshl_add_u32 v%d, v%d, 2, v%d" % (a, V_G, a))
        self("v_lshlrev_b32 v%d, 7, v%d" % (a, a))
        self("v_and_b32 v%d, 3, v%d" % (b, V_LANE))
        self("v_lshl_add_u32 v%d, v%d, 3, v%d" % (a, b, a))
        self("s_lshl_b32 s3, s%d, 5" % S_W)
        self("s_add_u32 s3, s3, %d" % LDS_SCR)
        self("v_add_u32 v%d, s3, v%d" % (a, a))
        for u in range(5):
            self.lg("ds_read_b64_tr_b16 %s, v%d offset:%d" % (vr(V_Y + 2 * u, 2), a, 16 * 128 * u), "ytr")
        self.xf_store_setup(S_XO1)
        yf, qf = 32, 34
        self.lg_wait_all()
        for i in range(10):
            self.unpack(yf, V_Y + i)
            self.unpack(qf, QN + i)
            self("v_pk_mul_f32 %s, %s, %s" % (vr(d, 2), vr(yf, 2), vr(qf, 2)))
            self.rnd_pair(d, t)
            self("v_pk_add_f32 %s, %s, %s" % (vr(XF + 2 * i, 2), vr(XF + 2 * i, 2), vr(d, 2)))
            self("v_cvt_pk_bf16_f32 v%d, v%d, v%d" % (V_X + i, XF + 2 * i, XF + 2 * i + 1))
            self.unpack(XF + 2 * i, V_X + i)
        self.xf_store()
        self.tile_stats(XF, 1, 28)

    def xf_store_setup(self, ws_off):
        self("s_lshl_b32 s3, s%d, 4" % S_G)
        self("s_lshl_b32 s%d, s%d, 2" % (S_T0, S_RB))
        self("s_add_u32 s3, s3, s%d" % S_T0)
        self("s_add_u32 s3, s3, s%d" % S_W)
        self("s_mul_i32 s3, s3, %d" % (20 * 1024))
        self("s_add_u32 s3, s3, s%d" % ws_off)
        a = 170
        self("v_lshlrev_b32 v%d, 4, v%d" % (a, V_LANE))
        self("v_add_u32 v%d, s3, v%d" % (a, a))
        self("s_mul_i32 s%d, s%d, 5" % (S_T0, S_CS))
        for u in range(5):
            self("s_add_u32 s%d, s%d, %d" % (S_T0 + 1, S_T0, u))
            self("s_lshr_b32 s%d, s%d, 1" % (S_T0 + 2, S_T0 + 1))
            self("s_lshl_b32 s%d, s%d, 10" % (S_T0 + 2, S_T0 + 2))
            self("s_and_b32 s%d, s%d, 1" % (S_T0 + 1, S_T0 + 1))
            self("s_lshl_b32 s%d, s%d, 3" % (S_T0 + 1, S_T0 + 1))
            self("s_add_u32 s%d, s%d, s%d" % (S_T0 + 1, S_T0 + 1, S_T0 + 2))
            self("v_add_u32 v%d, s%d, v%d" % (165 + u, S_T0 + 1, a))
    def xf_store(self):
        Lo, Ld = self.label("L_xo"), self.label("L_xd")
        p = "s[%d:%d]" % (P_WS, P_WS + 1)
        x4 = lambda u: "global_store_dwordx4 v%d, %s, %s" % (165 + u, vr(V_X + 2 * u, 4), p)
        x2 = lambda u: "global_store_dwordx2 v%d, %s, %s" % (165 + u, vr(V_X + 2 * u, 2), p)
        self("s_bitcmp1_b32 s%d, 0" % S_CS)
        self("s_cbranch_scc1 %s" % Lo)
        self.handoff_stores([x4(0), x4(2), x2(4)], record=False)
        self("s_branch %s" % Ld)
        self("%s:" % Lo)
        self.handoff_stores([x2(0), x4(1), x4(3)], record=False)
        self("%s:" % Ld)
        self.vmq.extend(["xf"] * 3)

    def mixer_update(self, m, rs, xf, tmp):
        yf, d = tmp, tmp + 2
        for i in range(10):
            X = xf + 2 * i
            self.unpack(yf, V_Y + i)
            self("v_pk_add_f32 %s, %s, %s op_sel_hi:[1,0] neg_lo:[0,1] neg_hi:[0,1]" % (vr(d, 2), vr(X, 2), vr(m, 2)))
            self("v_pk_mul_f32 %s, %s, %s op_sel_hi:[1,0]" % (vr(d, 2), vr(d, 2), vr(rs, 2)))
            self("v_pk_fma_f32 %s, %s, %s, %s" % (vr(X, 2), vr(d, 2), vr(yf, 2), vr(X, 2)))
            self("v_cvt_pk_bf16_f32 v%d, v%d, v%d" % (V_X + i, X, X + 1))
            self.unpack(X, V_X + i)

    def colsum(self):
        a, ones, acc = 164, 100, 104
        FR = [112, 120, 128, 136]
        for i in range(4): self("v_mov_b32 v%d, 0x3f803f80" % (ones + i))
        self("v_lshlrev_b32 v%d, 4, v%d" % (a, V_LANE))
        self("s_lshl_b32 s3, s%d, 11" % S_W)
        self("v_add_u32 v%d, s3, v%d" % (a, a))
        self("v_add_u32 v%d, %d, v%d" % (a + 1, 8 * 7168, a))
        self("v_add_u32 v%d, %d, v%d" % (a + 2, 16 * 7168, a))
        def loads(t):
            for i in range(2):
                self.lg("ds_read_b128 %s, v%d offset:%d" % (vr(FR[t % 4] + 4 * i, 4), a + (t // 8), (t % 8) * 7168 + 1024 * i), "cs%d" % t)
        for t in range(3): loads(t)
        for t in range(20):
            if t + 3 < 20: loads(t + 3)
            self.lg_wait("cs%d" % t)
            for i in range(2):
                c = vr(acc + 4 * i, 4) if t else "0"
                self("v_mfma_f32_16x16x32_bf16 %s, %s, %s, %s" % (vr(acc + 4 * i, 4), vr(FR[t % 4] + 4 * i, 4), vr(ones, 4), c))
        b = 144
        self("v_lshlrev_b32 v%d, 4, v%d" % (b, V_G))
        self("s_lshl_b32 s3, s%d, 7" % S_W)
        self("s_add_u32 s3, s3, %d" % LDS_CSX)
        self("v_add_u32 v%d, s3, v%d" % (b, b))
        self("v_cmp_eq_u32 vcc, 0, v%d" % V_L15)
        self("s_and_saveexec_b64 s[%d:%d], vcc" % (S_SAVE, S_SAVE + 1))
        self("ds_write_b128 v%d, %s" % (b, vr(acc, 4)))
        self("ds_write_b128 v%d, %s offset:64" % (b, vr(acc + 4, 4)))
        self.exec_restore()
        self.lg_wait_all()
    def colsum_fetch(self):
        b = 144
        self("v_lshlrev_b32 v%d, 4, v%d" % (b, V_G))
        self("v_add_u32 v%d, %d, v%d" % (b, LDS_CSX, b))
        for u in range(7):
            self.lg("ds_read_b128 %s, v%d offset:%d" % (vr(V_CS + 4 * u, 4), b, 64 * u), "cs")

    G1_ACC = 4; G1_AF = [60, 88]; G1_XR = 116; G1_DEPTH = 7; G1_LA = 172; G1_XA = 183; G1_ST = 174; G1_L16 = 182
    def g1_aloads(self, t, buf):
        return [("lg", "ds_read_b128 %s, v%d offset:%d" % (vr(self.G1_AF[buf] + 4 * i, 4), self.G1_LA, 1024 * i), "a%d" % t) for i in range(7)]
    def g1_setup(self, xf_off, hf_off):
        self("s_lshl_b32 s3, s%d, 4" % S_G)
        self("s_lshl_b32 s%d, s%d, 3" % (S_T0, S_RT))
        self("s_add_u32 s3, s3, s%d" % S_T0)
        self("s_lshl_b32 s%d, s%d, 1" % (S_T0, S_W))
        self("s_add_u32 s%d, s3, s%d" % (S_RU0, S_T0))
        self("s_mul_i32 s3, s%d, %d" % (S_RU0, 20 * 1024))
        self("s_add_u32 s3, s3, s%d" % xf_off)
        self.addr_pair(S_XFB, P_WS, 0, 3)
        self.addr_pair(S_TMPQ, S_XFB, 20 * 1024)
        self("v_lshlrev_b32 v%d, 4, v%d" % (self.G1_XA, V_LANE))
        self("v_lshlrev_b32 v%d, 4, v%d" % (self.G1_L16, V_LANE))
        self("s_mul_i32 s%d, s%d, %d" % (S_T0 + 3, S_RU0, 54 * 1024))
        self("s_add_u32 s%d, s%d, %s" % (S_T0 + 3, S_T0 + 3, hf_off))
        for i in range(7):
            self("s_add_u32 s%d, s%d, %d" % (S_T0 + 1, S_UOFF, i))
            self("s_lshr_b32 s%d, s%d, 1" % (S_T0 + 2, S_T0 + 1))
            self("s_lshl_b32 s%d, s%d, 10" % (S_T0 + 2, S_T0 + 2))
            self("s_and_b32 s%d, s%d, 1" % (S_T0 + 1, S_T0 + 1))
            self("s_lshl_b32 s%d, s%d, 3" % (S_T0 + 1, S_T0 + 1))
            self("s_add_u32 s%d, s%d, s%d" % (S_T0 + 1, S_T0 + 1, S_T0 + 2))
            self("s_add_u32 s%d, s%d, s%d" % (S_T0 + 1, S_T0 + 1, S_T0 + 3))
            self("s_add_u32 s%d, s%d, s%d" % (72 + 2 * i, P_WS, S_T0 + 1))
            self("s_addc_u32 s%d, s%d, 0" % (73 + 2 * i, P_WS + 1))
        self("v_lshlrev_b32 v%d, 4, v%d" % (self.G1_LA, V_LANE))
        if LDS_W1: self("v_add_u32 v%d, %d, v%d" % (self.G1_LA, LDS_W1, self.G1_LA))
        for x in self.g1_aloads(0, 0): self.lg(x[1], x[2])
        self("v_add_u32 v%d, 7168, v%d" % (self.G1_LA, self.G1_LA))
    def g1_main(self, statbuf, sb=None, w2range=None, ldf='', pretouch=False, hwt=False):
        ACC, AF, XR, DEPTH, la, xa, ST = self.G1_ACC, self.G1_AF, self.G1_XR, self.G1_DEPTH, self.G1_LA, self.G1_XA, self.G1_ST
        def xload(t):
            for rho in range(2):
                base = S_XFB if rho == 0 else S_TMPQ
                d = XR + ((t % DEPTH) * 2 + rho) * 4
                self.vm("global_load_dwordx4 %s, v%d, s[%d:%d] offset:%d %s" % (vr(d, 4), xa, base, base + 1, (t % 4) * 1024, ldf), "x%d" % t)
            if t % 4 == 3: self("v_add_u32 v%d, 4096, v%d" % (xa, xa))
        for t in range(3): xload(t)
        sa = 59
        self("s_lshl_b32 s3, s%d, 11" % S_RU0)
        self("s_add_u32 s3, s3, %d" % (WS_STAT + statbuf * STAT_SZ))
        self("v_lshlrev_b32 v%d, 7, v%d" % (sa, V_L15))
        self("v_lshl_add_u32 v%d, v%d, 5, v%d" % (sa, V_G, sa))
        self("v_add_u32 v%d, s3, v%d" % (sa, sa))
        for rho in range(2):
            for k in range(2):
                self.vm("global_load_dwordx2 %s, v%d, s[%d:%d] offset:%d" % (vr(ST + 4 * rho + 2 * k, 2), sa, P_WS, P_WS + 1, 2048 * rho + 16 * k), "st")
        for t in range(3, DEPTH): xload(t)
        if pretouch:
            self("s_mul_i32 s3, s%d, %d" % (S_RU0, 54 * 1024))
            self("s_lshr_b32 s%d, s%d, 1" % (S_T0, S_UOFF))
            self("s_lshl_b32 s%d, s%d, 10" % (S_T0, S_T0))
            self("s_add_u32 s3, s3, s%d" % S_T0)
            self("s_and_b32 s%d, s%d, 1" % (S_T0, S_UOFF))
            self("s_lshl_b32 s%d, s%d, 3" % (S_T0, S_T0))
            self("s_add_u32 s3, s3, s%d" % S_T0)
            self("s_add_u32 s3, s3, %d" % WS_HF1)
            self("v_lshrrev_b32 v57, 5, v%d" % V_LANE)
            self("v_mul_u32_u24 v57, %d, v57" % (54 * 1024))
            self("v_and_b32 v58, 31, v%d" % V_LANE)
            self("v_lshl_add_u32 v58, v58, 7, v57")
            self("v_add_u32 v58, s3, v58")
            Lp = self.label("L_pth")
            self("s_cmp_lg_u32 s%d, 0" % S_MODE)
            self("s_cbranch_scc1 %s" % Lp)
            self("global_store_dword v58, v58, s[%d:%d]" % (P_WS, P_WS + 1))
            self("%s:" % Lp)
        w2items = self.w2_items(w2range[0], w2range[1], self.G1_L16) if w2range else []
        nper = -(-len(w2items) // 16)
        for t in range(20):
            if t == 1 and sb: self.stamp(sb)
            buf = t & 1
            nxt = self.g1_aloads(t + 1, buf ^ 1) if t < 19 else []
            self.lg_wait_all()
            self.vm_wait("x%d" % t)
            self.bg_add(nxt)
            if t >= 1:
                self.bg_add(w2items[:nper]); w2items = w2items[nper:]
            nbg = len(self.bgq); done = 0
            k = 0
            for i in range(7):
                for rho in range(2):
                    acc = ACC + (rho * 7 + i) * 4
                    c = vr(acc, 4) if t else "0"
                    self("v_mfma_f32_16x16x32_bf16 %s, %s, %s, %s" % (vr(acc, 4), vr(AF[buf] + 4 * i, 4), vr(XR + ((t % DEPTH) * 2 + rho) * 4, 4), c))
                    k += 1
                    want = min(nbg, -(-nbg * k // 11))
                    self.bg_step(want - done); done = want
            self.bg_flush()
            if t < 19: self("v_add_u32 v%d, 7168, v%d" % (la, la))
            if t + DEPTH < 20: xload(t + DEPTH)
        if sb: self.stamp(sb + 1)
        M = [60, 64]; RS = [62, 66]
        self.vm_wait("st")
        for rho in range(2):
            for i in range(4): self("v_mov_b32 v%d, v%d" % (72 + i, ST + 4 * rho + i))
            self.row_stats_finish(72, M[rho], RS[rho])
        ha = 80
        self("v_add_u32 v%d, %d, v%d" % (ha, 54 * 1024, self.G1_L16))
        HA = [self.G1_L16, ha]
        lines = []
        O = 100
        for rho in range(2):
            for i in range(7):
                acc = ACC + (rho * 7 + i) * 4
                for p in range(2):
                    A = acc + 2 * p; C = V_CS + 4 * i + 2 * p
                    self("v_pk_fma_f32 %s, %s, %s, %s op_sel_hi:[1,0,1] neg_lo:[0,1,0] neg_hi:[0,1,0]" % (vr(A, 2), vr(C, 2), vr(M[rho], 2), vr(A, 2)))
                    self("v_pk_mul_f32 %s, %s, %s op_sel_hi:[1,0]" % (vr(A, 2), vr(A, 2), vr(RS[rho], 2)))
                    o = O + (rho * 7 + i) * 2 + p
                    self("v_cvt_pk_bf16_f32 v%d, v%d, v%d" % (o, A, A + 1))
                    self("v_pk_max_i16 v%d, v%d, 0" % (o, o))
        def st(rho, i, n):
            return "global_store_dwordx%d v%d, %s, s[%d:%d]" % (n, HA[rho], vr(O + (rho * 7 + i) * 2, n), 72 + 2 * i, 73 + 2 * i)
        Lo, Ld = self.label("L_ho"), self.label("L_hd")
        self("s_bitcmp1_b32 s%d, 0" % S_UOFF)
        self("s_cbranch_scc1 %s" % Lo)
        def emit(lines):
            if hwt:
                for l in lines: self(l + " sc0 sc1")
            else: self.handoff_stores(lines, record=False)
        emit([st(rho, i, 4 if i < 6 else 2) for rho in range(2) for i in (0, 2, 4, 6)])
        self("s_branch %s" % Ld)
        self("%s:" % Lo)
        emit([st(rho, i, 4 if i > 0 else 2) for rho in range(2) for i in (0, 1, 3, 5)])
        self("%s:" % Ld)
        self.vmq.extend(["h"] * 8)

    G2_ACC = [4, 24]; G2_HR = 44; G2_HA = 100; G2_RA = 104; G2_TMP = 108; G2_SUM = 128
    def g2_setup(self, hf_off):
        ha, ra = self.G2_HA, self.G2_RA
        for s in range(14):
            self("s_mul_i32 s3, s%d, 14" % S_W)
            self("s_add_u32 s3, s3, %d" % s)
            self("s_min_u32 s3, s3, 53")
            self("s_lshl_b32 s%d, s3, 10" % (S_HSTEP + s))
        self.srd(SRD_A, P_WS, 0x10000000 - self.o.get('wsbase', 0))
        for k in range(4):
            self("s_add_u32 s3, s%d, %d" % (S_W, 1 + k))
            self("s_and_b32 s3, s3, 3")
            self("s_mul_i32 s%d, s3, 5120" % (S_T0 + 1))
            self("s_lshl_b32 s%d, s%d, 4" % (S_T0, S_G))
            self("s_add_u32 s3, s3, s%d" % S_T0)
            self("s_lshl_b32 s%d, s%d, 2" % (S_T0, S_RB))
            self("s_add_u32 s3, s3, s%d" % S_T0)
            self("s_mul_i32 s3, s3, %d" % (54 * 1024))
            self("s_add_u32 s3, s3, %s" % hf_off)
            self("v_lshlrev_b32 v%d, 4, v%d" % (ha + k, V_LANE))
            self("v_add_u32 v%d, s3, v%d" % (ha + k, ha + k))
            self("v_lshlrev_b32 v%d, 4, v%d" % (ra + k, V_LANE))
            self("s_add_u32 s3, s%d, %d" % (S_T0 + 1, LDS_SCR))
            self("v_add_u32 v%d, s3, v%d" % (ra + k, ra + k))
    def g2_main(self, sb=None, ldf=''):
        ACC, HR, ha, ra, TMP, SUM = self.G2_ACC, self.G2_HR, self.G2_HA, self.G2_RA, self.G2_TMP, self.G2_SUM
        def hload(p):
            k, s = divmod(p, 14)
            self.vm("buffer_load_dwordx4 %s, v%d, s[%d:%d], s%d offen %s" % (vr(HR + 4 * s, 4), ha + k, SRD_A, SRD_A + 3, S_HSTEP + s, ldf), "h%d" % p)
        for p in range(14): hload(p)
        if sb: self.stamp(sb)
        for k in range(4):
            acc = ACC[k & 1]; prev = ACC[(k & 1) ^ 1]
            for s in range(14):
                p = 14 * k + s
                if k > 0:
                    if s == 1:
                        self.bg_add([("lg", "ds_write_b128 v%d, %s offset:%d" % (ra + k - 1, vr(prev + 4 * i, 4), 1024 * i), "rw") for i in range(5)])
                    if s == 4:
                        self.bg_flush(); self.lg_wait_all(); self("s_barrier")
                        self.bg_add([("lg", "ds_read_b128 %s, v%d offset:%d" % (vr(TMP + 4 * i, 4), ra + 3, 1024 * i), "rr") for i in range(5)])
                    if s == 8:
                        self.bg_flush(); self.lg_wait_all(); self("s_barrier")
                        if k == 1:
                            self.bg_add(["v_mov_b32 v%d, v%d" % (SUM + j, TMP + j) for j in range(20)])
                        else:
                            self.bg_add(["v_pk_add_f32 %s, %s, %s" % (vr(SUM + j, 2), vr(SUM + j, 2), vr(TMP + j, 2)) for j in range(0, 20, 2)])
                self.vm_wait("h%d" % p)
                for i in range(5):
                    c = vr(acc + 4 * i, 4) if s > 0 else "0"
                    self("v_mfma_f32_16x16x32_bf16 %s, %s, %s, %s" % (vr(acc + 4 * i, 4), w2reg(s * 5 + i), vr(HR + 4 * s, 4), c))
                    self.bg_step(1)
                if p + 14 < 56: hload(p + 14)
            self.bg_flush()
        if sb: self.stamp(sb + 1)
        acc = ACC[1]
        for j in range(0, 20, 2):
            self("v_pk_add_f32 %s, %s, %s" % (vr(SUM + j, 2), vr(SUM + j, 2), vr(acc + j, 2)))
        return SUM

    def residual_add(self, RES, XF):
        t = 178
        self.unpack_tile(XF, V_X)
        for i in range(10):
            self.rnd_pair(RES + 2 * i, t)
            self("v_pk_add_f32 %s, %s, %s" % (vr(XF + 2 * i, 2), vr(XF + 2 * i, 2), vr(RES + 2 * i, 2)))
            self("v_cvt_pk_bf16_f32 v%d, v%d, v%d" % (V_X + i, XF + 2 * i, XF + 2 * i + 1))
            self.unpack(XF + 2 * i, V_X + i)

    def store_out(self):
        t2 = 164
        self.rowbase()
        self("v_add_u32 v%d, s3, v%d" % (t2, V_L15))
        self("v_mul_u32_u24 v%d, 1280, v%d" % (t2, t2))
        self("s_mul_i32 s3, s%d, 160" % S_CS)
        self("v_lshlrev_b32 v%d, 3, v%d" % (t2 + 1, V_G))
        self("v_add3_u32 v%d, v%d, v%d, s3" % (t2, t2, t2 + 1))
        for u in range(5):
            self.vm("global_store_dwordx2 v%d, %s, s[%d:%d] offset:%d" % (t2, vr(V_X + 2 * u, 2), P_OUT, P_OUT + 1, 32 * u), "out")

    def epoch_update(self):
        L = self.label("L_ep")
        self("s_add_u32 s3, s2, s%d" % S_W)
        self("s_cmp_lg_u32 s3, 0")
        self("s_cbranch_scc1 %s" % L)
        self("s_sub_u32 s3, s%d, 0x%x" % (S_TAG, TAG0))
        self("s_add_u32 s3, s3, 16")
        self("v_mov_b32 v176, s3")
        self("v_mov_b32 v177, %d" % WS_EPOCH)
        self.exec_set("1")
        self("global_store_dword v177, v176, s[%d:%d] sc0 sc1" % (P_WS, P_WS + 1))
        self.exec_restore()
        self("%s:" % L)

    def build(self):
        o = self.o
        self.prologue()
        if o.get("stamps"): self("v_mov_b32 v%d, 0" % V_STAMP)
        self.stamp(0)
        self.repack_issue()
        self.prep_loads()
        self.stamp(38)
        self.repack_finish()
        self.stamp(1)
        self.prep_compute()
        self.stamp(2)
        self.mode_check()
        self.vm_wait("rpst")
        self.lg_wait_all()
        self("s_barrier")
        L = self.if_wave(3)
        self("s_lshl_b32 s%d, s%d, 8" % (S_T0, S_G))
        self("s_lshl_b32 s%d, s%d, 3" % (S_T0 + 1, S_J))
        self("s_add_u32 s%d, s%d, s%d" % (S_T0, S_T0, S_T0 + 1))
        self("s_add_u32 s%d, s%d, %d" % (S_T0, S_T0, WS_PKFLAG))
        self.flag_store(P_WS, S_T0, 1, device=True)
        self.close(L)
        self.mode_fetch()
        self.stamp(3)
        self.prep_store_ur()
        self.unpack_tile(124, V_X)
        self.tile_stats(124, 0, 144)
        self.stamp(4)
        self.barrier_arrive(1)
        self.build_kcopies()
        self.w2_setup()
        self.stamp(5)
        self.pk_wait()
        self.barrier_wait(1)
        self.stamp(6)
        self.vmq = []; self.lgq = []
        self.conv()
        self.stamp(9)
        self.post_conv()
        self.stamp(13)
        c2 = o.get("w1c2", 5)
        L = self.if_wave(3, eq=False)
        self.w1_dma(range(c2, 7))
        self.close(L)
        self.barrier_arrive(2)
        n2 = o.get("w2conv", 70)
        self.colsum()
        self("s_barrier")
        self.colsum_fetch()
        self.stamp(14)
        self.g1_setup(S_XO1, str(WS_HF1))
        self.lg_wait_all()
        self.barrier_wait(2)
        self.stamp(15)
        self.g1_main(1, 16, w2range=(n2, 70) if n2 < 70 else None, pretouch=o.get('pt_h', 1), ldf='sc1', hwt=o.get('hwt', 0))
        self.stamp(18)
        self.barrier_arrive(3)
        self.g2_setup(str(WS_HF1))
        self.barrier_wait(3)
        self.stamp(21)
        RES = self.g2_main(22)
        self.stamp(24)
        XF = 4
        self.residual_add(RES, XF)
        self.tile_stats(XF, 2, 28)
        self.row_stats_issue(2, 60)
        self.xf_store_setup(S_XO3)
        self.stamp(25)
        self.vm_wait("rs")
        self.row_stats_validate(2, 60)
        self.stamp(26)
        self.row_stats_finish(60, 24, 26)
        self.mixer_update(24, 26, XF, 28)
        self.xf_store()
        self.tile_stats(XF, 3, 28)
        self.stamp(27)
        self.barrier_arrive(4)
        self.g1_setup(S_XO3, 's%d' % S_HO2)
        self.barrier_wait(4)
        self.stamp(28)
        self.g1_main(3, 29, ldf='sc1')
        self.stamp(31)
        self.barrier_arrive(5)
        self.g2_setup('s%d' % S_HO2)
        self.barrier_wait(5)
        self.stamp(32)
        RES = self.g2_main(33, ldf='sc1')
        self.stamp(35)
        self.residual_add(RES, 4)
        self.store_out()
        self.epoch_update()
        self.stamp(36)
        self("s_waitcnt vmcnt(0)")
        self.stamp(37)
        self.stamp_dump()
        self("s_waitcnt vmcnt(0)")
        self("s_branch L_end")
        self("L_abort:")
        self("L_end:")
        self("s_endpgm")

def make(opts):
    k = K(opts)
    k.build()
    body, added = k.text()
    hdr = open("interleave_layers__ssm_conv_h3__dense_activation_relu__prompt.s.ref").read().split("\n")
    head = [l for l in hdr if l.startswith(";") and "@launch" not in l and "Override launch" not in l and "grid=ceil" not in l][:13]
    txt = "\n".join(head) + "\n"
    txt += "; @launch grid=(256,1,1) block=(256,1,1) lds=%d\n" % LDS_TOTAL
    txt += '.amdgcn_target "amdgcn-amd-amdhsa--gfx950"\n.text\n.globl %s\n.p2align 8\n.type %s,@function\n%s:\n' % (KNAME, KNAME, KNAME)
    txt += body
    txt += """.section .rodata,"a"
.p2align 6
.amdhsa_kernel %s
  .amdhsa_next_free_vgpr 512
  .amdhsa_next_free_sgpr 102
  .amdhsa_accum_offset 256
  .amdhsa_group_segment_fixed_size 0
  .amdhsa_kernarg_size 96
  .amdhsa_user_sgpr_count 2
  .amdhsa_user_sgpr_kernarg_segment_ptr 1
  .amdhsa_system_sgpr_workgroup_id_x 1
.end_amdhsa_kernel
""" % KNAME
    return txt, added, len(k.ins)

if __name__ == "__main__":
    import argparse, json
    ap = argparse.ArgumentParser()
    ap.add_argument("-o", default="interleave_layers__ssm_conv_h3__dense_activation_relu__prompt.s")
    ap.add_argument("--opts", default="{}")
    a = ap.parse_args()
    txt, added, n = make(json.loads(a.opts))
    open(a.o, "w").write(txt)
    print("wrote", a.o, "instructions", n, "nop states added", added, "bytes", len(txt))
```

```python
import sys
sys.path.insert(0, "work")
from gen import *

KNAME = "interleave_layers__ssm_conv_h3__dense_activation_relu__prompt_kernel"

WS_EPOCH = 0x0
WS_XCCF  = 0x400
WS_LFLAG = 0x1000
WS_YFLAG = 0x2000
WS_PKFLAG = 0x3000
WS_STAT  = 0x100000
STAT_SZ  = 0x40000
WS_UR    = 0x200000
WS_YT    = 0x500000
WS_W1P   = 0x800000
WS_W2P   = 0xB00000
WP_SZ    = 2211840
WS_XF1   = 0xE00000
WS_XF3   = 0x1100000
WS_HF1   = 0x1400000
WS_HF2   = 0x1B00000
WS_STAMP = 0x2200000
KX = 0x5BD1E995
TAG0 = 0x9E3779B9

KC_STRIDE = 4160
SLOT = 8 * KC_STRIDE + 4608
U_OFF = 8 * KC_STRIDE
LDS_T = 3 * SLOT
T_STRIDE = 144
LDS_W1 = 0
LDS_SCR = 140 * 1024
LDS_TOTAL = 163840
LDS_MODE = LDS_TOTAL - 16
LDS_CSX = LDS_SCR + 16384

S_G, S_J, S_W, S_MODE = 4, 5, 6, 7
SRD_A, SRD_B = 8, 12
P_Q, P_K, P_V, P_SK, P_SSM, P_D, P_W1 = 16, 18, 20, 22, 24, 26, 30
P_W2, P_OUT, P_DBG, P_WS = 32, 34, 36, 38
S_TAG = 28
S_KX = 29
S_RB, S_CS, S_RT, S_CT, S_UOFF = 40, 41, 42, 43, 44
S_MASK = 45
S_XCC = 46
S_CH = 47
S_HASCH = 48
S_DVAL = 49
S_T0 = 50
SRD_W2 = 56
S_W2B = 60
S_RU0 = 63
S_LFLAG = 64
S_TMPP = 66
S_TMPQ = 68
S_SLOT = 70
S_TMO = 71
S_HSTEP = 72
S_XFB = 86
S_M2 = 88
S_XO1, S_XO3, S_HO2 = 90, 91, 96
S_SAVE = 92
S_TS = 94

V_TID, V_LANE, V_L15, V_G = 0, 1, 2, 3
V_STAMP = 173
V_CS = 184
V_Y = 212
V_X = 222
V_W2X = 232

def w2reg(f):
    return ar(4 * f, 4) if f < 64 else vr(V_W2X + 4 * (f - 64), 4)

TIMEOUT = 400000

class K(Gen):
    def __init__(self, opts):
        super().__init__()
        self.o = opts
        self.bgq = []

    def stamp(self, idx):
        if not self.o.get("stamps"): return
        self("s_memtime s[%d:%d]" % (S_TS, S_TS + 1))
        self("s_waitcnt lgkmcnt(0)")
        self("v_writelane_b32 v%d, s%d, %d" % (V_STAMP, S_TS, idx))
        self.lgq = []
    def stamp_dump(self):
        if not self.o.get("stamps"): return
        self("s_lshl_b32 s3, s2, 2")
        self("s_add_u32 s3, s3, s%d" % S_W)
        self("s_lshl_b32 s3, s3, 8")
        self("s_add_u32 s3, s3, %d" % WS_STAMP)
        self("v_lshlrev_b32 v180, 2, v%d" % V_LANE)
        self("v_add_u32 v180, s3, v180")
        self("global_store_dword v180, v%d, s[%d:%d]" % (V_STAMP, P_WS, P_WS + 1))
    def bg_add(self, items): self.bgq.extend(items)
    def bg_step(self, n=1):
        q = self.bgq
        while n > 0 and q:
            it = q.pop(0)
            if callable(it): it()
            elif isinstance(it, tuple):
                kind, text, tag = it
                (self.vm if kind == "vm" else self.lg)(text, tag)
            else: self(it)
            n -= 1
    def bg_flush(self): self.bg_step(1 << 30)
    def if_wave(self, w, eq=True):
        L = self.label("L_iw")
        self("s_cmp_%s_u32 s%d, %d" % ("lg" if eq else "eq", S_W, w))
        self("s_cbranch_scc1 %s" % L)
        return L
    def close(self, L): self("%s:" % L)
    def exec_set(self, mask):
        self("s_mov_b64 s[%d:%d], exec" % (S_SAVE, S_SAVE + 1))
        self("s_mov_b64 exec, %s" % mask)
    def exec_restore(self): self("s_mov_b64 exec, s[%d:%d]" % (S_SAVE, S_SAVE + 1))
    def rnd_pair(self, p, t):
        self("v_cvt_pk_bf16_f32 v%d, v%d, v%d" % (t, p, p + 1))
        self("v_lshlrev_b32 v%d, 16, v%d" % (p, t))
        self("v_and_b32 v%d, s%d, v%d" % (p + 1, S_MASK, t))
    def unpack(self, dst, src):
        self("v_lshlrev_b32 v%d, 16, v%d" % (dst, src))
        self("v_and_b32 v%d, s%d, v%d" % (dst + 1, S_MASK, src))
    def unpack_tile(self, dst, src):
        for i in range(10): self.unpack(dst + 2 * i, src + i)
    def rnd1(self, r, t):
        self("v_cvt_pk_bf16_f32 v%d, v%d, v%d" % (t, r, r))
        self("v_lshlrev_b32 v%d, 16, v%d" % (r, t))
    def xg_sum(self, r, t):
        self("v_mov_b32 v%d, v%d" % (t, r))
        self("v_permlane16_swap_b32 v%d, v%d" % (r, t))
        self("v_add_f32 v%d, v%d, v%d" % (r, r, t))
        self("v_mov_b32 v%d, v%d" % (t, r))
        self("v_permlane32_swap_b32 v%d, v%d" % (r, t))
        self("v_add_f32 v%d, v%d, v%d" % (r, r, t))
    def srd(self, q, ptr, nbytes, const=0, add_sgpr=None):
        self("s_add_u32 s%d, s%d, %d" % (q, ptr, const))
        self("s_addc_u32 s%d, s%d, 0" % (q + 1, ptr + 1))
        if add_sgpr is not None:
            self("s_add_u32 s%d, s%d, s%d" % (q, q, add_sgpr))
            self("s_addc_u32 s%d, s%d, 0" % (q + 1, q + 1))
        self("s_and_b32 s%d, s%d, 0xffff" % (q + 1, q + 1))
        self("s_mov_b32 s%d, %d" % (q + 2, nbytes))
        self("s_mov_b32 s%d, 0x20000" % (q + 3))
    def addr_pair(self, dst, ptr, const=0, add_sgpr=None):
        self("s_add_u32 s%d, s%d, %d" % (dst, ptr, const))
        self("s_addc_u32 s%d, s%d, 0" % (dst + 1, ptr + 1))
        if add_sgpr is not None:
            self("s_add_u32 s%d, s%d, s%d" % (dst, dst, add_sgpr))
            self("s_addc_u32 s%d, s%d, 0" % (dst + 1, dst + 1))
    def handoff_stores(self, lines, tagname="st", record=True):
        Ls, Ld = self.label("L_slow"), self.label("L_sd")
        self("s_cmp_eq_u32 s%d, 0" % S_MODE)
        self("s_cbranch_scc0 %s" % Ls)
        for l in lines: self(l)
        self("s_branch %s" % Ld)
        self("%s:" % Ls)
        for l in lines: self(l + " sc0 sc1")
        self("%s:" % Ld)
        if record:
            for l in lines: self.vmq.append(tagname)
    def rowbase(self):
        self("s_lshl_b32 s3, s%d, 8" % S_G)
        self("s_lshl_b32 s%d, s%d, 6" % (S_T0, S_RB))
        self("s_add_u32 s3, s3, s%d" % S_T0)
        self("s_lshl_b32 s%d, s%d, 4" % (S_T0, S_W))
        self("s_add_u32 s3, s3, s%d" % S_T0)

    def flag_store(self, base_pair, off_sgpr, val, device, vt=176):
        if isinstance(val, int): self("s_add_u32 s3, s%d, %d" % (S_TAG, val))
        else: self("s_add_u32 s3, s%d, %s" % (S_TAG, val))
        self("v_mov_b32 v%d, s3" % vt)
        self("s_xor_b32 s3, s3, s%d" % S_KX)
        self("v_mov_b32 v%d, s3" % (vt + 1))
        self("v_mov_b32 v%d, s%d" % (vt + 2, off_sgpr))
        self.exec_set("1")
        line = "global_store_dwordx2 v%d, %s, s[%d:%d]" % (vt + 2, vr(vt, 2), base_pair, base_pair + 1)
        if device: self(line + " sc0 sc1")
        else: self.handoff_stores([line], record=False)
        self.exec_restore()
    def pair_bad(self, w0, w1, lo, span, t, acc=None):
        self("v_subrev_u32 v%d, s%d, v%d" % (t, lo, w0))
        self("v_cmp_lt_u32 vcc, %d, v%d" % (span, t))
        self("v_xor_b32 v%d, v%d, v%d" % (t, w0, w1))
        self("v_cmp_ne_u32 s[%d:%d], s%d, v%d" % (S_M2, S_M2 + 1, S_KX, t))
        self("s_or_b64 s[%d:%d], vcc, s[%d:%d]" % (S_M2, S_M2 + 1, S_M2, S_M2 + 1))
    def poll_pairs(self, base_pair, voff, lo, span, vt, npair=1):
        L = self.label("L_poll")
        self("s_add_u32 s%d, s%d, %d" % (S_T0 + 5, S_TAG, lo))
        self("s_mov_b32 s%d, %d" % (S_TMO, TIMEOUT))
        self("%s:" % L)
        if npair == 1:
            self("global_load_dwordx2 %s, v%d, s[%d:%d] sc1" % (vr(vt, 2), voff, base_pair, base_pair + 1))
        else:
            for k in range(npair // 2):
                self("global_load_dwordx4 %s, v%d, s[%d:%d] offset:%d sc1" % (vr(vt + 4 * k, 4), voff, base_pair, base_pair + 1, 16 * k))
        self("s_sub_u32 s%d, s%d, 1" % (S_TMO, S_TMO))
        self("s_cmp_eq_u32 s%d, 0" % S_TMO)
        self("s_cbranch_scc1 L_abort")
        self("s_waitcnt vmcnt(0)")
        for k in range(npair):
            self.pair_bad(vt + 2 * k, vt + 2 * k + 1, S_T0 + 5, span, vt + 2 * npair)
            self("s_cbranch_scc1 %s" % L)

    def barrier_arrive(self, phase, drain=True, wave=0):
        if drain: self.wait_all()
        self("s_barrier")
        L = self.if_wave(wave)
        self("s_lshl_b32 s%d, s%d, 3" % (S_T0, S_J))
        self.flag_store(S_LFLAG, S_T0, phase, device=False)
        self.close(L)
    def pk_wait(self):
        L = self.if_wave(3)
        self.addr_pair(S_TMPP, P_WS, WS_PKFLAG)
        self("v_lshlrev_b32 v174, 5, v%d" % V_LANE)
        self.poll_pairs(S_TMPP, 174, 1, 0, 4, npair=4)
        self.stamp(40)
        self.close(L)
    def barrier_wait(self, phase, wave=0, vt=176):
        L = self.if_wave(wave)
        self("v_and_b32 v%d, 31, v%d" % (vt + 4, V_LANE))
        self("v_lshlrev_b32 v%d, 3, v%d" % (vt + 4, vt + 4))
        self.poll_pairs(S_LFLAG, vt + 4, phase, 7 - phase, vt)
        self.close(L)
        self("s_barrier")

    def prologue(self):
        self("s_cmp_ge_u32 s2, 256")
        self("s_cbranch_scc1 L_end")
        if self.o.get("dbgtime"):
            self("s_memrealtime s[98:99]")
            self("s_memtime s[100:101]")
        self("s_load_dwordx16 s[16:31], s[0:1], 0")
        self("s_load_dwordx8 s[32:39], s[0:1], 64")
        self("s_and_b32 s%d, s2, 7" % S_G)
        self("s_lshr_b32 s%d, s2, 3" % S_J)
        self("v_lshrrev_b32 v4, 6, v0")
        self("v_readfirstlane_b32 s%d, v4" % S_W)
        self("v_and_b32 v%d, 63, v0" % V_LANE)
        self("v_and_b32 v%d, 15, v0" % V_L15)
        self("v_bfe_u32 v%d, v0, 4, 2" % V_G)
        self("s_getreg_b32 s%d, hwreg(HW_REG_XCC_ID, 0, 4)" % S_XCC)
        self("s_mov_b32 s%d, 0xffff0000" % S_MASK)
        self("s_lshr_b32 s%d, s%d, 3" % (S_RB, S_J))
        self("s_and_b32 s%d, s%d, 7" % (S_CS, S_J))
        self("s_lshr_b32 s%d, s%d, 4" % (S_RT, S_J))
        self("s_and_b32 s%d, s%d, 15" % (S_CT, S_J))
        self("s_mul_i32 s3, s%d, %d" % (S_CT, 11 * 4370))
        self("s_lshr_b32 s3, s3, 16")
        self("s_mul_i32 s%d, s%d, 6" % (S_UOFF, S_CT))
        self("s_add_u32 s%d, s%d, s3" % (S_UOFF, S_UOFF))
        self("s_mov_b32 s%d, 0" % S_MODE)
        self("s_waitcnt lgkmcnt(0)")
        wsb = self.o.get("wsbase", 0)
        if wsb:
            self("s_add_u32 s%d, s%d, 0x%x" % (P_WS, P_WS, wsb))
            self("s_addc_u32 s%d, s%d, 0" % (P_WS + 1, P_WS + 1))
        self("s_load_dword s%d, s[%d:%d], %d" % (S_TAG, P_WS, P_WS + 1, WS_EPOCH))
        self("s_mov_b32 s%d, 0x%x" % (S_KX, KX))
        self("s_lshl_b32 s3, s%d, 8" % S_G)
        self.addr_pair(S_LFLAG, P_WS, WS_LFLAG, 3)

    def repack_decode(self, T, src, pitch, dst):
        L2, Ld = self.label("L_rp2"), self.label("L_rpd")
        a, b = S_T0, S_T0 + 1
        self("s_cmp_ge_u32 s%d, 540" % T)
        self("s_cbranch_scc1 %s" % L2)
        self("s_mul_hi_u32 s%d, s%d, %d" % (a, T, (1 << 32) // 27 + 1))
        self("s_mul_i32 s%d, s%d, 27" % (b, a))
        self("s_sub_u32 s%d, s%d, s%d" % (b, T, b))
        self("s_mul_i32 s3, s%d, %d" % (a, 32 * 3456))
        self("s_lshl_b32 s%d, s%d, 7" % (pitch, b))
        self("s_add_u32 s3, s3, s%d" % pitch)
        self.addr_pair(src, P_W1, 0, 3)
        self("s_mul_i32 s3, s%d, 108" % a)
        self("s_lshl_b32 s%d, s%d, 2" % (b, b))
        self("s_add_u32 s3, s3, s%d" % b)
        self("s_lshl_b32 s3, s3, 10")
        self("s_add_u32 s%d, s3, %d" % (dst, WS_W1P))
        self("s_movk_i32 s%d, 3456" % pitch)
        self("s_branch %s" % Ld)
        self("%s:" % L2)
        self("s_sub_u32 s3, s%d, 540" % T)
        self("s_mul_hi_u32 s%d, s3, %d" % (a, (1 << 32) // 10 + 1))
        self("s_mul_i32 s%d, s%d, 10" % (b, a))
        self("s_sub_u32 s%d, s3, s%d" % (b, b))
        self("s_mul_i32 s3, s%d, %d" % (a, 32 * 1280))
        self("s_lshl_b32 s%d, s%d, 7" % (pitch, b))
        self("s_add_u32 s3, s3, s%d" % pitch)
        self.addr_pair(src, P_W2, 0, 3)
        self("s_mul_i32 s3, s%d, 40" % a)
        self("s_lshl_b32 s%d, s%d, 2" % (b, b))
        self("s_add_u32 s3, s3, s%d" % b)
        self("s_lshl_b32 s3, s3, 10")
        self("s_add_u32 s%d, s3, %d" % (dst, WS_W2P))
        self("s_movk_i32 s%d, 1280" % pitch)
        self("%s:" % Ld)
    def repack_issue(self):
        T, T2 = 72, 73
        self.RP = dict(src1=74, pitch1=76, dst1=77, src2=78, pitch2=80, dst2=81, has2=82, lds=83)
        R = self.RP
        self("s_lshl_b32 s%d, s2, 2" % T)
        self("s_add_u32 s%d, s%d, s%d" % (T, T, S_W))
        self("s_cmp_lt_u32 s%d, 56" % T)
        self("s_cselect_b32 s%d, 1, 0" % R["has2"])
        self("s_lshl_b32 s%d, s%d, 13" % (R["lds"], S_W))
        self.repack_decode(T, R["src1"], R["pitch1"], R["dst1"])
        row, ch, off = 100, 101, 102
        self("v_lshrrev_b32 v%d, 3, v%d" % (row, V_LANE))
        self("v_and_b32 v%d, 7, v%d" % (ch, V_LANE))
        self("v_lshlrev_b32 v%d, 4, v%d" % (ch, ch))
        def dma(src, pitch, ldsoff, rec):
            self("v_mul_lo_u32 v%d, v%d, s%d" % (off, row, pitch))
            self("v_add_u32 v%d, v%d, v%d" % (off, off, ch))
            self("s_lshl_b32 s%d, s%d, 3" % (S_T0, pitch))
            for r in range(4):
                self("s_add_u32 m0, s%d, %d" % (R["lds"], ldsoff + 1024 * r))
                if r: self("v_add_u32 v%d, s%d, v%d" % (off, S_T0, off))
                t = "global_load_lds_dwordx4 v%d, s[%d:%d]" % (off, src, src + 1)
                if rec: self.vm(t, "rp")
                else: self(t)
        L = self.label("L_rp1")
        self("s_cmp_eq_u32 s%d, 0" % R["has2"])
        self("s_cbranch_scc1 %s" % L)
        self("s_add_u32 s%d, s%d, 1024" % (T2, T))
        self.repack_decode(T2, R["src2"], R["pitch2"], R["dst2"])
        dma(R["src2"], R["pitch2"], 4096, False)
        self("%s:" % L)
        dma(R["src1"], R["pitch1"], 0, True)
    def repack_finish(self):
        R = self.RP
        a, F, sa = 100, 104, 101
        self.vm_wait("rp")
        self("v_bfe_u32 v%d, v%d, 2, 2" % (a, V_LANE))
        self("v_lshl_add_u32 v%d, v%d, 2, v%d" % (a, V_G, a))
        self("v_lshlrev_b32 v%d, 7, v%d" % (a, a))
        self("v_and_b32 v%d, 3, v%d" % (sa, V_LANE))
        self("v_lshl_add_u32 v%d, v%d, 3, v%d" % (a, sa, a))
        self("v_add_u32 v%d, s%d, v%d" % (a, R["lds"], a))
        def one(ldsoff, dst, rec):
            for u in range(4):
                for h in range(2):
                    self("ds_read_b64_tr_b16 %s, v%d offset:%d" % (vr(F + 4 * u + 2 * h, 2), a, ldsoff + h * 2048 + 32 * u))
            self("v_lshlrev_b32 v%d, 4, v%d" % (sa, V_LANE))
            self("v_add_u32 v%d, s%d, v%d" % (sa, dst, sa))
            self("s_waitcnt lgkmcnt(0)")
            for u in range(4):
                t = "global_store_dwordx4 v%d, %s, s[%d:%d] offset:%d sc0 sc1" % (sa, vr(F + 4 * u, 4), P_WS, P_WS + 1, 1024 * u)
                if rec: self.vm(t, "rpst")
                else: self(t)
        L = self.label("L_rf2")
        self("s_cmp_eq_u32 s%d, 0" % R["has2"])
        self("s_cbranch_scc1 %s" % L)
        one(4096, R["dst2"], False)
        self("s_nop 1")
        self("%s:" % L)
        one(0, R["dst1"], True)
        self.lgq = []

    def prep_loads(self):
        KR, VR, TAP, RAW = 4, 34, 46, 66
        self.KR, self.VR, self.TAP, self.RAW = KR, VR, TAP, RAW
        c10, rp, off = 110, 111, 112
        self("v_and_b32 v%d, 7, v0" % c10)
        self("v_lshrrev_b32 v%d, 3, v0" % rp)
        self("s_lshl_b32 s3, s%d, 6" % S_J)
        self("s_sub_u32 s3, s3, 3")
        self("v_lshlrev_b32 v%d, 1, v%d" % (off, rp))
        self("v_add_u32 v%d, s3, v%d" % (off, off))
        self("s_movk_i32 s%d, 1280" % S_T0)
        self("v_mul_lo_u32 v%d, v%d, s%d" % (off, off, S_T0))
        self("s_mul_i32 s3, s%d, 160" % S_G)
        self("v_mul_u32_u24 v%d, 20, v%d" % (off + 1, c10))
        self("v_add3_u32 v%d, v%d, v%d, s3" % (off, off, off + 1))
        self.srd(SRD_A, P_K, 2621440)
        self.srd(SRD_B, P_V, 2621440)
        offs = [off]
        for r in range(1, 5):
            self("v_add_u32 v%d, %d, v%d" % (off + 1 + r, 1280 * r, off))
            offs.append(off + 1 + r)
        for r in range(5):
            self.vm("buffer_load_dwordx4 %s, v%d, s[%d:%d], 0 offen" % (vr(KR + 6 * r, 4), offs[r], SRD_A, SRD_A + 3), "k")
            self.vm("buffer_load_dword v%d, v%d, s[%d:%d], 0 offen offset:16" % (KR + 6 * r + 4, offs[r], SRD_A, SRD_A + 3), "k")
        for r in range(2):
            self.vm("buffer_load_dwordx4 %s, v%d, s[%d:%d], 0 offen" % (vr(VR + 6 * r, 4), offs[3 + r], SRD_B, SRD_B + 3), "v")
            self.vm("buffer_load_dword v%d, v%d, s[%d:%d], 0 offen offset:16" % (VR + 6 * r + 4, offs[3 + r], SRD_B, SRD_B + 3), "v")
        t = off + 7
        self("s_mul_i32 s3, s%d, 640" % S_G)
        self("v_mul_u32_u24 v%d, 80, v%d" % (t, c10))
        self("v_add_u32 v%d, s3, v%d" % (t, t))
        for i in range(5):
            self.vm("global_load_dwordx4 %s, v%d, s[%d:%d] offset:%d" % (vr(TAP + 4 * i, 4), t, P_SK, P_SK + 1, 16 * i), "tap")
        t2 = off + 8
        self.rowbase()
        self("v_add_u32 v%d, s3, v%d" % (t2, V_L15))
        self("v_mul_u32_u24 v%d, 1280, v%d" % (t2, t2))
        self("s_mul_i32 s3, s%d, 160" % S_CS)
        self("v_lshlrev_b32 v%d, 3, v%d" % (t2 + 1, V_G))
        self("v_add3_u32 v%d, v%d, v%d, s3" % (t2, t2, t2 + 1))
        for u in range(5):
            self.vm("global_load_dwordx2 %s, v%d, s[%d:%d] offset:%d" % (vr(V_X + 2 * u, 2), t2, P_Q, P_Q + 1, 32 * u), "q")
        self("s_lshl_b32 s3, s%d, 5" % S_W)
        self("s_add_u32 s3, s3, s%d" % S_J)
        self("s_cmp_lt_u32 s3, 80")
        self("s_cselect_b32 s%d, 1, 0" % S_HASCH)
        self("s_cselect_b32 s3, s3, 0")
        self("s_mul_i32 s%d, s%d, 80" % (S_CH, S_G))
        self("s_add_u32 s%d, s%d, s3" % (S_CH, S_CH))
        self("s_mul_i32 s%d, s%d, %d" % (S_SLOT, S_W, SLOT))
        self("s_cmp_lt_u32 s%d, 3" % S_W)
        self("s_cselect_b32 s%d, s%d, 0" % (S_SLOT, S_SLOT))
        self("s_lshl_b32 s3, s%d, 1" % S_CH)
        self("s_and_b32 s3, s3, 0xfffffffc")
        self("s_load_dword s%d, s[%d:%d], s3" % (S_DVAL, P_D, P_D + 1))
        self("s_lshl_b32 s3, s%d, 12" % S_CH)
        self.srd(52, P_SSM, 4096, add_sgpr=3)
        a = off + 10
        self("v_lshlrev_b32 v%d, 4, v%d" % (a, V_LANE))
        for r in range(4):
            self("v_add_u32 v%d, %d, v%d" % (a + 1, (1024 * r - 16) & 0xffffffff, a))
            self.vm("buffer_load_dwordx4 %s, v%d, s[52:55], 0 offen" % (vr(RAW + 8 * r, 4), a + 1), "raw")
            self.vm("buffer_load_dwordx4 %s, v%d, s[52:55], 0 offen offset:%d" % (vr(RAW + 8 * r + 4, 4), a, 1024 * r), "raw")
        La, Lb = self.label("L_pt"), self.label("L_ptd")
        self("s_cmp_ge_u32 s%d, 2" % S_W)
        self("s_cbranch_scc1 %s" % La)
        self("s_lshl_b32 s3, s%d, 6" % S_W)
        self("v_add_u32 v%d, s3, v%d" % (a, V_LANE))
        self("v_min_u32 v%d, 79, v%d" % (a, a))
        self("v_lshlrev_b32 v%d, 12, v%d" % (a, a))
        self("s_mul_i32 s3, s%d, %d" % (S_G, 80 * 4096))
        self("s_sub_u32 s%d, 31, s%d" % (S_T0, S_J))
        self("s_lshl_b32 s%d, s%d, 7" % (S_T0, S_T0))
        self("s_add_u32 s3, s3, s%d" % S_T0)
        self("s_add_u32 s3, s3, %d" % WS_UR)
        self("v_add_u32 v%d, s3, v%d" % (a, a))
        self("global_load_dword v%d, v%d, s[%d:%d]" % (a + 1, a, P_WS, P_WS + 1))
        self("s_branch %s" % Lb)
        self("%s:" % La)
        self("s_lshl_b32 s3, s%d, 8" % S_G)
        self("s_lshl_b32 s%d, s%d, 6" % (S_T0, S_RB))
        self("s_add_u32 s3, s3, s%d" % S_T0)
        self("s_lshl_b32 s%d, s%d, 3" % (S_T0, S_CS))
        self("s_add_u32 s3, s3, s%d" % S_T0)
        self("v_and_b32 v%d, 7, v%d" % (a, V_LANE))
        self("v_add_u32 v%d, s3, v%d" % (a, a))
        self("v_lshlrev_b32 v%d, 7, v%d" % (a, a))
        self("v_bfe_u32 v%d, v%d, 3, 1" % (a + 1, V_LANE))
        self("s_sub_u32 s3, s%d, 2" % S_W)
        self("s_lshl_b32 s3, s3, 1")
        self("v_add_u32 v%d, s3, v%d" % (a + 1, a + 1))
        self("v_mul_u32_u24 v%d, %d, v%d" % (a + 1, STAT_SZ, a + 1))
        self("v_add3_u32 v%d, v%d, v%d, %s" % (a, a, a + 1, "s%d" % S_T0)) if False else None
        self("v_add_u32 v%d, v%d, v%d" % (a, a, a + 1))
        self("v_add_u32 v%d, %d, v%d" % (a, WS_STAT, a))
        self("global_load_dword v%d, v%d, s[%d:%d]" % (a + 1, a, P_WS, P_WS + 1))
        self("v_and_b32 v%d, 1, v%d" % (a, V_LANE))
        self("v_lshlrev_b32 v%d, 7, v%d" % (a, a))
        self("global_load_dword v%d, v%d, s[%d:%d]" % (a + 1, a, S_LFLAG, S_LFLAG + 1))
        self("%s:" % Lb)
        self("s_waitcnt lgkmcnt(0)")
        self("s_add_u32 s%d, s%d, 0x%x" % (S_TAG, S_TAG, TAG0))
        L = self.if_wave(0)
        self("s_lshl_b32 s%d, s%d, 8" % (S_T0, S_G))
        self("s_lshl_b32 s%d, s%d, 3" % (S_T0 + 1, S_J))
        self("s_add_u32 s%d, s%d, s%d" % (S_T0, S_T0, S_T0 + 1))
        self("s_add_u32 s%d, s%d, %d" % (S_T0, S_T0, WS_XCCF))
        self.flag_store(P_WS, S_T0, "s%d" % S_XCC, device=True)
        self.close(L)

    def prep_compute(self):
        KR, VR, TAP = self.KR, self.VR, self.TAP
        Kp, Tp, Vp = 124, 134, 142
        A0, A1, P0, P1, t0, t1 = 146, 148, 150, 152, 154, 155
        O0, O1 = 156, 157
        lad = 158
        self("v_and_b32 v%d, 7, v0" % lad)
        self("v_mul_u32_u24 v%d, %d, v%d" % (lad, 10 * T_STRIDE, lad))
        self("v_lshrrev_b32 v%d, 3, v0" % (lad + 1))
        self("v_lshlrev_b32 v%d, 2, v%d" % (lad + 1, lad + 1))
        self("v_sub_u32 v%d, v%d, v%d" % (lad, lad, lad + 1))
        self("v_add_u32 v%d, %d, v%d" % (lad, LDS_T + 124, lad))
        self.vm_wait(["k", "v", "tap"])
        self.stamp(39)
        pk = lambda op, d, a, b: self("v_pk_%s_f32 %s, %s, %s" % (op, vr(d, 2), vr(a, 2), vr(b, 2)))
        for i in range(5):
            for r in range(5): self.unpack(Kp + 2 * r, KR + 6 * r + i)
            for t in range(4):
                s0 = TAP + 4 * i + (t >> 1); s1 = s0 + 2
                if t & 1:
                    self("v_and_b32 v%d, s%d, v%d" % (Tp + 2 * t, S_MASK, s0))
                    self("v_and_b32 v%d, s%d, v%d" % (Tp + 2 * t + 1, S_MASK, s1))
                else:
                    self("v_lshlrev_b32 v%d, 16, v%d" % (Tp + 2 * t, s0))
                    self("v_lshlrev_b32 v%d, 16, v%d" % (Tp + 2 * t + 1, s1))
            for r in range(2): self.unpack(Vp + 2 * r, VR + 6 * r + i)
            pk("mul", A0, Kp + 0, Tp + 6); pk("mul", A1, Kp + 2, Tp + 6)
            self.rnd_pair(A0, t0); self.rnd_pair(A1, t1)
            for step in range(1, 4):
                T = Tp + 2 * (3 - step)
                pk("mul", P0, Kp + 2 * step, T); pk("mul", P1, Kp + 2 * (step + 1), T)
                self.rnd_pair(P0, t0); self.rnd_pair(P1, t1)
                pk("add", A0, A0, P0); pk("add", A1, A1, P1)
                self.rnd_pair(A0, t0); self.rnd_pair(A1, t1)
            pk("mul", A0, A0, Vp + 0); pk("mul", A1, A1, Vp + 2)
            self("v_cvt_pk_bf16_f32 v%d, v%d, v%d" % (O0, A1, A0))
            self("v_cvt_pk_bf16_f32 v%d, v%d, v%d" % (O1, A1 + 1, A0 + 1))
            self.lg("ds_write_b32 v%d, v%d offset:%d" % (lad, O0, (2 * i) * T_STRIDE), "tw")
            self.lg("ds_write_b32 v%d, v%d offset:%d" % (lad, O1, (2 * i + 1) * T_STRIDE), "tw")

    def mode_check(self, vt=176):
        L = self.if_wave(0)
        self("s_lshl_b32 s3, s%d, 8" % S_G)
        self.addr_pair(S_TMPP, P_WS, WS_XCCF, 3)
        self("v_and_b32 v%d, 31, v%d" % (vt + 4, V_LANE))
        self("v_lshlrev_b32 v%d, 3, v%d" % (vt + 4, vt + 4))
        self.poll_pairs(S_TMPP, vt + 4, 0, 7, vt)
        self("s_add_u32 s3, s%d, s%d" % (S_TAG, S_XCC))
        self("v_cmp_ne_u32 vcc, s3, v%d" % vt)
        self("s_nop 1")
        self("s_cmp_lg_u64 vcc, 0")
        self("s_cselect_b32 s%d, 1, 0" % S_MODE)
        if self.o.get("force_slow"): self("s_mov_b32 s%d, 1" % S_MODE)
        self("v_mov_b32 v%d, s%d" % (vt, S_MODE))
        self("v_mov_b32 v%d, %d" % (vt + 1, LDS_MODE))
        self("ds_write_b32 v%d, v%d" % (vt + 1, vt))
        self.close(L)
    def mode_fetch(self, vt=176):
        self("v_mov_b32 v%d, %d" % (vt + 1, LDS_MODE))
        self("ds_read_b32 v%d, v%d" % (vt, vt + 1))
        self("s_waitcnt lgkmcnt(0)")
        self("v_readfirstlane_b32 s%d, v%d" % (S_MODE, vt))
        self.lgq = []
        alias = self.o.get("alias", 1)
        self("s_mov_b32 s%d, %d" % (S_XO1, WS_UR if alias else WS_XF1))
        self("s_mov_b32 s%d, %d" % (S_XO3, WS_UR if alias else WS_XF3))
        self("s_mov_b32 s%d, %d" % (S_HO2, WS_HF1 if alias else WS_HF2))
        L = self.label("L_al")
        self("s_cmp_eq_u32 s%d, 0" % S_MODE)
        self("s_cbranch_scc1 %s" % L)
        self("s_mov_b32 s%d, %d" % (S_XO1, WS_XF1))
        self("s_mov_b32 s%d, %d" % (S_XO3, WS_XF3))
        self("s_mov_b32 s%d, %d" % (S_HO2, WS_HF2))
        self("%s:" % L)

    def tile_stats(self, xf, buf, tmp):
        s, t = tmp, tmp + 4
        d = tmp + 6
        m2 = tmp + 26
        pk = lambda op, dd, a, b: self("v_pk_%s_f32 %s, %s, %s" % (op, vr(dd, 2), vr(a, 2), vr(b, 2)))
        pk("add", s, xf, xf + 2)
        for i in range(2, 10): pk("add", s, s, xf + 2 * i)
        self("v_add_f32 v%d, v%d, v%d" % (s, s, s + 1))
        self.xg_sum(s, t)
        self("v_mul_f32 v%d, 0x3c4ccccd, v%d" % (s, s))
        for i in range(10):
            self("v_pk_add_f32 %s, %s, %s op_sel_hi:[1,0] neg_lo:[0,1] neg_hi:[0,1]" % (vr(d + 2 * i, 2), vr(xf + 2 * i, 2), vr(s, 2)))
        pk("mul", m2, d, d)
        for i in range(1, 10):
            self("v_pk_fma_f32 %s, %s, %s, %s" % (vr(m2, 2), vr(d + 2 * i, 2), vr(d + 2 * i, 2), vr(m2, 2)))
        self("v_add_f32 v%d, v%d, v%d" % (s + 1, m2, m2 + 1))
        self.xg_sum(s + 1, t)
        self("s_add_u32 s3, s%d, %d" % (S_TAG, buf))
        self("v_mov_b32 v%d, s3" % (s + 2))
        self("s_xor_b32 s3, s3, s%d" % S_KX)
        self("v_mov_b32 v%d, s3" % (s + 3))
        self.rowbase()
        self("s_lshl_b32 s3, s3, 7")
        self("s_lshl_b32 s%d, s%d, 4" % (S_T0, S_CS))
        self("s_add_u32 s3, s3, s%d" % S_T0)
        self("s_add_u32 s3, s3, %d" % (WS_STAT + buf * STAT_SZ))
        self("v_lshlrev_b32 v%d, 7, v%d" % (t, V_L15))
        self("v_add_u32 v%d, s3, v%d" % (t, t))
        self.exec_set("0xffff")
        self.handoff_stores(["global_store_dwordx4 v%d, %s, s[%d:%d]" % (t, vr(s, 4), P_WS, P_WS + 1)], "stat")
        self.exec_restore()
    def row_stats_issue(self, buf, tmp):
        a = tmp + 8
        self.rowbase()
        self("s_lshl_b32 s3, s3, 7")
        self("s_add_u32 s3, s3, %d" % (WS_STAT + buf * STAT_SZ))
        self("v_lshlrev_b32 v%d, 7, v%d" % (a, V_L15))
        self("v_lshl_add_u32 v%d, v%d, 5, v%d" % (a, V_G, a))
        self("v_add_u32 v%d, s3, v%d" % (a, a))
        for k in range(2):
            self.vm("global_load_dwordx4 %s, v%d, s[%d:%d] offset:%d sc1" % (vr(tmp + 4 * k, 4), a, P_WS, P_WS + 1, 16 * k), "rs")
    def row_stats_validate(self, buf, tmp):
        Lr, Lo = self.label("L_rsr"), self.label("L_rso")
        self("s_add_u32 s%d, s%d, %d" % (S_T0 + 5, S_TAG, buf))
        self("s_mov_b32 s%d, %d" % (S_TMO, TIMEOUT))
        self("%s:" % Lr)
        self.pair_bad(tmp + 2, tmp + 3, S_T0 + 5, 0, tmp + 9)
        self("s_mov_b64 s[%d:%d], s[%d:%d]" % (S_TMPQ, S_TMPQ + 1, S_M2, S_M2 + 1))
        self.pair_bad(tmp + 6, tmp + 7, S_T0 + 5, 0, tmp + 9)
        self("s_or_b64 s[%d:%d], s[%d:%d], s[%d:%d]" % (S_M2, S_M2 + 1, S_M2, S_M2 + 1, S_TMPQ, S_TMPQ + 1))
        self("s_cbranch_scc0 %s" % Lo)
        self("s_sub_u32 s%d, s%d, 1" % (S_TMO, S_TMO))
        self("s_cmp_eq_u32 s%d, 0" % S_TMO)
        self("s_cbranch_scc1 L_abort")
        for k in range(2):
            self("global_load_dwordx4 %s, v%d, s[%d:%d] offset:%d sc1" % (vr(tmp + 4 * k, 4), tmp + 8, P_WS, P_WS + 1, 16 * k))
        self("s_waitcnt vmcnt(0)")
        self("s_branch %s" % Lr)
        self("%s:" % Lo)
        self("v_mov_b32 v%d, v%d" % (tmp + 2, tmp + 4))
        self("v_mov_b32 v%d, v%d" % (tmp + 3, tmp + 5))
    def row_stats_finish_items(self, tmp, out_m, out_rs):
        m0, q0, m1, q1 = tmp, tmp + 1, tmp + 2, tmp + 3
        s, t = tmp + 4, tmp + 5
        g = Gen()
        def xs(r):
            g("v_mov_b32 v%d, v%d" % (t, r)); g("v_permlane16_swap_b32 v%d, v%d" % (r, t)); g("v_add_f32 v%d, v%d, v%d" % (r, r, t))
            g("v_mov_b32 v%d, v%d" % (t, r)); g("v_permlane32_swap_b32 v%d, v%d" % (r, t)); g("v_add_f32 v%d, v%d, v%d" % (r, r, t))
        def r1(r):
            g("v_cvt_pk_bf16_f32 v%d, v%d, v%d" % (t, r, r)); g("v_lshlrev_b32 v%d, 16, v%d" % (r, t))
        g("v_add_f32 v%d, v%d, v%d" % (s, m0, m1)); xs(s)
        g("v_mul_f32 v%d, 0x3e000000, v%d" % (s, s))
        g("v_sub_f32 v%d, v%d, v%d" % (m0, m0, s)); g("v_sub_f32 v%d, v%d, v%d" % (m1, m1, s))
        g("v_mul_f32 v%d, v%d, v%d" % (m0, m0, m0)); g("v_fmac_f32 v%d, v%d, v%d" % (m0, m1, m1))
        g("v_add_f32 v%d, v%d, v%d" % (q0, q0, q1))
        g("v_mov_b32 v%d, 0x42a00000" % t); g("v_fmac_f32 v%d, v%d, v%d" % (q0, m0, t)); xs(q0)
        g("v_mul_f32 v%d, 0x3acccccd, v%d" % (q0, q0)); r1(q0)
        g("v_add_f32 v%d, 0x3727c5ac, v%d" % (q0, q0)); r1(q0)
        g("v_sqrt_f32 v%d, v%d" % (q0, q0)); g("s_nop 0"); r1(q0)
        g("v_rcp_f32 v%d, v%d" % (out_rs, q0)); r1(s)
        g("v_mov_b32 v%d, v%d" % (out_m, s))
        return [i.text.strip() for i in g.ins]
    def row_stats_finish(self, tmp, out_m, out_rs):
        for l in self.row_stats_finish_items(tmp, out_m, out_rs): self(l)

    def prep_store_ur(self):
        a, b = 100, 101
        self("v_lshrrev_b32 v%d, 3, v0" % a)
        self("v_and_b32 v%d, 7, v0" % b)
        self("v_lshlrev_b32 v%d, 4, v%d" % (b, b))
        self("v_mul_u32_u24 v%d, %d, v%d" % (102, T_STRIDE, a))
        self("v_add3_u32 v%d, v%d, v%d, 0" % (102, 102, b))
        self("v_add_u32 v%d, %d, v%d" % (102, LDS_T, 102))
        self("s_mul_i32 s3, s%d, %d" % (S_G, 80 * 4096))
        self("s_sub_u32 s%d, 31, s%d" % (S_T0, S_J))
        self("s_lshl_b32 s%d, s%d, 7" % (S_T0, S_T0))
        self("s_add_u32 s3, s3, s%d" % S_T0)
        self("s_add_u32 s3, s3, %d" % WS_UR)
        self("v_lshlrev_b32 v%d, 12, v%d" % (103, a))
        self("v_add3_u32 v%d, v%d, v%d, s3" % (103, 103, b))
        for r in range(2):
            self("ds_read_b128 %s, v102 offset:%d" % (vr(104 + 4 * r, 4), 32 * T_STRIDE * r))
        L = self.label("L_ur")
        self("s_cmp_ge_u32 s%d, 2" % S_W)
        self("s_cbranch_scc1 %s" % L)
        self("ds_read_b128 v[112:115], v102 offset:%d" % (32 * T_STRIDE * 2))
        self("%s:" % L)
        self("v_add_u32 v116, %d, v103" % (32 * 4096))
        self("v_add_u32 v117, %d, v103" % (64 * 4096))
        self("s_waitcnt lgkmcnt(0)")
        self.handoff_stores(["global_store_dwordx4 v103, v[104:107], s[%d:%d]" % (P_WS, P_WS + 1),
                             "global_store_dwordx4 v116, v[108:111], s[%d:%d]" % (P_WS, P_WS + 1)], "ur")
        L = self.label("L_ur2")
        self("s_cmp_ge_u32 s%d, 2" % S_W)
        self("s_cbranch_scc1 %s" % L)
        self.handoff_stores(["global_store_dwordx4 v117, v[112:115], s[%d:%d]" % (P_WS, P_WS + 1)], "ur", record=False)
        self("%s:" % L)
        self.lgq = []

    def build_kcopies(self):
        RAW = self.RAW
        SETS = [(110, 116, 122), (134, 140, 146)]
        ad, z = 128, 130
        L = self.label("L_kc")
        self("s_cmp_eq_u32 s%d, 0" % S_HASCH)
        self("s_cbranch_scc1 %s" % L)
        self("v_lshlrev_b32 v%d, 4, v%d" % (ad, V_LANE))
        self("s_add_u32 s3, s%d, 16" % S_SLOT)
        self("v_add_u32 v%d, s3, v%d" % (ad, ad))
        for r in range(4):
            R = RAW + 8 * r
            A, B, C = SETS[r & 1]
            if r >= 2: self("s_waitcnt lgkmcnt(8)")
            for i in range(6):
                self("v_alignbit_b32 v%d, v%d, v%d, 16" % (A + i, R + i + 1, R + i))
            for i in range(6):
                self("v_alignbit_b32 v%d, v%d, v%d, 16" % (B + i, R + i + 2, R + i + 1))
            for i in range(6):
                self("v_mov_b32 v%d, v%d" % (C + i, R + i + 1))
            src = {0: A, 1: C, 2: B, 3: R + 2, 4: A + 2, 5: C + 2, 6: B + 2, 7: R + 4}
            for c in range(8):
                self("ds_write_b128 v%d, %s offset:%d" % (ad, vr(src[c], 4), c * KC_STRIDE + 1024 * r))
        for i in range(4): self("v_mov_b32 v%d, 0" % (z + i))
        self("v_mul_u32_u24 v%d, %d, v%d" % (ad + 1, KC_STRIDE, V_LANE))
        self("v_add_u32 v%d, s%d, v%d" % (ad + 1, S_SLOT, ad + 1))
        self.exec_set("0xff")
        self("ds_write_b128 v%d, %s" % (ad + 1, vr(z, 4)))
        self("s_mov_b64 exec, 0x3fffffff")
        self("v_lshlrev_b32 v%d, 4, v%d" % (ad + 1, V_LANE))
        self("s_add_u32 s3, s%d, %d" % (S_SLOT, U_OFF + 4096))
        self("v_add_u32 v%d, s3, v%d" % (ad + 1, ad + 1))
        self("ds_write_b128 v%d, %s" % (ad + 1, vr(z, 4)))
        self.exec_restore()
        self("%s:" % L)
        self("s_waitcnt lgkmcnt(0)")
        self.lgq = []

    def conv(self):
        Lskip = self.label("L_conv_skip"); Ldone = self.label("L_conv_done")
        self("s_cmp_eq_u32 s%d, 0" % S_HASCH)
        self("s_cbranch_scc1 %s" % Lskip)
        self("s_lshl_b32 s3, s%d, 12" % S_CH)
        self.addr_pair(S_TMPP, P_WS, WS_UR, 3)
        a = 164
        self("v_lshlrev_b32 v%d, 4, v%d" % (a, V_LANE))
        for r in range(4):
            self("s_add_u32 m0, s%d, %d" % (S_SLOT, U_OFF + 1024 * r))
            self("v_add_u32 v%d, %d, v%d" % (a + 1, 1024 * r, a))
            self.vm("global_load_lds_dwordx4 v%d, s[%d:%d]" % (a + 1, S_TMPP, S_TMPP + 1), "u")
        self("s_and_b32 s3, s%d, 1" % S_CH)
        self("s_lshl_b32 s%d, s%d, 16" % (S_T0, S_DVAL))
        self("s_and_b32 s%d, s%d, 0xffff0000" % (S_DVAL, S_DVAL))
        self("s_cmp_eq_u32 s3, 0")
        self("s_cselect_b32 s%d, s%d, s%d" % (S_DVAL, S_T0, S_DVAL))
        vA, vB = 166, 167
        self("v_and_b32 v%d, 7, v%d" % (vA, V_L15))
        self("v_mul_u32_u24 v%d, %d, v%d" % (vA, KC_STRIDE, vA))
        self("v_lshrrev_b32 v%d, 3, v%d" % (168, V_L15))
        self("v_add_u32 v%d, v%d, v%d" % (168, 168, V_G))
        self("v_lshl_add_u32 v%d, v%d, 4, v%d" % (vA, 168, vA))
        self("v_add_u32 v%d, s%d, v%d" % (vA, S_SLOT, vA))
        self("v_lshlrev_b32 v%d, 5, v%d" % (vB, V_L15))
        self("v_lshlrev_b32 v%d, 4, v%d" % (168, V_G))
        self("v_sub_u32 v%d, v%d, v%d" % (vB, 168, vB))
        self("s_add_u32 s3, s%d, %d" % (S_SLOT, U_OFF + 4064 - 3584))
        self("v_add_u32 v%d, s3, v%d" % (vB, vB))
        ACC = 4; FA = [36, 100]; FB = [68, 132]
        def loadsA(tau, buf):
            return [("lg", "ds_read_b128 %s, v%d offset:%d" % (vr(FA[buf] + 4 * i, 4), vA, 64 * tau + 512 * i), "cA") for i in range(8)]
        def loadsB(tau, buf):
            return [("lg", "ds_read_b128 %s, v%d offset:%d" % (vr(FB[buf] + 4 * i, 4), vB, 3584 - 512 * i + 64 * tau), "cB") for i in range(8)]
        self.bg_add(loadsA(0, 0)); self.bg_flush()
        ua, sa = 168, 169
        self("v_lshlrev_b32 v%d, 5, v%d" % (sa, V_L15))
        self("v_lshl_add_u32 v%d, v%d, 3, v%d" % (sa, V_G, sa))
        self("s_add_u32 s3, s%d, %d" % (S_SLOT, U_OFF + 4088 - 3584))
        self("v_sub_u32 v%d, s3, v%d" % (ua, sa))
        self("s_lshl_b32 s3, s%d, 12" % S_CH)
        self("s_add_u32 s3, s3, %d" % WS_YT)
        self("v_and_b32 v%d, 1, v%d" % (170, V_G))
        self("v_lshlrev_b32 v%d, 9, v%d" % (170, 170))
        self("v_lshrrev_b32 v%d, 1, v%d" % (171, V_G))
        self("v_lshl_add_u32 v%d, v%d, 4, v%d" % (170, 171, 170))
        self("v_lshl_add_u32 v%d, v%d, 5, v%d" % (sa, V_L15, 170))
        self("v_add_u32 v%d, s3, v%d" % (sa, sa))
        self("v_mov_b32 v170, s%d" % S_DVAL)
        self("v_lshlrev_b32 v171, 4, v%d" % V_LANE)
        self.vm_wait("u")
        self.stamp(7)
        self.bg_add(loadsB(0, 0)); self.bg_flush()
        for tau in range(8):
            buf = tau & 1
            self.lg_wait_all()
            if tau < 7:
                la, lb = loadsA(tau + 1, buf ^ 1), loadsB(tau + 1, buf ^ 1)
                for x, y in zip(la, lb): self.bg_add([x, y])
            n2 = self.o.get("w2conv", 70)
            f0, f1 = min(n2, 10 * tau), min(n2, 10 * tau + 10)
            self.bg_add(self.w2_items(f0, f1, 171))
            pairs = sorted([(i, be - i) for be in range(8) for i in range(be + 1)])
            first = set()
            for kk, (i, m) in enumerate(pairs):
                be = i + m
                c = vr(ACC + 4 * be, 4) if (tau > 0 or be in first) else "0"
                first.add(be)
                self("v_mfma_f32_16x16x32_bf16 %s, %s, %s, %s" % (vr(ACC + 4 * be, 4), vr(FA[buf] + 4 * i, 4), vr(FB[buf] + 4 * m, 4), c))
                self.bg_step(1)
            self.bg_flush()
        self.stamp(8)
        UQ = 36
        for b in range(8):
            self.lg("ds_read_b64 %s, v%d offset:%d" % (vr(UQ + 2 * b, 2), ua, 3584 - 512 * b), "uq")
        self.lg_wait_all()
        U, t, O = 56, 60, 64
        for b in range(8):
            d0, d1 = UQ + 2 * b, UQ + 2 * b + 1
            A = ACC + 4 * b
            self("v_and_b32 v%d, s%d, v%d" % (U + 0, S_MASK, d1))
            self("v_lshlrev_b32 v%d, 16, v%d" % (U + 1, d1))
            self("v_and_b32 v%d, s%d, v%d" % (U + 2, S_MASK, d0))
            self("v_lshlrev_b32 v%d, 16, v%d" % (U + 3, d0))
            self("v_pk_mul_f32 %s, %s, v[170:171] op_sel_hi:[1,0]" % (vr(U, 2), vr(U, 2)))
            self("v_pk_mul_f32 %s, %s, v[170:171] op_sel_hi:[1,0]" % (vr(U + 2, 2), vr(U + 2, 2)))
            self.rnd_pair(U, t); self.rnd_pair(U + 2, t + 1)
            self.rnd_pair(A, t); self.rnd_pair(A + 2, t + 1)
            self("v_pk_add_f32 %s, %s, %s" % (vr(A, 2), vr(A, 2), vr(U, 2)))
            self("v_pk_add_f32 %s, %s, %s" % (vr(A + 2, 2), vr(A + 2, 2), vr(U + 2, 2)))
            o = O + 2 * b
            self("v_cvt_pk_bf16_f32 v%d, v%d, v%d" % (o, A, A + 1))
            self("v_cvt_pk_bf16_f32 v%d, v%d, v%d" % (o + 1, A + 2, A + 3))
            if b & 1:
                self("v_permlane16_swap_b32 v%d, v%d" % (o - 2, o))
                self("v_permlane16_swap_b32 v%d, v%d" % (o - 1, o + 1))
                self("global_store_dwordx4 v%d, %s, s[%d:%d] offset:%d sc0 sc1" % (sa, vr(o - 2, 4), P_WS, P_WS + 1, 512 * (b - 1)))
        self("s_branch %s" % Ldone)
        self("%s:" % Lskip)
        self("v_lshlrev_b32 v171, 4, v%d" % V_LANE)
        n2 = self.o.get("w2conv", 70)
        for f0 in range(0, n2, 35):
            self.bg_add(self.w2_items(f0, min(n2, f0 + 35), 171)); self.bg_flush()
            self("s_waitcnt vmcnt(20)")
        self("%s:" % Ldone)
        self.vmq = []; self.lgq = []

    def weights_prefetch(self):
        a, d = 174, 190
        self.addr_pair(S_TMPP, P_WS, WS_PKFLAG)
        self("v_lshlrev_b32 v%d, 5, v%d" % (a, V_LANE))
        self.poll_pairs(S_TMPP, a, 1, 0, 176 + 0, npair=4) if False else None
        self.poll_pairs(S_TMPP, a, 1, 0, 4, npair=4)
        self.stamp(40)
        for base in (WS_W1P, WS_W2P):
            self.srd(SRD_A, P_WS, WP_SZ, const=base)
            self("s_mul_i32 s3, s%d, 69120" % S_J)
            self("v_lshlrev_b32 v%d, 7, v%d" % (a, V_LANE))
            self("v_add_u32 v%d, s3, v%d" % (a, a))
            for i in range(9):
                if i == 8: self.exec_set("0xfffffff")
                self("buffer_load_dword v%d, v%d, s[%d:%d], 0 offen" % (d, a, SRD_A, SRD_A + 3))
                if i < 8: self("v_add_u32 v%d, 8192, v%d" % (a, a))
            self.exec_restore()

    def w1_dma(self, its):
        self.srd(SRD_B, P_WS, WP_SZ, const=WS_W1P)
        a = 163
        self("v_lshlrev_b32 v%d, 4, v%d" % (a, V_LANE))
        so, lo = S_T0, S_T0 + 1
        self("s_mul_i32 s%d, s%d, 108" % (so, S_W))
        self("s_add_u32 s%d, s%d, s%d" % (so, so, S_UOFF))
        self("s_lshl_b32 s%d, s%d, 10" % (so, so))
        self("s_mul_i32 s%d, s%d, 7168" % (lo, S_W))
        for it in its:
            L = None
            if it == 6:
                L = self.label("L_w1l")
                self("s_cmp_eq_u32 s%d, 2" % S_W)
                self("s_cbranch_scc1 %s" % L)
            self("s_add_u32 m0, s%d, %d" % (lo, LDS_W1 + it * 3 * 7168))
            self("s_add_u32 s3, s%d, %d" % (so, it * 3 * 108 * 1024))
            for i in range(4):
                self("buffer_load_dwordx4 v%d, s[%d:%d], s3 offen offset:%d lds" % (a, SRD_B, SRD_B + 3, 1024 * i))
            self("s_add_u32 m0, s%d, %d" % (lo, LDS_W1 + it * 3 * 7168 + 4096))
            self("s_add_u32 s3, s3, 4096")
            for i in range(3):
                self("buffer_load_dwordx4 v%d, s[%d:%d], s3 offen offset:%d lds" % (a, SRD_B, SRD_B + 3, 1024 * i))
            if L: self("%s:" % L)
    def w2_setup(self):
        self.srd(SRD_W2, P_WS, WP_SZ, const=WS_W2P)
        self("s_mul_i32 s3, s%d, %d" % (S_W, 14 * 40))
        self("s_mul_i32 s%d, s%d, 5" % (S_T0, S_CS))
        self("s_add_u32 s3, s3, s%d" % S_T0)
        self("s_lshl_b32 s%d, s3, 10" % S_W2B)
    def w2_items(self, f0, f1, vlane16):
        it = []
        last = None
        for f in range(f0, f1):
            s, i = divmod(f, 5)
            key = (s, i == 4)
            if key != last:
                it.append("s_add_u32 s61, s%d, %d" % (S_W2B, s * 40 * 1024 + (4096 if i == 4 else 0)))
                last = key
            it.append(("vm", "buffer_load_dwordx4 %s, v%d, s[%d:%d], s61 offen offset:%d" % (w2reg(f), vlane16, SRD_W2, SRD_W2 + 3, 0 if i == 4 else 1024 * i), "w2"))
        return it

    def post_conv(self):
        QN = V_CS
        self.wait_all()
        self("s_barrier")
        self.stamp(10)
        L = self.if_wave(3)
        self("s_lshl_b32 s%d, s%d, 8" % (S_T0, S_G))
        self("s_lshl_b32 s%d, s%d, 3" % (S_T0 + 1, S_J))
        self("s_add_u32 s%d, s%d, s%d" % (S_T0, S_T0, S_T0 + 1))
        self("s_add_u32 s%d, s%d, %d" % (S_T0, S_T0, WS_YFLAG))
        self.flag_store(P_WS, S_T0, 1, device=True)
        self.close(L)
        self.row_stats_issue(0, 60)
        c1, c2 = self.o.get("w1c1", 4), self.o.get("w1c2", 5)
        L = self.if_wave(3, eq=False)
        self.w1_dma(range(0, c1))
        self.close(L)
        self.stamp(11)
        La, Lb = self.label("L_qa"), self.label("L_qb")
        self("s_cmp_eq_u32 s%d, 3" % S_W)
        self("s_cbranch_scc1 %s" % La)
        self("s_waitcnt vmcnt(%d)" % (7 * c1))
        self("s_branch %s" % Lb)
        self("%s:" % La)
        self("s_waitcnt vmcnt(0)")
        self("%s:" % Lb)
        self.vmq = []
        self.row_stats_validate(0, 60)
        self.row_stats_finish(60, 24, 26)
        XF, d, t = 4, 28, 30
        self.unpack_tile(XF, V_X)
        for i in range(10):
            self("v_pk_add_f32 %s, %s, v[24:25] op_sel_hi:[1,0] neg_lo:[0,1] neg_hi:[0,1]" % (vr(d, 2), vr(XF + 2 * i, 2)))
            self.rnd_pair(d, t)
            self("v_pk_mul_f32 %s, %s, v[26:27] op_sel_hi:[1,0]" % (vr(d, 2), vr(d, 2)))
            self("v_cvt_pk_bf16_f32 v%d, v%d, v%d" % (QN + i, d, d + 1))
        Ly = self.if_wave(3)
        self.addr_pair(S_TMPP, P_WS, WS_YFLAG)
        self("s_lshl_b32 s3, s%d, 8" % S_CS)
        self("s_lshl_b32 s%d, s%d, 8" % (S_T0, S_G))
        self("v_mov_b32 v181, s3")
        self("v_mov_b32 v180, s%d" % S_T0)
        self("v_cmp_gt_u32 vcc, 32, v%d" % V_LANE)
        self("v_cndmask_b32 v181, v180, v181, vcc")
        self("v_and_b32 v180, 31, v%d" % V_LANE)
        self("v_lshl_add_u32 v180, v180, 3, v181")
        self.poll_pairs(S_TMPP, 180, 1, 0, 176)
        self.stamp(41)
        self("s_mul_i32 s3, s%d, %d" % (S_CS, 80 * 4096))
        self("s_lshl_b32 s%d, s%d, 9" % (S_T0, S_G))
        self("s_add_u32 s3, s3, s%d" % S_T0)
        self("s_lshl_b32 s%d, s%d, 7" % (S_T0, S_RB))
        self("s_add_u32 s3, s3, s%d" % S_T0)
        self.addr_pair(S_TMPP, P_WS, WS_YT, 3)
        a, b = 164, 165
        self("v_lshrrev_b32 v%d, 3, v%d" % (a, V_LANE))
        self("v_lshlrev_b32 v%d, 12, v%d" % (a, a))
        self("v_and_b32 v%d, 7, v%d" % (b, V_LANE))
        self("v_lshl_add_u32 v%d, v%d, 4, v%d" % (a, b, a))
        for k in range(10):
            self("s_mov_b32 m0, %d" % (LDS_SCR + 1024 * k))
            self("v_add_u32 v%d, %d, v%d" % (b, 8 * 4096 * k, a))
            self("global_load_lds_dwordx4 v%d, s[%d:%d]" % (b, S_TMPP, S_TMPP + 1))
        self("s_waitcnt vmcnt(0)")
        self.close(Ly)
        self("s_barrier")
        self.stamp(12)
        L = self.if_wave(3, eq=False)
        self.w1_dma(range(c1, c2))
        self.close(L)
        a, b = 164, 165
        self("v_bfe_u32 v%d, v%d, 2, 2" % (a, V_LANE))
        self("v_lshl_add_u32 v%d, v%d, 2, v%d" % (a, V_G, a))
        self("v_lshlrev_b32 v%d, 7, v%d" % (a, a))
        self("v_and_b32 v%d, 3, v%d" % (b, V_LANE))
        self("v_lshl_add_u32 v%d, v%d, 3, v%d" % (a, b, a))
        self("s_lshl_b32 s3, s%d, 5" % S_W)
        self("s_add_u32 s3, s3, %d" % LDS_SCR)
        self("v_add_u32 v%d, s3, v%d" % (a, a))
        for u in range(5):
            self.lg("ds_read_b64_tr_b16 %s, v%d offset:%d" % (vr(V_Y + 2 * u, 2), a, 16 * 128 * u), "ytr")
        self.xf_store_setup(S_XO1)
        yf, qf = 32, 34
        self.lg_wait_all()
        for i in range(10):
            self.unpack(yf, V_Y + i)
            self.unpack(qf, QN + i)
            self("v_pk_mul_f32 %s, %s, %s" % (vr(d, 2), vr(yf, 2), vr(qf, 2)))
            self.rnd_pair(d, t)
            self("v_pk_add_f32 %s, %s, %s" % (vr(XF + 2 * i, 2), vr(XF + 2 * i, 2), vr(d, 2)))
            self("v_cvt_pk_bf16_f32 v%d, v%d, v%d" % (V_X + i, XF + 2 * i, XF + 2 * i + 1))
            self.unpack(XF + 2 * i, V_X + i)
        self.xf_store()
        self.tile_stats(XF, 1, 28)

    def xf_store_setup(self, ws_off):
        self("s_lshl_b32 s3, s%d, 4" % S_G)
        self("s_lshl_b32 s%d, s%d, 2" % (S_T0, S_RB))
        self("s_add_u32 s3, s3, s%d" % S_T0)
        self("s_add_u32 s3, s3, s%d" % S_W)
        self("s_mul_i32 s3, s3, %d" % (20 * 1024))
        self("s_add_u32 s3, s3, s%d" % ws_off)
        a = 170
        self("v_lshlrev_b32 v%d, 4, v%d" % (a, V_LANE))
        self("v_add_u32 v%d, s3, v%d" % (a, a))
        self("s_mul_i32 s%d, s%d, 5" % (S_T0, S_CS))
        for u in range(5):
            self("s_add_u32 s%d, s%d, %d" % (S_T0 + 1, S_T0, u))
            self("s_lshr_b32 s%d, s%d, 1" % (S_T0 + 2, S_T0 + 1))
            self("s_lshl_b32 s%d, s%d, 10" % (S_T0 + 2, S_T0 + 2))
            self("s_and_b32 s%d, s%d, 1" % (S_T0 + 1, S_T0 + 1))
            self("s_lshl_b32 s%d, s%d, 3" % (S_T0 + 1, S_T0 + 1))
            self("s_add_u32 s%d, s%d, s%d" % (S_T0 + 1, S_T0 + 1, S_T0 + 2))
            self("v_add_u32 v%d, s%d, v%d" % (165 + u, S_T0 + 1, a))
    def xf_store(self):
        Lo, Ld = self.label("L_xo"), self.label("L_xd")
        p = "s[%d:%d]" % (P_WS, P_WS + 1)
        x4 = lambda u: "global_store_dwordx4 v%d, %s, %s" % (165 + u, vr(V_X + 2 * u, 4), p)
        x2 = lambda u: "global_store_dwordx2 v%d, %s, %s" % (165 + u, vr(V_X + 2 * u, 2), p)
        self("s_bitcmp1_b32 s%d, 0" % S_CS)
        self("s_cbranch_scc1 %s" % Lo)
        self.handoff_stores([x4(0), x4(2), x2(4)], record=False)
        self("s_branch %s" % Ld)
        self("%s:" % Lo)
        self.handoff_stores([x2(0), x4(1), x4(3)], record=False)
        self("%s:" % Ld)
        self.vmq.extend(["xf"] * 3)

    def mixer_update(self, m, rs, xf, tmp):
        yf, d = tmp, tmp + 2
        for i in range(10):
            X = xf + 2 * i
            self.unpack(yf, V_Y + i)
            self("v_pk_add_f32 %s, %s, %s op_sel_hi:[1,0] neg_lo:[0,1] neg_hi:[0,1]" % (vr(d, 2), vr(X, 2), vr(m, 2)))
            self("v_pk_mul_f32 %s, %s, %s op_sel_hi:[1,0]" % (vr(d, 2), vr(d, 2), vr(rs, 2)))
            self("v_pk_fma_f32 %s, %s, %s, %s" % (vr(X, 2), vr(d, 2), vr(yf, 2), vr(X, 2)))
            self("v_cvt_pk_bf16_f32 v%d, v%d, v%d" % (V_X + i, X, X + 1))
            self.unpack(X, V_X + i)

    def colsum(self):
        a, ones, acc = 164, 100, 104
        FR = [112, 120, 128, 136]
        for i in range(4): self("v_mov_b32 v%d, 0x3f803f80" % (ones + i))
        self("v_lshlrev_b32 v%d, 4, v%d" % (a, V_LANE))
        self("s_lshl_b32 s3, s%d, 11" % S_W)
        self("v_add_u32 v%d, s3, v%d" % (a, a))
        self("v_add_u32 v%d, %d, v%d" % (a + 1, 8 * 7168, a))
        self("v_add_u32 v%d, %d, v%d" % (a + 2, 16 * 7168, a))
        def loads(t):
            for i in range(2):
                self.lg("ds_read_b128 %s, v%d offset:%d" % (vr(FR[t % 4] + 4 * i, 4), a + (t // 8), (t % 8) * 7168 + 1024 * i), "cs%d" % t)
        for t in range(3): loads(t)
        for t in range(20):
            if t + 3 < 20: loads(t + 3)
            self.lg_wait("cs%d" % t)
            for i in range(2):
                c = vr(acc + 4 * i, 4) if t else "0"
                self("v_mfma_f32_16x16x32_bf16 %s, %s, %s, %s" % (vr(acc + 4 * i, 4), vr(FR[t % 4] + 4 * i, 4), vr(ones, 4), c))
        b = 144
        self("v_lshlrev_b32 v%d, 4, v%d" % (b, V_G))
        self("s_lshl_b32 s3, s%d, 7" % S_W)
        self("s_add_u32 s3, s3, %d" % LDS_CSX)
        self("v_add_u32 v%d, s3, v%d" % (b, b))
        self("v_cmp_eq_u32 vcc, 0, v%d" % V_L15)
        self("s_and_saveexec_b64 s[%d:%d], vcc" % (S_SAVE, S_SAVE + 1))
        self("ds_write_b128 v%d, %s" % (b, vr(acc, 4)))
        self("ds_write_b128 v%d, %s offset:64" % (b, vr(acc + 4, 4)))
        self.exec_restore()
        self.lg_wait_all()
    def colsum_fetch(self):
        b = 144
        self("v_lshlrev_b32 v%d, 4, v%d" % (b, V_G))
        self("v_add_u32 v%d, %d, v%d" % (b, LDS_CSX, b))
        for u in range(7):
            self.lg("ds_read_b128 %s, v%d offset:%d" % (vr(V_CS + 4 * u, 4), b, 64 * u), "cs")

    G1_ACC = 4; G1_AF = [60, 88]; G1_XR = 116; G1_DEPTH = 7; G1_LA = 172; G1_XA = 183; G1_ST = 174; G1_L16 = 182
    def g1_aloads(self, t, buf):
        return [("lg", "ds_read_b128 %s, v%d offset:%d" % (vr(self.G1_AF[buf] + 4 * i, 4), self.G1_LA, 1024 * i), "a%d" % t) for i in range(7)]
    def g1_setup(self, xf_off, hf_off):
        self("s_lshl_b32 s3, s%d, 4" % S_G)
        self("s_lshl_b32 s%d, s%d, 3" % (S_T0, S_RT))
        self("s_add_u32 s3, s3, s%d" % S_T0)
        self("s_lshl_b32 s%d, s%d, 1" % (S_T0, S_W))
        self("s_add_u32 s%d, s3, s%d" % (S_RU0, S_T0))
        self("s_mul_i32 s3, s%d, %d" % (S_RU0, 20 * 1024))
        self("s_add_u32 s3, s3, s%d" % xf_off)
        self.addr_pair(S_XFB, P_WS, 0, 3)
        self.addr_pair(S_TMPQ, S_XFB, 20 * 1024)
        self("v_lshlrev_b32 v%d, 4, v%d" % (self.G1_XA, V_LANE))
        self("v_lshlrev_b32 v%d, 4, v%d" % (self.G1_L16, V_LANE))
        self("s_mul_i32 s%d, s%d, %d" % (S_T0 + 3, S_RU0, 54 * 1024))
        self("s_add_u32 s%d, s%d, %s" % (S_T0 + 3, S_T0 + 3, hf_off))
        for i in range(7):
            self("s_add_u32 s%d, s%d, %d" % (S_T0 + 1, S_UOFF, i))
            self("s_lshr_b32 s%d, s%d, 1" % (S_T0 + 2, S_T0 + 1))
            self("s_lshl_b32 s%d, s%d, 10" % (S_T0 + 2, S_T0 + 2))
            self("s_and_b32 s%d, s%d, 1" % (S_T0 + 1, S_T0 + 1))
            self("s_lshl_b32 s%d, s%d, 3" % (S_T0 + 1, S_T0 + 1))
            self("s_add_u32 s%d, s%d, s%d" % (S_T0 + 1, S_T0 + 1, S_T0 + 2))
            self("s_add_u32 s%d, s%d, s%d" % (S_T0 + 1, S_T0 + 1, S_T0 + 3))
            self("s_add_u32 s%d, s%d, s%d" % (72 + 2 * i, P_WS, S_T0 + 1))
            self("s_addc_u32 s%d, s%d, 0" % (73 + 2 * i, P_WS + 1))
        self("v_lshlrev_b32 v%d, 4, v%d" % (self.G1_LA, V_LANE))
        if LDS_W1: self("v_add_u32 v%d, %d, v%d" % (self.G1_LA, LDS_W1, self.G1_LA))
        for x in self.g1_aloads(0, 0): self.lg(x[1], x[2])
        self("v_add_u32 v%d, 7168, v%d" % (self.G1_LA, self.G1_LA))
    def g1_main(self, statbuf, sb=None, w2range=None, ldf='', pretouch=False, hwt=False):
        ACC, AF, XR, DEPTH, la, xa, ST = self.G1_ACC, self.G1_AF, self.G1_XR, self.G1_DEPTH, self.G1_LA, self.G1_XA, self.G1_ST
        def xload(t):
            for rho in range(2):
                base = S_XFB if rho == 0 else S_TMPQ
                d = XR + ((t % DEPTH) * 2 + rho) * 4
                self.vm("global_load_dwordx4 %s, v%d, s[%d:%d] offset:%d %s" % (vr(d, 4), xa, base, base + 1, (t % 4) * 1024, ldf), "x%d" % t)
            if t % 4 == 3: self("v_add_u32 v%d, 4096, v%d" % (xa, xa))
        for t in range(3): xload(t)
        sa = 59
        self("s_lshl_b32 s3, s%d, 11" % S_RU0)
        self("s_add_u32 s3, s3, %d" % (WS_STAT + statbuf * STAT_SZ))
        self("v_lshlrev_b32 v%d, 7, v%d" % (sa, V_L15))
        self("v_lshl_add_u32 v%d, v%d, 5, v%d" % (sa, V_G, sa))
        self("v_add_u32 v%d, s3, v%d" % (sa, sa))
        for rho in range(2):
            for k in range(2):
                self.vm("global_load_dwordx2 %s, v%d, s[%d:%d] offset:%d" % (vr(ST + 4 * rho + 2 * k, 2), sa, P_WS, P_WS + 1, 2048 * rho + 16 * k), "st")
        for t in range(3, DEPTH): xload(t)
        if pretouch:
            self("s_mul_i32 s3, s%d, %d" % (S_RU0, 54 * 1024))
            self("s_lshr_b32 s%d, s%d, 1" % (S_T0, S_UOFF))
            self("s_lshl_b32 s%d, s%d, 10" % (S_T0, S_T0))
            self("s_add_u32 s3, s3, s%d" % S_T0)
            self("s_and_b32 s%d, s%d, 1" % (S_T0, S_UOFF))
            self("s_lshl_b32 s%d, s%d, 3" % (S_T0, S_T0))
            self("s_add_u32 s3, s3, s%d" % S_T0)
            self("s_add_u32 s3, s3, %d" % WS_HF1)
            self("v_lshrrev_b32 v57, 5, v%d" % V_LANE)
            self("v_mul_u32_u24 v57, %d, v57" % (54 * 1024))
            self("v_and_b32 v58, 31, v%d" % V_LANE)
            self("v_lshl_add_u32 v58, v58, 7, v57")
            self("v_add_u32 v58, s3, v58")
            Lp = self.label("L_pth")
            self("s_cmp_lg_u32 s%d, 0" % S_MODE)
            self("s_cbranch_scc1 %s" % Lp)
            self("global_store_dword v58, v58, s[%d:%d]" % (P_WS, P_WS + 1))
            self("%s:" % Lp)
        w2items = self.w2_items(w2range[0], w2range[1], self.G1_L16) if w2range else []
        nper = -(-len(w2items) // 16)
        for t in range(20):
            if t == 1 and sb: self.stamp(sb)
            buf = t & 1
            nxt = self.g1_aloads(t + 1, buf ^ 1) if t < 19 else []
            self.lg_wait_all()
            self.vm_wait("x%d" % t)
            self.bg_add(nxt)
            if t >= 1:
                self.bg_add(w2items[:nper]); w2items = w2items[nper:]
            nbg = len(self.bgq); done = 0
            k = 0
            for i in range(7):
                for rho in range(2):
                    acc = ACC + (rho * 7 + i) * 4
                    c = vr(acc, 4) if t else "0"
                    self("v_mfma_f32_16x16x32_bf16 %s, %s, %s, %s" % (vr(acc, 4), vr(AF[buf] + 4 * i, 4), vr(XR + ((t % DEPTH) * 2 + rho) * 4, 4), c))
                    k += 1
                    want = min(nbg, -(-nbg * k // 11))
                    self.bg_step(want - done); done = want
            self.bg_flush()
            if t < 19: self("v_add_u32 v%d, 7168, v%d" % (la, la))
            if t + DEPTH < 20: xload(t + DEPTH)
        if sb: self.stamp(sb + 1)
        M = [60, 64]; RS = [62, 66]
        self.vm_wait("st")
        for rho in range(2):
            for i in range(4): self("v_mov_b32 v%d, v%d" % (72 + i, ST + 4 * rho + i))
            self.row_stats_finish(72, M[rho], RS[rho])
        ha = 80
        self("v_add_u32 v%d, %d, v%d" % (ha, 54 * 1024, self.G1_L16))
        HA = [self.G1_L16, ha]
        lines = []
        O = 100
        for rho in range(2):
            for i in range(7):
                acc = ACC + (rho * 7 + i) * 4
                for p in range(2):
                    A = acc + 2 * p; C = V_CS + 4 * i + 2 * p
                    self("v_pk_fma_f32 %s, %s, %s, %s op_sel_hi:[1,0,1] neg_lo:[0,1,0] neg_hi:[0,1,0]" % (vr(A, 2), vr(C, 2), vr(M[rho], 2), vr(A, 2)))
                    self("v_pk_mul_f32 %s, %s, %s op_sel_hi:[1,0]" % (vr(A, 2), vr(A, 2), vr(RS[rho], 2)))
                    o = O + (rho * 7 + i) * 2 + p
                    self("v_cvt_pk_bf16_f32 v%d, v%d, v%d" % (o, A, A + 1))
                    self("v_pk_max_i16 v%d, v%d, 0" % (o, o))
        def st(rho, i, n):
            return "global_store_dwordx%d v%d, %s, s[%d:%d]" % (n, HA[rho], vr(O + (rho * 7 + i) * 2, n), 72 + 2 * i, 73 + 2 * i)
        Lo, Ld = self.label("L_ho"), self.label("L_hd")
        self("s_bitcmp1_b32 s%d, 0" % S_UOFF)
        self("s_cbranch_scc1 %s" % Lo)
        def emit(lines):
            if hwt:
                for l in lines: self(l + " sc0 sc1")
            else: self.handoff_stores(lines, record=False)
        emit([st(rho, i, 4 if i < 6 else 2) for rho in range(2) for i in (0, 2, 4, 6)])
        self("s_branch %s" % Ld)
        self("%s:" % Lo)
        emit([st(rho, i, 4 if i > 0 else 2) for rho in range(2) for i in (0, 1, 3, 5)])
        self("%s:" % Ld)
        self.vmq.extend(["h"] * 8)

    G2_ACC = [4, 24]; G2_HR = 44; G2_HA = 100; G2_RA = 104; G2_TMP = 108; G2_SUM = 128
    def g2_setup(self, hf_off):
        ha, ra = self.G2_HA, self.G2_RA
        for s in range(14):
            self("s_mul_i32 s3, s%d, 14" % S_W)
            self("s_add_u32 s3, s3, %d" % s)
            self("s_min_u32 s3, s3, 53")
            self("s_lshl_b32 s%d, s3, 10" % (S_HSTEP + s))
        self.srd(SRD_A, P_WS, 0x10000000 - self.o.get('wsbase', 0))
        for k in range(4):
            self("s_add_u32 s3, s%d, %d" % (S_W, 1 + k))
            self("s_and_b32 s3, s3, 3")
            self("s_mul_i32 s%d, s3, 5120" % (S_T0 + 1))
            self("s_lshl_b32 s%d, s%d, 4" % (S_T0, S_G))
            self("s_add_u32 s3, s3, s%d" % S_T0)
            self("s_lshl_b32 s%d, s%d, 2" % (S_T0, S_RB))
            self("s_add_u32 s3, s3, s%d" % S_T0)
            self("s_mul_i32 s3, s3, %d" % (54 * 1024))
            self("s_add_u32 s3, s3, %s" % hf_off)
            self("v_lshlrev_b32 v%d, 4, v%d" % (ha + k, V_LANE))
            self("v_add_u32 v%d, s3, v%d" % (ha + k, ha + k))
            self("v_lshlrev_b32 v%d, 4, v%d" % (ra + k, V_LANE))
            self("s_add_u32 s3, s%d, %d" % (S_T0 + 1, LDS_SCR))
            self("v_add_u32 v%d, s3, v%d" % (ra + k, ra + k))
    def g2_main(self, sb=None, ldf=''):
        ACC, HR, ha, ra, TMP, SUM = self.G2_ACC, self.G2_HR, self.G2_HA, self.G2_RA, self.G2_TMP, self.G2_SUM
        def hload(p):
            k, s = divmod(p, 14)
            self.vm("buffer_load_dwordx4 %s, v%d, s[%d:%d], s%d offen %s" % (vr(HR + 4 * s, 4), ha + k, SRD_A, SRD_A + 3, S_HSTEP + s, ldf), "h%d" % p)
        for p in range(14): hload(p)
        if sb: self.stamp(sb)
        for k in range(4):
            acc = ACC[k & 1]; prev = ACC[(k & 1) ^ 1]
            for s in range(14):
                p = 14 * k + s
                if k > 0:
                    if s == 1:
                        self.bg_add([("lg", "ds_write_b128 v%d, %s offset:%d" % (ra + k - 1, vr(prev + 4 * i, 4), 1024 * i), "rw") for i in range(5)])
                    if s == 4:
                        self.bg_flush(); self.lg_wait_all(); self("s_barrier")
                        self.bg_add([("lg", "ds_read_b128 %s, v%d offset:%d" % (vr(TMP + 4 * i, 4), ra + 3, 1024 * i), "rr") for i in range(5)])
                    if s == 8:
                        self.bg_flush(); self.lg_wait_all(); self("s_barrier")
                        if k == 1:
                            self.bg_add(["v_mov_b32 v%d, v%d" % (SUM + j, TMP + j) for j in range(20)])
                        else:
                            self.bg_add(["v_pk_add_f32 %s, %s, %s" % (vr(SUM + j, 2), vr(SUM + j, 2), vr(TMP + j, 2)) for j in range(0, 20, 2)])
                self.vm_wait("h%d" % p)
                for i in range(5):
                    c = vr(acc + 4 * i, 4) if s > 0 else "0"
                    self("v_mfma_f32_16x16x32_bf16 %s, %s, %s, %s" % (vr(acc + 4 * i, 4), w2reg(s * 5 + i), vr(HR + 4 * s, 4), c))
                    self.bg_step(1)
                if p + 14 < 56: hload(p + 14)
            self.bg_flush()
        if sb: self.stamp(sb + 1)
        acc = ACC[1]
        for j in range(0, 20, 2):
            self("v_pk_add_f32 %s, %s, %s" % (vr(SUM + j, 2), vr(SUM + j, 2), vr(acc + j, 2)))
        return SUM

    def residual_add(self, RES, XF):
        t = 178
        self.unpack_tile(XF, V_X)
        for i in range(10):
            self.rnd_pair(RES + 2 * i, t)
            self("v_pk_add_f32 %s, %s, %s" % (vr(XF + 2 * i, 2), vr(XF + 2 * i, 2), vr(RES + 2 * i, 2)))
            self("v_cvt_pk_bf16_f32 v%d, v%d, v%d" % (V_X + i, XF + 2 * i, XF + 2 * i + 1))
            self.unpack(XF + 2 * i, V_X + i)

    def store_out(self):
        t2 = 164
        self.rowbase()
        self("v_add_u32 v%d, s3, v%d" % (t2, V_L15))
        self("v_mul_u32_u24 v%d, 1280, v%d" % (t2, t2))
        self("s_mul_i32 s3, s%d, 160" % S_CS)
        self("v_lshlrev_b32 v%d, 3, v%d" % (t2 + 1, V_G))
        self("v_add3_u32 v%d, v%d, v%d, s3" % (t2, t2, t2 + 1))
        for u in range(5):
            self.vm("global_store_dwordx2 v%d, %s, s[%d:%d] offset:%d" % (t2, vr(V_X + 2 * u, 2), P_OUT, P_OUT + 1, 32 * u), "out")

    def epoch_update(self):
        L = self.label("L_ep")
        self("s_add_u32 s3, s2, s%d" % S_W)
        self("s_cmp_lg_u32 s3, 0")
        self("s_cbranch_scc1 %s" % L)
        self("s_sub_u32 s3, s%d, 0x%x" % (S_TAG, TAG0))
        self("s_add_u32 s3, s3, 16")
        self("v_mov_b32 v176, s3")
        self("v_mov_b32 v177, %d" % WS_EPOCH)
        self.exec_set("1")
        self("global_store_dword v177, v176, s[%d:%d] sc0 sc1" % (P_WS, P_WS + 1))
        self.exec_restore()
        self("%s:" % L)

    def build(self):
        o = self.o
        self.prologue()
        if o.get("stamps"): self("v_mov_b32 v%d, 0" % V_STAMP)
        self.stamp(0)
        self.repack_issue()
        self.prep_loads()
        self.stamp(38)
        self.repack_finish()
        self.stamp(1)
        self.prep_compute()
        self.stamp(2)
        self.mode_check()
        self.vm_wait("rpst")
        self.lg_wait_all()
        self("s_barrier")
        L = self.if_wave(3)
        self("s_lshl_b32 s%d, s%d, 8" % (S_T0, S_G))
        self("s_lshl_b32 s%d, s%d, 3" % (S_T0 + 1, S_J))
        self("s_add_u32 s%d, s%d, s%d" % (S_T0, S_T0, S_T0 + 1))
        self("s_add_u32 s%d, s%d, %d" % (S_T0, S_T0, WS_PKFLAG))
        self.flag_store(P_WS, S_T0, 1, device=True)
        self.close(L)
        self.mode_fetch()
        self.stamp(3)
        self.prep_store_ur()
        self.unpack_tile(124, V_X)
        self.tile_stats(124, 0, 144)
        self.stamp(4)
        self.barrier_arrive(1)
        self.build_kcopies()
        self.w2_setup()
        self.stamp(5)
        self.pk_wait()
        self.barrier_wait(1)
        self.stamp(6)
        self.vmq = []; self.lgq = []
        self.conv()
        self.stamp(9)
        self.post_conv()
        self.stamp(13)
        c2 = o.get("w1c2", 5)
        L = self.if_wave(3, eq=False)
        self.w1_dma(range(c2, 7))
        self.close(L)
        self.barrier_arrive(2)
        n2 = o.get("w2conv", 70)
        self.colsum()
        self("s_barrier")
        self.colsum_fetch()
        self.stamp(14)
        self.g1_setup(S_XO1, str(WS_HF1))
        self.lg_wait_all()
        self.barrier_wait(2)
        self.stamp(15)
        self.g1_main(1, 16, w2range=(n2, 70) if n2 < 70 else None, pretouch=o.get('pt_h', 1), ldf='sc1', hwt=o.get('hwt', 0))
        self.stamp(18)
        self.barrier_arrive(3)
        self.g2_setup(str(WS_HF1))
        self.barrier_wait(3)
        self.stamp(21)
        RES = self.g2_main(22)
        self.stamp(24)
        XF = 4
        self.residual_add(RES, XF)
        self.tile_stats(XF, 2, 28)
        self.row_stats_issue(2, 60)
        self.xf_store_setup(S_XO3)
        self.stamp(25)
        self.vm_wait("rs")
        self.row_stats_validate(2, 60)
        self.stamp(26)
        self.row_stats_finish(60, 24, 26)
        self.mixer_update(24, 26, XF, 28)
        self.xf_store()
        self.tile_stats(XF, 3, 28)
        self.stamp(27)
        self.barrier_arrive(4)
        self.g1_setup(S_XO3, 's%d' % S_HO2)
        self.barrier_wait(4)
        self.stamp(28)
        self.g1_main(3, 29, ldf='sc1')
        self.stamp(31)
        self.barrier_arrive(5)
        self.g2_setup('s%d' % S_HO2)
        self.barrier_wait(5)
        self.stamp(32)
        RES = self.g2_main(33, ldf='sc1')
        self.stamp(35)
        self.residual_add(RES, 4)
        self.store_out()
        self.epoch_update()
        self.stamp(36)
        self("s_waitcnt vmcnt(0)")
        self.stamp(37)
        self.stamp_dump()
        if self.o.get("dbgtime"):
            L = self.label("L_dt")
            self("s_add_u32 s3, s%d, s%d" % (S_J, S_W))
            self("s_cmp_lg_u32 s3, 0")
            self("s_cbranch_scc1 %s" % L)
            self("s_memrealtime s[94:95]")
            self("s_memtime s[92:93]")
            self("s_waitcnt lgkmcnt(0)")
            self("s_sub_u32 s94, s94, s98")
            self("s_sub_u32 s92, s92, s100")
            self("v_mov_b32 v4, s94")
            self("v_mov_b32 v5, s92")
            self("s_lshl_b32 s3, s%d, 3" % S_G)
            self("v_mov_b32 v6, s3")
            self("s_mov_b64 exec, 1")
            self("global_store_dwordx2 v6, v[4:5], s[%d:%d]" % (P_DBG, P_DBG + 1))
            self("%s:" % L)
        self("s_waitcnt vmcnt(0)")
        self("s_branch L_end")
        self("L_abort:")
        self("L_end:")
        self("s_endpgm")

def make(opts):
    k = K(opts)
    k.build()
    body, added = k.text()
    hdr = open("interleave_layers__ssm_conv_h3__dense_activation_relu__prompt.s.ref").read().split("\n")
    head = [l for l in hdr if l.startswith(";") and "@launch" not in l and "Override launch" not in l and "grid=ceil" not in l][:13]
    txt = "\n".join(head) + "\n"
    txt += "; @launch grid=(256,1,1) block=(256,1,1) lds=%d\n" % LDS_TOTAL
    txt += '.amdgcn_target "amdgcn-amd-amdhsa--gfx950"\n.text\n.globl %s\n.p2align 8\n.type %s,@function\n%s:\n' % (KNAME, KNAME, KNAME)
    txt += body
    txt += """.section .rodata,"a"
.p2align 6
.amdhsa_kernel %s
  .amdhsa_next_free_vgpr 512
  .amdhsa_next_free_sgpr 102
  .amdhsa_accum_offset 256
  .amdhsa_group_segment_fixed_size 0
  .amdhsa_kernarg_size 96
  .amdhsa_user_sgpr_count 2
  .amdhsa_user_sgpr_kernarg_segment_ptr 1
  .amdhsa_system_sgpr_workgroup_id_x 1
.end_amdhsa_kernel
""" % KNAME
    return txt, added, len(k.ins)

if __name__ == "__main__":
    import argparse, json
    ap = argparse.ArgumentParser()
    ap.add_argument("-o", default="interleave_layers__ssm_conv_h3__dense_activation_relu__prompt.s")
    ap.add_argument("--opts", default="{}")
    a = ap.parse_args()
    txt, added, n = make(json.loads(a.opts))
    open(a.o, "w").write(txt)
    print("wrote", a.o, "instructions", n, "nop states added", added, "bytes", len(txt))
```

```python
import sys
sys.path.insert(0, "work")
from gen import *

KNAME = "interleave_layers__ssm_conv_h3__dense_activation_relu__prompt_kernel"

WS_EPOCH = 0x0
WS_XCCF  = 0x400
WS_LFLAG = 0x1000
WS_YFLAG = 0x2000
WS_PKFLAG = 0x3000
WS_STAT  = 0x100000
STAT_SZ  = 0x40000
WS_UR    = 0x200000
WS_YT    = 0x500000
WS_W1P   = 0x800000
WS_W2P   = 0xB00000
WP_SZ    = 2211840
WS_XF1   = 0xE00000
WS_XF3   = 0x1100000
WS_HF1   = 0x1400000
WS_HF2   = 0x1B00000
WS_STAMP = 0x2200000
KX = 0x5BD1E995
TAG0 = 0x9E3779B9

KC_STRIDE = 4160
SLOT = 8 * KC_STRIDE + 4608
U_OFF = 8 * KC_STRIDE
LDS_T = 3 * SLOT
T_STRIDE = 144
LDS_W1 = 0
LDS_SCR = 140 * 1024
LDS_TOTAL = 163840
LDS_MODE = LDS_TOTAL - 16
LDS_CSX = LDS_SCR + 16384

S_G, S_J, S_W, S_MODE = 4, 5, 6, 7
SRD_A, SRD_B = 8, 12
P_Q, P_K, P_V, P_SK, P_SSM, P_D, P_W1 = 16, 18, 20, 22, 24, 26, 30
P_W2, P_OUT, P_DBG, P_WS = 32, 34, 36, 38
S_TAG = 28
S_KX = 29
S_RB, S_CS, S_RT, S_CT, S_UOFF = 40, 41, 42, 43, 44
S_MASK = 45
S_XCC = 46
S_CH = 47
S_HASCH = 48
S_DVAL = 49
S_T0 = 50
SRD_W2 = 56
S_W2B = 60
S_RU0 = 63
S_LFLAG = 64
S_TMPP = 66
S_TMPQ = 68
S_SLOT = 70
S_TMO = 71
S_HSTEP = 72
S_XFB = 86
S_M2 = 88
S_XO1, S_XO3, S_HO2 = 90, 91, 96
S_SAVE = 92
S_TS = 94

V_TID, V_LANE, V_L15, V_G = 0, 1, 2, 3
V_STAMP = 173
V_CS = 184
V_Y = 212
V_X = 222
V_W2X = 232

def w2reg(f):
    return ar(4 * f, 4) if f < 64 else vr(V_W2X + 4 * (f - 64), 4)

TIMEOUT = 400000

class K(Gen):
    def __init__(self, opts):
        super().__init__()
        self.o = opts
        self.bgq = []

    def stamp(self, idx):
        if not self.o.get("stamps"): return
        self("s_memtime s[%d:%d]" % (S_TS, S_TS + 1))
        self("s_waitcnt lgkmcnt(0)")
        self("v_writelane_b32 v%d, s%d, %d" % (V_STAMP, S_TS, idx))
        self.lgq = []
    def stamp_dump(self):
        if not self.o.get("stamps"): return
        self("s_lshl_b32 s3, s2, 2")
        self("s_add_u32 s3, s3, s%d" % S_W)
        self("s_lshl_b32 s3, s3, 8")
        self("s_add_u32 s3, s3, %d" % WS_STAMP)
        self("v_lshlrev_b32 v180, 2, v%d" % V_LANE)
        self("v_add_u32 v180, s3, v180")
        self("global_store_dword v180, v%d, s[%d:%d]" % (V_STAMP, P_WS, P_WS + 1))
    def bg_add(self, items): self.bgq.extend(items)
    def bg_step(self, n=1):
        q = self.bgq
        while n > 0 and q:
            it = q.pop(0)
            if callable(it): it()
            elif isinstance(it, tuple):
                kind, text, tag = it
                (self.vm if kind == "vm" else self.lg)(text, tag)
            else: self(it)
            n -= 1
    def bg_flush(self): self.bg_step(1 << 30)
    def if_wave(self, w, eq=True):
        L = self.label("L_iw")
        self("s_cmp_%s_u32 s%d, %d" % ("lg" if eq else "eq", S_W, w))
        self("s_cbranch_scc1 %s" % L)
        return L
    def close(self, L): self("%s:" % L)
    def exec_set(self, mask):
        self("s_mov_b64 s[%d:%d], exec" % (S_SAVE, S_SAVE + 1))
        self("s_mov_b64 exec, %s" % mask)
    def exec_restore(self): self("s_mov_b64 exec, s[%d:%d]" % (S_SAVE, S_SAVE + 1))
    def rnd_pair(self, p, t):
        self("v_cvt_pk_bf16_f32 v%d, v%d, v%d" % (t, p, p + 1))
        self("v_lshlrev_b32 v%d, 16, v%d" % (p, t))
        self("v_and_b32 v%d, s%d, v%d" % (p + 1, S_MASK, t))
    def unpack(self, dst, src):
        self("v_lshlrev_b32 v%d, 16, v%d" % (dst, src))
        self("v_and_b32 v%d, s%d, v%d" % (dst + 1, S_MASK, src))
    def unpack_tile(self, dst, src):
        for i in range(10): self.unpack(dst + 2 * i, src + i)
    def rnd1(self, r, t):
        self("v_cvt_pk_bf16_f32 v%d, v%d, v%d" % (t, r, r))
        self("v_lshlrev_b32 v%d, 16, v%d" % (r, t))
    def xg_sum(self, r, t):
        self("v_mov_b32 v%d, v%d" % (t, r))
        self("v_permlane16_swap_b32 v%d, v%d" % (r, t))
        self("v_add_f32 v%d, v%d, v%d" % (r, r, t))
        self("v_mov_b32 v%d, v%d" % (t, r))
        self("v_permlane32_swap_b32 v%d, v%d" % (r, t))
        self("v_add_f32 v%d, v%d, v%d" % (r, r, t))
    def srd(self, q, ptr, nbytes, const=0, add_sgpr=None):
        self("s_add_u32 s%d, s%d, %d" % (q, ptr, const))
        self("s_addc_u32 s%d, s%d, 0" % (q + 1, ptr + 1))
        if add_sgpr is not None:
            self("s_add_u32 s%d, s%d, s%d" % (q, q, add_sgpr))
            self("s_addc_u32 s%d, s%d, 0" % (q + 1, q + 1))
        self("s_and_b32 s%d, s%d, 0xffff" % (q + 1, q + 1))
        self("s_mov_b32 s%d, %d" % (q + 2, nbytes))
        self("s_mov_b32 s%d, 0x20000" % (q + 3))
    def addr_pair(self, dst, ptr, const=0, add_sgpr=None):
        self("s_add_u32 s%d, s%d, %d" % (dst, ptr, const))
        self("s_addc_u32 s%d, s%d, 0" % (dst + 1, ptr + 1))
        if add_sgpr is not None:
            self("s_add_u32 s%d, s%d, s%d" % (dst, dst, add_sgpr))
            self("s_addc_u32 s%d, s%d, 0" % (dst + 1, dst + 1))
    def handoff_stores(self, lines, tagname="st", record=True):
        Ls, Ld = self.label("L_slow"), self.label("L_sd")
        self("s_cmp_eq_u32 s%d, 0" % S_MODE)
        self("s_cbranch_scc0 %s" % Ls)
        for l in lines: self(l)
        self("s_branch %s" % Ld)
        self("%s:" % Ls)
        for l in lines: self(l + " sc0 sc1")
        self("%s:" % Ld)
        if record:
            for l in lines: self.vmq.append(tagname)
    def rowbase(self):
        self("s_lshl_b32 s3, s%d, 8" % S_G)
        self("s_lshl_b32 s%d, s%d, 6" % (S_T0, S_RB))
        self("s_add_u32 s3, s3, s%d" % S_T0)
        self("s_lshl_b32 s%d, s%d, 4" % (S_T0, S_W))
        self("s_add_u32 s3, s3, s%d" % S_T0)

    def flag_store(self, base_pair, off_sgpr, val, device, vt=176):
        if isinstance(val, int): self("s_add_u32 s3, s%d, %d" % (S_TAG, val))
        else: self("s_add_u32 s3, s%d, %s" % (S_TAG, val))
        self("v_mov_b32 v%d, s3" % vt)
        self("s_xor_b32 s3, s3, s%d" % S_KX)
        self("v_mov_b32 v%d, s3" % (vt + 1))
        self("v_mov_b32 v%d, s%d" % (vt + 2, off_sgpr))
        self.exec_set("1")
        line = "global_store_dwordx2 v%d, %s, s[%d:%d]" % (vt + 2, vr(vt, 2), base_pair, base_pair + 1)
        if device: self(line + " sc0 sc1")
        else: self.handoff_stores([line], record=False)
        self.exec_restore()
    def pair_bad(self, w0, w1, lo, span, t, acc=None):
        self("v_subrev_u32 v%d, s%d, v%d" % (t, lo, w0))
        self("v_cmp_lt_u32 vcc, %d, v%d" % (span, t))
        self("v_xor_b32 v%d, v%d, v%d" % (t, w0, w1))
        self("v_cmp_ne_u32 s[%d:%d], s%d, v%d" % (S_M2, S_M2 + 1, S_KX, t))
        self("s_or_b64 s[%d:%d], vcc, s[%d:%d]" % (S_M2, S_M2 + 1, S_M2, S_M2 + 1))
    def poll_pairs(self, base_pair, voff, lo, span, vt, npair=1):
        L = self.label("L_poll")
        self("s_add_u32 s%d, s%d, %d" % (S_T0 + 5, S_TAG, lo))
        self("s_mov_b32 s%d, %d" % (S_TMO, TIMEOUT))
        self("%s:" % L)
        if npair == 1:
            self("global_load_dwordx2 %s, v%d, s[%d:%d] sc1" % (vr(vt, 2), voff, base_pair, base_pair + 1))
        else:
            for k in range(npair // 2):
                self("global_load_dwordx4 %s, v%d, s[%d:%d] offset:%d sc1" % (vr(vt + 4 * k, 4), voff, base_pair, base_pair + 1, 16 * k))
        self("s_sub_u32 s%d, s%d, 1" % (S_TMO, S_TMO))
        self("s_cmp_eq_u32 s%d, 0" % S_TMO)
        self("s_cbranch_scc1 L_abort")
        self("s_waitcnt vmcnt(0)")
        for k in range(npair):
            self.pair_bad(vt + 2 * k, vt + 2 * k + 1, S_T0 + 5, span, vt + 2 * npair)
            self("s_cbranch_scc1 %s" % L)

    def barrier_arrive(self, phase, drain=True, wave=0):
        if drain: self.wait_all()
        self("s_barrier")
        L = self.if_wave(wave)
        self("s_lshl_b32 s%d, s%d, 3" % (S_T0, S_J))
        self.flag_store(S_LFLAG, S_T0, phase, device=False)
        self.close(L)
    def pk_wait(self):
        L = self.if_wave(3)
        self.addr_pair(S_TMPP, P_WS, WS_PKFLAG)
        self("v_lshlrev_b32 v174, 5, v%d" % V_LANE)
        self.poll_pairs(S_TMPP, 174, 1, 0, 4, npair=4)
        self.stamp(40)
        self.close(L)
    def barrier_wait(self, phase, wave=0, vt=176):
        L = self.if_wave(wave)
        self("v_and_b32 v%d, 31, v%d" % (vt + 4, V_LANE))
        self("v_lshlrev_b32 v%d, 3, v%d" % (vt + 4, vt + 4))
        self.poll_pairs(S_LFLAG, vt + 4, phase, 7 - phase, vt)
        self.close(L)
        self("s_barrier")

    def prologue(self):
        self("s_cmp_ge_u32 s2, 256")
        self("s_cbranch_scc1 L_end")
        if self.o.get("dbgtime"):
            self("s_memrealtime s[98:99]")
            self("s_memtime s[100:101]")
        self("s_load_dwordx16 s[16:31], s[0:1], 0")
        self("s_load_dwordx8 s[32:39], s[0:1], 64")
        self("s_and_b32 s%d, s2, 7" % S_G)
        self("s_lshr_b32 s%d, s2, 3" % S_J)
        self("v_lshrrev_b32 v4, 6, v0")
        self("v_readfirstlane_b32 s%d, v4" % S_W)
        self("v_and_b32 v%d, 63, v0" % V_LANE)
        self("v_and_b32 v%d, 15, v0" % V_L15)
        self("v_bfe_u32 v%d, v0, 4, 2" % V_G)
        self("s_getreg_b32 s%d, hwreg(HW_REG_XCC_ID, 0, 4)" % S_XCC)
        self("s_mov_b32 s%d, 0xffff0000" % S_MASK)
        self("s_lshr_b32 s%d, s%d, 3" % (S_RB, S_J))
        self("s_and_b32 s%d, s%d, 7" % (S_CS, S_J))
        self("s_lshr_b32 s%d, s%d, 4" % (S_RT, S_J))
        self("s_and_b32 s%d, s%d, 15" % (S_CT, S_J))
        self("s_mul_i32 s3, s%d, %d" % (S_CT, 11 * 4370))
        self("s_lshr_b32 s3, s3, 16")
        self("s_mul_i32 s%d, s%d, 6" % (S_UOFF, S_CT))
        self("s_add_u32 s%d, s%d, s3" % (S_UOFF, S_UOFF))
        self("s_mov_b32 s%d, 0" % S_MODE)
        self("s_waitcnt lgkmcnt(0)")
        wsb = self.o.get("wsbase", 0)
        if wsb:
            self("s_add_u32 s%d, s%d, 0x%x" % (P_WS, P_WS, wsb))
            self("s_addc_u32 s%d, s%d, 0" % (P_WS + 1, P_WS + 1))
        self("s_load_dword s%d, s[%d:%d], %d" % (S_TAG, P_WS, P_WS + 1, WS_EPOCH))
        self("s_mov_b32 s%d, 0x%x" % (S_KX, KX))
        self("s_lshl_b32 s3, s%d, 8" % S_G)
        self.addr_pair(S_LFLAG, P_WS, WS_LFLAG, 3)

    def repack_decode(self, T, src, pitch, dst):
        L2, Ld = self.label("L_rp2"), self.label("L_rpd")
        a, b = S_T0, S_T0 + 1
        self("s_cmp_ge_u32 s%d, 540" % T)
        self("s_cbranch_scc1 %s" % L2)
        self("s_mul_hi_u32 s%d, s%d, %d" % (a, T, (1 << 32) // 27 + 1))
        self("s_mul_i32 s%d, s%d, 27" % (b, a))
        self("s_sub_u32 s%d, s%d, s%d" % (b, T, b))
        self("s_mul_i32 s3, s%d, %d" % (a, 32 * 3456))
        self("s_lshl_b32 s%d, s%d, 7" % (pitch, b))
        self("s_add_u32 s3, s3, s%d" % pitch)
        self.addr_pair(src, P_W1, 0, 3)
        self("s_mul_i32 s3, s%d, 108" % a)
        self("s_lshl_b32 s%d, s%d, 2" % (b, b))
        self("s_add_u32 s3, s3, s%d" % b)
        self("s_lshl_b32 s3, s3, 10")
        self("s_add_u32 s%d, s3, %d" % (dst, WS_W1P))
        self("s_movk_i32 s%d, 3456" % pitch)
        self("s_branch %s" % Ld)
        self("%s:" % L2)
        self("s_sub_u32 s3, s%d, 540" % T)
        self("s_mul_hi_u32 s%d, s3, %d" % (a, (1 << 32) // 10 + 1))
        self("s_mul_i32 s%d, s%d, 10" % (b, a))
        self("s_sub_u32 s%d, s3, s%d" % (b, b))
        self("s_mul_i32 s3, s%d, %d" % (a, 32 * 1280))
        self("s_lshl_b32 s%d, s%d, 7" % (pitch, b))
        self("s_add_u32 s3, s3, s%d" % pitch)
        self.addr_pair(src, P_W2, 0, 3)
        self("s_mul_i32 s3, s%d, 40" % a)
        self("s_lshl_b32 s%d, s%d, 2" % (b, b))
        self("s_add_u32 s3, s3, s%d" % b)
        self("s_lshl_b32 s3, s3, 10")
        self("s_add_u32 s%d, s3, %d" % (dst, WS_W2P))
        self("s_movk_i32 s%d, 1280" % pitch)
        self("%s:" % Ld)
    def repack_issue(self):
        T, T2 = 72, 73
        self.RP = dict(src1=74, pitch1=76, dst1=77, src2=78, pitch2=80, dst2=81, has2=82, lds=83)
        R = self.RP
        self("s_lshl_b32 s%d, s2, 2" % T)
        self("s_add_u32 s%d, s%d, s%d" % (T, T, S_W))
        self("s_cmp_lt_u32 s%d, 56" % T)
        self("s_cselect_b32 s%d, 1, 0" % R["has2"])
        self("s_lshl_b32 s%d, s%d, 13" % (R["lds"], S_W))
        self.repack_decode(T, R["src1"], R["pitch1"], R["dst1"])
        row, ch, off = 100, 101, 102
        self("v_lshrrev_b32 v%d, 3, v%d" % (row, V_LANE))
        self("v_and_b32 v%d, 7, v%d" % (ch, V_LANE))
        self("v_lshlrev_b32 v%d, 4, v%d" % (ch, ch))
        def dma(src, pitch, ldsoff, rec):
            self("v_mul_lo_u32 v%d, v%d, s%d" % (off, row, pitch))
            self("v_add_u32 v%d, v%d, v%d" % (off, off, ch))
            self("s_lshl_b32 s%d, s%d, 3" % (S_T0, pitch))
            for r in range(4):
                self("s_add_u32 m0, s%d, %d" % (R["lds"], ldsoff + 1024 * r))
                if r: self("v_add_u32 v%d, s%d, v%d" % (off, S_T0, off))
                t = "global_load_lds_dwordx4 v%d, s[%d:%d]" % (off, src, src + 1)
                if rec: self.vm(t, "rp")
                else: self(t)
        L = self.label("L_rp1")
        self("s_cmp_eq_u32 s%d, 0" % R["has2"])
        self("s_cbranch_scc1 %s" % L)
        self("s_add_u32 s%d, s%d, 1024" % (T2, T))
        self.repack_decode(T2, R["src2"], R["pitch2"], R["dst2"])
        dma(R["src2"], R["pitch2"], 4096, False)
        self("%s:" % L)
        dma(R["src1"], R["pitch1"], 0, True)
    def repack_finish(self):
        R = self.RP
        a, F, sa = 100, 104, 101
        self.vm_wait("rp")
        self("v_bfe_u32 v%d, v%d, 2, 2" % (a, V_LANE))
        self("v_lshl_add_u32 v%d, v%d, 2, v%d" % (a, V_G, a))
        self("v_lshlrev_b32 v%d, 7, v%d" % (a, a))
        self("v_and_b32 v%d, 3, v%d" % (sa, V_LANE))
        self("v_lshl_add_u32 v%d, v%d, 3, v%d" % (a, sa, a))
        self("v_add_u32 v%d, s%d, v%d" % (a, R["lds"], a))
        def one(ldsoff, dst, rec):
            for u in range(4):
                for h in range(2):
                    self("ds_read_b64_tr_b16 %s, v%d offset:%d" % (vr(F + 4 * u + 2 * h, 2), a, ldsoff + h * 2048 + 32 * u))
            self("v_lshlrev_b32 v%d, 4, v%d" % (sa, V_LANE))
            self("v_add_u32 v%d, s%d, v%d" % (sa, dst, sa))
            self("s_waitcnt lgkmcnt(0)")
            for u in range(4):
                t = "global_store_dwordx4 v%d, %s, s[%d:%d] offset:%d sc0 sc1" % (sa, vr(F + 4 * u, 4), P_WS, P_WS + 1, 1024 * u)
                if rec: self.vm(t, "rpst")
                else: self(t)
        L = self.label("L_rf2")
        self("s_cmp_eq_u32 s%d, 0" % R["has2"])
        self("s_cbranch_scc1 %s" % L)
        one(4096, R["dst2"], False)
        self("s_nop 1")
        self("%s:" % L)
        one(0, R["dst1"], True)
        self.lgq = []

    def prep_loads(self):
        KR, VR, TAP, RAW = 4, 34, 46, 66
        self.KR, self.VR, self.TAP, self.RAW = KR, VR, TAP, RAW
        c10, rp, off = 110, 111, 112
        self("v_and_b32 v%d, 7, v0" % c10)
        self("v_lshrrev_b32 v%d, 3, v0" % rp)
        self("s_lshl_b32 s3, s%d, 6" % S_J)
        self("s_sub_u32 s3, s3, 3")
        self("v_lshlrev_b32 v%d, 1, v%d" % (off, rp))
        self("v_add_u32 v%d, s3, v%d" % (off, off))
        self("s_movk_i32 s%d, 1280" % S_T0)
        self("v_mul_lo_u32 v%d, v%d, s%d" % (off, off, S_T0))
        self("s_mul_i32 s3, s%d, 160" % S_G)
        self("v_mul_u32_u24 v%d, 20, v%d" % (off + 1, c10))
        self("v_add3_u32 v%d, v%d, v%d, s3" % (off, off, off + 1))
        self.srd(SRD_A, P_K, 2621440)
        self.srd(SRD_B, P_V, 2621440)
        offs = [off]
        for r in range(1, 5):
            self("v_add_u32 v%d, %d, v%d" % (off + 1 + r, 1280 * r, off))
            offs.append(off + 1 + r)
        for r in range(5):
            self.vm("buffer_load_dwordx4 %s, v%d, s[%d:%d], 0 offen" % (vr(KR + 6 * r, 4), offs[r], SRD_A, SRD_A + 3), "k")
            self.vm("buffer_load_dword v%d, v%d, s[%d:%d], 0 offen offset:16" % (KR + 6 * r + 4, offs[r], SRD_A, SRD_A + 3), "k")
        for r in range(2):
            self.vm("buffer_load_dwordx4 %s, v%d, s[%d:%d], 0 offen" % (vr(VR + 6 * r, 4), offs[3 + r], SRD_B, SRD_B + 3), "v")
            self.vm("buffer_load_dword v%d, v%d, s[%d:%d], 0 offen offset:16" % (VR + 6 * r + 4, offs[3 + r], SRD_B, SRD_B + 3), "v")
        t = off + 7
        self("s_mul_i32 s3, s%d, 640" % S_G)
        self("v_mul_u32_u24 v%d, 80, v%d" % (t, c10))
        self("v_add_u32 v%d, s3, v%d" % (t, t))
        for i in range(5):
            self.vm("global_load_dwordx4 %s, v%d, s[%d:%d] offset:%d" % (vr(TAP + 4 * i, 4), t, P_SK, P_SK + 1, 16 * i), "tap")
        t2 = off + 8
        self.rowbase()
        self("v_add_u32 v%d, s3, v%d" % (t2, V_L15))
        self("v_mul_u32_u24 v%d, 1280, v%d" % (t2, t2))
        self("s_mul_i32 s3, s%d, 160" % S_CS)
        self("v_lshlrev_b32 v%d, 3, v%d" % (t2 + 1, V_G))
        self("v_add3_u32 v%d, v%d, v%d, s3" % (t2, t2, t2 + 1))
        for u in range(5):
            self.vm("global_load_dwordx2 %s, v%d, s[%d:%d] offset:%d" % (vr(V_X + 2 * u, 2), t2, P_Q, P_Q + 1, 32 * u), "q")
        self("s_lshl_b32 s3, s%d, 5" % S_W)
        self("s_add_u32 s3, s3, s%d" % S_J)
        self("s_cmp_lt_u32 s3, 80")
        self("s_cselect_b32 s%d, 1, 0" % S_HASCH)
        self("s_cselect_b32 s3, s3, 0")
        self("s_mul_i32 s%d, s%d, 80" % (S_CH, S_G))
        self("s_add_u32 s%d, s%d, s3" % (S_CH, S_CH))
        self("s_mul_i32 s%d, s%d, %d" % (S_SLOT, S_W, SLOT))
        self("s_cmp_lt_u32 s%d, 3" % S_W)
        self("s_cselect_b32 s%d, s%d, 0" % (S_SLOT, S_SLOT))
        self("s_lshl_b32 s3, s%d, 1" % S_CH)
        self("s_and_b32 s3, s3, 0xfffffffc")
        self("s_load_dword s%d, s[%d:%d], s3" % (S_DVAL, P_D, P_D + 1))
        self("s_lshl_b32 s3, s%d, 12" % S_CH)
        self.srd(52, P_SSM, 4096, add_sgpr=3)
        a = off + 10
        self("v_lshlrev_b32 v%d, 4, v%d" % (a, V_LANE))
        for r in range(4):
            self("v_add_u32 v%d, %d, v%d" % (a + 1, (1024 * r - 16) & 0xffffffff, a))
            self.vm("buffer_load_dwordx4 %s, v%d, s[52:55], 0 offen" % (vr(RAW + 8 * r, 4), a + 1), "raw")
            self.vm("buffer_load_dwordx4 %s, v%d, s[52:55], 0 offen offset:%d" % (vr(RAW + 8 * r + 4, 4), a, 1024 * r), "raw")
        La, Lb = self.label("L_pt"), self.label("L_ptd")
        self("s_cmp_ge_u32 s%d, 2" % S_W)
        self("s_cbranch_scc1 %s" % La)
        self("s_lshl_b32 s3, s%d, 6" % S_W)
        self("v_add_u32 v%d, s3, v%d" % (a, V_LANE))
        self("v_min_u32 v%d, 79, v%d" % (a, a))
        self("v_lshlrev_b32 v%d, 12, v%d" % (a, a))
        self("s_mul_i32 s3, s%d, %d" % (S_G, 80 * 4096))
        self("s_sub_u32 s%d, 31, s%d" % (S_T0, S_J))
        self("s_lshl_b32 s%d, s%d, 7" % (S_T0, S_T0))
        self("s_add_u32 s3, s3, s%d" % S_T0)
        self("s_add_u32 s3, s3, %d" % WS_UR)
        self("v_add_u32 v%d, s3, v%d" % (a, a))
        self("global_load_dword v%d, v%d, s[%d:%d]" % (a + 1, a, P_WS, P_WS + 1))
        self("s_branch %s" % Lb)
        self("%s:" % La)
        self("s_lshl_b32 s3, s%d, 8" % S_G)
        self("s_lshl_b32 s%d, s%d, 6" % (S_T0, S_RB))
        self("s_add_u32 s3, s3, s%d" % S_T0)
        self("s_lshl_b32 s%d, s%d, 3" % (S_T0, S_CS))
        self("s_add_u32 s3, s3, s%d" % S_T0)
        self("v_and_b32 v%d, 7, v%d" % (a, V_LANE))
        self("v_add_u32 v%d, s3, v%d" % (a, a))
        self("v_lshlrev_b32 v%d, 7, v%d" % (a, a))
        self("v_bfe_u32 v%d, v%d, 3, 1" % (a + 1, V_LANE))
        self("s_sub_u32 s3, s%d, 2" % S_W)
        self("s_lshl_b32 s3, s3, 1")
        self("v_add_u32 v%d, s3, v%d" % (a + 1, a + 1))
        self("v_mul_u32_u24 v%d, %d, v%d" % (a + 1, STAT_SZ, a + 1))
        self("v_add3_u32 v%d, v%d, v%d, %s" % (a, a, a + 1, "s%d" % S_T0)) if False else None
        self("v_add_u32 v%d, v%d, v%d" % (a, a, a + 1))
        self("v_add_u32 v%d, %d, v%d" % (a, WS_STAT, a))
        self("global_load_dword v%d, v%d, s[%d:%d]" % (a + 1, a, P_WS, P_WS + 1))
        self("v_and_b32 v%d, 1, v%d" % (a, V_LANE))
        self("v_lshlrev_b32 v%d, 7, v%d" % (a, a))
        self("global_load_dword v%d, v%d, s[%d:%d]" % (a + 1, a, S_LFLAG, S_LFLAG + 1))
        self("%s:" % Lb)
        self("s_waitcnt lgkmcnt(0)")
        self("s_add_u32 s%d, s%d, 0x%x" % (S_TAG, S_TAG, TAG0))
        L = self.if_wave(0)
        self("s_lshl_b32 s%d, s%d, 8" % (S_T0, S_G))
        self("s_lshl_b32 s%d, s%d, 3" % (S_T0 + 1, S_J))
        self("s_add_u32 s%d, s%d, s%d" % (S_T0, S_T0, S_T0 + 1))
        self("s_add_u32 s%d, s%d, %d" % (S_T0, S_T0, WS_XCCF))
        self.flag_store(P_WS, S_T0, "s%d" % S_XCC, device=True)
        self.close(L)

    def prep_compute(self):
        KR, VR, TAP = self.KR, self.VR, self.TAP
        Kp, Tp, Vp = 124, 134, 142
        A0, A1, P0, P1, t0, t1 = 146, 148, 150, 152, 154, 155
        O0, O1 = 156, 157
        lad = 158
        self("v_and_b32 v%d, 7, v0" % lad)
        self("v_mul_u32_u24 v%d, %d, v%d" % (lad, 10 * T_STRIDE, lad))
        self("v_lshrrev_b32 v%d, 3, v0" % (lad + 1))
        self("v_lshlrev_b32 v%d, 2, v%d" % (lad + 1, lad + 1))
        self("v_sub_u32 v%d, v%d, v%d" % (lad, lad, lad + 1))
        self("v_add_u32 v%d, %d, v%d" % (lad, LDS_T + 124, lad))
        self.vm_wait(["k", "v", "tap"])
        self.stamp(39)
        pk = lambda op, d, a, b: self("v_pk_%s_f32 %s, %s, %s" % (op, vr(d, 2), vr(a, 2), vr(b, 2)))
        for i in range(5):
            for r in range(5): self.unpack(Kp + 2 * r, KR + 6 * r + i)
            for t in range(4):
                s0 = TAP + 4 * i + (t >> 1); s1 = s0 + 2
                if t & 1:
                    self("v_and_b32 v%d, s%d, v%d" % (Tp + 2 * t, S_MASK, s0))
                    self("v_and_b32 v%d, s%d, v%d" % (Tp + 2 * t + 1, S_MASK, s1))
                else:
                    self("v_lshlrev_b32 v%d, 16, v%d" % (Tp + 2 * t, s0))
                    self("v_lshlrev_b32 v%d, 16, v%d" % (Tp + 2 * t + 1, s1))
            for r in range(2): self.unpack(Vp + 2 * r, VR + 6 * r + i)
            pk("mul", A0, Kp + 0, Tp + 6); pk("mul", A1, Kp + 2, Tp + 6)
            self.rnd_pair(A0, t0); self.rnd_pair(A1, t1)
            for step in range(1, 4):
                T = Tp + 2 * (3 - step)
                pk("mul", P0, Kp + 2 * step, T); pk("mul", P1, Kp + 2 * (step + 1), T)
                self.rnd_pair(P0, t0); self.rnd_pair(P1, t1)
                pk("add", A0, A0, P0); pk("add", A1, A1, P1)
                self.rnd_pair(A0, t0); self.rnd_pair(A1, t1)
            pk("mul", A0, A0, Vp + 0); pk("mul", A1, A1, Vp + 2)
            self("v_cvt_pk_bf16_f32 v%d, v%d, v%d" % (O0, A1, A0))
            self("v_cvt_pk_bf16_f32 v%d, v%d, v%d" % (O1, A1 + 1, A0 + 1))
            self.lg("ds_write_b32 v%d, v%d offset:%d" % (lad, O0, (2 * i) * T_STRIDE), "tw")
            self.lg("ds_write_b32 v%d, v%d offset:%d" % (lad, O1, (2 * i + 1) * T_STRIDE), "tw")

    def mode_check(self, vt=176):
        L = self.if_wave(0)
        self("s_lshl_b32 s3, s%d, 8" % S_G)
        self.addr_pair(S_TMPP, P_WS, WS_XCCF, 3)
        self("v_and_b32 v%d, 31, v%d" % (vt + 4, V_LANE))
        self("v_lshlrev_b32 v%d, 3, v%d" % (vt + 4, vt + 4))
        self.poll_pairs(S_TMPP, vt + 4, 0, 7, vt)
        self("s_add_u32 s3, s%d, s%d" % (S_TAG, S_XCC))
        self("v_cmp_ne_u32 vcc, s3, v%d" % vt)
        self("s_nop 1")
        self("s_cmp_lg_u64 vcc, 0")
        self("s_cselect_b32 s%d, 1, 0" % S_MODE)
        if self.o.get("force_slow"): self("s_mov_b32 s%d, 1" % S_MODE)
        self("v_mov_b32 v%d, s%d" % (vt, S_MODE))
        self("v_mov_b32 v%d, %d" % (vt + 1, LDS_MODE))
        self("ds_write_b32 v%d, v%d" % (vt + 1, vt))
        self.close(L)
    def mode_fetch(self, vt=176):
        self("v_mov_b32 v%d, %d" % (vt + 1, LDS_MODE))
        self("ds_read_b32 v%d, v%d" % (vt, vt + 1))
        self("s_waitcnt lgkmcnt(0)")
        self("v_readfirstlane_b32 s%d, v%d" % (S_MODE, vt))
        self.lgq = []
        alias = self.o.get("alias", 1)
        self("s_mov_b32 s%d, %d" % (S_XO1, WS_UR if alias else WS_XF1))
        self("s_mov_b32 s%d, %d" % (S_XO3, WS_UR if alias else WS_XF3))
        self("s_mov_b32 s%d, %d" % (S_HO2, WS_HF1 if alias else WS_HF2))
        L = self.label("L_al")
        self("s_cmp_eq_u32 s%d, 0" % S_MODE)
        self("s_cbranch_scc1 %s" % L)
        self("s_mov_b32 s%d, %d" % (S_XO1, WS_XF1))
        self("s_mov_b32 s%d, %d" % (S_XO3, WS_XF3))
        self("s_mov_b32 s%d, %d" % (S_HO2, WS_HF2))
        self("%s:" % L)

    def tile_stats(self, xf, buf, tmp):
        s, t = tmp, tmp + 4
        d = tmp + 6
        m2 = tmp + 26
        pk = lambda op, dd, a, b: self("v_pk_%s_f32 %s, %s, %s" % (op, vr(dd, 2), vr(a, 2), vr(b, 2)))
        pk("add", s, xf, xf + 2)
        for i in range(2, 10): pk("add", s, s, xf + 2 * i)
        self("v_add_f32 v%d, v%d, v%d" % (s, s, s + 1))
        self.xg_sum(s, t)
        self("v_mul_f32 v%d, 0x3c4ccccd, v%d" % (s, s))
        for i in range(10):
            self("v_pk_add_f32 %s, %s, %s op_sel_hi:[1,0] neg_lo:[0,1] neg_hi:[0,1]" % (vr(d + 2 * i, 2), vr(xf + 2 * i, 2), vr(s, 2)))
        pk("mul", m2, d, d)
        for i in range(1, 10):
            self("v_pk_fma_f32 %s, %s, %s, %s" % (vr(m2, 2), vr(d + 2 * i, 2), vr(d + 2 * i, 2), vr(m2, 2)))
        self("v_add_f32 v%d, v%d, v%d" % (s + 1, m2, m2 + 1))
        self.xg_sum(s + 1, t)
        self("s_add_u32 s3, s%d, %d" % (S_TAG, buf))
        self("v_mov_b32 v%d, s3" % (s + 2))
        self("s_xor_b32 s3, s3, s%d" % S_KX)
        self("v_mov_b32 v%d, s3" % (s + 3))
        self.rowbase()
        self("s_lshl_b32 s3, s3, 7")
        self("s_lshl_b32 s%d, s%d, 4" % (S_T0, S_CS))
        self("s_add_u32 s3, s3, s%d" % S_T0)
        self("s_add_u32 s3, s3, %d" % (WS_STAT + buf * STAT_SZ))
        self("v_lshlrev_b32 v%d, 7, v%d" % (t, V_L15))
        self("v_add_u32 v%d, s3, v%d" % (t, t))
        self.exec_set("0xffff")
        self.handoff_stores(["global_store_dwordx4 v%d, %s, s[%d:%d]" % (t, vr(s, 4), P_WS, P_WS + 1)], "stat")
        self.exec_restore()
    def row_stats_issue(self, buf, tmp):
        a = tmp + 8
        self.rowbase()
        self("s_lshl_b32 s3, s3, 7")
        self("s_add_u32 s3, s3, %d" % (WS_STAT + buf * STAT_SZ))
        self("v_lshlrev_b32 v%d, 7, v%d" % (a, V_L15))
        self("v_lshl_add_u32 v%d, v%d, 5, v%d" % (a, V_G, a))
        self("v_add_u32 v%d, s3, v%d" % (a, a))
        for k in range(2):
            self.vm("global_load_dwordx4 %s, v%d, s[%d:%d] offset:%d sc1" % (vr(tmp + 4 * k, 4), a, P_WS, P_WS + 1, 16 * k), "rs")
    def row_stats_validate(self, buf, tmp):
        Lr, Lo = self.label("L_rsr"), self.label("L_rso")
        self("s_add_u32 s%d, s%d, %d" % (S_T0 + 5, S_TAG, buf))
        self("s_mov_b32 s%d, %d" % (S_TMO, TIMEOUT))
        self("%s:" % Lr)
        self.pair_bad(tmp + 2, tmp + 3, S_T0 + 5, 0, tmp + 9)
        self("s_mov_b64 s[%d:%d], s[%d:%d]" % (S_TMPQ, S_TMPQ + 1, S_M2, S_M2 + 1))
        self.pair_bad(tmp + 6, tmp + 7, S_T0 + 5, 0, tmp + 9)
        self("s_or_b64 s[%d:%d], s[%d:%d], s[%d:%d]" % (S_M2, S_M2 + 1, S_M2, S_M2 + 1, S_TMPQ, S_TMPQ + 1))
        self("s_cbranch_scc0 %s" % Lo)
        self("s_sub_u32 s%d, s%d, 1" % (S_TMO, S_TMO))
        self("s_cmp_eq_u32 s%d, 0" % S_TMO)
        self("s_cbranch_scc1 L_abort")
        for k in range(2):
            self("global_load_dwordx4 %s, v%d, s[%d:%d] offset:%d sc1" % (vr(tmp + 4 * k, 4), tmp + 8, P_WS, P_WS + 1, 16 * k))
        self("s_waitcnt vmcnt(0)")
        self("s_branch %s" % Lr)
        self("%s:" % Lo)
        self("v_mov_b32 v%d, v%d" % (tmp + 2, tmp + 4))
        self("v_mov_b32 v%d, v%d" % (tmp + 3, tmp + 5))
    def row_stats_finish_items(self, tmp, out_m, out_rs):
        m0, q0, m1, q1 = tmp, tmp + 1, tmp + 2, tmp + 3
        s, t = tmp + 4, tmp + 5
        g = Gen()
        def xs(r):
            g("v_mov_b32 v%d, v%d" % (t, r)); g("v_permlane16_swap_b32 v%d, v%d" % (r, t)); g("v_add_f32 v%d, v%d, v%d" % (r, r, t))
            g("v_mov_b32 v%d, v%d" % (t, r)); g("v_permlane32_swap_b32 v%d, v%d" % (r, t)); g("v_add_f32 v%d, v%d, v%d" % (r, r, t))
        def r1(r):
            g("v_cvt_pk_bf16_f32 v%d, v%d, v%d" % (t, r, r)); g("v_lshlrev_b32 v%d, 16, v%d" % (r, t))
        g("v_add_f32 v%d, v%d, v%d" % (s, m0, m1)); xs(s)
        g("v_mul_f32 v%d, 0x3e000000, v%d" % (s, s))
        g("v_sub_f32 v%d, v%d, v%d" % (m0, m0, s)); g("v_sub_f32 v%d, v%d, v%d" % (m1, m1, s))
        g("v_mul_f32 v%d, v%d, v%d" % (m0, m0, m0)); g("v_fmac_f32 v%d, v%d, v%d" % (m0, m1, m1))
        g("v_add_f32 v%d, v%d, v%d" % (q0, q0, q1))
        g("v_mov_b32 v%d, 0x42a00000" % t); g("v_fmac_f32 v%d, v%d, v%d" % (q0, m0, t)); xs(q0)
        g("v_mul_f32 v%d, 0x3acccccd, v%d" % (q0, q0)); r1(q0)
        g("v_add_f32 v%d, 0x3727c5ac, v%d" % (q0, q0)); r1(q0)
        g("v_sqrt_f32 v%d, v%d" % (q0, q0)); g("s_nop 0"); r1(q0)
        g("v_rcp_f32 v%d, v%d" % (out_rs, q0)); r1(s)
        g("v_mov_b32 v%d, v%d" % (out_m, s))
        return [i.text.strip() for i in g.ins]
    def row_stats_finish(self, tmp, out_m, out_rs):
        for l in self.row_stats_finish_items(tmp, out_m, out_rs): self(l)

    def prep_store_ur(self):
        a, b = 100, 101
        self("v_lshrrev_b32 v%d, 3, v0" % a)
        self("v_and_b32 v%d, 7, v0" % b)
        self("v_lshlrev_b32 v%d, 4, v%d" % (b, b))
        self("v_mul_u32_u24 v%d, %d, v%d" % (102, T_STRIDE, a))
        self("v_add3_u32 v%d, v%d, v%d, 0" % (102, 102, b))
        self("v_add_u32 v%d, %d, v%d" % (102, LDS_T, 102))
        self("s_mul_i32 s3, s%d, %d" % (S_G, 80 * 4096))
        self("s_sub_u32 s%d, 31, s%d" % (S_T0, S_J))
        self("s_lshl_b32 s%d, s%d, 7" % (S_T0, S_T0))
        self("s_add_u32 s3, s3, s%d" % S_T0)
        self("s_add_u32 s3, s3, %d" % WS_UR)
        self("v_lshlrev_b32 v%d, 12, v%d" % (103, a))
        self("v_add3_u32 v%d, v%d, v%d, s3" % (103, 103, b))
        for r in range(2):
            self("ds_read_b128 %s, v102 offset:%d" % (vr(104 + 4 * r, 4), 32 * T_STRIDE * r))
        L = self.label("L_ur")
        self("s_cmp_ge_u32 s%d, 2" % S_W)
        self("s_cbranch_scc1 %s" % L)
        self("ds_read_b128 v[112:115], v102 offset:%d" % (32 * T_STRIDE * 2))
        self("%s:" % L)
        self("v_add_u32 v116, %d, v103" % (32 * 4096))
        self("v_add_u32 v117, %d, v103" % (64 * 4096))
        self("s_waitcnt lgkmcnt(0)")
        self.handoff_stores(["global_store_dwordx4 v103, v[104:107], s[%d:%d]" % (P_WS, P_WS + 1),
                             "global_store_dwordx4 v116, v[108:111], s[%d:%d]" % (P_WS, P_WS + 1)], "ur")
        L = self.label("L_ur2")
        self("s_cmp_ge_u32 s%d, 2" % S_W)
        self("s_cbranch_scc1 %s" % L)
        self.handoff_stores(["global_store_dwordx4 v117, v[112:115], s[%d:%d]" % (P_WS, P_WS + 1)], "ur", record=False)
        self("%s:" % L)
        self.lgq = []

    def build_kcopies(self):
        RAW = self.RAW
        SETS = [(110, 116, 122), (134, 140, 146)]
        ad, z = 128, 130
        L = self.label("L_kc")
        self("s_cmp_eq_u32 s%d, 0" % S_HASCH)
        self("s_cbranch_scc1 %s" % L)
        self("v_lshlrev_b32 v%d, 4, v%d" % (ad, V_LANE))
        self("s_add_u32 s3, s%d, 16" % S_SLOT)
        self("v_add_u32 v%d, s3, v%d" % (ad, ad))
        for r in range(4):
            R = RAW + 8 * r
            A, B, C = SETS[r & 1]
            if r >= 2: self("s_waitcnt lgkmcnt(8)")
            for i in range(6):
                self("v_alignbit_b32 v%d, v%d, v%d, 16" % (A + i, R + i + 1, R + i))
            for i in range(6):
                self("v_alignbit_b32 v%d, v%d, v%d, 16" % (B + i, R + i + 2, R + i + 1))
            for i in range(6):
                self("v_mov_b32 v%d, v%d" % (C + i, R + i + 1))
            src = {0: A, 1: C, 2: B, 3: R + 2, 4: A + 2, 5: C + 2, 6: B + 2, 7: R + 4}
            for c in range(8):
                self("ds_write_b128 v%d, %s offset:%d" % (ad, vr(src[c], 4), c * KC_STRIDE + 1024 * r))
        for i in range(4): self("v_mov_b32 v%d, 0" % (z + i))
        self("v_mul_u32_u24 v%d, %d, v%d" % (ad + 1, KC_STRIDE, V_LANE))
        self("v_add_u32 v%d, s%d, v%d" % (ad + 1, S_SLOT, ad + 1))
        self.exec_set("0xff")
        self("ds_write_b128 v%d, %s" % (ad + 1, vr(z, 4)))
        self("s_mov_b64 exec, 0x3fffffff")
        self("v_lshlrev_b32 v%d, 4, v%d" % (ad + 1, V_LANE))
        self("s_add_u32 s3, s%d, %d" % (S_SLOT, U_OFF + 4096))
        self("v_add_u32 v%d, s3, v%d" % (ad + 1, ad + 1))
        self("ds_write_b128 v%d, %s" % (ad + 1, vr(z, 4)))
        self.exec_restore()
        self("%s:" % L)
        self("s_waitcnt lgkmcnt(0)")
        self.lgq = []

    def conv(self):
        Lskip = self.label("L_conv_skip"); Ldone = self.label("L_conv_done")
        self("s_cmp_eq_u32 s%d, 0" % S_HASCH)
        self("s_cbranch_scc1 %s" % Lskip)
        self("s_lshl_b32 s3, s%d, 12" % S_CH)
        self.addr_pair(S_TMPP, P_WS, WS_UR, 3)
        a = 164
        self("v_lshlrev_b32 v%d, 4, v%d" % (a, V_LANE))
        for r in range(4):
            self("s_add_u32 m0, s%d, %d" % (S_SLOT, U_OFF + 1024 * r))
            self("v_add_u32 v%d, %d, v%d" % (a + 1, 1024 * r, a))
            self.vm("global_load_lds_dwordx4 v%d, s[%d:%d]" % (a + 1, S_TMPP, S_TMPP + 1), "u")
        self("s_and_b32 s3, s%d, 1" % S_CH)
        self("s_lshl_b32 s%d, s%d, 16" % (S_T0, S_DVAL))
        self("s_and_b32 s%d, s%d, 0xffff0000" % (S_DVAL, S_DVAL))
        self("s_cmp_eq_u32 s3, 0")
        self("s_cselect_b32 s%d, s%d, s%d" % (S_DVAL, S_T0, S_DVAL))
        vA, vB = 166, 167
        self("v_and_b32 v%d, 7, v%d" % (vA, V_L15))
        self("v_mul_u32_u24 v%d, %d, v%d" % (vA, KC_STRIDE, vA))
        self("v_lshrrev_b32 v%d, 3, v%d" % (168, V_L15))
        self("v_add_u32 v%d, v%d, v%d" % (168, 168, V_G))
        self("v_lshl_add_u32 v%d, v%d, 4, v%d" % (vA, 168, vA))
        self("v_add_u32 v%d, s%d, v%d" % (vA, S_SLOT, vA))
        self("v_lshlrev_b32 v%d, 5, v%d" % (vB, V_L15))
        self("v_lshlrev_b32 v%d, 4, v%d" % (168, V_G))
        self("v_sub_u32 v%d, v%d, v%d" % (vB, 168, vB))
        self("s_add_u32 s3, s%d, %d" % (S_SLOT, U_OFF + 4064 - 3584))
        self("v_add_u32 v%d, s3, v%d" % (vB, vB))
        ACC = 4; FA = [36, 100]; FB = [68, 132]
        def loadsA(tau, buf):
            return [("lg", "ds_read_b128 %s, v%d offset:%d" % (vr(FA[buf] + 4 * i, 4), vA, 64 * tau + 512 * i), "cA") for i in range(8)]
        def loadsB(tau, buf):
            return [("lg", "ds_read_b128 %s, v%d offset:%d" % (vr(FB[buf] + 4 * i, 4), vB, 3584 - 512 * i + 64 * tau), "cB") for i in range(8)]
        self.bg_add(loadsA(0, 0)); self.bg_flush()
        ua, sa = 168, 169
        self("v_lshlrev_b32 v%d, 5, v%d" % (sa, V_L15))
        self("v_lshl_add_u32 v%d, v%d, 3, v%d" % (sa, V_G, sa))
        self("s_add_u32 s3, s%d, %d" % (S_SLOT, U_OFF + 4088 - 3584))
        self("v_sub_u32 v%d, s3, v%d" % (ua, sa))
        self("s_lshl_b32 s3, s%d, 12" % S_CH)
        self("s_add_u32 s3, s3, %d" % WS_YT)
        self("v_and_b32 v%d, 1, v%d" % (170, V_G))
        self("v_lshlrev_b32 v%d, 9, v%d" % (170, 170))
        self("v_lshrrev_b32 v%d, 1, v%d" % (171, V_G))
        self("v_lshl_add_u32 v%d, v%d, 4, v%d" % (170, 171, 170))
        self("v_lshl_add_u32 v%d, v%d, 5, v%d" % (sa, V_L15, 170))
        self("v_add_u32 v%d, s3, v%d" % (sa, sa))
        self("v_mov_b32 v170, s%d" % S_DVAL)
        self("v_lshlrev_b32 v171, 4, v%d" % V_LANE)
        self.vm_wait("u")
        self.stamp(7)
        self.bg_add(loadsB(0, 0)); self.bg_flush()
        for tau in range(8):
            buf = tau & 1
            self.lg_wait_all()
            if tau < 7:
                la, lb = loadsA(tau + 1, buf ^ 1), loadsB(tau + 1, buf ^ 1)
                for x, y in zip(la, lb): self.bg_add([x, y])
            n2 = self.o.get("w2conv", 70)
            f0, f1 = min(n2, 10 * tau), min(n2, 10 * tau + 10)
            self.bg_add(self.w2_items(f0, f1, 171))
            pairs = sorted([(i, be - i) for be in range(8) for i in range(be + 1)])
            first = set()
            for kk, (i, m) in enumerate(pairs):
                be = i + m
                c = vr(ACC + 4 * be, 4) if (tau > 0 or be in first) else "0"
                first.add(be)
                self("v_mfma_f32_16x16x32_bf16 %s, %s, %s, %s" % (vr(ACC + 4 * be, 4), vr(FA[buf] + 4 * i, 4), vr(FB[buf] + 4 * m, 4), c))
                self.bg_step(1)
            self.bg_flush()
        self.stamp(8)
        UQ = 36
        for b in range(8):
            self.lg("ds_read_b64 %s, v%d offset:%d" % (vr(UQ + 2 * b, 2), ua, 3584 - 512 * b), "uq")
        self.lg_wait_all()
        U, t, O = 56, 60, 64
        for b in range(8):
            d0, d1 = UQ + 2 * b, UQ + 2 * b + 1
            A = ACC + 4 * b
            self("v_and_b32 v%d, s%d, v%d" % (U + 0, S_MASK, d1))
            self("v_lshlrev_b32 v%d, 16, v%d" % (U + 1, d1))
            self("v_and_b32 v%d, s%d, v%d" % (U + 2, S_MASK, d0))
            self("v_lshlrev_b32 v%d, 16, v%d" % (U + 3, d0))
            self("v_pk_mul_f32 %s, %s, v[170:171] op_sel_hi:[1,0]" % (vr(U, 2), vr(U, 2)))
            self("v_pk_mul_f32 %s, %s, v[170:171] op_sel_hi:[1,0]" % (vr(U + 2, 2), vr(U + 2, 2)))
            self.rnd_pair(U, t); self.rnd_pair(U + 2, t + 1)
            self.rnd_pair(A, t); self.rnd_pair(A + 2, t + 1)
            self("v_pk_add_f32 %s, %s, %s" % (vr(A, 2), vr(A, 2), vr(U, 2)))
            self("v_pk_add_f32 %s, %s, %s" % (vr(A + 2, 2), vr(A + 2, 2), vr(U + 2, 2)))
            o = O + 2 * b
            self("v_cvt_pk_bf16_f32 v%d, v%d, v%d" % (o, A, A + 1))
            self("v_cvt_pk_bf16_f32 v%d, v%d, v%d" % (o + 1, A + 2, A + 3))
            if b & 1:
                self("v_permlane16_swap_b32 v%d, v%d" % (o - 2, o))
                self("v_permlane16_swap_b32 v%d, v%d" % (o - 1, o + 1))
                self("global_store_dwordx4 v%d, %s, s[%d:%d] offset:%d sc0 sc1" % (sa, vr(o - 2, 4), P_WS, P_WS + 1, 512 * (b - 1)))
        self("s_branch %s" % Ldone)
        self("%s:" % Lskip)
        self("v_lshlrev_b32 v171, 4, v%d" % V_LANE)
        n2 = self.o.get("w2conv", 70)
        for f0 in range(0, n2, 35):
            self.bg_add(self.w2_items(f0, min(n2, f0 + 35), 171)); self.bg_flush()
            self("s_waitcnt vmcnt(20)")
        self("%s:" % Ldone)
        self.vmq = []; self.lgq = []

    def weights_prefetch(self):
        a, d = 174, 190
        self.addr_pair(S_TMPP, P_WS, WS_PKFLAG)
        self("v_lshlrev_b32 v%d, 5, v%d" % (a, V_LANE))
        self.poll_pairs(S_TMPP, a, 1, 0, 176 + 0, npair=4) if False else None
        self.poll_pairs(S_TMPP, a, 1, 0, 4, npair=4)
        self.stamp(40)
        for base in (WS_W1P, WS_W2P):
            self.srd(SRD_A, P_WS, WP_SZ, const=base)
            self("s_mul_i32 s3, s%d, 69120" % S_J)
            self("v_lshlrev_b32 v%d, 7, v%d" % (a, V_LANE))
            self("v_add_u32 v%d, s3, v%d" % (a, a))
            for i in range(9):
                if i == 8: self.exec_set("0xfffffff")
                self("buffer_load_dword v%d, v%d, s[%d:%d], 0 offen" % (d, a, SRD_A, SRD_A + 3))
                if i < 8: self("v_add_u32 v%d, 8192, v%d" % (a, a))
            self.exec_restore()

    def w1_dma(self, its):
        self.srd(SRD_B, P_WS, WP_SZ, const=WS_W1P)
        a = 163
        self("v_lshlrev_b32 v%d, 4, v%d" % (a, V_LANE))
        so, lo = S_T0, S_T0 + 1
        self("s_mul_i32 s%d, s%d, 108" % (so, S_W))
        self("s_add_u32 s%d, s%d, s%d" % (so, so, S_UOFF))
        self("s_lshl_b32 s%d, s%d, 10" % (so, so))
        self("s_mul_i32 s%d, s%d, 7168" % (lo, S_W))
        for it in its:
            L = None
            if it == 6:
                L = self.label("L_w1l")
                self("s_cmp_eq_u32 s%d, 2" % S_W)
                self("s_cbranch_scc1 %s" % L)
            self("s_add_u32 m0, s%d, %d" % (lo, LDS_W1 + it * 3 * 7168))
            self("s_add_u32 s3, s%d, %d" % (so, it * 3 * 108 * 1024))
            for i in range(4):
                self("buffer_load_dwordx4 v%d, s[%d:%d], s3 offen offset:%d lds" % (a, SRD_B, SRD_B + 3, 1024 * i))
            self("s_add_u32 m0, s%d, %d" % (lo, LDS_W1 + it * 3 * 7168 + 4096))
            self("s_add_u32 s3, s3, 4096")
            for i in range(3):
                self("buffer_load_dwordx4 v%d, s[%d:%d], s3 offen offset:%d lds" % (a, SRD_B, SRD_B + 3, 1024 * i))
            if L: self("%s:" % L)
    def w2_setup(self):
        self.srd(SRD_W2, P_WS, WP_SZ, const=WS_W2P)
        self("s_mul_i32 s3, s%d, %d" % (S_W, 14 * 40))
        self("s_mul_i32 s%d, s%d, 5" % (S_T0, S_CS))
        self("s_add_u32 s3, s3, s%d" % S_T0)
        self("s_lshl_b32 s%d, s3, 10" % S_W2B)
    def w2_items(self, f0, f1, vlane16):
        it = []
        last = None
        for f in range(f0, f1):
            s, i = divmod(f, 5)
            key = (s, i == 4)
            if key != last:
                it.append("s_add_u32 s61, s%d, %d" % (S_W2B, s * 40 * 1024 + (4096 if i == 4 else 0)))
                last = key
            it.append(("vm", "buffer_load_dwordx4 %s, v%d, s[%d:%d], s61 offen offset:%d" % (w2reg(f), vlane16, SRD_W2, SRD_W2 + 3, 0 if i == 4 else 1024 * i), "w2"))
        return it

    def post_conv(self):
        QN = V_CS
        self.wait_all()
        self("s_barrier")
        self.stamp(10)
        L = self.if_wave(3)
        self("s_lshl_b32 s%d, s%d, 8" % (S_T0, S_G))
        self("s_lshl_b32 s%d, s%d, 3" % (S_T0 + 1, S_J))
        self("s_add_u32 s%d, s%d, s%d" % (S_T0, S_T0, S_T0 + 1))
        self("s_add_u32 s%d, s%d, %d" % (S_T0, S_T0, WS_YFLAG))
        self.flag_store(P_WS, S_T0, 1, device=True)
        self.close(L)
        self.row_stats_issue(0, 60)
        c1, c2 = self.o.get("w1c1", 4), self.o.get("w1c2", 5)
        L = self.if_wave(3, eq=False)
        self.w1_dma(range(0, c1))
        self.close(L)
        self.stamp(11)
        La, Lb = self.label("L_qa"), self.label("L_qb")
        self("s_cmp_eq_u32 s%d, 3" % S_W)
        self("s_cbranch_scc1 %s" % La)
        self("s_waitcnt vmcnt(%d)" % (7 * c1))
        self("s_branch %s" % Lb)
        self("%s:" % La)
        self("s_waitcnt vmcnt(0)")
        self("%s:" % Lb)
        self.vmq = []
        self.row_stats_validate(0, 60)
        self.row_stats_finish(60, 24, 26)
        XF, d, t = 4, 28, 30
        self.unpack_tile(XF, V_X)
        for i in range(10):
            self("v_pk_add_f32 %s, %s, v[24:25] op_sel_hi:[1,0] neg_lo:[0,1] neg_hi:[0,1]" % (vr(d, 2), vr(XF + 2 * i, 2)))
            self.rnd_pair(d, t)
            self("v_pk_mul_f32 %s, %s, v[26:27] op_sel_hi:[1,0]" % (vr(d, 2), vr(d, 2)))
            self("v_cvt_pk_bf16_f32 v%d, v%d, v%d" % (QN + i, d, d + 1))
        Ly = self.if_wave(3)
        self.addr_pair(S_TMPP, P_WS, WS_YFLAG)
        self("s_lshl_b32 s3, s%d, 8" % S_CS)
        self("s_lshl_b32 s%d, s%d, 8" % (S_T0, S_G))
        self("v_mov_b32 v181, s3")
        self("v_mov_b32 v180, s%d" % S_T0)
        self("v_cmp_gt_u32 vcc, 32, v%d" % V_LANE)
        self("v_cndmask_b32 v181, v180, v181, vcc")
        self("v_and_b32 v180, 31, v%d" % V_LANE)
        self("v_lshl_add_u32 v180, v180, 3, v181")
        self.poll_pairs(S_TMPP, 180, 1, 0, 176)
        self.stamp(41)
        self("s_mul_i32 s3, s%d, %d" % (S_CS, 80 * 4096))
        self("s_lshl_b32 s%d, s%d, 9" % (S_T0, S_G))
        self("s_add_u32 s3, s3, s%d" % S_T0)
        self("s_lshl_b32 s%d, s%d, 7" % (S_T0, S_RB))
        self("s_add_u32 s3, s3, s%d" % S_T0)
        self.addr_pair(S_TMPP, P_WS, WS_YT, 3)
        a, b = 164, 165
        self("v_lshrrev_b32 v%d, 3, v%d" % (a, V_LANE))
        self("v_lshlrev_b32 v%d, 12, v%d" % (a, a))
        self("v_and_b32 v%d, 7, v%d" % (b, V_LANE))
        self("v_lshl_add_u32 v%d, v%d, 4, v%d" % (a, b, a))
        for k in range(10):
            self("s_mov_b32 m0, %d" % (LDS_SCR + 1024 * k))
            self("v_add_u32 v%d, %d, v%d" % (b, 8 * 4096 * k, a))
            self("global_load_lds_dwordx4 v%d, s[%d:%d]" % (b, S_TMPP, S_TMPP + 1))
        self("s_waitcnt vmcnt(0)")
        self.close(Ly)
        self("s_barrier")
        self.stamp(12)
        L = self.if_wave(3, eq=False)
        self.w1_dma(range(c1, c2))
        self.close(L)
        a, b = 164, 165
        self("v_bfe_u32 v%d, v%d, 2, 2" % (a, V_LANE))
        self("v_lshl_add_u32 v%d, v%d, 2, v%d" % (a, V_G, a))
        self("v_lshlrev_b32 v%d, 7, v%d" % (a, a))
        self("v_and_b32 v%d, 3, v%d" % (b, V_LANE))
        self("v_lshl_add_u32 v%d, v%d, 3, v%d" % (a, b, a))
        self("s_lshl_b32 s3, s%d, 5" % S_W)
        self("s_add_u32 s3, s3, %d" % LDS_SCR)
        self("v_add_u32 v%d, s3, v%d" % (a, a))
        for u in range(5):
            self.lg("ds_read_b64_tr_b16 %s, v%d offset:%d" % (vr(V_Y + 2 * u, 2), a, 16 * 128 * u), "ytr")
        self.xf_store_setup(S_XO1)
        yf, qf = 32, 34
        self.lg_wait_all()
        for i in range(10):
            self.unpack(yf, V_Y + i)
            self.unpack(qf, QN + i)
            self("v_pk_mul_f32 %s, %s, %s" % (vr(d, 2), vr(yf, 2), vr(qf, 2)))
            self.rnd_pair(d, t)
            self("v_pk_add_f32 %s, %s, %s" % (vr(XF + 2 * i, 2), vr(XF + 2 * i, 2), vr(d, 2)))
            self("v_cvt_pk_bf16_f32 v%d, v%d, v%d" % (V_X + i, XF + 2 * i, XF + 2 * i + 1))
            self.unpack(XF + 2 * i, V_X + i)
        self.xf_store()
        self.tile_stats(XF, 1, 28)

    def xf_store_setup(self, ws_off):
        self("s_lshl_b32 s3, s%d, 4" % S_G)
        self("s_lshl_b32 s%d, s%d, 2" % (S_T0, S_RB))
        self("s_add_u32 s3, s3, s%d" % S_T0)
        self("s_add_u32 s3, s3, s%d" % S_W)
        self("s_mul_i32 s3, s3, %d" % (20 * 1024))
        self("s_add_u32 s3, s3, s%d" % ws_off)
        a = 170
        self("v_lshlrev_b32 v%d, 4, v%d" % (a, V_LANE))
        self("v_add_u32 v%d, s3, v%d" % (a, a))
        self("s_mul_i32 s%d, s%d, 5" % (S_T0, S_CS))
        for u in range(5):
            self("s_add_u32 s%d, s%d, %d" % (S_T0 + 1, S_T0, u))
            self("s_lshr_b32 s%d, s%d, 1" % (S_T0 + 2, S_T0 + 1))
            self("s_lshl_b32 s%d, s%d, 10" % (S_T0 + 2, S_T0 + 2))
            self("s_and_b32 s%d, s%d, 1" % (S_T0 + 1, S_T0 + 1))
            self("s_lshl_b32 s%d, s%d, 3" % (S_T0 + 1, S_T0 + 1))
            self("s_add_u32 s%d, s%d, s%d" % (S_T0 + 1, S_T0 + 1, S_T0 + 2))
            self("v_add_u32 v%d, s%d, v%d" % (165 + u, S_T0 + 1, a))
    def xf_store(self):
        Lo, Ld = self.label("L_xo"), self.label("L_xd")
        p = "s[%d:%d]" % (P_WS, P_WS + 1)
        x4 = lambda u: "global_store_dwordx4 v%d, %s, %s" % (165 + u, vr(V_X + 2 * u, 4), p)
        x2 = lambda u: "global_store_dwordx2 v%d, %s, %s" % (165 + u, vr(V_X + 2 * u, 2), p)
        self("s_bitcmp1_b32 s%d, 0" % S_CS)
        self("s_cbranch_scc1 %s" % Lo)
        self.handoff_stores([x4(0), x4(2), x2(4)], record=False)
        self("s_branch %s" % Ld)
        self("%s:" % Lo)
        self.handoff_stores([x2(0), x4(1), x4(3)], record=False)
        self("%s:" % Ld)
        self.vmq.extend(["xf"] * 3)

    def mixer_update(self, m, rs, xf, tmp):
        yf, d = tmp, tmp + 2
        for i in range(10):
            X = xf + 2 * i
            self.unpack(yf, V_Y + i)
            self("v_pk_add_f32 %s, %s, %s op_sel_hi:[1,0] neg_lo:[0,1] neg_hi:[0,1]" % (vr(d, 2), vr(X, 2), vr(m, 2)))
            self("v_pk_mul_f32 %s, %s, %s op_sel_hi:[1,0]" % (vr(d, 2), vr(d, 2), vr(rs, 2)))
            self("v_pk_fma_f32 %s, %s, %s, %s" % (vr(X, 2), vr(d, 2), vr(yf, 2), vr(X, 2)))
            self("v_cvt_pk_bf16_f32 v%d, v%d, v%d" % (V_X + i, X, X + 1))
            self.unpack(X, V_X + i)

    def colsum(self):
        a, ones, acc = 164, 100, 104
        FR = [112, 120, 128, 136]
        for i in range(4): self("v_mov_b32 v%d, 0x3f803f80" % (ones + i))
        self("v_lshlrev_b32 v%d, 4, v%d" % (a, V_LANE))
        self("s_lshl_b32 s3, s%d, 11" % S_W)
        self("v_add_u32 v%d, s3, v%d" % (a, a))
        self("v_add_u32 v%d, %d, v%d" % (a + 1, 8 * 7168, a))
        self("v_add_u32 v%d, %d, v%d" % (a + 2, 16 * 7168, a))
        def loads(t):
            for i in range(2):
                self.lg("ds_read_b128 %s, v%d offset:%d" % (vr(FR[t % 4] + 4 * i, 4), a + (t // 8), (t % 8) * 7168 + 1024 * i), "cs%d" % t)
        for t in range(3): loads(t)
        for t in range(20):
            if t + 3 < 20: loads(t + 3)
            self.lg_wait("cs%d" % t)
            for i in range(2):
                c = vr(acc + 4 * i, 4) if t else "0"
                self("v_mfma_f32_16x16x32_bf16 %s, %s, %s, %s" % (vr(acc + 4 * i, 4), vr(FR[t % 4] + 4 * i, 4), vr(ones, 4), c))
        b = 144
        self("v_lshlrev_b32 v%d, 4, v%d" % (b, V_G))
        self("s_lshl_b32 s3, s%d, 7" % S_W)
        self("s_add_u32 s3, s3, %d" % LDS_CSX)
        self("v_add_u32 v%d, s3, v%d" % (b, b))
        self("v_cmp_eq_u32 vcc, 0, v%d" % V_L15)
        self("s_and_saveexec_b64 s[%d:%d], vcc" % (S_SAVE, S_SAVE + 1))
        self("ds_write_b128 v%d, %s" % (b, vr(acc, 4)))
        self("ds_write_b128 v%d, %s offset:64" % (b, vr(acc + 4, 4)))
        self.exec_restore()
        self.lg_wait_all()
    def colsum_fetch(self):
        b = 144
        self("v_lshlrev_b32 v%d, 4, v%d" % (b, V_G))
        self("v_add_u32 v%d, %d, v%d" % (b, LDS_CSX, b))
        for u in range(7):
            self.lg("ds_read_b128 %s, v%d offset:%d" % (vr(V_CS + 4 * u, 4), b, 64 * u), "cs")

    G1_ACC = 4; G1_AF = [60, 88]; G1_XR = 116; G1_DEPTH = 7; G1_LA = 172; G1_XA = 183; G1_ST = 174; G1_L16 = 182
    def g1_aloads(self, t, buf):
        return [("lg", "ds_read_b128 %s, v%d offset:%d" % (vr(self.G1_AF[buf] + 4 * i, 4), self.G1_LA, 1024 * i), "a%d" % t) for i in range(7)]
    def g1_setup(self, xf_off, hf_off):
        self("s_lshl_b32 s3, s%d, 4" % S_G)
        self("s_lshl_b32 s%d, s%d, 3" % (S_T0, S_RT))
        self("s_add_u32 s3, s3, s%d" % S_T0)
        self("s_lshl_b32 s%d, s%d, 1" % (S_T0, S_W))
        self("s_add_u32 s%d, s3, s%d" % (S_RU0, S_T0))
        self("s_mul_i32 s3, s%d, %d" % (S_RU0, 20 * 1024))
        self("s_add_u32 s3, s3, s%d" % xf_off)
        self.addr_pair(S_XFB, P_WS, 0, 3)
        self.addr_pair(S_TMPQ, S_XFB, 20 * 1024)
        self("v_lshlrev_b32 v%d, 4, v%d" % (self.G1_XA, V_LANE))
        self("v_lshlrev_b32 v%d, 4, v%d" % (self.G1_L16, V_LANE))
        self("s_mul_i32 s%d, s%d, %d" % (S_T0 + 3, S_RU0, 54 * 1024))
        self("s_add_u32 s%d, s%d, %s" % (S_T0 + 3, S_T0 + 3, hf_off))
        for i in range(7):
            self("s_add_u32 s%d, s%d, %d" % (S_T0 + 1, S_UOFF, i))
            self("s_lshr_b32 s%d, s%d, 1" % (S_T0 + 2, S_T0 + 1))
            self("s_lshl_b32 s%d, s%d, 10" % (S_T0 + 2, S_T0 + 2))
            self("s_and_b32 s%d, s%d, 1" % (S_T0 + 1, S_T0 + 1))
            self("s_lshl_b32 s%d, s%d, 3" % (S_T0 + 1, S_T0 + 1))
            self("s_add_u32 s%d, s%d, s%d" % (S_T0 + 1, S_T0 + 1, S_T0 + 2))
            self("s_add_u32 s%d, s%d, s%d" % (S_T0 + 1, S_T0 + 1, S_T0 + 3))
            self("s_add_u32 s%d, s%d, s%d" % (72 + 2 * i, P_WS, S_T0 + 1))
            self("s_addc_u32 s%d, s%d, 0" % (73 + 2 * i, P_WS + 1))
        self("v_lshlrev_b32 v%d, 4, v%d" % (self.G1_LA, V_LANE))
        if LDS_W1: self("v_add_u32 v%d, %d, v%d" % (self.G1_LA, LDS_W1, self.G1_LA))
        for x in self.g1_aloads(0, 0): self.lg(x[1], x[2])
        self("v_add_u32 v%d, 7168, v%d" % (self.G1_LA, self.G1_LA))
    def g1_main(self, statbuf, sb=None, w2range=None, ldf='', pretouch=False, hwt=False):
        ACC, AF, XR, DEPTH, la, xa, ST = self.G1_ACC, self.G1_AF, self.G1_XR, self.G1_DEPTH, self.G1_LA, self.G1_XA, self.G1_ST
        def xload(t):
            for rho in range(2):
                base = S_XFB if rho == 0 else S_TMPQ
                d = XR + ((t % DEPTH) * 2 + rho) * 4
                self.vm("global_load_dwordx4 %s, v%d, s[%d:%d] offset:%d %s" % (vr(d, 4), xa, base, base + 1, (t % 4) * 1024, ldf), "x%d" % t)
            if t % 4 == 3: self("v_add_u32 v%d, 4096, v%d" % (xa, xa))
        for t in range(3): xload(t)
        sa = 59
        self("s_lshl_b32 s3, s%d, 11" % S_RU0)
        self("s_add_u32 s3, s3, %d" % (WS_STAT + statbuf * STAT_SZ))
        self("v_lshlrev_b32 v%d, 7, v%d" % (sa, V_L15))
        self("v_lshl_add_u32 v%d, v%d, 5, v%d" % (sa, V_G, sa))
        self("v_add_u32 v%d, s3, v%d" % (sa, sa))
        for rho in range(2):
            for k in range(2):
                self.vm("global_load_dwordx2 %s, v%d, s[%d:%d] offset:%d" % (vr(ST + 4 * rho + 2 * k, 2), sa, P_WS, P_WS + 1, 2048 * rho + 16 * k), "st")
        for t in range(3, DEPTH): xload(t)
        if pretouch:
            self("s_mul_i32 s3, s%d, %d" % (S_RU0, 54 * 1024))
            self("s_lshr_b32 s%d, s%d, 1" % (S_T0, S_UOFF))
            self("s_lshl_b32 s%d, s%d, 10" % (S_T0, S_T0))
            self("s_add_u32 s3, s3, s%d" % S_T0)
            self("s_and_b32 s%d, s%d, 1" % (S_T0, S_UOFF))
            self("s_lshl_b32 s%d, s%d, 3" % (S_T0, S_T0))
            self("s_add_u32 s3, s3, s%d" % S_T0)
            self("s_add_u32 s3, s3, %d" % WS_HF1)
            self("v_lshrrev_b32 v57, 5, v%d" % V_LANE)
            self("v_mul_u32_u24 v57, %d, v57" % (54 * 1024))
            self("v_and_b32 v58, 31, v%d" % V_LANE)
            self("v_lshl_add_u32 v58, v58, 7, v57")
            self("v_add_u32 v58, s3, v58")
            Lp = self.label("L_pth")
            self("s_cmp_lg_u32 s%d, 0" % S_MODE)
            self("s_cbranch_scc1 %s" % Lp)
            self("global_store_dword v58, v58, s[%d:%d]" % (P_WS, P_WS + 1))
            self("%s:" % Lp)
        w2items = self.w2_items(w2range[0], w2range[1], self.G1_L16) if w2range else []
        nper = -(-len(w2items) // 16)
        for t in range(20):
            if t == 1 and sb: self.stamp(sb)
            buf = t & 1
            nxt = self.g1_aloads(t + 1, buf ^ 1) if t < 19 else []
            self.lg_wait_all()
            self.vm_wait("x%d" % t)
            self.bg_add(nxt)
            if t >= 1:
                self.bg_add(w2items[:nper]); w2items = w2items[nper:]
            nbg = len(self.bgq); done = 0
            k = 0
            for i in range(7):
                for rho in range(2):
                    acc = ACC + (rho * 7 + i) * 4
                    c = vr(acc, 4) if t else "0"
                    self("v_mfma_f32_16x16x32_bf16 %s, %s, %s, %s" % (vr(acc, 4), vr(AF[buf] + 4 * i, 4), vr(XR + ((t % DEPTH) * 2 + rho) * 4, 4), c))
                    k += 1
                    want = min(nbg, -(-nbg * k // 11))
                    self.bg_step(want - done); done = want
            self.bg_flush()
            if t < 19: self("v_add_u32 v%d, 7168, v%d" % (la, la))
            if t + DEPTH < 20: xload(t + DEPTH)
        if sb: self.stamp(sb + 1)
        M = [60, 64]; RS = [62, 66]
        self.vm_wait("st")
        for rho in range(2):
            for i in range(4): self("v_mov_b32 v%d, v%d" % (72 + i, ST + 4 * rho + i))
            self.row_stats_finish(72, M[rho], RS[rho])
        ha = 80
        self("v_add_u32 v%d, %d, v%d" % (ha, 54 * 1024, self.G1_L16))
        HA = [self.G1_L16, ha]
        lines = []
        O = 100
        for rho in range(2):
            for i in range(7):
                acc = ACC + (rho * 7 + i) * 4
                for p in range(2):
                    A = acc + 2 * p; C = V_CS + 4 * i + 2 * p
                    self("v_pk_fma_f32 %s, %s, %s, %s op_sel_hi:[1,0,1] neg_lo:[0,1,0] neg_hi:[0,1,0]" % (vr(A, 2), vr(C, 2), vr(M[rho], 2), vr(A, 2)))
                    self("v_pk_mul_f32 %s, %s, %s op_sel_hi:[1,0]" % (vr(A, 2), vr(A, 2), vr(RS[rho], 2)))
                    o = O + (rho * 7 + i) * 2 + p
                    self("v_cvt_pk_bf16_f32 v%d, v%d, v%d" % (o, A, A + 1))
                    self("v_pk_max_i16 v%d, v%d, 0" % (o, o))
        def st(rho, i, n):
            return "global_store_dwordx%d v%d, %s, s[%d:%d]" % (n, HA[rho], vr(O + (rho * 7 + i) * 2, n), 72 + 2 * i, 73 + 2 * i)
        Lo, Ld = self.label("L_ho"), self.label("L_hd")
        self("s_bitcmp1_b32 s%d, 0" % S_UOFF)
        self("s_cbranch_scc1 %s" % Lo)
        def emit(lines):
            if hwt:
                for l in lines: self(l + " sc0 sc1")
            else: self.handoff_stores(lines, record=False)
        emit([st(rho, i, 4 if i < 6 else 2) for rho in range(2) for i in (0, 2, 4, 6)])
        self("s_branch %s" % Ld)
        self("%s:" % Lo)
        emit([st(rho, i, 4 if i > 0 else 2) for rho in range(2) for i in (0, 1, 3, 5)])
        self("%s:" % Ld)
        self.vmq.extend(["h"] * 8)

    G2_ACC = [4, 24]; G2_HR = 44; G2_HA = 100; G2_RA = 104; G2_TMP = 108; G2_SUM = 128
    def g2_setup(self, hf_off):
        ha, ra = self.G2_HA, self.G2_RA
        for s in range(14):
            self("s_mul_i32 s3, s%d, 14" % S_W)
            self("s_add_u32 s3, s3, %d" % s)
            self("s_min_u32 s3, s3, 53")
            self("s_lshl_b32 s%d, s3, 10" % (S_HSTEP + s))
        self.srd(SRD_A, P_WS, 0x10000000 - self.o.get('wsbase', 0))
        for k in range(4):
            self("s_add_u32 s3, s%d, %d" % (S_W, 1 + k))
            self("s_and_b32 s3, s3, 3")
            self("s_mul_i32 s%d, s3, 5120" % (S_T0 + 1))
            self("s_lshl_b32 s%d, s%d, 4" % (S_T0, S_G))
            self("s_add_u32 s3, s3, s%d" % S_T0)
            self("s_lshl_b32 s%d, s%d, 2" % (S_T0, S_RB))
            self("s_add_u32 s3, s3, s%d" % S_T0)
            self("s_mul_i32 s3, s3, %d" % (54 * 1024))
            self("s_add_u32 s3, s3, %s" % hf_off)
            self("v_lshlrev_b32 v%d, 4, v%d" % (ha + k, V_LANE))
            self("v_add_u32 v%d, s3, v%d" % (ha + k, ha + k))
            self("v_lshlrev_b32 v%d, 4, v%d" % (ra + k, V_LANE))
            self("s_add_u32 s3, s%d, %d" % (S_T0 + 1, LDS_SCR))
            self("v_add_u32 v%d, s3, v%d" % (ra + k, ra + k))
    def g2_main(self, sb=None, ldf=''):
        ACC, HR, ha, ra, TMP, SUM = self.G2_ACC, self.G2_HR, self.G2_HA, self.G2_RA, self.G2_TMP, self.G2_SUM
        def hload(p):
            k, s = divmod(p, 14)
            self.vm("buffer_load_dwordx4 %s, v%d, s[%d:%d], s%d offen %s" % (vr(HR + 4 * s, 4), ha + k, SRD_A, SRD_A + 3, S_HSTEP + s, ldf), "h%d" % p)
        for p in range(14): hload(p)
        if sb: self.stamp(sb)
        for k in range(4):
            acc = ACC[k & 1]; prev = ACC[(k & 1) ^ 1]
            for s in range(14):
                p = 14 * k + s
                if k > 0:
                    if s == 1:
                        self.bg_add([("lg", "ds_write_b128 v%d, %s offset:%d" % (ra + k - 1, vr(prev + 4 * i, 4), 1024 * i), "rw") for i in range(5)])
                    if s == 4:
                        self.bg_flush(); self.lg_wait_all(); self("s_barrier")
                        self.bg_add([("lg", "ds_read_b128 %s, v%d offset:%d" % (vr(TMP + 4 * i, 4), ra + 3, 1024 * i), "rr") for i in range(5)])
                    if s == 8:
                        self.bg_flush(); self.lg_wait_all(); self("s_barrier")
                        if k == 1:
                            self.bg_add(["v_mov_b32 v%d, v%d" % (SUM + j, TMP + j) for j in range(20)])
                        else:
                            self.bg_add(["v_pk_add_f32 %s, %s, %s" % (vr(SUM + j, 2), vr(SUM + j, 2), vr(TMP + j, 2)) for j in range(0, 20, 2)])
                self.vm_wait("h%d" % p)
                for i in range(5):
                    c = vr(acc + 4 * i, 4) if s > 0 else "0"
                    self("v_mfma_f32_16x16x32_bf16 %s, %s, %s, %s" % (vr(acc + 4 * i, 4), w2reg(s * 5 + i), vr(HR + 4 * s, 4), c))
                    self.bg_step(1)
                if p + 14 < 56: hload(p + 14)
            self.bg_flush()
        if sb: self.stamp(sb + 1)
        acc = ACC[1]
        for j in range(0, 20, 2):
            self("v_pk_add_f32 %s, %s, %s" % (vr(SUM + j, 2), vr(SUM + j, 2), vr(acc + j, 2)))
        return SUM

    def residual_add(self, RES, XF):
        t = 178
        self.unpack_tile(XF, V_X)
        for i in range(10):
            self.rnd_pair(RES + 2 * i, t)
            self("v_pk_add_f32 %s, %s, %s" % (vr(XF + 2 * i, 2), vr(XF + 2 * i, 2), vr(RES + 2 * i, 2)))
            self("v_cvt_pk_bf16_f32 v%d, v%d, v%d" % (V_X + i, XF + 2 * i, XF + 2 * i + 1))
            self.unpack(XF + 2 * i, V_X + i)

    def store_out(self):
        t2 = 164
        self.rowbase()
        self("v_add_u32 v%d, s3, v%d" % (t2, V_L15))
        self("v_mul_u32_u24 v%d, 1280, v%d" % (t2, t2))
        self("s_mul_i32 s3, s%d, 160" % S_CS)
        self("v_lshlrev_b32 v%d, 3, v%d" % (t2 + 1, V_G))
        self("v_add3_u32 v%d, v%d, v%d, s3" % (t2, t2, t2 + 1))
        for u in range(5):
            self.vm("global_store_dwordx2 v%d, %s, s[%d:%d] offset:%d %s" % (t2, vr(V_X + 2 * u, 2), P_OUT, P_OUT + 1, 32 * u, self.o.get("outf", "")), "out")

    def epoch_update(self):
        L = self.label("L_ep")
        self("s_add_u32 s3, s2, s%d" % S_W)
        self("s_cmp_lg_u32 s3, 0")
        self("s_cbranch_scc1 %s" % L)
        self("s_sub_u32 s3, s%d, 0x%x" % (S_TAG, TAG0))
        self("s_add_u32 s3, s3, 16")
        self("v_mov_b32 v176, s3")
        self("v_mov_b32 v177, %d" % WS_EPOCH)
        self.exec_set("1")
        self("global_store_dword v177, v176, s[%d:%d] sc0 sc1" % (P_WS, P_WS + 1))
        self.exec_restore()
        self("%s:" % L)

    def build(self):
        o = self.o
        self.prologue()
        if o.get("stamps"): self("v_mov_b32 v%d, 0" % V_STAMP)
        self.stamp(0)
        self.repack_issue()
        self.prep_loads()
        self.stamp(38)
        self.repack_finish()
        self.stamp(1)
        self.prep_compute()
        self.stamp(2)
        self.mode_check()
        self.vm_wait("rpst")
        self.lg_wait_all()
        self("s_barrier")
        L = self.if_wave(3)
        self("s_lshl_b32 s%d, s%d, 8" % (S_T0, S_G))
        self("s_lshl_b32 s%d, s%d, 3" % (S_T0 + 1, S_J))
        self("s_add_u32 s%d, s%d, s%d" % (S_T0, S_T0, S_T0 + 1))
        self("s_add_u32 s%d, s%d, %d" % (S_T0, S_T0, WS_PKFLAG))
        self.flag_store(P_WS, S_T0, 1, device=True)
        self.close(L)
        self.mode_fetch()
        self.stamp(3)
        self.prep_store_ur()
        self.unpack_tile(124, V_X)
        self.tile_stats(124, 0, 144)
        self.stamp(4)
        self.barrier_arrive(1)
        self.build_kcopies()
        self.w2_setup()
        self.stamp(5)
        self.pk_wait()
        self.barrier_wait(1)
        self.stamp(6)
        self.vmq = []; self.lgq = []
        self.conv()
        self.stamp(9)
        self.post_conv()
        self.stamp(13)
        c2 = o.get("w1c2", 5)
        L = self.if_wave(3, eq=False)
        self.w1_dma(range(c2, 7))
        self.close(L)
        self.barrier_arrive(2)
        n2 = o.get("w2conv", 70)
        self.colsum()
        self("s_barrier")
        self.colsum_fetch()
        self.stamp(14)
        self.g1_setup(S_XO1, str(WS_HF1))
        self.lg_wait_all()
        self.barrier_wait(2)
        self.stamp(15)
        self.g1_main(1, 16, w2range=(n2, 70) if n2 < 70 else None, pretouch=o.get('pt_h', 1), ldf='sc1', hwt=o.get('hwt', 0))
        self.stamp(18)
        self.barrier_arrive(3)
        self.g2_setup(str(WS_HF1))
        self.barrier_wait(3)
        self.stamp(21)
        RES = self.g2_main(22)
        self.stamp(24)
        XF = 4
        self.residual_add(RES, XF)
        self.tile_stats(XF, 2, 28)
        self.row_stats_issue(2, 60)
        self.xf_store_setup(S_XO3)
        self.stamp(25)
        self.vm_wait("rs")
        self.row_stats_validate(2, 60)
        self.stamp(26)
        self.row_stats_finish(60, 24, 26)
        self.mixer_update(24, 26, XF, 28)
        self.xf_store()
        self.tile_stats(XF, 3, 28)
        self.stamp(27)
        self.barrier_arrive(4)
        self.g1_setup(S_XO3, 's%d' % S_HO2)
        self.barrier_wait(4)
        self.stamp(28)
        self.g1_main(3, 29, ldf='sc1')
        self.stamp(31)
        self.barrier_arrive(5)
        self.g2_setup('s%d' % S_HO2)
        self.barrier_wait(5)
        if o.get("wbl2"):
            L = self.label("L_wb")
            self("s_lshl_b32 s3, s%d, 2" % S_J)
            self("s_add_u32 s3, s3, s%d" % S_W)
            self("s_cmp_lg_u32 s3, %d" % o.get("wbl2_who", 1))
            self("s_cbranch_scc1 %s" % L)
            self("buffer_wbl2 sc1")
            self("%s:" % L)
        self.stamp(32)
        RES = self.g2_main(33, ldf='sc1')
        self.stamp(35)
        self.residual_add(RES, 4)
        self.store_out()
        self.epoch_update()
        self.stamp(36)
        self("s_waitcnt vmcnt(0)")
        self.stamp(37)
        self.stamp_dump()
        if self.o.get("dbgtime"):
            L = self.label("L_dt")
            self("s_add_u32 s3, s%d, s%d" % (S_J, S_W))
            self("s_cmp_lg_u32 s3, 0")
            self("s_cbranch_scc1 %s" % L)
            self("s_memrealtime s[94:95]")
            self("s_memtime s[92:93]")
            self("s_waitcnt lgkmcnt(0)")
            self("s_sub_u32 s94, s94, s98")
            self("s_sub_u32 s92, s92, s100")
            self("v_mov_b32 v4, s94")
            self("v_mov_b32 v5, s92")
            self("s_lshl_b32 s3, s%d, 3" % S_G)
            self("v_mov_b32 v6, s3")
            self("s_mov_b64 exec, 1")
            self("global_store_dwordx2 v6, v[4:5], s[%d:%d]" % (P_DBG, P_DBG + 1))
            self("%s:" % L)
        self("s_waitcnt vmcnt(0)")
        self("s_branch L_end")
        self("L_abort:")
        self("L_end:")
        self("s_endpgm")

def make(opts):
    k = K(opts)
    k.build()
    body, added = k.text()
    hdr = open("interleave_layers__ssm_conv_h3__dense_activation_relu__prompt.s.ref").read().split("\n")
    head = [l for l in hdr if l.startswith(";") and "@launch" not in l and "Override launch" not in l and "grid=ceil" not in l][:13]
    txt = "\n".join(head) + "\n"
    txt += "; @launch grid=(256,1,1) block=(256,1,1) lds=%d\n" % LDS_TOTAL
    txt += '.amdgcn_target "amdgcn-amd-amdhsa--gfx950"\n.text\n.globl %s\n.p2align 8\n.type %s,@function\n%s:\n' % (KNAME, KNAME, KNAME)
    txt += body
    txt += """.section .rodata,"a"
.p2align 6
.amdhsa_kernel %s
  .amdhsa_next_free_vgpr 512
  .amdhsa_next_free_sgpr 102
  .amdhsa_accum_offset 256
  .amdhsa_group_segment_fixed_size 0
  .amdhsa_kernarg_size 96
  .amdhsa_user_sgpr_count 2
  .amdhsa_user_sgpr_kernarg_segment_ptr 1
  .amdhsa_system_sgpr_workgroup_id_x 1
.end_amdhsa_kernel
""" % KNAME
    return txt, added, len(k.ins)

if __name__ == "__main__":
    import argparse, json
    ap = argparse.ArgumentParser()
    ap.add_argument("-o", default="interleave_layers__ssm_conv_h3__dense_activation_relu__prompt.s")
    ap.add_argument("--opts", default="{}")
    a = ap.parse_args()
    txt, added, n = make(json.loads(a.opts))
    open(a.o, "w").write(txt)
    print("wrote", a.o, "instructions", n, "nop states added", added, "bytes", len(txt))
```

```python
import re

REG_RE = re.compile(r'\b([vas])(\d+)\b|\b([vas])\[(\d+):(\d+)\]|\b(vcc|exec|m0|scc)\b')

def regs_of(tok):
    out = []
    for m in REG_RE.finditer(tok):
        if m.group(1):
            out.append(m.group(1) + m.group(2))
        elif m.group(3):
            for i in range(int(m.group(4)), int(m.group(5)) + 1):
                out.append(m.group(3) + str(i))
        else:
            out.append(m.group(6))
    return out

TRANS = ("v_exp_", "v_log_", "v_rcp_", "v_rsq_", "v_sqrt_", "v_sin_", "v_cos_")

class Ins:
    __slots__ = ("nohaz", "text", "op", "kind", "wr", "rd", "mfma_c", "mfma_ab", "passes", "dpp", "nops", "is_label", "stdata", "lds_dma")
    def __init__(self, text):
        self.text = text
        self.is_label = False
        self.wr = set(); self.rd = set(); self.mfma_c = set(); self.mfma_ab = set()
        self.passes = 0; self.dpp = False; self.nops = 1; self.stdata = set(); self.lds_dma = False
        t = text.strip()
        nohaz = t.endswith("; nohaz")
        self.nohaz = nohaz
        if nohaz: t = t[:-len("; nohaz")].strip(); self.text = ("    " + t) if not t.endswith(":") else t
        if t.endswith(":") or t.startswith("."):
            self.is_label = t.endswith(":")
            self.op = ""; self.kind = "label" if self.is_label else "dir"; self.nops = 0
            return
        t = t.split(";")[0].strip()
        parts = t.split(None, 1)
        op = parts[0]; self.op = op
        rest = parts[1] if len(parts) > 1 else ""
        ops = []; depth = 0; cur = ""
        for ch in rest:
            if ch in "[(": depth += 1
            if ch in "])": depth -= 1
            if ch == "," and depth == 0:
                ops.append(cur.strip()); cur = ""
            else:
                cur += ch
        if cur.strip(): ops.append(cur.strip())
        R = lambda i: set(regs_of(ops[i].split()[0])) if i < len(ops) and ops[i] else set()
        allr = lambda i0: set(x for i in range(i0, len(ops)) for x in regs_of(ops[i].split()[0] if ops[i] else ""))
        if op == "s_nop":
            self.kind = "nop"; self.nops = int(ops[0], 0) + 1
        elif op.startswith("v_mfma"):
            self.kind = "mfma"
            self.wr = R(0); self.mfma_ab = R(1) | R(2); self.mfma_c = R(3)
            self.rd = self.mfma_ab | self.mfma_c
            self.passes = 8 if "32x32" in op else 4
        elif op.startswith("v_"):
            self.kind = "valu"
            self.dpp = ("_dpp" in op) or ("row_" in rest) or ("quad_perm" in rest) or ("wave_" in rest)
            if op.startswith("v_cmp"):
                self.wr = R(0); self.rd = allr(1)
                if op.startswith("v_cmpx"): self.wr |= {"exec"}
            elif op.startswith("v_permlane") and "swap" in op:
                self.wr = R(0) | R(1); self.rd = R(0) | R(1)
            elif op.startswith(("v_add_co", "v_sub_co", "v_subrev_co")):
                self.wr = R(0) | R(1); self.rd = allr(2)
            elif op.startswith(("v_addc_co", "v_subb_co")):
                self.wr = R(0) | R(1); self.rd = allr(2)
            elif op.startswith(("v_fmac", "v_mac", "v_dot2c", "v_pk_fmac")):
                self.wr = R(0); self.rd = allr(0)
            elif op.startswith("v_cndmask") and len(ops) == 3:
                self.wr = R(0); self.rd = allr(1) | {"vcc"}
            elif op.startswith("v_writelane"):
                self.wr = R(0); self.rd = allr(0)
            else:
                self.wr = R(0); self.rd = allr(1)
                if "dst_unused:UNUSED_PRESERVE" in rest or self.dpp: self.rd |= R(0)
            self.rd |= {"exec"}
        elif op.startswith("ds_"):
            self.kind = "ds"
            if op.startswith(("ds_read", "ds_bpermute", "ds_permute", "ds_swizzle")) or "_rtn" in op:
                self.wr = R(0); self.rd = allr(1)
            else:
                self.rd = allr(0); self.stdata = allr(1)
        elif op.startswith(("global_", "buffer_", "flat_")):
            self.kind = "vmem"
            is_lds = (" lds" in (" " + rest)) or "_lds_" in op
            self.lds_dma = is_lds
            if op in ("buffer_wbl2", "buffer_inv"):
                pass
            elif is_lds:
                self.rd = allr(0) | {"m0"}
            elif "load" in op:
                self.wr = R(0); self.rd = allr(1)
            elif "atomic" in op:
                if " sc0" in (" " + rest):
                    self.wr = R(0); self.rd = allr(1)
                else:
                    self.rd = allr(0)
            else:
                self.rd = allr(0)
                if op.startswith("global_"): data = R(1)
                else: data = R(0)
                self.stdata = data if ("x4" in op or "x3" in op) else set()
        elif op.startswith("s_"):
            self.kind = "salu"
            if op.startswith(("s_cmp", "s_bitcmp")):
                self.rd = allr(0); self.wr = {"scc"}
            elif op.startswith(("s_cbranch", "s_branch", "s_call", "s_setpc", "s_swappc")):
                self.kind = "branch"
            elif op in ("s_waitcnt", "s_barrier", "s_sleep", "s_setprio", "s_endpgm", "s_sethalt"):
                self.kind = "misc"
            elif op.startswith("s_load") or op.startswith("s_buffer_load") or op in ("s_memtime", "s_memrealtime"):
                self.kind = "smem"; self.wr = R(0); self.rd = allr(1)
            elif "saveexec" in op:
                self.wr = R(0) | {"exec"}; self.rd = allr(1) | {"exec"}
            else:
                self.wr = R(0); self.rd = allr(1)
        else:
            raise ValueError("unknown instruction: " + text)

def need_states(p, c):
    n = 0
    if p.kind == "valu":
        vw = set(r for r in p.wr if r[0] in "va" and r not in ("vcc",))
        sw = set(r for r in p.wr if (r[0] == "s" and r != "scc") or r == "vcc")
        if c.kind == "mfma" and vw & c.rd: n = max(n, 2)
        if c.kind == "vmem" and sw & c.rd: n = max(n, 5)
        if c.kind == "valu":
            if sw & c.rd:
                if c.op.startswith(("v_readlane", "v_writelane")): n = max(n, 4)
                else: n = max(n, 2)
            if c.op.startswith(("v_readlane", "v_readfirstlane")) and vw & c.rd: n = max(n, 1)
            if c.dpp and vw & c.rd: n = max(n, 2)
            if c.op.startswith("v_permlane") and vw & c.rd: n = max(n, 2)
            if p.op.startswith(TRANS) and vw & c.rd: n = max(n, 1)
            if ("sdwa" in p.op or "dst_sel" in p.text) and vw & (c.rd | c.wr): n = max(n, 1)
            if "exec" in p.wr: n = max(n, 4 if c.op.startswith(("v_readlane", "v_readfirstlane", "v_writelane", "v_permlane")) else (5 if c.dpp else 2))
        if c.kind == "mfma" and "exec" in p.wr: n = max(n, 4)
        if c.kind == "branch" and ("vcc" in p.wr) and "vcc" in c.op: n = max(n, 0)
    elif p.kind == "mfma":
        P = p.passes
        t_c_overlap = {4: 6, 8: 10}[P]; t_ab = {4: 8, 8: 12}[P]; t_war = {4: 3, 8: 7}[P]
        if c.kind == "mfma":
            if p.wr & c.mfma_ab: n = max(n, t_ab)
            if p.wr & c.mfma_c and not (p.wr == c.mfma_c and p.passes == c.passes): n = max(n, t_c_overlap)
            if p.wr & c.wr and not (p.wr == c.mfma_c): n = max(n, t_c_overlap)
        elif c.kind in ("valu", "vmem", "ds"):
            if p.wr & (c.rd | c.wr): n = max(n, t_ab)
            if c.kind == "valu" and p.mfma_c & c.wr: n = max(n, t_war)
    elif p.kind == "salu":
        if "m0" in p.wr and (c.lds_dma or "addtid" in c.op): n = max(n, 1)
        if "exec" in p.wr and c.kind == "valu" and c.dpp: n = max(n, 0)
    elif p.kind in ("vmem",):
        if p.stdata and c.kind == "valu" and p.stdata & c.wr: n = max(n, 2)
        if p.stdata and c.kind in ("vmem", "ds", "mfma") and p.stdata & c.wr: n = max(n, 1)
    elif p.kind == "ds":
        if p.stdata and len(p.stdata) >= 3 and c.kind == "valu" and p.stdata & c.wr: n = max(n, 2)
    return n

MAXW = 14
def fix_hazards(ins_list):
    out = []
    added = 0
    def pending_flush():
        need = 0; dist = 0
        for p in reversed(out):
            if p.kind in ("label", "dir"): continue
            w = 0
            if p.kind == "mfma": w = {4: 8, 8: 12}[p.passes]
            elif p.kind == "valu":
                if any((r[0] == "s" and r != "scc") or r == "vcc" for r in p.wr): w = 5
                else: w = 2
                if "exec" in p.wr: w = 5
            elif p.kind == "vmem" and p.stdata: w = 2
            elif p.kind == "salu" and "m0" in p.wr: w = 1
            need = max(need, w - dist)
            dist += p.nops
            if dist >= MAXW: break
        return need
    for c in ins_list:
        if c.kind in ("label", "branch"):
            nb = 0 if c.nohaz else pending_flush()
            while nb > 0:
                k = min(nb, 16); out.append(Ins("    s_nop %d" % (k - 1))); nb -= k; added += k
            out.append(c); continue
        if c.kind == "dir":
            out.append(c); continue
        need = 0; dist = 0
        for p in reversed(out):
            if p.kind == "label":
                if p.nohaz: continue
                break
            if p.kind == "dir": continue
            n = need_states(p, c)
            need = max(need, n - dist)
            dist += p.nops
            if dist >= MAXW: break
        while need > 0:
            k = min(need, 16); out.append(Ins("    s_nop %d" % (k - 1))); need -= k; added += k
        out.append(c)
    return out, added

class Gen:
    def __init__(self):
        self.ins = []
        self.uid = 0
        self.vmq = []
        self.lgq = []
    def __call__(self, s):
        for l in s.split("\n"):
            l = l.strip()
            if not l or l.startswith(";"): continue
            self.ins.append(Ins(l if (l.endswith(":") or l.endswith(": ; nohaz") or l.startswith(".")) else "    " + l))
    def label(self, base="L"):
        self.uid += 1
        return "%s_%d" % (base, self.uid)
    def vm(self, s, tag=None):
        self(s); self.vmq.append(tag)
    def lg(self, s, tag=None):
        self(s); self.lgq.append(tag)
    def _wait(self, q, tags, name, maxn):
        if not isinstance(tags, (list, tuple, set)): tags = [tags]
        last = -1
        for i, t in enumerate(q):
            if t in tags: last = i
        if last < 0: return
        n = len(q) - 1 - last
        n = min(n, maxn)
        self("s_waitcnt %s(%d)" % (name, n))
        del q[:len(q) - n]
    def vm_wait(self, tags): self._wait(self.vmq, tags, "vmcnt", 63)
    def lg_wait(self, tags): self._wait(self.lgq, tags, "lgkmcnt", 15)
    def vm_wait_all(self):
        self("s_waitcnt vmcnt(0)"); self.vmq = []
    def lg_wait_all(self):
        self("s_waitcnt lgkmcnt(0)"); self.lgq = []
    def wait_all(self):
        self("s_waitcnt vmcnt(0) lgkmcnt(0)"); self.vmq = []; self.lgq = []
    def text(self, fix=True):
        ins = self.ins
        added = 0
        if fix: ins, added = fix_hazards(ins)
        return "\n".join(i.text for i in ins) + "\n", added

def vr(b, n=1, k="v"):
    return "%s%d" % (k, b) if n == 1 else "%s[%d:%d]" % (k, b, b + n - 1)
def ar(b, n=1): return vr(b, n, "a")
def sr(b, n=1): return vr(b, n, "s")
```

```python
import sys
sys.path.insert(0, "work")
from gen import *

KNAME = "interleave_layers__ssm_conv_h3__dense_activation_relu__prompt_kernel"

WS_EPOCH = 0x0
WS_XCCF  = 0x400
WS_LFLAG = 0x1000
WS_YFLAG = 0x2000
WS_PKFLAG = 0x3000
WS_STAT  = 0x100000
STAT_SZ  = 0x40000
WS_UR    = 0x200000
WS_YT    = 0x500000
WS_W1P   = 0x800000
WS_W2P   = 0xB00000
WP_SZ    = 2211840
WS_XF1   = 0xE00000
WS_XF3   = 0x1100000
WS_HF1   = 0x1400000
WS_HF2   = 0x1B00000
WS_STAMP = 0x2200000
KX = 0x5BD1E995
TAG0 = 0x9E3779B9

KC_STRIDE = 4160
SLOT = 8 * KC_STRIDE + 4608
U_OFF = 8 * KC_STRIDE
LDS_T = 3 * SLOT
T_STRIDE = 144
LDS_W1 = 0
W1_STRIDE = 224
LDS_SCR = 140 * 1024
LDS_TOTAL = 163840
LDS_MODE = LDS_TOTAL - 16
LDS_CSX = LDS_SCR + 16384
LDS_RP = LDS_T + 80 * T_STRIDE
LDS_Q = LDS_RP + 3 * 4096

S_G, S_J, S_W, S_MODE = 4, 5, 6, 7
SRD_A, SRD_B = 8, 12
P_Q, P_K, P_V, P_SK, P_SSM, P_D, P_W1 = 16, 18, 20, 22, 24, 26, 30
P_W2, P_OUT, P_DBG, P_WS = 32, 34, 36, 38
S_TAG = 28
S_KX = 29
S_RB, S_CS, S_RT, S_CT, S_UOFF = 40, 41, 42, 43, 44
S_MASK = 45
S_XCC = 46
S_CH = 47
S_HASCH = 48
S_DVAL = 49
S_T0 = 50
SRD_W2 = 56
S_W2B = 60
S_RU0 = 63
S_LFLAG = 64
S_TMPP = 66
S_TMPQ = 68
S_SLOT = 70
S_TMO = 71
S_HSTEP = 72
S_XFB = 86
S_M2 = 88
S_XO1, S_XO3, S_HO2 = 90, 91, 96
S_SAVE = 92
S_TS = 94

V_TID, V_LANE, V_L15, V_G = 0, 1, 2, 3
V_STAMP = 173
V_CS = 184
V_Y = 212
V_X = 222
V_W2X = 232

def w2reg(f):
    return ar(4 * f, 4) if f < 64 else vr(V_W2X + 4 * (f - 64), 4)

TIMEOUT = 400000

class K(Gen):
    def __init__(self, opts):
        super().__init__()
        self.o = opts
        self.bgq = []

    def stamp(self, idx):
        if not self.o.get("stamps"): return
        self("s_memtime s[%d:%d]" % (S_TS, S_TS + 1))
        self("s_waitcnt lgkmcnt(0)")
        self("v_writelane_b32 v%d, s%d, %d" % (V_STAMP, S_TS, idx))
        self.lgq = []
    def stamp_dump(self):
        if not self.o.get("stamps"): return
        self("s_memrealtime s[%d:%d]" % (S_TS, S_TS + 1))
        self("s_waitcnt lgkmcnt(0)")
        self("v_writelane_b32 v%d, s%d, 63" % (V_STAMP, S_TS))
        self("v_writelane_b32 v%d, s98, 62" % V_STAMP)
        self("s_lshl_b32 s3, s2, 2")
        self("s_add_u32 s3, s3, s%d" % S_W)
        self("s_lshl_b32 s3, s3, 8")
        self("s_add_u32 s3, s3, %d" % WS_STAMP)
        self("v_lshlrev_b32 v180, 2, v%d" % V_LANE)
        self("v_add_u32 v180, s3, v180")
        self("global_store_dword v180, v%d, s[%d:%d]" % (V_STAMP, P_WS, P_WS + 1))
    def bg_add(self, items): self.bgq.extend(items)
    def bg_step(self, n=1):
        q = self.bgq
        while n > 0 and q:
            it = q.pop(0)
            if callable(it): it()
            elif isinstance(it, tuple):
                kind, text, tag = it
                (self.vm if kind == "vm" else self.lg)(text, tag)
            else: self(it)
            n -= 1
    def bg_flush(self): self.bg_step(1 << 30)
    def if_wave(self, w, eq=True):
        L = self.label("L_iw")
        self("s_cmp_%s_u32 s%d, %d" % ("lg" if eq else "eq", S_W, w))
        self("s_cbranch_scc1 %s" % L)
        return L
    def close(self, L): self("%s:" % L)
    def exec_set(self, mask):
        self("s_mov_b64 s[%d:%d], exec" % (S_SAVE, S_SAVE + 1))
        self("s_mov_b64 exec, %s" % mask)
    def exec_restore(self): self("s_mov_b64 exec, s[%d:%d]" % (S_SAVE, S_SAVE + 1))
    def rnd_pair(self, p, t):
        self("v_cvt_pk_bf16_f32 v%d, v%d, v%d" % (t, p, p + 1))
        self("v_lshlrev_b32 v%d, 16, v%d" % (p, t))
        self("v_and_b32 v%d, s%d, v%d" % (p + 1, S_MASK, t))
    def unpack(self, dst, src):
        self("v_lshlrev_b32 v%d, 16, v%d" % (dst, src))
        self("v_and_b32 v%d, s%d, v%d" % (dst + 1, S_MASK, src))
    def unpack_tile(self, dst, src):
        for i in range(10): self.unpack(dst + 2 * i, src + i)
    def rnd1(self, r, t):
        self("v_cvt_pk_bf16_f32 v%d, v%d, v%d" % (t, r, r))
        self("v_lshlrev_b32 v%d, 16, v%d" % (r, t))
    def xg_sum(self, r, t):
        self("v_mov_b32 v%d, v%d" % (t, r))
        self("v_permlane16_swap_b32 v%d, v%d" % (r, t))
        self("v_add_f32 v%d, v%d, v%d" % (r, r, t))
        self("v_mov_b32 v%d, v%d" % (t, r))
        self("v_permlane32_swap_b32 v%d, v%d" % (r, t))
        self("v_add_f32 v%d, v%d, v%d" % (r, r, t))
    def srd(self, q, ptr, nbytes, const=0, add_sgpr=None):
        self("s_add_u32 s%d, s%d, %d" % (q, ptr, const))
        self("s_addc_u32 s%d, s%d, 0" % (q + 1, ptr + 1))
        if add_sgpr is not None:
            self("s_add_u32 s%d, s%d, s%d" % (q, q, add_sgpr))
            self("s_addc_u32 s%d, s%d, 0" % (q + 1, q + 1))
        self("s_and_b32 s%d, s%d, 0xffff" % (q + 1, q + 1))
        self("s_mov_b32 s%d, %d" % (q + 2, nbytes))
        self("s_mov_b32 s%d, 0x20000" % (q + 3))
    def addr_pair(self, dst, ptr, const=0, add_sgpr=None):
        self("s_add_u32 s%d, s%d, %d" % (dst, ptr, const))
        self("s_addc_u32 s%d, s%d, 0" % (dst + 1, ptr + 1))
        if add_sgpr is not None:
            self("s_add_u32 s%d, s%d, s%d" % (dst, dst, add_sgpr))
            self("s_addc_u32 s%d, s%d, 0" % (dst + 1, dst + 1))
    def handoff_stores(self, lines, tagname="st", record=True):
        Ls, Ld = self.label("L_slow"), self.label("L_sd")
        self("s_cmp_eq_u32 s%d, 0" % S_MODE)
        self("s_cbranch_scc0 %s" % Ls)
        for l in lines: self(l)
        self("s_branch %s" % Ld)
        self("%s:" % Ls)
        for l in lines: self(l + " sc0 sc1")
        self("%s:" % Ld)
        if record:
            for l in lines: self.vmq.append(tagname)
    def rowbase(self):
        self("s_lshl_b32 s3, s%d, 8" % S_G)
        self("s_lshl_b32 s%d, s%d, 6" % (S_T0, S_RB))
        self("s_add_u32 s3, s3, s%d" % S_T0)
        self("s_lshl_b32 s%d, s%d, 4" % (S_T0, S_W))
        self("s_add_u32 s3, s3, s%d" % S_T0)

    def flag_store(self, base_pair, off_sgpr, val, device, vt=176):
        if isinstance(val, int): self("s_add_u32 s3, s%d, %d" % (S_TAG, val))
        else: self("s_add_u32 s3, s%d, %s" % (S_TAG, val))
        self("v_mov_b32 v%d, s3" % vt)
        self("s_xor_b32 s3, s3, s%d" % S_KX)
        self("v_mov_b32 v%d, s3" % (vt + 1))
        self("v_mov_b32 v%d, s%d" % (vt + 2, off_sgpr))
        self.exec_set("1")
        line = "global_store_dwordx2 v%d, %s, s[%d:%d]" % (vt + 2, vr(vt, 2), base_pair, base_pair + 1)
        if device: self(line + " sc0 sc1")
        else: self.handoff_stores([line], record=False)
        self.exec_restore()
    def pair_bad(self, w0, w1, lo, span, t, acc=None):
        self("v_subrev_u32 v%d, s%d, v%d" % (t, lo, w0))
        self("v_cmp_lt_u32 vcc, %d, v%d" % (span, t))
        self("v_xor_b32 v%d, v%d, v%d" % (t, w0, w1))
        self("v_cmp_ne_u32 s[%d:%d], s%d, v%d" % (S_M2, S_M2 + 1, S_KX, t))
        self("s_or_b64 s[%d:%d], vcc, s[%d:%d]" % (S_M2, S_M2 + 1, S_M2, S_M2 + 1))
    def poll_pairs(self, base_pair, voff, lo, span, vt, npair=1):
        L = self.label("L_poll")
        self("s_add_u32 s%d, s%d, %d" % (S_T0 + 5, S_TAG, lo))
        self("s_mov_b32 s%d, %d" % (S_TMO, TIMEOUT))
        self("%s:" % L)
        if npair == 1:
            self("global_load_dwordx2 %s, v%d, s[%d:%d] sc1" % (vr(vt, 2), voff, base_pair, base_pair + 1))
        else:
            for k in range(npair // 2):
                self("global_load_dwordx4 %s, v%d, s[%d:%d] offset:%d sc1" % (vr(vt + 4 * k, 4), voff, base_pair, base_pair + 1, 16 * k))
        self("s_sub_u32 s%d, s%d, 1" % (S_TMO, S_TMO))
        self("s_cmp_eq_u32 s%d, 0" % S_TMO)
        self("s_cbranch_scc1 L_abort")
        self("s_waitcnt vmcnt(0)")
        for k in range(npair):
            self.pair_bad(vt + 2 * k, vt + 2 * k + 1, S_T0 + 5, span, vt + 2 * npair)
            self("s_cbranch_scc1 %s" % L)

    def barrier_arrive(self, phase, drain=True, wave=0):
        if drain: self.wait_all()
        self("s_barrier")
        L = self.if_wave(wave)
        self("s_lshl_b32 s%d, s%d, 3" % (S_T0, S_J))
        self.flag_store(S_LFLAG, S_T0, phase, device=False)
        self.close(L)
    def pk_wait(self):
        L = self.if_wave(3)
        self.addr_pair(S_TMPP, P_WS, WS_PKFLAG)
        self("v_lshlrev_b32 v174, 5, v%d" % V_LANE)
        self.poll_pairs(S_TMPP, 174, 1, 0, 4, npair=4)
        self.stamp(40)
        self.close(L)
    def barrier_wait(self, phase, wave=0, vt=176):
        L = self.if_wave(wave)
        self("v_and_b32 v%d, 31, v%d" % (vt + 4, V_LANE))
        self("v_lshlrev_b32 v%d, 3, v%d" % (vt + 4, vt + 4))
        self.poll_pairs(S_LFLAG, vt + 4, phase, 7 - phase, vt)
        self.close(L)
        self("s_barrier")

    def prologue(self):
        self("s_cmp_ge_u32 s2, 256")
        self("s_cbranch_scc1 L_end")
        if self.o.get("dbgtime") or self.o.get("stamps"):
            self("s_memrealtime s[98:99]")
            self("s_memtime s[100:101]")
        self("s_load_dwordx16 s[16:31], s[0:1], 0")
        self("s_load_dwordx8 s[32:39], s[0:1], 64")
        self("s_and_b32 s%d, s2, 7" % S_G)
        self("s_lshr_b32 s%d, s2, 3" % S_J)
        self("v_lshrrev_b32 v4, 6, v0")
        self("v_readfirstlane_b32 s%d, v4" % S_W)
        self("v_and_b32 v%d, 63, v0" % V_LANE)
        self("v_and_b32 v%d, 15, v0" % V_L15)
        self("v_bfe_u32 v%d, v0, 4, 2" % V_G)
        self("s_getreg_b32 s%d, hwreg(HW_REG_XCC_ID, 0, 4)" % S_XCC)
        self("s_mov_b32 s%d, 0xffff0000" % S_MASK)
        self("s_lshr_b32 s%d, s%d, 3" % (S_RB, S_J))
        self("s_and_b32 s%d, s%d, 7" % (S_CS, S_J))
        self("s_lshr_b32 s%d, s%d, 4" % (S_RT, S_J))
        self("s_and_b32 s%d, s%d, 15" % (S_CT, S_J))
        self("s_mul_i32 s3, s%d, %d" % (S_CT, 11 * 4370))
        self("s_lshr_b32 s3, s3, 16")
        self("s_mul_i32 s%d, s%d, 6" % (S_UOFF, S_CT))
        self("s_add_u32 s%d, s%d, s3" % (S_UOFF, S_UOFF))
        self("s_mov_b32 s%d, 0" % S_MODE)
        self("s_waitcnt lgkmcnt(0)")
        wsb = self.o.get("wsbase", 0)
        if wsb:
            self("s_add_u32 s%d, s%d, 0x%x" % (P_WS, P_WS, wsb))
            self("s_addc_u32 s%d, s%d, 0" % (P_WS + 1, P_WS + 1))
        self("s_load_dword s%d, s[%d:%d], %d" % (S_TAG, P_WS, P_WS + 1, WS_EPOCH))
        self("s_mov_b32 s%d, 0x%x" % (S_KX, KX))
        self("s_lshl_b32 s3, s%d, 8" % S_G)
        self.addr_pair(S_LFLAG, P_WS, WS_LFLAG, 3)

    def repack_issue(self):
        L = self.if_wave(3)
        row, ch, off = 100, 101, 102
        self("v_lshrrev_b32 v%d, 3, v%d" % (row, V_LANE))
        self("v_and_b32 v%d, 7, v%d" % (ch, V_LANE))
        self("v_lshlrev_b32 v%d, 4, v%d" % (ch, ch))
        self("v_mul_u32_u24 v%d, 1280, v%d" % (103, row))
        self("v_add_u32 v%d, v%d, v%d" % (103, 103, ch))
        for k in range(3):
            Lk = None
            if k == 2:
                Lk = self.label("L_rp3")
                self("s_cmp_ge_u32 s2, 28")
                self("s_cbranch_scc1 %s" % Lk)
            a, b = S_T0, S_T0 + 1
            self("s_add_u32 s%d, s2, %d" % (S_T0 + 3, 256 * k))
            self("s_mul_hi_u32 s%d, s%d, %d" % (a, S_T0 + 3, (1 << 32) // 10 + 1))
            self("s_mul_i32 s%d, s%d, 10" % (b, a))
            self("s_sub_u32 s%d, s%d, s%d" % (b, S_T0 + 3, b))
            self("s_mul_i32 s3, s%d, %d" % (a, 32 * 1280))
            self("s_lshl_b32 s%d, s%d, 7" % (S_T0 + 2, b))
            self("s_add_u32 s3, s3, s%d" % (S_T0 + 2))
            self.addr_pair(S_TMPP, P_W2, 0, 3)
            self("s_mul_i32 s3, s%d, 40" % a)
            self("s_lshl_b32 s%d, s%d, 2" % (b, b))
            self("s_add_u32 s3, s3, s%d" % b)
            self("s_lshl_b32 s3, s3, 10")
            self("s_add_u32 s%d, s3, %d" % (74 + k, WS_W2P))
            self("v_mov_b32 v%d, v103" % off)
            for r in range(4):
                self("s_mov_b32 m0, %d" % (LDS_RP + 4096 * k + 1024 * r))
                if r: self("v_add_u32 v%d, %d, v%d" % (off, 8 * 1280, off))
                self("global_load_lds_dwordx4 v%d, s[%d:%d] %s" % (off, S_TMPP, S_TMPP + 1, self.o.get("nt_w", "nt")))
            if Lk: self("%s:" % Lk)
        self("s_lshl_b32 s3, s%d, 8" % S_G)
        self("s_lshl_b32 s%d, s%d, 6" % (S_T0, S_RB))
        self("s_add_u32 s3, s3, s%d" % S_T0)
        self("s_mul_i32 s3, s3, 1280")
        self("s_mul_i32 s%d, s%d, 160" % (S_T0, S_CS))
        self("s_add_u32 s3, s3, s%d" % S_T0)
        self.addr_pair(S_TMPP, P_Q, 0, 3)
        self("s_mov_b32 s%d, %d" % (S_T0, (1 << 32) // 10 + 1))
        for i in range(10):
            self("v_add_u32 v%d, %d, v%d" % (off, 64 * i, V_LANE))
            self("v_mul_hi_u32 v%d, v%d, s%d" % (row, off, S_T0))
            self("v_mul_u32_u24 v%d, 10, v%d" % (ch, row))
            self("v_sub_u32 v%d, v%d, v%d" % (ch, off, ch))
            self("v_mul_u32_u24 v%d, 1280, v%d" % (row, row))
            self("v_lshl_add_u32 v%d, v%d, 4, v%d" % (off, ch, row))
            self("s_mov_b32 m0, %d" % (LDS_Q + 1024 * i))
            self("global_load_lds_dwordx4 v%d, s[%d:%d]" % (off, S_TMPP, S_TMPP + 1))
        self.close(L)
    def repack_finish(self):
        a, sa = 100, 101
        self("s_waitcnt vmcnt(0)")
        self("v_bfe_u32 v%d, v%d, 2, 2" % (a, V_LANE))
        self("v_lshl_add_u32 v%d, v%d, 2, v%d" % (a, V_G, a))
        self("v_lshlrev_b32 v%d, 7, v%d" % (a, a))
        self("v_and_b32 v%d, 3, v%d" % (sa, V_LANE))
        self("v_lshl_add_u32 v%d, v%d, 3, v%d" % (a, sa, a))
        self("v_add_u32 v%d, %d, v%d" % (a, LDS_RP, a))
        for k in range(3):
            Lk = None
            if k == 2:
                Lk = self.label("L_rf3")
                self("s_cmp_ge_u32 s2, 28")
                self("s_cbranch_scc1 %s" % Lk)
            F = 104 + 16 * k
            for u in range(4):
                for h in range(2):
                    self("ds_read_b64_tr_b16 %s, v%d offset:%d" % (vr(F + 4 * u + 2 * h, 2), a, 4096 * k + h * 2048 + 32 * u))
            self("v_lshlrev_b32 v%d, 4, v%d" % (sa, V_LANE))
            self("v_add_u32 v%d, s%d, v%d" % (sa, 74 + k, sa))
            self("s_waitcnt lgkmcnt(0)")
            for u in range(4):
                self("global_store_dwordx4 v%d, %s, s[%d:%d] offset:%d sc0 sc1" % (sa, vr(F + 4 * u, 4), P_WS, P_WS + 1, 1024 * u))
            if Lk: self("%s:" % Lk)

    def prep_loads(self):
        KR, VR, TAP, RAW = 4, 34, 46, 66
        self.KR, self.VR, self.TAP, self.RAW = KR, VR, TAP, RAW
        c10, rp, off = 110, 111, 112
        self("v_and_b32 v%d, 7, v0" % c10)
        self("v_lshrrev_b32 v%d, 3, v0" % rp)
        self("s_lshl_b32 s3, s%d, 6" % S_J)
        self("s_sub_u32 s3, s3, 3")
        self("v_lshlrev_b32 v%d, 1, v%d" % (off, rp))
        self("v_add_u32 v%d, s3, v%d" % (off, off))
        self("s_movk_i32 s%d, 1280" % S_T0)
        self("v_mul_lo_u32 v%d, v%d, s%d" % (off, off, S_T0))
        self("s_mul_i32 s3, s%d, 160" % S_G)
        self("v_mul_u32_u24 v%d, 20, v%d" % (off + 1, c10))
        self("v_add3_u32 v%d, v%d, v%d, s3" % (off, off, off + 1))
        self.srd(SRD_A, P_K, 2621440)
        self.srd(SRD_B, P_V, 2621440)
        nk = self.o.get("nt_kv", "")
        offs = [off]
        for r in range(1, 5):
            self("v_add_u32 v%d, %d, v%d" % (off + 1 + r, 1280 * r, off))
            offs.append(off + 1 + r)
        for r in range(5):
            self.vm("buffer_load_dwordx4 %s, v%d, s[%d:%d], 0 offen %s" % (vr(KR + 6 * r, 4), offs[r], SRD_A, SRD_A + 3, nk), "k")
            self.vm("buffer_load_dword v%d, v%d, s[%d:%d], 0 offen offset:16 %s" % (KR + 6 * r + 4, offs[r], SRD_A, SRD_A + 3, nk), "k")
        for r in range(2):
            self.vm("buffer_load_dwordx4 %s, v%d, s[%d:%d], 0 offen %s" % (vr(VR + 6 * r, 4), offs[3 + r], SRD_B, SRD_B + 3, nk), "v")
            self.vm("buffer_load_dword v%d, v%d, s[%d:%d], 0 offen offset:16 %s" % (VR + 6 * r + 4, offs[3 + r], SRD_B, SRD_B + 3, nk), "v")
        t = off + 7
        self("s_mul_i32 s3, s%d, 640" % S_G)
        self("v_mul_u32_u24 v%d, 80, v%d" % (t, c10))
        self("v_add_u32 v%d, s3, v%d" % (t, t))
        for i in range(5):
            self.vm("global_load_dwordx4 %s, v%d, s[%d:%d] offset:%d" % (vr(TAP + 4 * i, 4), t, P_SK, P_SK + 1, 16 * i), "tap")
        self("s_lshl_b32 s3, s%d, 5" % S_W)
        self("s_add_u32 s3, s3, s%d" % S_J)
        self("s_cmp_lt_u32 s3, 80")
        self("s_cselect_b32 s%d, 1, 0" % S_HASCH)
        self("s_cselect_b32 s3, s3, 0")
        self("s_mul_i32 s%d, s%d, 80" % (S_CH, S_G))
        self("s_add_u32 s%d, s%d, s3" % (S_CH, S_CH))
        self("s_mul_i32 s%d, s%d, %d" % (S_SLOT, S_W, SLOT))
        self("s_cmp_lt_u32 s%d, 3" % S_W)
        self("s_cselect_b32 s%d, s%d, 0" % (S_SLOT, S_SLOT))
        self("s_lshl_b32 s3, s%d, 1" % S_CH)
        self("s_and_b32 s3, s3, 0xfffffffc")
        self("s_load_dword s%d, s[%d:%d], s3" % (S_DVAL, P_D, P_D + 1))
        self("s_lshl_b32 s3, s%d, 12" % S_CH)
        self.srd(52, P_SSM, 4096, add_sgpr=3)
        a = off + 10
        Lr = self.if_wave(3, eq=False)
        self("v_lshlrev_b32 v%d, 4, v%d" % (a, V_LANE))
        for r in range(4):
            self("v_add_u32 v%d, %d, v%d" % (a + 1, (1024 * r - 16) & 0xffffffff, a))
            self("buffer_load_dwordx4 %s, v%d, s[52:55], 0 offen %s" % (vr(RAW + 8 * r, 4), a + 1, self.o.get("nt_s", "")))
            self("buffer_load_dwordx4 %s, v%d, s[52:55], 0 offen offset:%d %s" % (vr(RAW + 8 * r + 4, 4), a, 1024 * r, self.o.get("nt_s", "")))
        self.close(Lr)
        La, Lb = self.label("L_pt"), self.label("L_ptd")
        self("s_cmp_ge_u32 s%d, 2" % S_W)
        self("s_cbranch_scc1 %s" % La)
        self("s_lshl_b32 s3, s%d, 6" % S_W)
        self("v_add_u32 v%d, s3, v%d" % (a, V_LANE))
        self("v_min_u32 v%d, 79, v%d" % (a, a))
        self("v_lshlrev_b32 v%d, 12, v%d" % (a, a))
        self("s_mul_i32 s3, s%d, %d" % (S_G, 80 * 4096))
        self("s_sub_u32 s%d, 31, s%d" % (S_T0, S_J))
        self("s_lshl_b32 s%d, s%d, 7" % (S_T0, S_T0))
        self("s_add_u32 s3, s3, s%d" % S_T0)
        self("s_add_u32 s3, s3, %d" % WS_UR)
        self("v_add_u32 v%d, s3, v%d" % (a, a))
        self("global_load_dword v%d, v%d, s[%d:%d]" % (a + 1, a, P_WS, P_WS + 1))
        self("s_branch %s" % Lb)
        self("%s:" % La)
        self("v_and_b32 v%d, 1, v%d" % (a, V_LANE))
        self("v_lshlrev_b32 v%d, 7, v%d" % (a, a))
        self("global_load_dword v%d, v%d, s[%d:%d]" % (a + 1, a, S_LFLAG, S_LFLAG + 1))
        self("%s:" % Lb)
        self.repack_issue()
        self("s_waitcnt lgkmcnt(0)")
        self("s_add_u32 s%d, s%d, 0x%x" % (S_TAG, S_TAG, TAG0))
        L = self.if_wave(0)
        self("s_lshl_b32 s%d, s%d, 8" % (S_T0, S_G))
        self("s_lshl_b32 s%d, s%d, 3" % (S_T0 + 1, S_J))
        self("s_add_u32 s%d, s%d, s%d" % (S_T0, S_T0, S_T0 + 1))
        self("s_add_u32 s%d, s%d, %d" % (S_T0, S_T0, WS_XCCF))
        self.flag_store(P_WS, S_T0, "s%d" % S_XCC, device=True)
        self.close(L)

    def window_stores(self):
        a = 160
        self("s_lshl_b32 s3, s%d, 8" % S_G)
        self("s_lshl_b32 s%d, s%d, 6" % (S_T0, S_RB))
        self("s_add_u32 s3, s3, s%d" % S_T0)
        self("s_lshl_b32 s%d, s%d, 3" % (S_T0, S_CS))
        self("s_add_u32 s3, s3, s%d" % S_T0)
        self("v_and_b32 v%d, 7, v%d" % (a, V_LANE))
        self("v_add_u32 v%d, s3, v%d" % (a, a))
        self("v_lshlrev_b32 v%d, 7, v%d" % (a, a))
        self("v_bfe_u32 v%d, v%d, 3, 2" % (a + 1, V_LANE))
        self("v_mul_u32_u24 v%d, %d, v%d" % (a + 1, STAT_SZ, a + 1))
        self("v_add_u32 v%d, v%d, v%d" % (a, a, a + 1))
        self("v_add_u32 v%d, %d, v%d" % (a, WS_STAT, a))
        self("global_load_dword a0, v%d, s[%d:%d]" % (a, P_WS, P_WS + 1))
        if not self.o.get("prewrite", 1): return
        for i in range(4): self("v_mov_b32 v%d, 0" % (164 + i))
        self("s_mul_i32 s3, s%d, %d" % (S_G, 16 * 54 * 1024))
        self("s_mul_i32 s%d, s%d, %d" % (S_T0, S_J, 27 * 1024))
        self("s_add_u32 s3, s3, s%d" % S_T0)
        self("s_add_u32 s3, s3, %d" % WS_HF1)
        self("v_lshlrev_b32 v%d, 4, v%d" % (a, V_LANE))
        self("v_add_u32 v%d, s3, v%d" % (a, a))
        for i in range(27):
            if i and i % 4 == 0: self("v_add_u32 v%d, 4096, v%d" % (a, a))
            self("global_store_dwordx4 v%d, v[164:167], s[%d:%d] offset:%d sc0 sc1" % (a, P_WS, P_WS + 1, 1024 * (i % 4)))

    def prep_compute(self):
        KR, VR, TAP = self.KR, self.VR, self.TAP
        Kp, Tp, Vp = 124, 134, 142
        A0, A1, P0, P1, t0, t1 = 146, 148, 150, 152, 154, 155
        O0, O1 = 156, 157
        lad = 158
        self("v_and_b32 v%d, 7, v0" % lad)
        self("v_mul_u32_u24 v%d, %d, v%d" % (lad, 10 * T_STRIDE, lad))
        self("v_lshrrev_b32 v%d, 3, v0" % (lad + 1))
        self("v_lshlrev_b32 v%d, 2, v%d" % (lad + 1, lad + 1))
        self("v_sub_u32 v%d, v%d, v%d" % (lad, lad, lad + 1))
        self("v_add_u32 v%d, %d, v%d" % (lad, LDS_T + 124, lad))
        L3, Ld = self.label("L_w3"), self.label("L_w3d")
        self("s_cmp_eq_u32 s%d, 3" % S_W)
        self("s_cbranch_scc1 %s" % L3)
        self("s_waitcnt vmcnt(8)")
        self("s_branch %s" % Ld)
        self("%s:" % L3)
        self("s_waitcnt vmcnt(18)")
        self("%s:" % Ld)
        self.vmq = []
        self.stamp(39)
        pk = lambda op, d, a, b: self("v_pk_%s_f32 %s, %s, %s" % (op, vr(d, 2), vr(a, 2), vr(b, 2)))
        for i in range(5):
            for r in range(5): self.unpack(Kp + 2 * r, KR + 6 * r + i)
            for t in range(4):
                s0 = TAP + 4 * i + (t >> 1); s1 = s0 + 2
                if t & 1:
                    self("v_and_b32 v%d, s%d, v%d" % (Tp + 2 * t, S_MASK, s0))
                    self("v_and_b32 v%d, s%d, v%d" % (Tp + 2 * t + 1, S_MASK, s1))
                else:
                    self("v_lshlrev_b32 v%d, 16, v%d" % (Tp + 2 * t, s0))
                    self("v_lshlrev_b32 v%d, 16, v%d" % (Tp + 2 * t + 1, s1))
            for r in range(2): self.unpack(Vp + 2 * r, VR + 6 * r + i)
            pk("mul", A0, Kp + 0, Tp + 6); pk("mul", A1, Kp + 2, Tp + 6)
            self.rnd_pair(A0, t0); self.rnd_pair(A1, t1)
            for step in range(1, 4):
                T = Tp + 2 * (3 - step)
                pk("mul", P0, Kp + 2 * step, T); pk("mul", P1, Kp + 2 * (step + 1), T)
                self.rnd_pair(P0, t0); self.rnd_pair(P1, t1)
                pk("add", A0, A0, P0); pk("add", A1, A1, P1)
                self.rnd_pair(A0, t0); self.rnd_pair(A1, t1)
            pk("mul", A0, A0, Vp + 0); pk("mul", A1, A1, Vp + 2)
            self("v_cvt_pk_bf16_f32 v%d, v%d, v%d" % (O0, A1, A0))
            self("v_cvt_pk_bf16_f32 v%d, v%d, v%d" % (O1, A1 + 1, A0 + 1))
            self.lg("ds_write_b32 v%d, v%d offset:%d" % (lad, O0, (2 * i) * T_STRIDE), "tw")
            self.lg("ds_write_b32 v%d, v%d offset:%d" % (lad, O1, (2 * i + 1) * T_STRIDE), "tw")

    def mode_check(self, vt=176):
        L = self.if_wave(0)
        self("s_lshl_b32 s3, s%d, 8" % S_G)
        self.addr_pair(S_TMPP, P_WS, WS_XCCF, 3)
        self("v_and_b32 v%d, 31, v%d" % (vt + 4, V_LANE))
        self("v_lshlrev_b32 v%d, 3, v%d" % (vt + 4, vt + 4))
        self.poll_pairs(S_TMPP, vt + 4, 0, 7, vt)
        self("s_add_u32 s3, s%d, s%d" % (S_TAG, S_XCC))
        self("v_cmp_ne_u32 vcc, s3, v%d" % vt)
        self("s_nop 1")
        self("s_cmp_lg_u64 vcc, 0")
        self("s_cselect_b32 s%d, 1, 0" % S_MODE)
        if self.o.get("force_slow"): self("s_mov_b32 s%d, 1" % S_MODE)
        self("v_mov_b32 v%d, s%d" % (vt, S_MODE))
        self("v_mov_b32 v%d, %d" % (vt + 1, LDS_MODE))
        self("ds_write_b32 v%d, v%d" % (vt + 1, vt))
        self.close(L)
    def mode_fetch(self, vt=176):
        self("v_mov_b32 v%d, %d" % (vt + 1, LDS_MODE))
        self("ds_read_b32 v%d, v%d" % (vt, vt + 1))
        self("s_waitcnt lgkmcnt(0)")
        self("v_readfirstlane_b32 s%d, v%d" % (S_MODE, vt))
        self.lgq = []
        alias = self.o.get("alias", 1)
        self("s_mov_b32 s%d, %d" % (S_XO1, WS_UR if alias else WS_XF1))
        self("s_mov_b32 s%d, %d" % (S_XO3, WS_UR if alias else WS_XF3))
        self("s_mov_b32 s%d, %d" % (S_HO2, WS_HF1 if alias else WS_HF2))
        L = self.label("L_al")
        self("s_cmp_eq_u32 s%d, 0" % S_MODE)
        self("s_cbranch_scc1 %s" % L)
        self("s_mov_b32 s%d, %d" % (S_XO1, WS_XF1))
        self("s_mov_b32 s%d, %d" % (S_XO3, WS_XF3))
        self("s_mov_b32 s%d, %d" % (S_HO2, WS_HF2))
        self("%s:" % L)

    def tile_stats(self, xf, buf, tmp):
        s, t = tmp, tmp + 4
        d = tmp + 6
        m2 = tmp + 26
        pk = lambda op, dd, a, b: self("v_pk_%s_f32 %s, %s, %s" % (op, vr(dd, 2), vr(a, 2), vr(b, 2)))
        pk("add", s, xf, xf + 2)
        for i in range(2, 10): pk("add", s, s, xf + 2 * i)
        self("v_add_f32 v%d, v%d, v%d" % (s, s, s + 1))
        self.xg_sum(s, t)
        self("v_mul_f32 v%d, 0x3c4ccccd, v%d" % (s, s))
        for i in range(10):
            self("v_pk_add_f32 %s, %s, %s op_sel_hi:[1,0] neg_lo:[0,1] neg_hi:[0,1]" % (vr(d + 2 * i, 2), vr(xf + 2 * i, 2), vr(s, 2)))
        pk("mul", m2, d, d)
        for i in range(1, 10):
            self("v_pk_fma_f32 %s, %s, %s, %s" % (vr(m2, 2), vr(d + 2 * i, 2), vr(d + 2 * i, 2), vr(m2, 2)))
        self("v_add_f32 v%d, v%d, v%d" % (s + 1, m2, m2 + 1))
        self.xg_sum(s + 1, t)
        self("s_add_u32 s3, s%d, %d" % (S_TAG, buf))
        self("v_mov_b32 v%d, s3" % (s + 2))
        self("s_xor_b32 s3, s3, s%d" % S_KX)
        self("v_mov_b32 v%d, s3" % (s + 3))
        self.rowbase()
        self("s_lshl_b32 s3, s3, 7")
        self("s_lshl_b32 s%d, s%d, 4" % (S_T0, S_CS))
        self("s_add_u32 s3, s3, s%d" % S_T0)
        self("s_add_u32 s3, s3, %d" % (WS_STAT + buf * STAT_SZ))
        self("v_lshlrev_b32 v%d, 7, v%d" % (t, V_L15))
        self("v_add_u32 v%d, s3, v%d" % (t, t))
        self.exec_set("0xffff")
        self.handoff_stores(["global_store_dwordx4 v%d, %s, s[%d:%d]" % (t, vr(s, 4), P_WS, P_WS + 1)], "stat")
        self.exec_restore()
    def row_stats_issue(self, buf, tmp):
        a = tmp + 8
        self.rowbase()
        self("s_lshl_b32 s3, s3, 7")
        self("s_add_u32 s3, s3, %d" % (WS_STAT + buf * STAT_SZ))
        self("v_lshlrev_b32 v%d, 7, v%d" % (a, V_L15))
        self("v_lshl_add_u32 v%d, v%d, 5, v%d" % (a, V_G, a))
        self("v_add_u32 v%d, s3, v%d" % (a, a))
        for k in range(2):
            self.vm("global_load_dwordx4 %s, v%d, s[%d:%d] offset:%d sc1" % (vr(tmp + 4 * k, 4), a, P_WS, P_WS + 1, 16 * k), "rs")
    def row_stats_validate(self, buf, tmp):
        Lr, Lo = self.label("L_rsr"), self.label("L_rso")
        self("s_add_u32 s%d, s%d, %d" % (S_T0 + 5, S_TAG, buf))
        self("s_mov_b32 s%d, %d" % (S_TMO, TIMEOUT))
        self("%s:" % Lr)
        self.pair_bad(tmp + 2, tmp + 3, S_T0 + 5, 0, tmp + 9)
        self("s_mov_b64 s[%d:%d], s[%d:%d]" % (S_TMPQ, S_TMPQ + 1, S_M2, S_M2 + 1))
        self.pair_bad(tmp + 6, tmp + 7, S_T0 + 5, 0, tmp + 9)
        self("s_or_b64 s[%d:%d], s[%d:%d], s[%d:%d]" % (S_M2, S_M2 + 1, S_M2, S_M2 + 1, S_TMPQ, S_TMPQ + 1))
        self("s_cbranch_scc0 %s" % Lo)
        self("s_sub_u32 s%d, s%d, 1" % (S_TMO, S_TMO))
        self("s_cmp_eq_u32 s%d, 0" % S_TMO)
        self("s_cbranch_scc1 L_abort")
        for k in range(2):
            self("global_load_dwordx4 %s, v%d, s[%d:%d] offset:%d sc1" % (vr(tmp + 4 * k, 4), tmp + 8, P_WS, P_WS + 1, 16 * k))
        self("s_waitcnt vmcnt(0)")
        self("s_branch %s" % Lr)
        self("%s:" % Lo)
        self("v_mov_b32 v%d, v%d" % (tmp + 2, tmp + 4))
        self("v_mov_b32 v%d, v%d" % (tmp + 3, tmp + 5))
    def row_stats_finish_items(self, tmp, out_m, out_rs):
        m0, q0, m1, q1 = tmp, tmp + 1, tmp + 2, tmp + 3
        s, t = tmp + 4, tmp + 5
        g = Gen()
        def xs(r):
            g("v_mov_b32 v%d, v%d" % (t, r)); g("v_permlane16_swap_b32 v%d, v%d" % (r, t)); g("v_add_f32 v%d, v%d, v%d" % (r, r, t))
            g("v_mov_b32 v%d, v%d" % (t, r)); g("v_permlane32_swap_b32 v%d, v%d" % (r, t)); g("v_add_f32 v%d, v%d, v%d" % (r, r, t))
        def r1(r):
            g("v_cvt_pk_bf16_f32 v%d, v%d, v%d" % (t, r, r)); g("v_lshlrev_b32 v%d, 16, v%d" % (r, t))
        g("v_add_f32 v%d, v%d, v%d" % (s, m0, m1)); xs(s)
        g("v_mul_f32 v%d, 0x3e000000, v%d" % (s, s))
        g("v_sub_f32 v%d, v%d, v%d" % (m0, m0, s)); g("v_sub_f32 v%d, v%d, v%d" % (m1, m1, s))
        g("v_mul_f32 v%d, v%d, v%d" % (m0, m0, m0)); g("v_fmac_f32 v%d, v%d, v%d" % (m0, m1, m1))
        g("v_add_f32 v%d, v%d, v%d" % (q0, q0, q1))
        g("v_mov_b32 v%d, 0x42a00000" % t); g("v_fmac_f32 v%d, v%d, v%d" % (q0, m0, t)); xs(q0)
        g("v_mul_f32 v%d, 0x3acccccd, v%d" % (q0, q0)); r1(q0)
        g("v_add_f32 v%d, 0x3727c5ac, v%d" % (q0, q0)); r1(q0)
        g("v_sqrt_f32 v%d, v%d" % (q0, q0)); g("s_nop 0"); r1(q0)
        g("v_rcp_f32 v%d, v%d" % (out_rs, q0)); r1(s)
        g("v_mov_b32 v%d, v%d" % (out_m, s))
        return [i.text.strip() for i in g.ins]
    def row_stats_finish(self, tmp, out_m, out_rs):
        for l in self.row_stats_finish_items(tmp, out_m, out_rs): self(l)

    def prep_store_ur(self):
        L3 = self.if_wave(3, eq=False)
        a, b = 100, 101
        self("v_lshrrev_b32 v%d, 3, v0" % a)
        self("v_and_b32 v%d, 7, v0" % b)
        self("v_lshlrev_b32 v%d, 4, v%d" % (b, b))
        self("v_mul_u32_u24 v%d, %d, v%d" % (102, T_STRIDE, a))
        self("v_add3_u32 v%d, v%d, v%d, 0" % (102, 102, b))
        self("v_add_u32 v%d, %d, v%d" % (102, LDS_T, 102))
        self("s_mul_i32 s3, s%d, %d" % (S_G, 80 * 4096))
        self("s_sub_u32 s%d, 31, s%d" % (S_T0, S_J))
        self("s_lshl_b32 s%d, s%d, 7" % (S_T0, S_T0))
        self("s_add_u32 s3, s3, s%d" % S_T0)
        self("s_add_u32 s3, s3, %d" % WS_UR)
        self("v_lshlrev_b32 v%d, 12, v%d" % (103, a))
        self("v_add3_u32 v%d, v%d, v%d, s3" % (103, 103, b))
        for r in range(3):
            self("ds_read_b128 %s, v102 offset:%d" % (vr(104 + 4 * r, 4), 24 * T_STRIDE * r))
        L = self.if_wave(0)
        self("ds_read_b128 v[116:119], v102 offset:%d" % (24 * T_STRIDE * 3))
        self.close(L)
        self("v_add_u32 v120, %d, v103" % (24 * 4096))
        self("v_add_u32 v121, %d, v103" % (48 * 4096))
        self("v_add_u32 v122, %d, v103" % (72 * 4096))
        self("s_waitcnt lgkmcnt(0)")
        p = "s[%d:%d]" % (P_WS, P_WS + 1)
        self.handoff_stores(["global_store_dwordx4 v103, v[104:107], " + p, "global_store_dwordx4 v120, v[108:111], " + p,
                             "global_store_dwordx4 v121, v[112:115], " + p], record=False)
        L = self.if_wave(0)
        self.handoff_stores(["global_store_dwordx4 v122, v[116:119], " + p], record=False)
        self.close(L)
        self("s_waitcnt vmcnt(0)")
        self.close(L3)
        self.lgq = []; self.vmq = []

    def build_kcopies(self):
        RAW = self.RAW
        SETS = [(110, 116, 122), (134, 140, 146)]
        ad, z = 128, 130
        L = self.label("L_kc")
        self("s_cmp_eq_u32 s%d, 0" % S_HASCH)
        self("s_cbranch_scc1 %s" % L)
        self("v_lshlrev_b32 v%d, 4, v%d" % (ad, V_LANE))
        self("s_add_u32 s3, s%d, 16" % S_SLOT)
        self("v_add_u32 v%d, s3, v%d" % (ad, ad))
        for r in range(4):
            R = RAW + 8 * r
            A, B, C = SETS[r & 1]
            if r >= 2: self("s_waitcnt lgkmcnt(8)")
            for i in range(6):
                self("v_alignbit_b32 v%d, v%d, v%d, 16" % (A + i, R + i + 1, R + i))
            for i in range(6):
                self("v_alignbit_b32 v%d, v%d, v%d, 16" % (B + i, R + i + 2, R + i + 1))
            for i in range(6):
                self("v_mov_b32 v%d, v%d" % (C + i, R + i + 1))
            src = {0: A, 1: C, 2: B, 3: R + 2, 4: A + 2, 5: C + 2, 6: B + 2, 7: R + 4}
            for c in range(8):
                self("ds_write_b128 v%d, %s offset:%d" % (ad, vr(src[c], 4), c * KC_STRIDE + 1024 * r))
        for i in range(4): self("v_mov_b32 v%d, 0" % (z + i))
        self("v_mul_u32_u24 v%d, %d, v%d" % (ad + 1, KC_STRIDE, V_LANE))
        self("v_add_u32 v%d, s%d, v%d" % (ad + 1, S_SLOT, ad + 1))
        self.exec_set("0xff")
        self("ds_write_b128 v%d, %s" % (ad + 1, vr(z, 4)))
        self("s_mov_b64 exec, 0x3fffffff")
        self("v_lshlrev_b32 v%d, 4, v%d" % (ad + 1, V_LANE))
        self("s_add_u32 s3, s%d, %d" % (S_SLOT, U_OFF + 4096))
        self("v_add_u32 v%d, s3, v%d" % (ad + 1, ad + 1))
        self("ds_write_b128 v%d, %s" % (ad + 1, vr(z, 4)))
        self.exec_restore()
        self("%s:" % L)
        self("s_waitcnt lgkmcnt(0)")
        self.lgq = []

    def conv(self):
        Lskip = self.label("L_conv_skip"); Ldone = self.label("L_conv_done")
        self("s_cmp_eq_u32 s%d, 0" % S_HASCH)
        self("s_cbranch_scc1 %s" % Lskip)
        self("s_lshl_b32 s3, s%d, 12" % S_CH)
        self.addr_pair(S_TMPP, P_WS, WS_UR, 3)
        a = 164
        self("v_lshlrev_b32 v%d, 4, v%d" % (a, V_LANE))
        for r in range(4):
            self("s_add_u32 m0, s%d, %d" % (S_SLOT, U_OFF + 1024 * r))
            self("v_add_u32 v%d, %d, v%d" % (a + 1, 1024 * r, a))
            self.vm("global_load_lds_dwordx4 v%d, s[%d:%d]" % (a + 1, S_TMPP, S_TMPP + 1), "u")
        self("s_and_b32 s3, s%d, 1" % S_CH)
        self("s_lshl_b32 s%d, s%d, 16" % (S_T0, S_DVAL))
        self("s_and_b32 s%d, s%d, 0xffff0000" % (S_DVAL, S_DVAL))
        self("s_cmp_eq_u32 s3, 0")
        self("s_cselect_b32 s%d, s%d, s%d" % (S_DVAL, S_T0, S_DVAL))
        vA, vB = 166, 167
        self("v_and_b32 v%d, 7, v%d" % (vA, V_L15))
        self("v_mul_u32_u24 v%d, %d, v%d" % (vA, KC_STRIDE, vA))
        self("v_lshrrev_b32 v%d, 3, v%d" % (168, V_L15))
        self("v_add_u32 v%d, v%d, v%d" % (168, 168, V_G))
        self("v_lshl_add_u32 v%d, v%d, 4, v%d" % (vA, 168, vA))
        self("v_add_u32 v%d, s%d, v%d" % (vA, S_SLOT, vA))
        self("v_lshlrev_b32 v%d, 5, v%d" % (vB, V_L15))
        self("v_lshlrev_b32 v%d, 4, v%d" % (168, V_G))
        self("v_sub_u32 v%d, v%d, v%d" % (vB, 168, vB))
        self("s_add_u32 s3, s%d, %d" % (S_SLOT, U_OFF + 4064 - 3584))
        self("v_add_u32 v%d, s3, v%d" % (vB, vB))
        ACC = 4; FA = [36, 100]; FB = [68, 132]
        def loadsA(tau, buf):
            return [("lg", "ds_read_b128 %s, v%d offset:%d" % (vr(FA[buf] + 4 * i, 4), vA, 64 * tau + 512 * i), "cA") for i in range(8)]
        def loadsB(tau, buf):
            return [("lg", "ds_read_b128 %s, v%d offset:%d" % (vr(FB[buf] + 4 * i, 4), vB, 3584 - 512 * i + 64 * tau), "cB") for i in range(8)]
        self.bg_add(loadsA(0, 0)); self.bg_flush()
        ua, sa = 168, 169
        self("v_lshlrev_b32 v%d, 5, v%d" % (sa, V_L15))
        self("v_lshl_add_u32 v%d, v%d, 3, v%d" % (sa, V_G, sa))
        self("s_add_u32 s3, s%d, %d" % (S_SLOT, U_OFF + 4088 - 3584))
        self("v_sub_u32 v%d, s3, v%d" % (ua, sa))
        self("s_lshl_b32 s3, s%d, 12" % S_CH)
        self("s_add_u32 s3, s3, %d" % WS_YT)
        self("v_and_b32 v%d, 1, v%d" % (170, V_G))
        self("v_lshlrev_b32 v%d, 9, v%d" % (170, 170))
        self("v_lshrrev_b32 v%d, 1, v%d" % (171, V_G))
        self("v_lshl_add_u32 v%d, v%d, 4, v%d" % (170, 171, 170))
        self("v_lshl_add_u32 v%d, v%d, 5, v%d" % (sa, V_L15, 170))
        self("v_add_u32 v%d, s3, v%d" % (sa, sa))
        self("v_mov_b32 v170, s%d" % S_DVAL)
        self("v_lshlrev_b32 v171, 4, v%d" % V_LANE)
        if self.o.get("prewrite", 1):
            self("s_lshl_b32 s3, s%d, 12" % S_CH)
            self("s_add_u32 s3, s3, %d" % WS_YT)
            self("v_add_u32 v172, s3, v171")
            for i in range(4): self("v_mov_b32 v%d, 0" % (4 + i))
            for i in range(4):
                self.vm("global_store_dwordx4 v172, v[4:7], s[%d:%d] offset:%d sc0 sc1" % (P_WS, P_WS + 1, 1024 * i), "ypw")
        self.vm_wait("u")
        self.stamp(7)
        self.bg_add(loadsB(0, 0)); self.bg_flush()
        for tau in range(8):
            buf = tau & 1
            self.lg_wait_all()
            if tau < 7:
                la, lb = loadsA(tau + 1, buf ^ 1), loadsB(tau + 1, buf ^ 1)
                for x, y in zip(la, lb): self.bg_add([x, y])

            pairs = sorted([(i, be - i) for be in range(8) for i in range(be + 1)])
            first = set()
            for kk, (i, m) in enumerate(pairs):
                be = i + m
                c = vr(ACC + 4 * be, 4) if (tau > 0 or be in first) else "0"
                first.add(be)
                self("v_mfma_f32_16x16x32_bf16 %s, %s, %s, %s" % (vr(ACC + 4 * be, 4), vr(FA[buf] + 4 * i, 4), vr(FB[buf] + 4 * m, 4), c))
                self.bg_step(1)
            self.bg_flush()
        self.stamp(8)
        UQ = 36
        for b in range(8):
            self.lg("ds_read_b64 %s, v%d offset:%d" % (vr(UQ + 2 * b, 2), ua, 3584 - 512 * b), "uq")
        self.lg_wait_all()
        U, t, O = 56, 60, 64
        for b in range(8):
            d0, d1 = UQ + 2 * b, UQ + 2 * b + 1
            A = ACC + 4 * b
            self("v_and_b32 v%d, s%d, v%d" % (U + 0, S_MASK, d1))
            self("v_lshlrev_b32 v%d, 16, v%d" % (U + 1, d1))
            self("v_and_b32 v%d, s%d, v%d" % (U + 2, S_MASK, d0))
            self("v_lshlrev_b32 v%d, 16, v%d" % (U + 3, d0))
            self("v_pk_mul_f32 %s, %s, v[170:171] op_sel_hi:[1,0]" % (vr(U, 2), vr(U, 2)))
            self("v_pk_mul_f32 %s, %s, v[170:171] op_sel_hi:[1,0]" % (vr(U + 2, 2), vr(U + 2, 2)))
            self.rnd_pair(U, t); self.rnd_pair(U + 2, t + 1)
            self.rnd_pair(A, t); self.rnd_pair(A + 2, t + 1)
            self("v_pk_add_f32 %s, %s, %s" % (vr(A, 2), vr(A, 2), vr(U, 2)))
            self("v_pk_add_f32 %s, %s, %s" % (vr(A + 2, 2), vr(A + 2, 2), vr(U + 2, 2)))
            o = O + 2 * b
            self("v_cvt_pk_bf16_f32 v%d, v%d, v%d" % (o, A, A + 1))
            self("v_cvt_pk_bf16_f32 v%d, v%d, v%d" % (o + 1, A + 2, A + 3))
            if b & 1:
                self("v_permlane16_swap_b32 v%d, v%d" % (o - 2, o))
                self("v_permlane16_swap_b32 v%d, v%d" % (o - 1, o + 1))
                self("global_store_dwordx4 v%d, %s, s[%d:%d] offset:%d sc0 sc1" % (sa, vr(o - 2, 4), P_WS, P_WS + 1, 512 * (b - 1)))
        self("s_branch %s" % Ldone)
        self("%s:" % Lskip)
        L2 = self.if_wave(3)
        self.repack_finish()
        self("s_waitcnt vmcnt(0)")
        self("s_lshl_b32 s%d, s%d, 8" % (S_T0, S_G))
        self("s_lshl_b32 s%d, s%d, 3" % (S_T0 + 1, S_J))
        self("s_add_u32 s%d, s%d, s%d" % (S_T0, S_T0, S_T0 + 1))
        self("s_add_u32 s%d, s%d, %d" % (S_T0, S_T0, WS_PKFLAG))
        self.flag_store(P_WS, S_T0, 1, device=True)
        self.stamp(42)
        self.window_stores()
        if self.o.get("st_pw"):
            self("s_waitcnt vmcnt(0)")
            self.stamp(43)
        npf = self.o.get("w1pf", 9)
        if npf:
            self.srd(SRD_A, P_W1, 640 * 3456)
            self("s_mul_i32 s3, s%d, 69120" % S_J)
            self("v_lshlrev_b32 v160, 7, v%d" % V_LANE)
            self("v_add_u32 v160, s3, v160")
            for i in range(npf):
                if i == 8: self.exec_set("0xfffffff")
                self("buffer_load_dword a0, v160, s[%d:%d], 0 offen" % (SRD_A, SRD_A + 3))
                if i < 8: self("v_add_u32 v160, 8192, v160")
            if npf == 9: self.exec_restore()
        if self.o.get("st_pw"):
            self("s_waitcnt vmcnt(0)")
            self.stamp(44)
        self.close(L2)
        self("%s:" % Ldone)
        self.vmq = []; self.lgq = []

    def weights_prefetch(self):
        a, d = 174, 190
        self.addr_pair(S_TMPP, P_WS, WS_PKFLAG)
        self("v_lshlrev_b32 v%d, 5, v%d" % (a, V_LANE))
        self.poll_pairs(S_TMPP, a, 1, 0, 176 + 0, npair=4) if False else None
        self.poll_pairs(S_TMPP, a, 1, 0, 4, npair=4)
        self.stamp(40)
        for base in (WS_W1P, WS_W2P):
            self.srd(SRD_A, P_WS, WP_SZ, const=base)
            self("s_mul_i32 s3, s%d, 69120" % S_J)
            self("v_lshlrev_b32 v%d, 7, v%d" % (a, V_LANE))
            self("v_add_u32 v%d, s3, v%d" % (a, a))
            for i in range(9):
                if i == 8: self.exec_set("0xfffffff")
                self("buffer_load_dword v%d, v%d, s[%d:%d], 0 offen" % (d, a, SRD_A, SRD_A + 3))
                if i < 8: self("v_add_u32 v%d, 8192, v%d" % (a, a))
            self.exec_restore()

    def w1_dma(self, its):
        self.srd(SRD_B, P_W1, 640 * 3456)
        c, row, cc, off = 160, 161, 162, 163
        self("s_lshl_b32 s3, s%d, 6" % S_W)
        self("s_add_u32 s3, s3, %d" % (192 * its[0]))
        self("v_add_u32 v%d, s3, v%d" % (c, V_LANE))
        self("s_mov_b32 s%d, %d" % (S_T0, (1 << 32) // 14 + 1))
        self("s_lshl_b32 s%d, s%d, 5" % (S_T0 + 1, S_UOFF))
        self("s_movk_i32 s%d, 3456" % (S_T0 + 2))
        self("s_lshl_b32 s%d, s%d, 10" % (S_T0 + 3, S_W))
        for it in its:
            L = None
            if it == 46:
                L = self.label("L_w1l")
                self("s_cmp_eq_u32 s%d, 2" % S_W)
                self("s_cbranch_scc1 %s" % L)
            self("v_mul_hi_u32 v%d, v%d, s%d" % (row, c, S_T0))
            self("v_mul_u32_u24 v%d, 14, v%d" % (cc, row))
            self("v_sub_u32 v%d, v%d, v%d" % (cc, c, cc))
            self("v_mul_lo_u32 v%d, v%d, s%d" % (off, row, S_T0 + 2))
            self("v_lshl_add_u32 v%d, v%d, 4, v%d" % (off, cc, off))
            self("s_add_u32 m0, s%d, %d" % (S_T0 + 3, LDS_W1 + 3072 * it))
            self("v_add_u32 v%d, 192, v%d" % (c, c))
            self("buffer_load_dwordx4 v%d, s[%d:%d], s%d offen lds" % (off, SRD_B, SRD_B + 3, S_T0 + 1))
            if L: self("%s:" % L)
    W1OFF = 174
    def w1_stage_setup(self):
        self.srd(SRD_B, P_W1, 640 * 3456)
        c, row, cc = 181, 182, 183
        self("s_lshl_b32 s3, s%d, 6" % S_W)
        self("v_add_u32 v%d, s3, v%d" % (c, V_LANE))
        self("s_mov_b32 s%d, %d" % (S_T0, (1 << 32) // 14 + 1))
        self("s_movk_i32 s%d, 3456" % (S_T0 + 2))
        for r in range(7):
            o = self.W1OFF + r
            self("v_mul_hi_u32 v%d, v%d, s%d" % (row, c, S_T0))
            self("v_mul_u32_u24 v%d, 14, v%d" % (cc, row))
            self("v_sub_u32 v%d, v%d, v%d" % (cc, c, cc))
            self("v_mul_lo_u32 v%d, v%d, s%d" % (o, row, S_T0 + 2))
            self("v_lshl_add_u32 v%d, v%d, 4, v%d" % (o, cc, o))
            self("v_add_u32 v%d, 256, v%d" % (c, c))
        self("s_lshl_b32 s62, s%d, 5" % S_UOFF)
    def w1_stage_items(self, it0, it1):
        items = []
        for it in range(it0, it1):
            q, r = divmod(it, 7)
            if r == 0 or it == it0:
                items.append("s_add_u32 s61, s62, %d" % (q * 128 * 3456))
            items.append(("vm", "buffer_load_dwordx4 %s, v%d, s[%d:%d], s61 offen" % (ar(4 * it, 4), self.W1OFF + r, SRD_B, SRD_B + 3), "w1"))
        return items
    def w1_stage_to_lds(self):
        b = 160
        self("v_lshlrev_b32 v%d, 4, v%d" % (b, V_LANE))
        self("s_lshl_b32 s3, s%d, 10" % S_W)
        self("v_add_u32 v%d, s3, v%d" % (b, b))
        self("v_add_u32 v%d, 65536, v%d" % (b + 1, b))
        self("v_add_u32 v%d, 131072, v%d" % (b + 2, b))
        for it in range(35):
            o = 4096 * it
            self.lg("ds_write_b128 v%d, %s offset:%d" % (b + o // 65536, ar(4 * it, 4), o % 65536), "w1w")
    def w2_setup(self):
        self.srd(SRD_W2, P_WS, WP_SZ, const=WS_W2P)
        self("s_mul_i32 s3, s%d, %d" % (S_W, 14 * 40))
        self("s_mul_i32 s%d, s%d, 5" % (S_T0, S_CS))
        self("s_add_u32 s3, s3, s%d" % S_T0)
        self("s_lshl_b32 s%d, s3, 10" % S_W2B)
    def w2_items(self, f0, f1, vlane16):
        it = []
        last = None
        for f in range(f0, f1):
            s, i = divmod(f, 5)
            key = (s, i == 4)
            if key != last:
                it.append("s_add_u32 s61, s%d, %d" % (S_W2B, s * 40 * 1024 + (4096 if i == 4 else 0)))
                last = key
            it.append(("vm", "buffer_load_dwordx4 %s, v%d, s[%d:%d], s61 offen offset:%d" % (w2reg(f), vlane16, SRD_W2, SRD_W2 + 3, 0 if i == 4 else 1024 * i), "w2"))
        return it

    def post_conv(self):
        QN = V_CS
        self("v_lshlrev_b32 v160, 4, v%d" % V_L15)
        self("s_lshl_b32 s3, s%d, 4" % S_W)
        self("v_add_u32 v160, s3, v%d" % V_L15)
        self("v_mul_u32_u24 v160, 160, v160")
        self("v_lshl_add_u32 v160, v%d, 3, v160" % V_G)
        self("v_add_u32 v160, %d, v160" % LDS_Q)
        for u in range(5):
            self.lg("ds_read_b64 %s, v160 offset:%d" % (vr(V_X + 2 * u, 2), 32 * u), "q")
        self.lg_wait_all()
        self.unpack_tile(124, V_X)
        self.tile_stats(124, 0, 144)
        self("s_waitcnt lgkmcnt(0)")
        L = self.if_wave(3, eq=False)
        self("s_waitcnt vmcnt(0)")
        self.close(L)
        self.vmq = []; self.lgq = []
        self("s_barrier")
        self.stamp(10)
        L = self.if_wave(3)
        self("s_lshl_b32 s%d, s%d, 8" % (S_T0, S_G))
        self("s_lshl_b32 s%d, s%d, 3" % (S_T0 + 1, S_J))
        self("s_add_u32 s%d, s%d, s%d" % (S_T0, S_T0, S_T0 + 1))
        self("s_add_u32 s%d, s%d, %d" % (S_T0, S_T0, WS_YFLAG))
        self.flag_store(P_WS, S_T0, 1, device=True)
        self.close(L)
        self.row_stats_issue(0, 60)
        c1, c2 = self.o.get("w1c1", 24), self.o.get("w1c2", 34)
        L = self.if_wave(3, eq=False)
        self.w1_dma(list(range(0, c1)))
        self.close(L)
        self.stamp(11)
        La, Lb = self.label("L_qa"), self.label("L_qb")
        self("s_cmp_eq_u32 s%d, 3" % S_W)
        self("s_cbranch_scc1 %s" % La)
        self("s_waitcnt vmcnt(%d)" % c1)
        self("s_branch %s" % Lb)
        self("%s:" % La)
        self("s_waitcnt vmcnt(0)")
        self("%s:" % Lb)
        self.vmq = []
        self.row_stats_validate(0, 60)
        self.row_stats_finish(60, 24, 26)
        XF, d, t = 4, 28, 30
        self.unpack_tile(XF, V_X)
        for i in range(10):
            self("v_pk_add_f32 %s, %s, v[24:25] op_sel_hi:[1,0] neg_lo:[0,1] neg_hi:[0,1]" % (vr(d, 2), vr(XF + 2 * i, 2)))
            self.rnd_pair(d, t)
            self("v_pk_mul_f32 %s, %s, v[26:27] op_sel_hi:[1,0]" % (vr(d, 2), vr(d, 2)))
            self("v_cvt_pk_bf16_f32 v%d, v%d, v%d" % (QN + i, d, d + 1))
        Ly = self.if_wave(3)
        self.addr_pair(S_TMPP, P_WS, WS_PKFLAG)
        self("v_lshlrev_b32 v159, 5, v%d" % V_LANE)
        self.poll_pairs(S_TMPP, 159, 1, 0, 144, npair=4)
        self.stamp(40)
        self.addr_pair(S_TMPP, P_WS, WS_YFLAG)
        self("s_lshl_b32 s3, s%d, 8" % S_CS)
        self("s_lshl_b32 s%d, s%d, 8" % (S_T0, S_G))
        self("v_mov_b32 v181, s3")
        self("v_mov_b32 v180, s%d" % S_T0)
        self("v_cmp_gt_u32 vcc, 32, v%d" % V_LANE)
        self("v_cndmask_b32 v181, v180, v181, vcc")
        self("v_and_b32 v180, 31, v%d" % V_LANE)
        self("v_lshl_add_u32 v180, v180, 3, v181")
        self.poll_pairs(S_TMPP, 180, 1, 0, 176)
        self.stamp(41)
        self("s_mul_i32 s3, s%d, %d" % (S_CS, 80 * 4096))
        self("s_lshl_b32 s%d, s%d, 9" % (S_T0, S_G))
        self("s_add_u32 s3, s3, s%d" % S_T0)
        self("s_lshl_b32 s%d, s%d, 7" % (S_T0, S_RB))
        self("s_add_u32 s3, s3, s%d" % S_T0)
        self.addr_pair(S_TMPP, P_WS, WS_YT, 3)
        a, b = 164, 165
        self("v_lshrrev_b32 v%d, 3, v%d" % (a, V_LANE))
        self("v_lshlrev_b32 v%d, 12, v%d" % (a, a))
        self("v_and_b32 v%d, 7, v%d" % (b, V_LANE))
        self("v_lshl_add_u32 v%d, v%d, 4, v%d" % (a, b, a))
        for k in range(10):
            self("s_mov_b32 m0, %d" % (LDS_SCR + 1024 * k))
            self("v_add_u32 v%d, %d, v%d" % (b, 8 * 4096 * k, a))
            self("global_load_lds_dwordx4 v%d, s[%d:%d]" % (b, S_TMPP, S_TMPP + 1))
        self("s_waitcnt vmcnt(0)")
        self.close(Ly)
        self("s_barrier")
        self.stamp(12)
        L = self.if_wave(3, eq=False)
        self.w1_dma(list(range(c1, c2)))
        self.close(L)

        a, b = 164, 165
        self("v_bfe_u32 v%d, v%d, 2, 2" % (a, V_LANE))
        self("v_lshl_add_u32 v%d, v%d, 2, v%d" % (a, V_G, a))
        self("v_lshlrev_b32 v%d, 7, v%d" % (a, a))
        self("v_and_b32 v%d, 3, v%d" % (b, V_LANE))
        self("v_lshl_add_u32 v%d, v%d, 3, v%d" % (a, b, a))
        self("s_lshl_b32 s3, s%d, 5" % S_W)
        self("s_add_u32 s3, s3, %d" % LDS_SCR)
        self("v_add_u32 v%d, s3, v%d" % (a, a))
        for u in range(5):
            self.lg("ds_read_b64_tr_b16 %s, v%d offset:%d" % (vr(V_Y + 2 * u, 2), a, 16 * 128 * u), "ytr")
        self.xf_store_setup(S_XO1)
        yf, qf = 32, 34
        self.lg_wait_all()
        for i in range(10):
            self.unpack(yf, V_Y + i)
            self.unpack(qf, QN + i)
            self("v_pk_mul_f32 %s, %s, %s" % (vr(d, 2), vr(yf, 2), vr(qf, 2)))
            self.rnd_pair(d, t)
            self("v_pk_add_f32 %s, %s, %s" % (vr(XF + 2 * i, 2), vr(XF + 2 * i, 2), vr(d, 2)))
            self("v_cvt_pk_bf16_f32 v%d, v%d, v%d" % (V_X + i, XF + 2 * i, XF + 2 * i + 1))
            self.unpack(XF + 2 * i, V_X + i)
        self.xf_store()
        self.tile_stats(XF, 1, 28)

    def xf_store_setup(self, ws_off):
        self("s_lshl_b32 s3, s%d, 4" % S_G)
        self("s_lshl_b32 s%d, s%d, 2" % (S_T0, S_RB))
        self("s_add_u32 s3, s3, s%d" % S_T0)
        self("s_add_u32 s3, s3, s%d" % S_W)
        self("s_mul_i32 s3, s3, %d" % (20 * 1024))
        self("s_add_u32 s3, s3, s%d" % ws_off)
        a = 170
        self("v_lshlrev_b32 v%d, 4, v%d" % (a, V_LANE))
        self("v_add_u32 v%d, s3, v%d" % (a, a))
        self("s_mul_i32 s%d, s%d, 5" % (S_T0, S_CS))
        for u in range(5):
            self("s_add_u32 s%d, s%d, %d" % (S_T0 + 1, S_T0, u))
            self("s_lshr_b32 s%d, s%d, 1" % (S_T0 + 2, S_T0 + 1))
            self("s_lshl_b32 s%d, s%d, 10" % (S_T0 + 2, S_T0 + 2))
            self("s_and_b32 s%d, s%d, 1" % (S_T0 + 1, S_T0 + 1))
            self("s_lshl_b32 s%d, s%d, 3" % (S_T0 + 1, S_T0 + 1))
            self("s_add_u32 s%d, s%d, s%d" % (S_T0 + 1, S_T0 + 1, S_T0 + 2))
            self("v_add_u32 v%d, s%d, v%d" % (165 + u, S_T0 + 1, a))
    def xf_store(self):
        Lo, Ld = self.label("L_xo"), self.label("L_xd")
        p = "s[%d:%d]" % (P_WS, P_WS + 1)
        x4 = lambda u: "global_store_dwordx4 v%d, %s, %s" % (165 + u, vr(V_X + 2 * u, 4), p)
        x2 = lambda u: "global_store_dwordx2 v%d, %s, %s" % (165 + u, vr(V_X + 2 * u, 2), p)
        self("s_bitcmp1_b32 s%d, 0" % S_CS)
        self("s_cbranch_scc1 %s" % Lo)
        self.handoff_stores([x4(0), x4(2), x2(4)], record=False)
        self("s_branch %s" % Ld)
        self("%s:" % Lo)
        self.handoff_stores([x2(0), x4(1), x4(3)], record=False)
        self("%s:" % Ld)
        self.vmq.extend(["xf"] * 3)

    def mixer_update(self, m, rs, xf, tmp):
        yf, d = tmp, tmp + 2
        for i in range(10):
            X = xf + 2 * i
            self.unpack(yf, V_Y + i)
            self("v_pk_add_f32 %s, %s, %s op_sel_hi:[1,0] neg_lo:[0,1] neg_hi:[0,1]" % (vr(d, 2), vr(X, 2), vr(m, 2)))
            self("v_pk_mul_f32 %s, %s, %s op_sel_hi:[1,0]" % (vr(d, 2), vr(d, 2), vr(rs, 2)))
            self("v_pk_fma_f32 %s, %s, %s, %s" % (vr(X, 2), vr(d, 2), vr(yf, 2), vr(X, 2)))
            self("v_cvt_pk_bf16_f32 v%d, v%d, v%d" % (V_X + i, X, X + 1))
            self.unpack(X, V_X + i)

    def w1_lane_addr(self, a, tmp):
        self("v_bfe_u32 v%d, v%d, 2, 2" % (a, V_LANE))
        self("v_lshl_add_u32 v%d, v%d, 2, v%d" % (a, V_G, a))
        self("v_mul_u32_u24 v%d, %d, v%d" % (a, W1_STRIDE, a))
        self("v_and_b32 v%d, 3, v%d" % (tmp, V_LANE))
        self("v_lshl_add_u32 v%d, v%d, 3, v%d" % (a, tmp, a))
    def colsum(self):
        a, ones, acc = 164, 100, 104
        FR = [112, 120, 128, 136]
        for i in range(4): self("v_mov_b32 v%d, 0x3f803f80" % (ones + i))
        self.w1_lane_addr(a, a + 1)
        self("s_lshl_b32 s3, s%d, 6" % S_W)
        self("v_add_u32 v%d, s3, v%d" % (a, a))
        self("v_add_u32 v%d, %d, v%d" % (a + 1, 8 * 32 * W1_STRIDE, a))
        self("v_add_u32 v%d, %d, v%d" % (a + 2, 16 * 32 * W1_STRIDE, a))
        def loads(t):
            for i in range(2):
                for h in range(2):
                    self.lg("ds_read_b64_tr_b16 %s, v%d offset:%d" % (vr(FR[t % 4] + 4 * i + 2 * h, 2), a + (t // 8), ((t % 8) * 32 + h * 16) * W1_STRIDE + 32 * i), "cs%d" % t)
        for t in range(3): loads(t)
        for t in range(20):
            if t + 3 < 20: loads(t + 3)
            self.lg_wait("cs%d" % t)
            for i in range(2):
                c = vr(acc + 4 * i, 4) if t else "0"
                self("v_mfma_f32_16x16x32_bf16 %s, %s, %s, %s" % (vr(acc + 4 * i, 4), vr(FR[t % 4] + 4 * i, 4), vr(ones, 4), c))
        b = 144
        self("v_lshlrev_b32 v%d, 4, v%d" % (b, V_G))
        self("s_lshl_b32 s3, s%d, 7" % S_W)
        self("s_add_u32 s3, s3, %d" % LDS_CSX)
        self("v_add_u32 v%d, s3, v%d" % (b, b))
        self("v_cmp_eq_u32 vcc, 0, v%d" % V_L15)
        self("s_and_saveexec_b64 s[%d:%d], vcc" % (S_SAVE, S_SAVE + 1))
        self("ds_write_b128 v%d, %s" % (b, vr(acc, 4)))
        self("ds_write_b128 v%d, %s offset:64" % (b, vr(acc + 4, 4)))
        self.exec_restore()
        self.lg_wait_all()
    def colsum_fetch(self):
        b = 144
        self("v_lshlrev_b32 v%d, 4, v%d" % (b, V_G))
        self("v_add_u32 v%d, %d, v%d" % (b, LDS_CSX, b))
        for u in range(7):
            self.lg("ds_read_b128 %s, v%d offset:%d" % (vr(V_CS + 4 * u, 4), b, 64 * u), "cs")

    G1_ACC = 4; G1_AF = [60, 88]; G1_XR = 116; G1_DEPTH = 7; G1_LA = 172; G1_XA = 183; G1_ST = 174; G1_L16 = 182
    def g1_aloads(self, t, buf):
        l = []
        for i in range(7):
            for h in range(2):
                l.append(("lg", "ds_read_b64_tr_b16 %s, v%d offset:%d" % (vr(self.G1_AF[buf] + 4 * i + 2 * h, 2), self.G1_LA, h * 16 * W1_STRIDE + 32 * i), "a%d" % t))
        return l
    def g1_setup(self, xf_off, hf_off):
        self("s_lshl_b32 s3, s%d, 4" % S_G)
        self("s_lshl_b32 s%d, s%d, 3" % (S_T0, S_RT))
        self("s_add_u32 s3, s3, s%d" % S_T0)
        self("s_lshl_b32 s%d, s%d, 1" % (S_T0, S_W))
        self("s_add_u32 s%d, s3, s%d" % (S_RU0, S_T0))
        self("s_mul_i32 s3, s%d, %d" % (S_RU0, 20 * 1024))
        self("s_add_u32 s3, s3, s%d" % xf_off)
        self.addr_pair(S_XFB, P_WS, 0, 3)
        self.addr_pair(S_TMPQ, S_XFB, 20 * 1024)
        self("v_lshlrev_b32 v%d, 4, v%d" % (self.G1_XA, V_LANE))
        self("v_lshlrev_b32 v%d, 4, v%d" % (self.G1_L16, V_LANE))
        self("s_mul_i32 s%d, s%d, %d" % (S_T0 + 3, S_RU0, 54 * 1024))
        self("s_add_u32 s%d, s%d, %s" % (S_T0 + 3, S_T0 + 3, hf_off))
        for i in range(7):
            self("s_add_u32 s%d, s%d, %d" % (S_T0 + 1, S_UOFF, i))
            self("s_lshr_b32 s%d, s%d, 1" % (S_T0 + 2, S_T0 + 1))
            self("s_lshl_b32 s%d, s%d, 10" % (S_T0 + 2, S_T0 + 2))
            self("s_and_b32 s%d, s%d, 1" % (S_T0 + 1, S_T0 + 1))
            self("s_lshl_b32 s%d, s%d, 3" % (S_T0 + 1, S_T0 + 1))
            self("s_add_u32 s%d, s%d, s%d" % (S_T0 + 1, S_T0 + 1, S_T0 + 2))
            self("s_add_u32 s%d, s%d, s%d" % (S_T0 + 1, S_T0 + 1, S_T0 + 3))
            self("s_add_u32 s%d, s%d, s%d" % (72 + 2 * i, P_WS, S_T0 + 1))
            self("s_addc_u32 s%d, s%d, 0" % (73 + 2 * i, P_WS + 1))
        self.w1_lane_addr(self.G1_LA, 59)
        for x in self.g1_aloads(0, 0): self.lg(x[1], x[2])
        self("v_add_u32 v%d, 7168, v%d" % (self.G1_LA, self.G1_LA))
    def g1_main(self, statbuf, sb=None, w2range=None, ldf='', pretouch=False, hwt=False, main_only=False):
        ACC, AF, XR, DEPTH, la, xa, ST = self.G1_ACC, self.G1_AF, self.G1_XR, self.G1_DEPTH, self.G1_LA, self.G1_XA, self.G1_ST
        def xload(t):
            for rho in range(2):
                base = S_XFB if rho == 0 else S_TMPQ
                d = XR + ((t % DEPTH) * 2 + rho) * 4
                self.vm("global_load_dwordx4 %s, v%d, s[%d:%d] offset:%d %s" % (vr(d, 4), xa, base, base + 1, (t % 4) * 1024, ldf), "x%d" % t)
            if t % 4 == 3: self("v_add_u32 v%d, 4096, v%d" % (xa, xa))
        for t in range(3): xload(t)
        sa = 59
        self("s_lshl_b32 s3, s%d, 11" % S_RU0)
        self("s_add_u32 s3, s3, %d" % (WS_STAT + statbuf * STAT_SZ))
        self("v_lshlrev_b32 v%d, 7, v%d" % (sa, V_L15))
        self("v_lshl_add_u32 v%d, v%d, 5, v%d" % (sa, V_G, sa))
        self("v_add_u32 v%d, s3, v%d" % (sa, sa))
        for rho in range(2):
            for k in range(2):
                self.vm("global_load_dwordx2 %s, v%d, s[%d:%d] offset:%d" % (vr(ST + 4 * rho + 2 * k, 2), sa, P_WS, P_WS + 1, 2048 * rho + 16 * k), "st")
        for t in range(3, DEPTH): xload(t)
        if pretouch:
            self("s_mul_i32 s3, s%d, %d" % (S_RU0, 54 * 1024))
            self("s_lshr_b32 s%d, s%d, 1" % (S_T0, S_UOFF))
            self("s_lshl_b32 s%d, s%d, 10" % (S_T0, S_T0))
            self("s_add_u32 s3, s3, s%d" % S_T0)
            self("s_and_b32 s%d, s%d, 1" % (S_T0, S_UOFF))
            self("s_lshl_b32 s%d, s%d, 3" % (S_T0, S_T0))
            self("s_add_u32 s3, s3, s%d" % S_T0)
            self("s_add_u32 s3, s3, %d" % WS_HF1)
            self("v_lshrrev_b32 v57, 5, v%d" % V_LANE)
            self("v_mul_u32_u24 v57, %d, v57" % (54 * 1024))
            self("v_and_b32 v58, 31, v%d" % V_LANE)
            self("v_lshl_add_u32 v58, v58, 7, v57")
            self("v_add_u32 v58, s3, v58")
            Lp = self.label("L_pth")
            self("s_cmp_lg_u32 s%d, 0" % S_MODE)
            self("s_cbranch_scc1 %s" % Lp)
            self("global_store_dword v58, v58, s[%d:%d]" % (P_WS, P_WS + 1))
            self("%s:" % Lp)
        w2items = self.w2_items(w2range[0], w2range[1], self.G1_L16) if w2range else []
        nper = -(-len(w2items) // 16)
        for t in range(20):
            if t == 1 and sb: self.stamp(sb)
            buf = t & 1
            nxt = self.g1_aloads(t + 1, buf ^ 1) if t < 19 else []
            self.lg_wait_all()
            self.vm_wait("x%d" % t)
            self.bg_add(nxt)
            if t >= 1:
                self.bg_add(w2items[:nper]); w2items = w2items[nper:]
            nbg = len(self.bgq); done = 0
            k = 0
            for i in range(7):
                for rho in range(2):
                    acc = ACC + (rho * 7 + i) * 4
                    c = vr(acc, 4) if t else "0"
                    self("v_mfma_f32_16x16x32_bf16 %s, %s, %s, %s" % (vr(acc, 4), vr(AF[buf] + 4 * i, 4), vr(XR + ((t % DEPTH) * 2 + rho) * 4, 4), c))
                    k += 1
                    want = min(nbg, -(-nbg * k // 11))
                    self.bg_step(want - done); done = want
            self.bg_flush()
            if t < 19: self("v_add_u32 v%d, 7168, v%d" % (la, la))
            if t + DEPTH < 20: xload(t + DEPTH)
        if sb: self.stamp(sb + 1)
        if main_only: return
        self.g1_epilogue(hwt)
    def g1_epilogue(self, hwt=False):
        ACC, AF, XR, DEPTH, la, xa, ST = self.G1_ACC, self.G1_AF, self.G1_XR, self.G1_DEPTH, self.G1_LA, self.G1_XA, self.G1_ST
        M = [60, 64]; RS = [62, 66]
        self.vm_wait_all()
        for rho in range(2):
            for i in range(4): self("v_mov_b32 v%d, v%d" % (72 + i, ST + 4 * rho + i))
            self.row_stats_finish(72, M[rho], RS[rho])
        ha = 80
        self("v_add_u32 v%d, %d, v%d" % (ha, 54 * 1024, self.G1_L16))
        HA = [self.G1_L16, ha]
        lines = []
        O = 100
        for rho in range(2):
            for i in range(7):
                acc = ACC + (rho * 7 + i) * 4
                for p in range(2):
                    A = acc + 2 * p; C = V_CS + 4 * i + 2 * p
                    self("v_pk_fma_f32 %s, %s, %s, %s op_sel_hi:[1,0,1] neg_lo:[0,1,0] neg_hi:[0,1,0]" % (vr(A, 2), vr(C, 2), vr(M[rho], 2), vr(A, 2)))
                    self("v_pk_mul_f32 %s, %s, %s op_sel_hi:[1,0]" % (vr(A, 2), vr(A, 2), vr(RS[rho], 2)))
                    o = O + (rho * 7 + i) * 2 + p
                    self("v_cvt_pk_bf16_f32 v%d, v%d, v%d" % (o, A, A + 1))
                    self("v_pk_max_i16 v%d, v%d, 0" % (o, o))
        def st(rho, i, n):
            return "global_store_dwordx%d v%d, %s, s[%d:%d]" % (n, HA[rho], vr(O + (rho * 7 + i) * 2, n), 72 + 2 * i, 73 + 2 * i)
        Lo, Ld = self.label("L_ho"), self.label("L_hd")
        self("s_bitcmp1_b32 s%d, 0" % S_UOFF)
        self("s_cbranch_scc1 %s" % Lo)
        def emit(lines):
            if hwt:
                for l in lines: self(l + " sc0 sc1")
            else: self.handoff_stores(lines, record=False)
        emit([st(rho, i, 4 if i < 6 else 2) for rho in range(2) for i in (0, 2, 4, 6)])
        self("s_branch %s" % Ld)
        self("%s:" % Lo)
        emit([st(rho, i, 4 if i > 0 else 2) for rho in range(2) for i in (0, 1, 3, 5)])
        self("%s:" % Ld)
        self.vmq.extend(["h"] * 8)

    G2_ACC = [4, 24]; G2_HR = 44; G2_HA = 100; G2_RA = 104; G2_TMP = 108; G2_SUM = 128
    def g2_setup(self, hf_off):
        ha, ra = self.G2_HA, self.G2_RA
        for s in range(14):
            self("s_mul_i32 s3, s%d, 14" % S_W)
            self("s_add_u32 s3, s3, %d" % s)
            self("s_min_u32 s3, s3, 53")
            self("s_lshl_b32 s%d, s3, 10" % (S_HSTEP + s))
        self.srd(SRD_A, P_WS, 0x10000000 - self.o.get('wsbase', 0))
        for k in range(4):
            self("s_add_u32 s3, s%d, %d" % (S_W, 1 + k))
            self("s_and_b32 s3, s3, 3")
            self("s_mul_i32 s%d, s3, 5120" % (S_T0 + 1))
            self("s_lshl_b32 s%d, s%d, 4" % (S_T0, S_G))
            self("s_add_u32 s3, s3, s%d" % S_T0)
            self("s_lshl_b32 s%d, s%d, 2" % (S_T0, S_RB))
            self("s_add_u32 s3, s3, s%d" % S_T0)
            self("s_mul_i32 s3, s3, %d" % (54 * 1024))
            self("s_add_u32 s3, s3, %s" % hf_off)
            self("v_lshlrev_b32 v%d, 4, v%d" % (ha + k, V_LANE))
            self("v_add_u32 v%d, s3, v%d" % (ha + k, ha + k))
            self("v_lshlrev_b32 v%d, 4, v%d" % (ra + k, V_LANE))
            self("s_add_u32 s3, s%d, %d" % (S_T0 + 1, LDS_SCR))
            self("v_add_u32 v%d, s3, v%d" % (ra + k, ra + k))
    def g2_main(self, sb=None, ldf=''):
        ACC, HR, ha, ra, TMP, SUM = self.G2_ACC, self.G2_HR, self.G2_HA, self.G2_RA, self.G2_TMP, self.G2_SUM
        def hload(p):
            k, s = divmod(p, 14)
            if self.o.get("g2_noload") and p >= 14: return
            self.vm("buffer_load_dwordx4 %s, v%d, s[%d:%d], s%d offen %s" % (vr(HR + 4 * s, 4), ha + k, SRD_A, SRD_A + 3, S_HSTEP + s, ldf), "h%d" % p)
        for p in range(14): hload(p)
        if sb: self.stamp(sb)
        late = []
        for k in range(4):
            acc = ACC[k & 1]; prev = ACC[(k & 1) ^ 1]
            for s in range(14):
                p = 14 * k + s
                if k > 0 and not self.o.get("g2_nobar"):
                    sA, sB = self.o.get("g2_sA", 7), self.o.get("g2_sB", 11)
                    w0 = self.o.get("g2_w0", 1)
                    X = self.o.get("g2_x", "wbra")
                    if w0 <= s < w0 + 5 and "w" in X:
                        i = s - w0
                        late.append(("lg", "ds_write_b128 v%d, %s offset:%d" % (ra + k - 1, vr(prev + 4 * i, 4), 1024 * i), "rw"))
                    if s == sA:
                        self.bg_flush()
                        if "b" in X: self.lg_wait_all(); self("s_barrier")
                        rd = [("lg", "ds_read_b128 %s, v%d offset:%d" % (vr(TMP + 4 * i, 4), ra + 3, 1024 * i), "rr") for i in range(5)]
                        if "r" in X: self.bg_add(rd)
                    if s == sB:
                        self.bg_flush()
                        if "b" in X: self.lg_wait_all(); self("s_barrier")
                        if "a" not in X: pass
                        elif k == 1:
                            self.bg_add(["v_mov_b32 v%d, v%d" % (SUM + j, TMP + j) for j in range(20)])
                        else:
                            self.bg_add(["v_pk_add_f32 %s, %s, %s" % (vr(SUM + j, 2), vr(SUM + j, 2), vr(TMP + j, 2)) for j in range(0, 20, 2)])
                self.vm_wait("h%d" % p)
                for i in range(5):
                    c = vr(acc + 4 * i, 4) if s > 0 else "0"
                    self("v_mfma_f32_16x16x32_bf16 %s, %s, %s, %s" % (vr(acc + 4 * i, 4), w2reg(s * 5 + i), vr(HR + 4 * s, 4), c))
                    if i == 2 and late:
                        x = late.pop(0); self.lg(x[1], x[2])
                    else:
                        self.bg_step(2 if k == 1 and s >= 11 else 1)
                if p + 14 < 56: hload(p + 14)
            self.bg_flush()
        if sb: self.stamp(sb + 1)
        acc = ACC[1]
        for j in range(0, 20, 2):
            self("v_pk_add_f32 %s, %s, %s" % (vr(SUM + j, 2), vr(SUM + j, 2), vr(acc + j, 2)))
        return SUM

    def residual_add(self, RES, XF):
        t = 178
        self.unpack_tile(XF, V_X)
        for i in range(10):
            self.rnd_pair(RES + 2 * i, t)
            self("v_pk_add_f32 %s, %s, %s" % (vr(XF + 2 * i, 2), vr(XF + 2 * i, 2), vr(RES + 2 * i, 2)))
            self("v_cvt_pk_bf16_f32 v%d, v%d, v%d" % (V_X + i, XF + 2 * i, XF + 2 * i + 1))
            self.unpack(XF + 2 * i, V_X + i)

    def store_out(self):
        t2 = 164
        self.rowbase()
        self("v_add_u32 v%d, s3, v%d" % (t2, V_L15))
        self("v_mul_u32_u24 v%d, 1280, v%d" % (t2, t2))
        self("s_mul_i32 s3, s%d, 160" % S_CS)
        self("v_lshlrev_b32 v%d, 3, v%d" % (t2 + 1, V_G))
        self("v_add3_u32 v%d, v%d, v%d, s3" % (t2, t2, t2 + 1))
        for u in range(5):
            self.vm("global_store_dwordx2 v%d, %s, s[%d:%d] offset:%d %s" % (t2, vr(V_X + 2 * u, 2), P_OUT, P_OUT + 1, 32 * u, self.o.get("outf", "")), "out")

    def epoch_update(self):
        L = self.label("L_ep")
        self("s_add_u32 s3, s2, s%d" % S_W)
        self("s_cmp_lg_u32 s3, 0")
        self("s_cbranch_scc1 %s" % L)
        self("s_sub_u32 s3, s%d, 0x%x" % (S_TAG, TAG0))
        self("s_add_u32 s3, s3, 16")
        self("v_mov_b32 v176, s3")
        self("v_mov_b32 v177, %d" % WS_EPOCH)
        self.exec_set("1")
        self("global_store_dword v177, v176, s[%d:%d] sc0 sc1" % (P_WS, P_WS + 1))
        self.exec_restore()
        self("%s:" % L)

    def build(self):
        o = self.o
        self.prologue()
        if o.get("stamps"): self("v_mov_b32 v%d, 0" % V_STAMP)
        self.stamp(0)
        self.prep_loads()
        self.stamp(38)
        self.prep_compute()
        self.stamp(2)
        self.mode_check()
        self.lg_wait_all()
        self("s_barrier")
        self.mode_fetch()
        self.stamp(3)
        self.prep_store_ur()
        self.stamp(4)
        self.barrier_arrive(1, drain=False)
        self.build_kcopies()
        self.w1_stage_setup()
        self.w2_setup()
        self.stamp(5)
        self.barrier_wait(1)
        self.stamp(6)
        self.vmq = []; self.lgq = []
        self.conv()
        self.stamp(9)
        self.post_conv()
        self.stamp(13)
        L = self.if_wave(3, eq=False)
        self.w1_dma(list(range(o.get("w1c2", 34), 47)))
        self.close(L)
        self.barrier_arrive(2)
        na, nb = o.get("w2a", 22), o.get("w2b", 48)
        self("v_lshlrev_b32 v163, 4, v%d" % V_LANE)
        self.bg_add(self.w2_items(0, na, 163)); self.bg_flush()
        self.colsum()
        self("s_barrier")
        self.colsum_fetch()
        self.stamp(14)
        self.g1_setup(S_XO1, str(WS_HF1))
        self.lg_wait_all()
        self.barrier_wait(2)
        self.stamp(15)
        self.g1_main(1, 16, w2range=(na, nb), ldf='sc1', main_only=True)
        self.g1_epilogue(hwt=o.get('hwt', 0))
        self.stamp(18)
        self.barrier_arrive(3)
        self("v_lshlrev_b32 v163, 4, v%d" % V_LANE)
        self.bg_add(self.w2_items(nb, 70, 163)); self.bg_flush()
        self.g2_setup(str(WS_HF1))
        self.barrier_wait(3)
        self.stamp(21)
        RES = self.g2_main(22)
        self.stamp(24)
        XF = 4
        self.residual_add(RES, XF)
        self.tile_stats(XF, 2, 28)
        self.row_stats_issue(2, 60)
        self.xf_store_setup(S_XO3)
        self.stamp(25)
        self.vm_wait("rs")
        self.row_stats_validate(2, 60)
        self.stamp(26)
        self.row_stats_finish(60, 24, 26)
        self.mixer_update(24, 26, XF, 28)
        self.xf_store()
        self.tile_stats(XF, 3, 28)
        self.stamp(27)
        self.barrier_arrive(4)
        self.g1_setup(S_XO3, 's%d' % S_HO2)
        self.barrier_wait(4)
        self.stamp(28)
        self.g1_main(3, 29, ldf='sc1')
        self.stamp(31)
        self.barrier_arrive(5)
        self.g2_setup('s%d' % S_HO2)
        self.barrier_wait(5)
        if o.get("wbl2"):
            L = self.label("L_wb")
            self("s_lshl_b32 s3, s%d, 2" % S_J)
            self("s_add_u32 s3, s3, s%d" % S_W)
            self("s_cmp_lg_u32 s3, %d" % o.get("wbl2_who", 1))
            self("s_cbranch_scc1 %s" % L)
            self("buffer_wbl2 sc1")
            self("%s:" % L)
        self.stamp(32)
        RES = self.g2_main(33, ldf='sc1')
        self.stamp(35)
        self.residual_add(RES, 4)
        self.store_out()
        self.epoch_update()
        self.stamp(36)
        self("s_waitcnt vmcnt(0)")
        self.stamp(37)
        self.stamp_dump()
        if self.o.get("dbgtime"):
            L = self.label("L_dt")
            self("s_add_u32 s3, s%d, s%d" % (S_J, S_W))
            self("s_cmp_lg_u32 s3, 0")
            self("s_cbranch_scc1 %s" % L)
            self("s_memrealtime s[94:95]")
            self("s_memtime s[92:93]")
            self("s_waitcnt lgkmcnt(0)")
            self("s_sub_u32 s94, s94, s98")
            self("s_sub_u32 s92, s92, s100")
            self("v_mov_b32 v4, s94")
            self("v_mov_b32 v5, s92")
            self("s_lshl_b32 s3, s%d, 3" % S_G)
            self("v_mov_b32 v6, s3")
            self("s_mov_b64 exec, 1")
            self("global_store_dwordx2 v6, v[4:5], s[%d:%d]" % (P_DBG, P_DBG + 1))
            self("%s:" % L)
        self("s_waitcnt vmcnt(0)")
        self("s_branch L_end")
        self("L_abort:")
        self("L_end:")
        self("s_endpgm")

def make(opts):
    k = K(opts)
    k.build()
    body, added = k.text()
    hdr = open("interleave_layers__ssm_conv_h3__dense_activation_relu__prompt.s.ref").read().split("\n")
    head = [l for l in hdr if l.startswith(";") and "@launch" not in l and "Override launch" not in l and "grid=ceil" not in l][:13]
    txt = "\n".join(head) + "\n"
    txt += "; @launch grid=(256,1,1) block=(256,1,1) lds=%d\n" % LDS_TOTAL
    txt += '.amdgcn_target "amdgcn-amd-amdhsa--gfx950"\n.text\n.globl %s\n.p2align 8\n.type %s,@function\n%s:\n' % (KNAME, KNAME, KNAME)
    txt += body
    txt += """.section .rodata,"a"
.p2align 6
.amdhsa_kernel %s
  .amdhsa_next_free_vgpr 512
  .amdhsa_next_free_sgpr 102
  .amdhsa_accum_offset 256
  .amdhsa_group_segment_fixed_size 0
  .amdhsa_kernarg_size 96
  .amdhsa_user_sgpr_count 2
  .amdhsa_user_sgpr_kernarg_segment_ptr 1
  .amdhsa_system_sgpr_workgroup_id_x 1
.end_amdhsa_kernel
""" % KNAME
    return txt, added, len(k.ins)

if __name__ == "__main__":
    import argparse, json
    ap = argparse.ArgumentParser()
    ap.add_argument("-o", default="interleave_layers__ssm_conv_h3__dense_activation_relu__prompt.s")
    ap.add_argument("--opts", default="{}")
    a = ap.parse_args()
    txt, added, n = make(json.loads(a.opts))
    open(a.o, "w").write(txt)
    print("wrote", a.o, "instructions", n, "nop states added", added, "bytes", len(txt))
```

```python
import sys
sys.path.insert(0, "work")
from gen import *

KNAME = "interleave_layers__ssm_conv_h3__dense_activation_relu__prompt_kernel"

WS_EPOCH = 0x0
WS_XCCF  = 0x400
WS_LFLAG = 0x1000
WS_YFLAG = 0x2000
WS_PKFLAG = 0x3000
WS_STAT  = 0x100000
STAT_SZ  = 0x40000
WS_UR    = 0x200000
WS_YT    = 0x500000
WS_W1P   = 0x800000
WS_W2P   = 0xB00000
WP_SZ    = 2211840
WS_XF1   = 0xE00000
WS_XF3   = 0x1100000
WS_HF1   = 0x1400000
WS_HF2   = 0x1B00000
WS_STAMP = 0x2200000
KX = 0x5BD1E995
TAG0 = 0x9E3779B9

KC_STRIDE = 4160
SLOT = 8 * KC_STRIDE + 4608
U_OFF = 8 * KC_STRIDE
LDS_T = 3 * SLOT
T_STRIDE = 144
LDS_W1 = 0
W1_STRIDE = 224
LDS_SCR = 140 * 1024
LDS_TOTAL = 163840
LDS_MODE = LDS_TOTAL - 16
LDS_CSX = LDS_SCR + 16384
LDS_RP = LDS_T + 80 * T_STRIDE
LDS_Q = LDS_RP + 3 * 4096

S_G, S_J, S_W, S_MODE = 4, 5, 6, 7
SRD_A, SRD_B = 8, 12
P_Q, P_K, P_V, P_SK, P_SSM, P_D, P_W1 = 16, 18, 20, 22, 24, 26, 30
P_W2, P_OUT, P_DBG, P_WS = 32, 34, 36, 38
S_TAG = 28
S_KX = 29
S_RB, S_CS, S_RT, S_CT, S_UOFF = 40, 41, 42, 43, 44
S_MASK = 45
S_XCC = 46
S_CH = 47
S_HASCH = 48
S_DVAL = 49
S_T0 = 50
SRD_W2 = 56
S_W2B = 60
S_RU0 = 63
S_LFLAG = 64
S_TMPP = 66
S_TMPQ = 68
S_SLOT = 70
S_TMO = 71
S_HSTEP = 72
S_XFB = 86
S_M2 = 88
S_XO1, S_XO3, S_HO2 = 90, 91, 96
S_SAVE = 92
S_TS = 94

V_TID, V_LANE, V_L15, V_G = 0, 1, 2, 3
V_STAMP = 173
V_CS = 184
V_Y = 212
V_X = 222
V_W2X = 232

def w2reg(f):
    return ar(4 * f, 4) if f < 64 else vr(V_W2X + 4 * (f - 64), 4)

TIMEOUT = 400000

class K(Gen):
    def __init__(self, opts):
        super().__init__()
        self.o = opts
        self.bgq = []

    def stamp(self, idx):
        if not self.o.get("stamps"): return
        self("s_memtime s[%d:%d]" % (S_TS, S_TS + 1))
        self("s_waitcnt lgkmcnt(0)")
        self("v_writelane_b32 v%d, s%d, %d" % (V_STAMP, S_TS, idx))
        self.lgq = []
    def stamp_dump(self):
        if not self.o.get("stamps"): return
        self("s_memrealtime s[%d:%d]" % (S_TS, S_TS + 1))
        self("s_waitcnt lgkmcnt(0)")
        self("v_writelane_b32 v%d, s%d, 63" % (V_STAMP, S_TS))
        self("v_writelane_b32 v%d, s98, 62" % V_STAMP)
        self("s_lshl_b32 s3, s2, 2")
        self("s_add_u32 s3, s3, s%d" % S_W)
        self("s_lshl_b32 s3, s3, 8")
        self("s_add_u32 s3, s3, %d" % WS_STAMP)
        self("v_lshlrev_b32 v180, 2, v%d" % V_LANE)
        self("v_add_u32 v180, s3, v180")
        self("global_store_dword v180, v%d, s[%d:%d]" % (V_STAMP, P_WS, P_WS + 1))
    def bg_add(self, items): self.bgq.extend(items)
    def bg_step(self, n=1):
        q = self.bgq
        while n > 0 and q:
            it = q.pop(0)
            if callable(it): it()
            elif isinstance(it, tuple):
                kind, text, tag = it
                (self.vm if kind == "vm" else self.lg)(text, tag)
            else: self(it)
            n -= 1
    def bg_flush(self): self.bg_step(1 << 30)
    def if_wave(self, w, eq=True):
        L = self.label("L_iw")
        self("s_cmp_%s_u32 s%d, %d" % ("lg" if eq else "eq", S_W, w))
        self("s_cbranch_scc1 %s" % L)
        return L
    def close(self, L): self("%s:" % L)
    def exec_set(self, mask):
        self("s_mov_b64 s[%d:%d], exec" % (S_SAVE, S_SAVE + 1))
        self("s_mov_b64 exec, %s" % mask)
    def exec_restore(self): self("s_mov_b64 exec, s[%d:%d]" % (S_SAVE, S_SAVE + 1))
    def rnd_pair(self, p, t):
        self("v_cvt_pk_bf16_f32 v%d, v%d, v%d" % (t, p, p + 1))
        self("v_lshlrev_b32 v%d, 16, v%d" % (p, t))
        self("v_and_b32 v%d, s%d, v%d" % (p + 1, S_MASK, t))
    def unpack(self, dst, src):
        self("v_lshlrev_b32 v%d, 16, v%d" % (dst, src))
        self("v_and_b32 v%d, s%d, v%d" % (dst + 1, S_MASK, src))
    def unpack_tile(self, dst, src):
        for i in range(10): self.unpack(dst + 2 * i, src + i)
    def rnd1(self, r, t):
        self("v_cvt_pk_bf16_f32 v%d, v%d, v%d" % (t, r, r))
        self("v_lshlrev_b32 v%d, 16, v%d" % (r, t))
    def xg_sum(self, r, t):
        self("v_mov_b32 v%d, v%d" % (t, r))
        self("v_permlane16_swap_b32 v%d, v%d" % (r, t))
        self("v_add_f32 v%d, v%d, v%d" % (r, r, t))
        self("v_mov_b32 v%d, v%d" % (t, r))
        self("v_permlane32_swap_b32 v%d, v%d" % (r, t))
        self("v_add_f32 v%d, v%d, v%d" % (r, r, t))
    def srd(self, q, ptr, nbytes, const=0, add_sgpr=None):
        self("s_add_u32 s%d, s%d, %d" % (q, ptr, const))
        self("s_addc_u32 s%d, s%d, 0" % (q + 1, ptr + 1))
        if add_sgpr is not None:
            self("s_add_u32 s%d, s%d, s%d" % (q, q, add_sgpr))
            self("s_addc_u32 s%d, s%d, 0" % (q + 1, q + 1))
        self("s_and_b32 s%d, s%d, 0xffff" % (q + 1, q + 1))
        self("s_mov_b32 s%d, %d" % (q + 2, nbytes))
        self("s_mov_b32 s%d, 0x20000" % (q + 3))
    def addr_pair(self, dst, ptr, const=0, add_sgpr=None):
        self("s_add_u32 s%d, s%d, %d" % (dst, ptr, const))
        self("s_addc_u32 s%d, s%d, 0" % (dst + 1, ptr + 1))
        if add_sgpr is not None:
            self("s_add_u32 s%d, s%d, s%d" % (dst, dst, add_sgpr))
            self("s_addc_u32 s%d, s%d, 0" % (dst + 1, dst + 1))
    def handoff_stores(self, lines, tagname="st", record=True):
        Ls, Ld = self.label("L_slow"), self.label("L_sd")
        self("s_cmp_eq_u32 s%d, 0" % S_MODE)
        self("s_cbranch_scc0 %s" % Ls)
        for l in lines: self(l)
        self("s_branch %s" % Ld)
        self("%s:" % Ls)
        for l in lines: self(l + " sc0 sc1")
        self("%s:" % Ld)
        if record:
            for l in lines: self.vmq.append(tagname)
    def rowbase(self):
        self("s_lshl_b32 s3, s%d, 8" % S_G)
        self("s_lshl_b32 s%d, s%d, 6" % (S_T0, S_RB))
        self("s_add_u32 s3, s3, s%d" % S_T0)
        self("s_lshl_b32 s%d, s%d, 4" % (S_T0, S_W))
        self("s_add_u32 s3, s3, s%d" % S_T0)

    def flag_store(self, base_pair, off_sgpr, val, device, vt=176):
        if isinstance(val, int): self("s_add_u32 s3, s%d, %d" % (S_TAG, val))
        else: self("s_add_u32 s3, s%d, %s" % (S_TAG, val))
        self("v_mov_b32 v%d, s3" % vt)
        self("s_xor_b32 s3, s3, s%d" % S_KX)
        self("v_mov_b32 v%d, s3" % (vt + 1))
        self("v_mov_b32 v%d, s%d" % (vt + 2, off_sgpr))
        self.exec_set("1")
        line = "global_store_dwordx2 v%d, %s, s[%d:%d]" % (vt + 2, vr(vt, 2), base_pair, base_pair + 1)
        if device: self(line + " sc0 sc1")
        else: self.handoff_stores([line], record=False)
        self.exec_restore()
    def pair_bad(self, w0, w1, lo, span, t, acc=None):
        self("v_subrev_u32 v%d, s%d, v%d" % (t, lo, w0))
        self("v_cmp_lt_u32 vcc, %d, v%d" % (span, t))
        self("v_xor_b32 v%d, v%d, v%d" % (t, w0, w1))
        self("v_cmp_ne_u32 s[%d:%d], s%d, v%d" % (S_M2, S_M2 + 1, S_KX, t))
        self("s_or_b64 s[%d:%d], vcc, s[%d:%d]" % (S_M2, S_M2 + 1, S_M2, S_M2 + 1))
    def poll_pairs(self, base_pair, voff, lo, span, vt, npair=1):
        L = self.label("L_poll")
        self("s_add_u32 s%d, s%d, %d" % (S_T0 + 5, S_TAG, lo))
        self("s_mov_b32 s%d, %d" % (S_TMO, TIMEOUT))
        self("%s:" % L)
        if npair == 1:
            self("global_load_dwordx2 %s, v%d, s[%d:%d] sc1" % (vr(vt, 2), voff, base_pair, base_pair + 1))
        else:
            for k in range(npair // 2):
                self("global_load_dwordx4 %s, v%d, s[%d:%d] offset:%d sc1" % (vr(vt + 4 * k, 4), voff, base_pair, base_pair + 1, 16 * k))
        self("s_sub_u32 s%d, s%d, 1" % (S_TMO, S_TMO))
        self("s_cmp_eq_u32 s%d, 0" % S_TMO)
        self("s_cbranch_scc1 L_abort")
        self("s_waitcnt vmcnt(0)")
        for k in range(npair):
            self.pair_bad(vt + 2 * k, vt + 2 * k + 1, S_T0 + 5, span, vt + 2 * npair)
            self("s_cbranch_scc1 %s" % L)

    def barrier_arrive(self, phase, drain=True, wave=0):
        if drain: self.wait_all()
        self("s_barrier")
        L = self.if_wave(wave)
        self("s_lshl_b32 s%d, s%d, 3" % (S_T0, S_J))
        self.flag_store(S_LFLAG, S_T0, phase, device=False)
        self.close(L)
    def pk_wait(self):
        L = self.if_wave(3)
        self.addr_pair(S_TMPP, P_WS, WS_PKFLAG)
        self("v_lshlrev_b32 v174, 5, v%d" % V_LANE)
        self.poll_pairs(S_TMPP, 174, 1, 0, 4, npair=4)
        self.stamp(40)
        self.close(L)
    def barrier_wait(self, phase, wave=0, vt=176):
        L = self.if_wave(wave)
        self("v_and_b32 v%d, 31, v%d" % (vt + 4, V_LANE))
        self("v_lshlrev_b32 v%d, 3, v%d" % (vt + 4, vt + 4))
        self.poll_pairs(S_LFLAG, vt + 4, phase, 7 - phase, vt)
        self.close(L)
        self("s_barrier")

    def prologue(self):
        self("s_cmp_ge_u32 s2, 256")
        self("s_cbranch_scc1 L_end")
        if self.o.get("dbgtime") or self.o.get("stamps"):
            self("s_memrealtime s[98:99]")
            self("s_memtime s[100:101]")
        self("s_load_dwordx16 s[16:31], s[0:1], 0")
        self("s_load_dwordx8 s[32:39], s[0:1], 64")
        self("s_and_b32 s%d, s2, 7" % S_G)
        self("s_lshr_b32 s%d, s2, 3" % S_J)
        self("v_lshrrev_b32 v4, 6, v0")
        self("v_readfirstlane_b32 s%d, v4" % S_W)
        self("v_and_b32 v%d, 63, v0" % V_LANE)
        self("v_and_b32 v%d, 15, v0" % V_L15)
        self("v_bfe_u32 v%d, v0, 4, 2" % V_G)
        self("s_getreg_b32 s%d, hwreg(HW_REG_XCC_ID, 0, 4)" % S_XCC)
        self("s_mov_b32 s%d, 0xffff0000" % S_MASK)
        self("s_lshr_b32 s%d, s%d, 3" % (S_RB, S_J))
        self("s_and_b32 s%d, s%d, 7" % (S_CS, S_J))
        self("s_lshr_b32 s%d, s%d, 4" % (S_RT, S_J))
        self("s_and_b32 s%d, s%d, 15" % (S_CT, S_J))
        self("s_mul_i32 s3, s%d, %d" % (S_CT, 11 * 4370))
        self("s_lshr_b32 s3, s3, 16")
        self("s_mul_i32 s%d, s%d, 6" % (S_UOFF, S_CT))
        self("s_add_u32 s%d, s%d, s3" % (S_UOFF, S_UOFF))
        self("s_mov_b32 s%d, 0" % S_MODE)
        self("s_waitcnt lgkmcnt(0)")
        wsb = self.o.get("wsbase", 0)
        if wsb:
            self("s_add_u32 s%d, s%d, 0x%x" % (P_WS, P_WS, wsb))
            self("s_addc_u32 s%d, s%d, 0" % (P_WS + 1, P_WS + 1))
        self("s_load_dword s%d, s[%d:%d], %d" % (S_TAG, P_WS, P_WS + 1, WS_EPOCH))
        self("s_mov_b32 s%d, 0x%x" % (S_KX, KX))
        self("s_lshl_b32 s3, s%d, 8" % S_G)
        self.addr_pair(S_LFLAG, P_WS, WS_LFLAG, 3)

    def repack_issue(self):
        L = self.if_wave(3)
        row, ch, off = 100, 101, 102
        self("v_lshrrev_b32 v%d, 3, v%d" % (row, V_LANE))
        self("v_and_b32 v%d, 7, v%d" % (ch, V_LANE))
        self("v_lshlrev_b32 v%d, 4, v%d" % (ch, ch))
        self("v_mul_u32_u24 v%d, 1280, v%d" % (103, row))
        self("v_add_u32 v%d, v%d, v%d" % (103, 103, ch))
        for k in range(3):
            Lk = None
            if k == 2:
                Lk = self.label("L_rp3")
                self("s_cmp_ge_u32 s2, 28")
                self("s_cbranch_scc1 %s" % Lk)
            a, b = S_T0, S_T0 + 1
            self("s_add_u32 s%d, s2, %d" % (S_T0 + 3, 256 * k))
            self("s_mul_hi_u32 s%d, s%d, %d" % (a, S_T0 + 3, (1 << 32) // 10 + 1))
            self("s_mul_i32 s%d, s%d, 10" % (b, a))
            self("s_sub_u32 s%d, s%d, s%d" % (b, S_T0 + 3, b))
            self("s_mul_i32 s3, s%d, %d" % (a, 32 * 1280))
            self("s_lshl_b32 s%d, s%d, 7" % (S_T0 + 2, b))
            self("s_add_u32 s3, s3, s%d" % (S_T0 + 2))
            self.addr_pair(S_TMPP, P_W2, 0, 3)
            self("s_mul_i32 s3, s%d, 40" % a)
            self("s_lshl_b32 s%d, s%d, 2" % (b, b))
            self("s_add_u32 s3, s3, s%d" % b)
            self("s_lshl_b32 s3, s3, 10")
            self("s_add_u32 s%d, s3, %d" % (74 + k, WS_W2P))
            self("v_mov_b32 v%d, v103" % off)
            for r in range(4):
                self("s_mov_b32 m0, %d" % (LDS_RP + 4096 * k + 1024 * r))
                if r: self("v_add_u32 v%d, %d, v%d" % (off, 8 * 1280, off))
                self("global_load_lds_dwordx4 v%d, s[%d:%d] %s" % (off, S_TMPP, S_TMPP + 1, self.o.get("nt_w", "nt")))
            if Lk: self("%s:" % Lk)
        self("s_lshl_b32 s3, s%d, 8" % S_G)
        self("s_lshl_b32 s%d, s%d, 6" % (S_T0, S_RB))
        self("s_add_u32 s3, s3, s%d" % S_T0)
        self("s_mul_i32 s3, s3, 1280")
        self("s_mul_i32 s%d, s%d, 160" % (S_T0, S_CS))
        self("s_add_u32 s3, s3, s%d" % S_T0)
        self.addr_pair(S_TMPP, P_Q, 0, 3)
        self("s_mov_b32 s%d, %d" % (S_T0, (1 << 32) // 10 + 1))
        for i in range(10):
            self("v_add_u32 v%d, %d, v%d" % (off, 64 * i, V_LANE))
            self("v_mul_hi_u32 v%d, v%d, s%d" % (row, off, S_T0))
            self("v_mul_u32_u24 v%d, 10, v%d" % (ch, row))
            self("v_sub_u32 v%d, v%d, v%d" % (ch, off, ch))
            self("v_mul_u32_u24 v%d, 1280, v%d" % (row, row))
            self("v_lshl_add_u32 v%d, v%d, 4, v%d" % (off, ch, row))
            self("s_mov_b32 m0, %d" % (LDS_Q + 1024 * i))
            self("global_load_lds_dwordx4 v%d, s[%d:%d]" % (off, S_TMPP, S_TMPP + 1))
        self.close(L)
    def repack_finish(self):
        a, sa = 100, 101
        self("s_waitcnt vmcnt(0)")
        self("v_bfe_u32 v%d, v%d, 2, 2" % (a, V_LANE))
        self("v_lshl_add_u32 v%d, v%d, 2, v%d" % (a, V_G, a))
        self("v_lshlrev_b32 v%d, 7, v%d" % (a, a))
        self("v_and_b32 v%d, 3, v%d" % (sa, V_LANE))
        self("v_lshl_add_u32 v%d, v%d, 3, v%d" % (a, sa, a))
        self("v_add_u32 v%d, %d, v%d" % (a, LDS_RP, a))
        for k in range(3):
            Lk = None
            if k == 2:
                Lk = self.label("L_rf3")
                self("s_cmp_ge_u32 s2, 28")
                self("s_cbranch_scc1 %s" % Lk)
            F = 104 + 16 * k
            for u in range(4):
                for h in range(2):
                    self("ds_read_b64_tr_b16 %s, v%d offset:%d" % (vr(F + 4 * u + 2 * h, 2), a, 4096 * k + h * 2048 + 32 * u))
            self("v_lshlrev_b32 v%d, 4, v%d" % (sa, V_LANE))
            self("v_add_u32 v%d, s%d, v%d" % (sa, 74 + k, sa))
            self("s_waitcnt lgkmcnt(0)")
            for u in range(4):
                self("global_store_dwordx4 v%d, %s, s[%d:%d] offset:%d sc0 sc1" % (sa, vr(F + 4 * u, 4), P_WS, P_WS + 1, 1024 * u))
            if Lk: self("%s:" % Lk)

    def prep_loads(self):
        KR, VR, TAP, RAW = 4, 34, 46, 66
        self.KR, self.VR, self.TAP, self.RAW = KR, VR, TAP, RAW
        c10, rp, off = 110, 111, 112
        self("v_and_b32 v%d, 7, v0" % c10)
        self("v_lshrrev_b32 v%d, 3, v0" % rp)
        self("s_lshl_b32 s3, s%d, 6" % S_J)
        self("s_sub_u32 s3, s3, 3")
        self("v_lshlrev_b32 v%d, 1, v%d" % (off, rp))
        self("v_add_u32 v%d, s3, v%d" % (off, off))
        self("s_movk_i32 s%d, 1280" % S_T0)
        self("v_mul_lo_u32 v%d, v%d, s%d" % (off, off, S_T0))
        self("s_mul_i32 s3, s%d, 160" % S_G)
        self("v_mul_u32_u24 v%d, 20, v%d" % (off + 1, c10))
        self("v_add3_u32 v%d, v%d, v%d, s3" % (off, off, off + 1))
        self.srd(SRD_A, P_K, 2621440)
        self.srd(SRD_B, P_V, 2621440)
        nk = self.o.get("nt_kv", "")
        offs = [off]
        for r in range(1, 5):
            self("v_add_u32 v%d, %d, v%d" % (off + 1 + r, 1280 * r, off))
            offs.append(off + 1 + r)
        for r in range(5):
            self.vm("buffer_load_dwordx4 %s, v%d, s[%d:%d], 0 offen %s" % (vr(KR + 6 * r, 4), offs[r], SRD_A, SRD_A + 3, nk), "k")
            self.vm("buffer_load_dword v%d, v%d, s[%d:%d], 0 offen offset:16 %s" % (KR + 6 * r + 4, offs[r], SRD_A, SRD_A + 3, nk), "k")
        for r in range(2):
            self.vm("buffer_load_dwordx4 %s, v%d, s[%d:%d], 0 offen %s" % (vr(VR + 6 * r, 4), offs[3 + r], SRD_B, SRD_B + 3, nk), "v")
            self.vm("buffer_load_dword v%d, v%d, s[%d:%d], 0 offen offset:16 %s" % (VR + 6 * r + 4, offs[3 + r], SRD_B, SRD_B + 3, nk), "v")
        t = off + 7
        self("s_mul_i32 s3, s%d, 640" % S_G)
        self("v_mul_u32_u24 v%d, 80, v%d" % (t, c10))
        self("v_add_u32 v%d, s3, v%d" % (t, t))
        for i in range(5):
            self.vm("global_load_dwordx4 %s, v%d, s[%d:%d] offset:%d" % (vr(TAP + 4 * i, 4), t, P_SK, P_SK + 1, 16 * i), "tap")
        self("s_lshl_b32 s3, s%d, 5" % S_W)
        self("s_add_u32 s3, s3, s%d" % S_J)
        self("s_cmp_lt_u32 s3, 80")
        self("s_cselect_b32 s%d, 1, 0" % S_HASCH)
        self("s_cselect_b32 s3, s3, 0")
        self("s_mul_i32 s%d, s%d, 80" % (S_CH, S_G))
        self("s_add_u32 s%d, s%d, s3" % (S_CH, S_CH))
        self("s_mul_i32 s%d, s%d, %d" % (S_SLOT, S_W, SLOT))
        self("s_cmp_lt_u32 s%d, 3" % S_W)
        self("s_cselect_b32 s%d, s%d, 0" % (S_SLOT, S_SLOT))
        self("s_lshl_b32 s3, s%d, 1" % S_CH)
        self("s_and_b32 s3, s3, 0xfffffffc")
        self("s_load_dword s%d, s[%d:%d], s3" % (S_DVAL, P_D, P_D + 1))
        self("s_lshl_b32 s3, s%d, 12" % S_CH)
        self.srd(52, P_SSM, 4096, add_sgpr=3)
        a = off + 10
        Lr = self.if_wave(3, eq=False)
        self("v_lshlrev_b32 v%d, 4, v%d" % (a, V_LANE))
        for r in range(4):
            self("v_add_u32 v%d, %d, v%d" % (a + 1, (1024 * r - 16) & 0xffffffff, a))
            self("buffer_load_dwordx4 %s, v%d, s[52:55], 0 offen %s" % (vr(RAW + 8 * r, 4), a + 1, self.o.get("nt_s", "")))
            self("buffer_load_dwordx4 %s, v%d, s[52:55], 0 offen offset:%d %s" % (vr(RAW + 8 * r + 4, 4), a, 1024 * r, self.o.get("nt_s", "")))
        self.close(Lr)
        La, Lb = self.label("L_pt"), self.label("L_ptd")
        self("s_cmp_ge_u32 s%d, 2" % S_W)
        self("s_cbranch_scc1 %s" % La)
        self("s_lshl_b32 s3, s%d, 6" % S_W)
        self("v_add_u32 v%d, s3, v%d" % (a, V_LANE))
        self("v_min_u32 v%d, 79, v%d" % (a, a))
        self("v_lshlrev_b32 v%d, 12, v%d" % (a, a))
        self("s_mul_i32 s3, s%d, %d" % (S_G, 80 * 4096))
        self("s_sub_u32 s%d, 31, s%d" % (S_T0, S_J))
        self("s_lshl_b32 s%d, s%d, 7" % (S_T0, S_T0))
        self("s_add_u32 s3, s3, s%d" % S_T0)
        self("s_add_u32 s3, s3, %d" % WS_UR)
        self("v_add_u32 v%d, s3, v%d" % (a, a))
        self("global_load_dword v%d, v%d, s[%d:%d]" % (a + 1, a, P_WS, P_WS + 1))
        self("s_branch %s" % Lb)
        self("%s:" % La)
        self("v_and_b32 v%d, 1, v%d" % (a, V_LANE))
        self("v_lshlrev_b32 v%d, 7, v%d" % (a, a))
        self("global_load_dword v%d, v%d, s[%d:%d]" % (a + 1, a, S_LFLAG, S_LFLAG + 1))
        self("%s:" % Lb)
        if self.o.get("codepf", 1):
            L = self.if_wave(1)
            self("s_getpc_b64 s[%d:%d]" % (S_TMPP, S_TMPP + 1))
            self("L_pcref:")
            self("s_sub_u32 s%d, s%d, (L_pcref - %s)" % (S_TMPP, S_TMPP, KNAME))
            self("s_subb_u32 s%d, s%d, 0" % (S_TMPP + 1, S_TMPP + 1))
            nl = self.o.get("codelines", 640)
            per = -(-nl // 32)
            self("s_mul_i32 s3, s%d, %d" % (S_J, per))
            self("v_add_u32 v%d, s3, v%d" % (a, V_LANE))
            self("v_min_u32 v%d, (L_end - %s) / 128, v%d" % (a, KNAME, a))
            self("v_lshlrev_b32 v%d, 7, v%d" % (a, a))
            self("s_mov_b64 s[%d:%d], exec" % (S_SAVE, S_SAVE + 1))
            self("s_bfm_b64 exec, %d, 0" % per)
            self("global_load_dword v%d, v%d, s[%d:%d]" % (a + 1, a, S_TMPP, S_TMPP + 1))
            self.exec_restore()
            self.close(L)
        self.repack_issue()
        self("s_waitcnt lgkmcnt(0)")
        self("s_add_u32 s%d, s%d, 0x%x" % (S_TAG, S_TAG, TAG0))
        L = self.if_wave(0)
        self("s_lshl_b32 s%d, s%d, 8" % (S_T0, S_G))
        self("s_lshl_b32 s%d, s%d, 3" % (S_T0 + 1, S_J))
        self("s_add_u32 s%d, s%d, s%d" % (S_T0, S_T0, S_T0 + 1))
        self("s_add_u32 s%d, s%d, %d" % (S_T0, S_T0, WS_XCCF))
        self.flag_store(P_WS, S_T0, "s%d" % S_XCC, device=True)
        self.close(L)

    def window_stores(self):
        a = 160
        self("s_lshl_b32 s3, s%d, 8" % S_G)
        self("s_lshl_b32 s%d, s%d, 6" % (S_T0, S_RB))
        self("s_add_u32 s3, s3, s%d" % S_T0)
        self("s_lshl_b32 s%d, s%d, 3" % (S_T0, S_CS))
        self("s_add_u32 s3, s3, s%d" % S_T0)
        self("v_and_b32 v%d, 7, v%d" % (a, V_LANE))
        self("v_add_u32 v%d, s3, v%d" % (a, a))
        self("v_lshlrev_b32 v%d, 7, v%d" % (a, a))
        self("v_bfe_u32 v%d, v%d, 3, 2" % (a + 1, V_LANE))
        self("v_mul_u32_u24 v%d, %d, v%d" % (a + 1, STAT_SZ, a + 1))
        self("v_add_u32 v%d, v%d, v%d" % (a, a, a + 1))
        self("v_add_u32 v%d, %d, v%d" % (a, WS_STAT, a))
        self("global_load_dword a0, v%d, s[%d:%d]" % (a, P_WS, P_WS + 1))
        if not self.o.get("prewrite", 1): return
        for i in range(4): self("v_mov_b32 v%d, -1" % (164 + i))
        self("s_mul_i32 s3, s%d, %d" % (S_G, 16 * 54 * 1024))
        self("s_mul_i32 s%d, s%d, %d" % (S_T0, S_J, 27 * 1024))
        self("s_add_u32 s3, s3, s%d" % S_T0)
        self("s_add_u32 s3, s3, %d" % WS_HF1)
        self("v_lshlrev_b32 v%d, 4, v%d" % (a, V_LANE))
        self("v_add_u32 v%d, s3, v%d" % (a, a))
        for i in range(27):
            if i and i % 4 == 0: self("v_add_u32 v%d, 4096, v%d" % (a, a))
            self("global_store_dwordx4 v%d, v[164:167], s[%d:%d] offset:%d sc0 sc1" % (a, P_WS, P_WS + 1, 1024 * (i % 4)))

    def prep_compute(self):
        KR, VR, TAP = self.KR, self.VR, self.TAP
        Kp, Tp, Vp = 124, 134, 142
        A0, A1, P0, P1, t0, t1 = 146, 148, 150, 152, 154, 155
        O0, O1 = 156, 157
        lad = 158
        self("v_and_b32 v%d, 7, v0" % lad)
        self("v_mul_u32_u24 v%d, %d, v%d" % (lad, 10 * T_STRIDE, lad))
        self("v_lshrrev_b32 v%d, 3, v0" % (lad + 1))
        self("v_lshlrev_b32 v%d, 2, v%d" % (lad + 1, lad + 1))
        self("v_sub_u32 v%d, v%d, v%d" % (lad, lad, lad + 1))
        self("v_add_u32 v%d, %d, v%d" % (lad, LDS_T + 124, lad))
        L3, Ld = self.label("L_w3"), self.label("L_w3d")
        self("s_cmp_eq_u32 s%d, 3" % S_W)
        self("s_cbranch_scc1 %s" % L3)
        self("s_waitcnt vmcnt(8)")
        self("s_branch %s" % Ld)
        self("%s:" % L3)
        self("s_waitcnt vmcnt(18)")
        self("%s:" % Ld)
        self.vmq = []
        self.stamp(39)
        pk = lambda op, d, a, b: self("v_pk_%s_f32 %s, %s, %s" % (op, vr(d, 2), vr(a, 2), vr(b, 2)))
        for i in range(5):
            for r in range(5): self.unpack(Kp + 2 * r, KR + 6 * r + i)
            for t in range(4):
                s0 = TAP + 4 * i + (t >> 1); s1 = s0 + 2
                if t & 1:
                    self("v_and_b32 v%d, s%d, v%d" % (Tp + 2 * t, S_MASK, s0))
                    self("v_and_b32 v%d, s%d, v%d" % (Tp + 2 * t + 1, S_MASK, s1))
                else:
                    self("v_lshlrev_b32 v%d, 16, v%d" % (Tp + 2 * t, s0))
                    self("v_lshlrev_b32 v%d, 16, v%d" % (Tp + 2 * t + 1, s1))
            for r in range(2): self.unpack(Vp + 2 * r, VR + 6 * r + i)
            pk("mul", A0, Kp + 0, Tp + 6); pk("mul", A1, Kp + 2, Tp + 6)
            self.rnd_pair(A0, t0); self.rnd_pair(A1, t1)
            for step in range(1, 4):
                T = Tp + 2 * (3 - step)
                pk("mul", P0, Kp + 2 * step, T); pk("mul", P1, Kp + 2 * (step + 1), T)
                self.rnd_pair(P0, t0); self.rnd_pair(P1, t1)
                pk("add", A0, A0, P0); pk("add", A1, A1, P1)
                self.rnd_pair(A0, t0); self.rnd_pair(A1, t1)
            pk("mul", A0, A0, Vp + 0); pk("mul", A1, A1, Vp + 2)
            self("v_cvt_pk_bf16_f32 v%d, v%d, v%d" % (O0, A1, A0))
            self("v_cvt_pk_bf16_f32 v%d, v%d, v%d" % (O1, A1 + 1, A0 + 1))
            self.lg("ds_write_b32 v%d, v%d offset:%d" % (lad, O0, (2 * i) * T_STRIDE), "tw")
            self.lg("ds_write_b32 v%d, v%d offset:%d" % (lad, O1, (2 * i + 1) * T_STRIDE), "tw")

    def mode_check(self, vt=176):
        L = self.if_wave(0)
        self("s_lshl_b32 s3, s%d, 8" % S_G)
        self.addr_pair(S_TMPP, P_WS, WS_XCCF, 3)
        self("v_and_b32 v%d, 31, v%d" % (vt + 4, V_LANE))
        self("v_lshlrev_b32 v%d, 3, v%d" % (vt + 4, vt + 4))
        self.poll_pairs(S_TMPP, vt + 4, 0, 7, vt)
        self("s_add_u32 s3, s%d, s%d" % (S_TAG, S_XCC))
        self("v_cmp_ne_u32 vcc, s3, v%d" % vt)
        self("s_nop 1")
        self("s_cmp_lg_u64 vcc, 0")
        self("s_cselect_b32 s%d, 1, 0" % S_MODE)
        if self.o.get("force_slow"): self("s_mov_b32 s%d, 1" % S_MODE)
        self("v_mov_b32 v%d, s%d" % (vt, S_MODE))
        self("v_mov_b32 v%d, %d" % (vt + 1, LDS_MODE))
        self("ds_write_b32 v%d, v%d" % (vt + 1, vt))
        self.close(L)
    def mode_fetch(self, vt=176):
        self("v_mov_b32 v%d, %d" % (vt + 1, LDS_MODE))
        self("ds_read_b32 v%d, v%d" % (vt, vt + 1))
        self("s_waitcnt lgkmcnt(0)")
        self("v_readfirstlane_b32 s%d, v%d" % (S_MODE, vt))
        self.lgq = []
        alias = self.o.get("alias", 1)
        self("s_mov_b32 s%d, %d" % (S_XO1, WS_UR if alias else WS_XF1))
        self("s_mov_b32 s%d, %d" % (S_XO3, WS_UR if alias else WS_XF3))
        self("s_mov_b32 s%d, %d" % (S_HO2, WS_HF1 if alias else WS_HF2))
        L = self.label("L_al")
        self("s_cmp_eq_u32 s%d, 0" % S_MODE)
        self("s_cbranch_scc1 %s" % L)
        self("s_mov_b32 s%d, %d" % (S_XO1, WS_XF1))
        self("s_mov_b32 s%d, %d" % (S_XO3, WS_XF3))
        self("s_mov_b32 s%d, %d" % (S_HO2, WS_HF2))
        self("%s:" % L)

    def tile_stats(self, xf, buf, tmp):
        s, t = tmp, tmp + 4
        d = tmp + 6
        m2 = tmp + 26
        pk = lambda op, dd, a, b: self("v_pk_%s_f32 %s, %s, %s" % (op, vr(dd, 2), vr(a, 2), vr(b, 2)))
        pk("add", s, xf, xf + 2)
        for i in range(2, 10): pk("add", s, s, xf + 2 * i)
        self("v_add_f32 v%d, v%d, v%d" % (s, s, s + 1))
        self.xg_sum(s, t)
        self("v_mul_f32 v%d, 0x3c4ccccd, v%d" % (s, s))
        for i in range(10):
            self("v_pk_add_f32 %s, %s, %s op_sel_hi:[1,0] neg_lo:[0,1] neg_hi:[0,1]" % (vr(d + 2 * i, 2), vr(xf + 2 * i, 2), vr(s, 2)))
        pk("mul", m2, d, d)
        for i in range(1, 10):
            self("v_pk_fma_f32 %s, %s, %s, %s" % (vr(m2, 2), vr(d + 2 * i, 2), vr(d + 2 * i, 2), vr(m2, 2)))
        self("v_add_f32 v%d, v%d, v%d" % (s + 1, m2, m2 + 1))
        self.xg_sum(s + 1, t)
        self("s_add_u32 s3, s%d, %d" % (S_TAG, buf))
        self("v_mov_b32 v%d, s3" % (s + 2))
        self("s_xor_b32 s3, s3, s%d" % S_KX)
        self("v_mov_b32 v%d, s3" % (s + 3))
        self.rowbase()
        self("s_lshl_b32 s3, s3, 7")
        self("s_lshl_b32 s%d, s%d, 4" % (S_T0, S_CS))
        self("s_add_u32 s3, s3, s%d" % S_T0)
        self("s_add_u32 s3, s3, %d" % (WS_STAT + buf * STAT_SZ))
        self("v_lshlrev_b32 v%d, 7, v%d" % (t, V_L15))
        self("v_add_u32 v%d, s3, v%d" % (t, t))
        self.exec_set("0xffff")
        self.handoff_stores(["global_store_dwordx4 v%d, %s, s[%d:%d]" % (t, vr(s, 4), P_WS, P_WS + 1)], "stat")
        self.exec_restore()
    def row_stats_issue(self, buf, tmp):
        a = tmp + 8
        self.rowbase()
        self("s_lshl_b32 s3, s3, 7")
        self("s_add_u32 s3, s3, %d" % (WS_STAT + buf * STAT_SZ))
        self("v_lshlrev_b32 v%d, 7, v%d" % (a, V_L15))
        self("v_lshl_add_u32 v%d, v%d, 5, v%d" % (a, V_G, a))
        self("v_add_u32 v%d, s3, v%d" % (a, a))
        for k in range(2):
            self.vm("global_load_dwordx4 %s, v%d, s[%d:%d] offset:%d sc1" % (vr(tmp + 4 * k, 4), a, P_WS, P_WS + 1, 16 * k), "rs")
    def row_stats_validate(self, buf, tmp):
        Lr, Lo = self.label("L_rsr"), self.label("L_rso")
        self("s_add_u32 s%d, s%d, %d" % (S_T0 + 5, S_TAG, buf))
        self("s_mov_b32 s%d, %d" % (S_TMO, TIMEOUT))
        self("%s:" % Lr)
        self.pair_bad(tmp + 2, tmp + 3, S_T0 + 5, 0, tmp + 9)
        self("s_mov_b64 s[%d:%d], s[%d:%d]" % (S_TMPQ, S_TMPQ + 1, S_M2, S_M2 + 1))
        self.pair_bad(tmp + 6, tmp + 7, S_T0 + 5, 0, tmp + 9)
        self("s_or_b64 s[%d:%d], s[%d:%d], s[%d:%d]" % (S_M2, S_M2 + 1, S_M2, S_M2 + 1, S_TMPQ, S_TMPQ + 1))
        self("s_cbranch_scc0 %s" % Lo)
        self("s_sub_u32 s%d, s%d, 1" % (S_TMO, S_TMO))
        self("s_cmp_eq_u32 s%d, 0" % S_TMO)
        self("s_cbranch_scc1 L_abort")
        for k in range(2):
            self("global_load_dwordx4 %s, v%d, s[%d:%d] offset:%d sc1" % (vr(tmp + 4 * k, 4), tmp + 8, P_WS, P_WS + 1, 16 * k))
        self("s_waitcnt vmcnt(0)")
        self("s_branch %s" % Lr)
        self("%s:" % Lo)
        self("v_mov_b32 v%d, v%d" % (tmp + 2, tmp + 4))
        self("v_mov_b32 v%d, v%d" % (tmp + 3, tmp + 5))
    def row_stats_finish_items(self, tmp, out_m, out_rs):
        m0, q0, m1, q1 = tmp, tmp + 1, tmp + 2, tmp + 3
        s, t = tmp + 4, tmp + 5
        g = Gen()
        def xs(r):
            g("v_mov_b32 v%d, v%d" % (t, r)); g("v_permlane16_swap_b32 v%d, v%d" % (r, t)); g("v_add_f32 v%d, v%d, v%d" % (r, r, t))
            g("v_mov_b32 v%d, v%d" % (t, r)); g("v_permlane32_swap_b32 v%d, v%d" % (r, t)); g("v_add_f32 v%d, v%d, v%d" % (r, r, t))
        def r1(r):
            g("v_cvt_pk_bf16_f32 v%d, v%d, v%d" % (t, r, r)); g("v_lshlrev_b32 v%d, 16, v%d" % (r, t))
        g("v_add_f32 v%d, v%d, v%d" % (s, m0, m1)); xs(s)
        g("v_mul_f32 v%d, 0x3e000000, v%d" % (s, s))
        g("v_sub_f32 v%d, v%d, v%d" % (m0, m0, s)); g("v_sub_f32 v%d, v%d, v%d" % (m1, m1, s))
        g("v_mul_f32 v%d, v%d, v%d" % (m0, m0, m0)); g("v_fmac_f32 v%d, v%d, v%d" % (m0, m1, m1))
        g("v_add_f32 v%d, v%d, v%d" % (q0, q0, q1))
        g("v_mov_b32 v%d, 0x42a00000" % t); g("v_fmac_f32 v%d, v%d, v%d" % (q0, m0, t)); xs(q0)
        g("v_mul_f32 v%d, 0x3acccccd, v%d" % (q0, q0)); r1(q0)
        g("v_add_f32 v%d, 0x3727c5ac, v%d" % (q0, q0)); r1(q0)
        g("v_sqrt_f32 v%d, v%d" % (q0, q0)); g("s_nop 0"); r1(q0)
        g("v_rcp_f32 v%d, v%d" % (out_rs, q0)); r1(s)
        g("v_mov_b32 v%d, v%d" % (out_m, s))
        return [i.text.strip() for i in g.ins]
    def row_stats_finish(self, tmp, out_m, out_rs):
        for l in self.row_stats_finish_items(tmp, out_m, out_rs): self(l)

    def prep_store_ur(self):
        L3 = self.if_wave(3, eq=False)
        a, b = 100, 101
        self("v_lshrrev_b32 v%d, 3, v0" % a)
        self("v_and_b32 v%d, 7, v0" % b)
        self("v_lshlrev_b32 v%d, 4, v%d" % (b, b))
        self("v_mul_u32_u24 v%d, %d, v%d" % (102, T_STRIDE, a))
        self("v_add3_u32 v%d, v%d, v%d, 0" % (102, 102, b))
        self("v_add_u32 v%d, %d, v%d" % (102, LDS_T, 102))
        self("s_mul_i32 s3, s%d, %d" % (S_G, 80 * 4096))
        self("s_sub_u32 s%d, 31, s%d" % (S_T0, S_J))
        self("s_lshl_b32 s%d, s%d, 7" % (S_T0, S_T0))
        self("s_add_u32 s3, s3, s%d" % S_T0)
        self("s_add_u32 s3, s3, %d" % WS_UR)
        self("v_lshlrev_b32 v%d, 12, v%d" % (103, a))
        self("v_add3_u32 v%d, v%d, v%d, s3" % (103, 103, b))
        for r in range(3):
            self("ds_read_b128 %s, v102 offset:%d" % (vr(104 + 4 * r, 4), 24 * T_STRIDE * r))
        L = self.if_wave(0)
        self("ds_read_b128 v[116:119], v102 offset:%d" % (24 * T_STRIDE * 3))
        self.close(L)
        self("v_add_u32 v120, %d, v103" % (24 * 4096))
        self("v_add_u32 v121, %d, v103" % (48 * 4096))
        self("v_add_u32 v122, %d, v103" % (72 * 4096))
        self("s_waitcnt lgkmcnt(0)")
        p = "s[%d:%d]" % (P_WS, P_WS + 1)
        self.handoff_stores(["global_store_dwordx4 v103, v[104:107], " + p, "global_store_dwordx4 v120, v[108:111], " + p,
                             "global_store_dwordx4 v121, v[112:115], " + p], record=False)
        L = self.if_wave(0)
        self.handoff_stores(["global_store_dwordx4 v122, v[116:119], " + p], record=False)
        self.close(L)
        self("s_waitcnt vmcnt(0)")
        self.close(L3)
        self.lgq = []; self.vmq = []

    def build_kcopies(self):
        RAW = self.RAW
        SETS = [(110, 116, 122), (134, 140, 146)]
        ad, z = 128, 130
        L = self.label("L_kc")
        self("s_cmp_eq_u32 s%d, 0" % S_HASCH)
        self("s_cbranch_scc1 %s" % L)
        self("v_lshlrev_b32 v%d, 4, v%d" % (ad, V_LANE))
        self("s_add_u32 s3, s%d, 16" % S_SLOT)
        self("v_add_u32 v%d, s3, v%d" % (ad, ad))
        for r in range(4):
            R = RAW + 8 * r
            A, B, C = SETS[r & 1]
            if r >= 2: self("s_waitcnt lgkmcnt(8)")
            for i in range(6):
                self("v_alignbit_b32 v%d, v%d, v%d, 16" % (A + i, R + i + 1, R + i))
            for i in range(6):
                self("v_alignbit_b32 v%d, v%d, v%d, 16" % (B + i, R + i + 2, R + i + 1))
            for i in range(6):
                self("v_mov_b32 v%d, v%d" % (C + i, R + i + 1))
            src = {0: A, 1: C, 2: B, 3: R + 2, 4: A + 2, 5: C + 2, 6: B + 2, 7: R + 4}
            for c in range(8):
                self("ds_write_b128 v%d, %s offset:%d" % (ad, vr(src[c], 4), c * KC_STRIDE + 1024 * r))
        for i in range(4): self("v_mov_b32 v%d, 0" % (z + i))
        self("v_mul_u32_u24 v%d, %d, v%d" % (ad + 1, KC_STRIDE, V_LANE))
        self("v_add_u32 v%d, s%d, v%d" % (ad + 1, S_SLOT, ad + 1))
        self.exec_set("0xff")
        self("ds_write_b128 v%d, %s" % (ad + 1, vr(z, 4)))
        self("s_mov_b64 exec, 0x3fffffff")
        self("v_lshlrev_b32 v%d, 4, v%d" % (ad + 1, V_LANE))
        self("s_add_u32 s3, s%d, %d" % (S_SLOT, U_OFF + 4096))
        self("v_add_u32 v%d, s3, v%d" % (ad + 1, ad + 1))
        self("ds_write_b128 v%d, %s" % (ad + 1, vr(z, 4)))
        self.exec_restore()
        self("%s:" % L)
        self("s_waitcnt lgkmcnt(0)")
        self.lgq = []

    def conv(self):
        Lskip = self.label("L_conv_skip"); Ldone = self.label("L_conv_done")
        self("s_cmp_eq_u32 s%d, 0" % S_HASCH)
        self("s_cbranch_scc1 %s" % Lskip)
        self("s_lshl_b32 s3, s%d, 12" % S_CH)
        self.addr_pair(S_TMPP, P_WS, WS_UR, 3)
        a = 164
        self("v_lshlrev_b32 v%d, 4, v%d" % (a, V_LANE))
        for r in range(4):
            self("s_add_u32 m0, s%d, %d" % (S_SLOT, U_OFF + 1024 * r))
            self("v_add_u32 v%d, %d, v%d" % (a + 1, 1024 * r, a))
            self.vm("global_load_lds_dwordx4 v%d, s[%d:%d]" % (a + 1, S_TMPP, S_TMPP + 1), "u")
        self("s_and_b32 s3, s%d, 1" % S_CH)
        self("s_lshl_b32 s%d, s%d, 16" % (S_T0, S_DVAL))
        self("s_and_b32 s%d, s%d, 0xffff0000" % (S_DVAL, S_DVAL))
        self("s_cmp_eq_u32 s3, 0")
        self("s_cselect_b32 s%d, s%d, s%d" % (S_DVAL, S_T0, S_DVAL))
        vA, vB = 166, 167
        self("v_and_b32 v%d, 7, v%d" % (vA, V_L15))
        self("v_mul_u32_u24 v%d, %d, v%d" % (vA, KC_STRIDE, vA))
        self("v_lshrrev_b32 v%d, 3, v%d" % (168, V_L15))
        self("v_add_u32 v%d, v%d, v%d" % (168, 168, V_G))
        self("v_lshl_add_u32 v%d, v%d, 4, v%d" % (vA, 168, vA))
        self("v_add_u32 v%d, s%d, v%d" % (vA, S_SLOT, vA))
        self("v_lshlrev_b32 v%d, 5, v%d" % (vB, V_L15))
        self("v_lshlrev_b32 v%d, 4, v%d" % (168, V_G))
        self("v_sub_u32 v%d, v%d, v%d" % (vB, 168, vB))
        self("s_add_u32 s3, s%d, %d" % (S_SLOT, U_OFF + 4064 - 3584))
        self("v_add_u32 v%d, s3, v%d" % (vB, vB))
        ACC = 4; FA = [36, 100]; FB = [68, 132]
        def loadsA(tau, buf):
            return [("lg", "ds_read_b128 %s, v%d offset:%d" % (vr(FA[buf] + 4 * i, 4), vA, 64 * tau + 512 * i), "cA") for i in range(8)]
        def loadsB(tau, buf):
            return [("lg", "ds_read_b128 %s, v%d offset:%d" % (vr(FB[buf] + 4 * i, 4), vB, 3584 - 512 * i + 64 * tau), "cB") for i in range(8)]
        self.bg_add(loadsA(0, 0)); self.bg_flush()
        ua, sa = 168, 169
        self("v_lshlrev_b32 v%d, 5, v%d" % (sa, V_L15))
        self("v_lshl_add_u32 v%d, v%d, 3, v%d" % (sa, V_G, sa))
        self("s_add_u32 s3, s%d, %d" % (S_SLOT, U_OFF + 4088 - 3584))
        self("v_sub_u32 v%d, s3, v%d" % (ua, sa))
        self("s_lshl_b32 s3, s%d, 12" % S_CH)
        self("s_add_u32 s3, s3, %d" % WS_YT)
        self("v_and_b32 v%d, 1, v%d" % (170, V_G))
        self("v_lshlrev_b32 v%d, 9, v%d" % (170, 170))
        self("v_lshrrev_b32 v%d, 1, v%d" % (171, V_G))
        self("v_lshl_add_u32 v%d, v%d, 4, v%d" % (170, 171, 170))
        self("v_lshl_add_u32 v%d, v%d, 5, v%d" % (sa, V_L15, 170))
        self("v_add_u32 v%d, s3, v%d" % (sa, sa))
        self("v_mov_b32 v170, s%d" % S_DVAL)
        self("v_lshlrev_b32 v171, 4, v%d" % V_LANE)
        if self.o.get("prewrite", 1):
            self("s_lshl_b32 s3, s%d, 12" % S_CH)
            self("s_add_u32 s3, s3, %d" % WS_YT)
            self("v_add_u32 v172, s3, v171")
            for i in range(4): self("v_mov_b32 v%d, 0" % (4 + i))
            for i in range(4):
                self.vm("global_store_dwordx4 v172, v[4:7], s[%d:%d] offset:%d sc0 sc1" % (P_WS, P_WS + 1, 1024 * i), "ypw")
        self.vm_wait("u")
        self.stamp(7)
        self.bg_add(loadsB(0, 0)); self.bg_flush()
        for tau in range(8):
            buf = tau & 1
            self.lg_wait_all()
            if tau < 7:
                la, lb = loadsA(tau + 1, buf ^ 1), loadsB(tau + 1, buf ^ 1)
                for x, y in zip(la, lb): self.bg_add([x, y])

            pairs = sorted([(i, be - i) for be in range(8) for i in range(be + 1)])
            first = set()
            for kk, (i, m) in enumerate(pairs):
                be = i + m
                c = vr(ACC + 4 * be, 4) if (tau > 0 or be in first) else "0"
                first.add(be)
                self("v_mfma_f32_16x16x32_bf16 %s, %s, %s, %s" % (vr(ACC + 4 * be, 4), vr(FA[buf] + 4 * i, 4), vr(FB[buf] + 4 * m, 4), c))
                self.bg_step(1)
            self.bg_flush()
        self.stamp(8)
        UQ = 36
        for b in range(8):
            self.lg("ds_read_b64 %s, v%d offset:%d" % (vr(UQ + 2 * b, 2), ua, 3584 - 512 * b), "uq")
        self.lg_wait_all()
        U, t, O = 56, 60, 64
        for b in range(8):
            d0, d1 = UQ + 2 * b, UQ + 2 * b + 1
            A = ACC + 4 * b
            self("v_and_b32 v%d, s%d, v%d" % (U + 0, S_MASK, d1))
            self("v_lshlrev_b32 v%d, 16, v%d" % (U + 1, d1))
            self("v_and_b32 v%d, s%d, v%d" % (U + 2, S_MASK, d0))
            self("v_lshlrev_b32 v%d, 16, v%d" % (U + 3, d0))
            self("v_pk_mul_f32 %s, %s, v[170:171] op_sel_hi:[1,0]" % (vr(U, 2), vr(U, 2)))
            self("v_pk_mul_f32 %s, %s, v[170:171] op_sel_hi:[1,0]" % (vr(U + 2, 2), vr(U + 2, 2)))
            self.rnd_pair(U, t); self.rnd_pair(U + 2, t + 1)
            self.rnd_pair(A, t); self.rnd_pair(A + 2, t + 1)
            self("v_pk_add_f32 %s, %s, %s" % (vr(A, 2), vr(A, 2), vr(U, 2)))
            self("v_pk_add_f32 %s, %s, %s" % (vr(A + 2, 2), vr(A + 2, 2), vr(U + 2, 2)))
            o = O + 2 * b
            self("v_cvt_pk_bf16_f32 v%d, v%d, v%d" % (o, A, A + 1))
            self("v_cvt_pk_bf16_f32 v%d, v%d, v%d" % (o + 1, A + 2, A + 3))
            if b & 1:
                self("v_permlane16_swap_b32 v%d, v%d" % (o - 2, o))
                self("v_permlane16_swap_b32 v%d, v%d" % (o - 1, o + 1))
                self("global_store_dwordx4 v%d, %s, s[%d:%d] offset:%d sc0 sc1" % (sa, vr(o - 2, 4), P_WS, P_WS + 1, 512 * (b - 1)))
        self("s_branch %s" % Ldone)
        self("%s:" % Lskip)
        L2 = self.if_wave(3)
        self.repack_finish()
        self("s_waitcnt vmcnt(0)")
        self("s_lshl_b32 s%d, s%d, 8" % (S_T0, S_G))
        self("s_lshl_b32 s%d, s%d, 3" % (S_T0 + 1, S_J))
        self("s_add_u32 s%d, s%d, s%d" % (S_T0, S_T0, S_T0 + 1))
        self("s_add_u32 s%d, s%d, %d" % (S_T0, S_T0, WS_PKFLAG))
        self.flag_store(P_WS, S_T0, 1, device=True)
        self.stamp(42)
        self.window_stores()
        if self.o.get("st_pw"):
            self("s_waitcnt vmcnt(0)")
            self.stamp(43)
        npf = self.o.get("w1pf", 9)
        if npf:
            self.srd(SRD_A, P_W1, 640 * 3456)
            self("s_mul_i32 s3, s%d, 69120" % S_J)
            self("v_lshlrev_b32 v160, 7, v%d" % V_LANE)
            self("v_add_u32 v160, s3, v160")
            for i in range(npf):
                if i == 8: self.exec_set("0xfffffff")
                self("buffer_load_dword a0, v160, s[%d:%d], 0 offen" % (SRD_A, SRD_A + 3))
                if i < 8: self("v_add_u32 v160, 8192, v160")
            if npf == 9: self.exec_restore()
        if self.o.get("st_pw"):
            self("s_waitcnt vmcnt(0)")
            self.stamp(44)
        self.close(L2)
        self("%s:" % Ldone)
        self.vmq = []; self.lgq = []

    def weights_prefetch(self):
        a, d = 174, 190
        self.addr_pair(S_TMPP, P_WS, WS_PKFLAG)
        self("v_lshlrev_b32 v%d, 5, v%d" % (a, V_LANE))
        self.poll_pairs(S_TMPP, a, 1, 0, 176 + 0, npair=4) if False else None
        self.poll_pairs(S_TMPP, a, 1, 0, 4, npair=4)
        self.stamp(40)
        for base in (WS_W1P, WS_W2P):
            self.srd(SRD_A, P_WS, WP_SZ, const=base)
            self("s_mul_i32 s3, s%d, 69120" % S_J)
            self("v_lshlrev_b32 v%d, 7, v%d" % (a, V_LANE))
            self("v_add_u32 v%d, s3, v%d" % (a, a))
            for i in range(9):
                if i == 8: self.exec_set("0xfffffff")
                self("buffer_load_dword v%d, v%d, s[%d:%d], 0 offen" % (d, a, SRD_A, SRD_A + 3))
                if i < 8: self("v_add_u32 v%d, 8192, v%d" % (a, a))
            self.exec_restore()

    def w1_dma(self, its):
        self.srd(SRD_B, P_W1, 640 * 3456)
        c, row, cc, off = 160, 161, 162, 163
        self("s_lshl_b32 s3, s%d, 6" % S_W)
        self("s_add_u32 s3, s3, %d" % (192 * its[0]))
        self("v_add_u32 v%d, s3, v%d" % (c, V_LANE))
        self("s_mov_b32 s%d, %d" % (S_T0, (1 << 32) // 14 + 1))
        self("s_lshl_b32 s%d, s%d, 5" % (S_T0 + 1, S_UOFF))
        self("s_movk_i32 s%d, 3456" % (S_T0 + 2))
        self("s_lshl_b32 s%d, s%d, 10" % (S_T0 + 3, S_W))
        for it in its:
            L = None
            if it == 46:
                L = self.label("L_w1l")
                self("s_cmp_eq_u32 s%d, 2" % S_W)
                self("s_cbranch_scc1 %s" % L)
            self("v_mul_hi_u32 v%d, v%d, s%d" % (row, c, S_T0))
            self("v_mul_u32_u24 v%d, 14, v%d" % (cc, row))
            self("v_sub_u32 v%d, v%d, v%d" % (cc, c, cc))
            self("v_mul_lo_u32 v%d, v%d, s%d" % (off, row, S_T0 + 2))
            self("v_lshl_add_u32 v%d, v%d, 4, v%d" % (off, cc, off))
            self("s_add_u32 m0, s%d, %d" % (S_T0 + 3, LDS_W1 + 3072 * it))
            self("v_add_u32 v%d, 192, v%d" % (c, c))
            self("buffer_load_dwordx4 v%d, s[%d:%d], s%d offen lds" % (off, SRD_B, SRD_B + 3, S_T0 + 1))
            if L: self("%s:" % L)
    W1OFF = 174
    def w1_stage_setup(self):
        self.srd(SRD_B, P_W1, 640 * 3456)
        c, row, cc = 181, 182, 183
        self("s_lshl_b32 s3, s%d, 6" % S_W)
        self("v_add_u32 v%d, s3, v%d" % (c, V_LANE))
        self("s_mov_b32 s%d, %d" % (S_T0, (1 << 32) // 14 + 1))
        self("s_movk_i32 s%d, 3456" % (S_T0 + 2))
        for r in range(7):
            o = self.W1OFF + r
            self("v_mul_hi_u32 v%d, v%d, s%d" % (row, c, S_T0))
            self("v_mul_u32_u24 v%d, 14, v%d" % (cc, row))
            self("v_sub_u32 v%d, v%d, v%d" % (cc, c, cc))
            self("v_mul_lo_u32 v%d, v%d, s%d" % (o, row, S_T0 + 2))
            self("v_lshl_add_u32 v%d, v%d, 4, v%d" % (o, cc, o))
            self("v_add_u32 v%d, 256, v%d" % (c, c))
        self("s_lshl_b32 s62, s%d, 5" % S_UOFF)
    def w1_stage_items(self, it0, it1):
        items = []
        for it in range(it0, it1):
            q, r = divmod(it, 7)
            if r == 0 or it == it0:
                items.append("s_add_u32 s61, s62, %d" % (q * 128 * 3456))
            items.append(("vm", "buffer_load_dwordx4 %s, v%d, s[%d:%d], s61 offen" % (ar(4 * it, 4), self.W1OFF + r, SRD_B, SRD_B + 3), "w1"))
        return items
    def w1_stage_to_lds(self):
        b = 160
        self("v_lshlrev_b32 v%d, 4, v%d" % (b, V_LANE))
        self("s_lshl_b32 s3, s%d, 10" % S_W)
        self("v_add_u32 v%d, s3, v%d" % (b, b))
        self("v_add_u32 v%d, 65536, v%d" % (b + 1, b))
        self("v_add_u32 v%d, 131072, v%d" % (b + 2, b))
        for it in range(35):
            o = 4096 * it
            self.lg("ds_write_b128 v%d, %s offset:%d" % (b + o // 65536, ar(4 * it, 4), o % 65536), "w1w")
    def w2_setup(self):
        self.srd(SRD_W2, P_WS, WP_SZ, const=WS_W2P)
        self("s_mul_i32 s3, s%d, %d" % (S_W, 14 * 40))
        self("s_mul_i32 s%d, s%d, 5" % (S_T0, S_CS))
        self("s_add_u32 s3, s3, s%d" % S_T0)
        self("s_lshl_b32 s%d, s3, 10" % S_W2B)
    def w2_items(self, f0, f1, vlane16):
        it = []
        last = None
        for f in range(f0, f1):
            s, i = divmod(f, 5)
            key = (s, i == 4)
            if key != last:
                it.append("s_add_u32 s61, s%d, %d" % (S_W2B, s * 40 * 1024 + (4096 if i == 4 else 0)))
                last = key
            it.append(("vm", "buffer_load_dwordx4 %s, v%d, s[%d:%d], s61 offen offset:%d" % (w2reg(f), vlane16, SRD_W2, SRD_W2 + 3, 0 if i == 4 else 1024 * i), "w2"))
        return it

    def post_conv(self):
        QN = V_CS
        self("v_lshlrev_b32 v160, 4, v%d" % V_L15)
        self("s_lshl_b32 s3, s%d, 4" % S_W)
        self("v_add_u32 v160, s3, v%d" % V_L15)
        self("v_mul_u32_u24 v160, 160, v160")
        self("v_lshl_add_u32 v160, v%d, 3, v160" % V_G)
        self("v_add_u32 v160, %d, v160" % LDS_Q)
        for u in range(5):
            self.lg("ds_read_b64 %s, v160 offset:%d" % (vr(V_X + 2 * u, 2), 32 * u), "q")
        self.lg_wait_all()
        self.unpack_tile(124, V_X)
        self.tile_stats(124, 0, 144)
        self("s_waitcnt lgkmcnt(0)")
        L = self.if_wave(3, eq=False)
        self("s_waitcnt vmcnt(0)")
        self.close(L)
        self.vmq = []; self.lgq = []
        self("s_barrier")
        self.stamp(10)
        L = self.if_wave(3)
        self("s_lshl_b32 s%d, s%d, 8" % (S_T0, S_G))
        self("s_lshl_b32 s%d, s%d, 3" % (S_T0 + 1, S_J))
        self("s_add_u32 s%d, s%d, s%d" % (S_T0, S_T0, S_T0 + 1))
        self("s_add_u32 s%d, s%d, %d" % (S_T0, S_T0, WS_YFLAG))
        self.flag_store(P_WS, S_T0, 1, device=True)
        self.close(L)
        self.row_stats_issue(0, 60)
        c1, c2 = self.o.get("w1c1", 24), self.o.get("w1c2", 34)
        L = self.if_wave(3, eq=False)
        self.w1_dma(list(range(0, c1)))
        self.close(L)
        self.stamp(11)
        La, Lb = self.label("L_qa"), self.label("L_qb")
        self("s_cmp_eq_u32 s%d, 3" % S_W)
        self("s_cbranch_scc1 %s" % La)
        self("s_waitcnt vmcnt(%d)" % c1)
        self("s_branch %s" % Lb)
        self("%s:" % La)
        self("s_waitcnt vmcnt(0)")
        self("%s:" % Lb)
        self.vmq = []
        self.row_stats_validate(0, 60)
        self.row_stats_finish(60, 24, 26)
        XF, d, t = 4, 28, 30
        self.unpack_tile(XF, V_X)
        for i in range(10):
            self("v_pk_add_f32 %s, %s, v[24:25] op_sel_hi:[1,0] neg_lo:[0,1] neg_hi:[0,1]" % (vr(d, 2), vr(XF + 2 * i, 2)))
            self.rnd_pair(d, t)
            self("v_pk_mul_f32 %s, %s, v[26:27] op_sel_hi:[1,0]" % (vr(d, 2), vr(d, 2)))
            self("v_cvt_pk_bf16_f32 v%d, v%d, v%d" % (QN + i, d, d + 1))
        Ly = self.if_wave(3)
        self.addr_pair(S_TMPP, P_WS, WS_PKFLAG)
        self("v_lshlrev_b32 v159, 5, v%d" % V_LANE)
        self.poll_pairs(S_TMPP, 159, 1, 0, 144, npair=4)
        self.stamp(40)
        self.addr_pair(S_TMPP, P_WS, WS_YFLAG)
        self("s_lshl_b32 s3, s%d, 8" % S_CS)
        self("s_lshl_b32 s%d, s%d, 8" % (S_T0, S_G))
        self("v_mov_b32 v181, s3")
        self("v_mov_b32 v180, s%d" % S_T0)
        self("v_cmp_gt_u32 vcc, 32, v%d" % V_LANE)
        self("v_cndmask_b32 v181, v180, v181, vcc")
        self("v_and_b32 v180, 31, v%d" % V_LANE)
        self("v_lshl_add_u32 v180, v180, 3, v181")
        self.poll_pairs(S_TMPP, 180, 1, 0, 176)
        self.stamp(41)
        self("s_mul_i32 s3, s%d, %d" % (S_CS, 80 * 4096))
        self("s_lshl_b32 s%d, s%d, 9" % (S_T0, S_G))
        self("s_add_u32 s3, s3, s%d" % S_T0)
        self("s_lshl_b32 s%d, s%d, 7" % (S_T0, S_RB))
        self("s_add_u32 s3, s3, s%d" % S_T0)
        self.addr_pair(S_TMPP, P_WS, WS_YT, 3)
        a, b = 164, 165
        self("v_lshrrev_b32 v%d, 3, v%d" % (a, V_LANE))
        self("v_lshlrev_b32 v%d, 12, v%d" % (a, a))
        self("v_and_b32 v%d, 7, v%d" % (b, V_LANE))
        self("v_lshl_add_u32 v%d, v%d, 4, v%d" % (a, b, a))
        for k in range(10):
            self("s_mov_b32 m0, %d" % (LDS_SCR + 1024 * k))
            self("v_add_u32 v%d, %d, v%d" % (b, 8 * 4096 * k, a))
            self("global_load_lds_dwordx4 v%d, s[%d:%d]" % (b, S_TMPP, S_TMPP + 1))
        self("s_waitcnt vmcnt(0)")
        self.close(Ly)
        self("s_barrier")
        self.stamp(12)
        L = self.if_wave(3, eq=False)
        self.w1_dma(list(range(c1, c2)))
        self.close(L)

        a, b = 164, 165
        self("v_bfe_u32 v%d, v%d, 2, 2" % (a, V_LANE))
        self("v_lshl_add_u32 v%d, v%d, 2, v%d" % (a, V_G, a))
        self("v_lshlrev_b32 v%d, 7, v%d" % (a, a))
        self("v_and_b32 v%d, 3, v%d" % (b, V_LANE))
        self("v_lshl_add_u32 v%d, v%d, 3, v%d" % (a, b, a))
        self("s_lshl_b32 s3, s%d, 5" % S_W)
        self("s_add_u32 s3, s3, %d" % LDS_SCR)
        self("v_add_u32 v%d, s3, v%d" % (a, a))
        for u in range(5):
            self.lg("ds_read_b64_tr_b16 %s, v%d offset:%d" % (vr(V_Y + 2 * u, 2), a, 16 * 128 * u), "ytr")
        self.xf_store_setup(S_XO1)
        yf, qf = 32, 34
        self.lg_wait_all()
        for i in range(10):
            self.unpack(yf, V_Y + i)
            self.unpack(qf, QN + i)
            self("v_pk_mul_f32 %s, %s, %s" % (vr(d, 2), vr(yf, 2), vr(qf, 2)))
            self.rnd_pair(d, t)
            self("v_pk_add_f32 %s, %s, %s" % (vr(XF + 2 * i, 2), vr(XF + 2 * i, 2), vr(d, 2)))
            self("v_cvt_pk_bf16_f32 v%d, v%d, v%d" % (V_X + i, XF + 2 * i, XF + 2 * i + 1))
            self.unpack(XF + 2 * i, V_X + i)
        self.xf_store()
        self.tile_stats(XF, 1, 28)

    def xf_store_setup(self, ws_off):
        self("s_lshl_b32 s3, s%d, 4" % S_G)
        self("s_lshl_b32 s%d, s%d, 2" % (S_T0, S_RB))
        self("s_add_u32 s3, s3, s%d" % S_T0)
        self("s_add_u32 s3, s3, s%d" % S_W)
        self("s_mul_i32 s3, s3, %d" % (20 * 1024))
        self("s_add_u32 s3, s3, s%d" % ws_off)
        a = 170
        self("v_lshlrev_b32 v%d, 4, v%d" % (a, V_LANE))
        self("v_add_u32 v%d, s3, v%d" % (a, a))
        self("s_mul_i32 s%d, s%d, 5" % (S_T0, S_CS))
        for u in range(5):
            self("s_add_u32 s%d, s%d, %d" % (S_T0 + 1, S_T0, u))
            self("s_lshr_b32 s%d, s%d, 1" % (S_T0 + 2, S_T0 + 1))
            self("s_lshl_b32 s%d, s%d, 10" % (S_T0 + 2, S_T0 + 2))
            self("s_and_b32 s%d, s%d, 1" % (S_T0 + 1, S_T0 + 1))
            self("s_lshl_b32 s%d, s%d, 3" % (S_T0 + 1, S_T0 + 1))
            self("s_add_u32 s%d, s%d, s%d" % (S_T0 + 1, S_T0 + 1, S_T0 + 2))
            self("v_add_u32 v%d, s%d, v%d" % (165 + u, S_T0 + 1, a))
    def xf_store(self):
        Lo, Ld = self.label("L_xo"), self.label("L_xd")
        p = "s[%d:%d]" % (P_WS, P_WS + 1)
        x4 = lambda u: "global_store_dwordx4 v%d, %s, %s" % (165 + u, vr(V_X + 2 * u, 4), p)
        x2 = lambda u: "global_store_dwordx2 v%d, %s, %s" % (165 + u, vr(V_X + 2 * u, 2), p)
        self("s_bitcmp1_b32 s%d, 0" % S_CS)
        self("s_cbranch_scc1 %s" % Lo)
        self.handoff_stores([x4(0), x4(2), x2(4)], record=False)
        self("s_branch %s" % Ld)
        self("%s:" % Lo)
        self.handoff_stores([x2(0), x4(1), x4(3)], record=False)
        self("%s:" % Ld)
        self.vmq.extend(["xf"] * 3)

    def mixer_update(self, m, rs, xf, tmp):
        yf, d = tmp, tmp + 2
        for i in range(10):
            X = xf + 2 * i
            self.unpack(yf, V_Y + i)
            self("v_pk_add_f32 %s, %s, %s op_sel_hi:[1,0] neg_lo:[0,1] neg_hi:[0,1]" % (vr(d, 2), vr(X, 2), vr(m, 2)))
            self("v_pk_mul_f32 %s, %s, %s op_sel_hi:[1,0]" % (vr(d, 2), vr(d, 2), vr(rs, 2)))
            self("v_pk_fma_f32 %s, %s, %s, %s" % (vr(X, 2), vr(d, 2), vr(yf, 2), vr(X, 2)))
            self("v_cvt_pk_bf16_f32 v%d, v%d, v%d" % (V_X + i, X, X + 1))
            self.unpack(X, V_X + i)

    def w1_lane_addr(self, a, tmp):
        self("v_bfe_u32 v%d, v%d, 2, 2" % (a, V_LANE))
        self("v_lshl_add_u32 v%d, v%d, 2, v%d" % (a, V_G, a))
        self("v_mul_u32_u24 v%d, %d, v%d" % (a, W1_STRIDE, a))
        self("v_and_b32 v%d, 3, v%d" % (tmp, V_LANE))
        self("v_lshl_add_u32 v%d, v%d, 3, v%d" % (a, tmp, a))
    def colsum(self):
        a, ones, acc = 164, 100, 104
        FR = [112, 120, 128, 136]
        for i in range(4): self("v_mov_b32 v%d, 0x3f803f80" % (ones + i))
        self.w1_lane_addr(a, a + 1)
        self("s_lshl_b32 s3, s%d, 6" % S_W)
        self("v_add_u32 v%d, s3, v%d" % (a, a))
        self("v_add_u32 v%d, %d, v%d" % (a + 1, 8 * 32 * W1_STRIDE, a))
        self("v_add_u32 v%d, %d, v%d" % (a + 2, 16 * 32 * W1_STRIDE, a))
        def loads(t):
            for i in range(2):
                for h in range(2):
                    self.lg("ds_read_b64_tr_b16 %s, v%d offset:%d" % (vr(FR[t % 4] + 4 * i + 2 * h, 2), a + (t // 8), ((t % 8) * 32 + h * 16) * W1_STRIDE + 32 * i), "cs%d" % t)
        for t in range(3): loads(t)
        for t in range(20):
            if t + 3 < 20: loads(t + 3)
            self.lg_wait("cs%d" % t)
            for i in range(2):
                c = vr(acc + 4 * i, 4) if t else "0"
                self("v_mfma_f32_16x16x32_bf16 %s, %s, %s, %s" % (vr(acc + 4 * i, 4), vr(FR[t % 4] + 4 * i, 4), vr(ones, 4), c))
        b = 144
        self("v_lshlrev_b32 v%d, 4, v%d" % (b, V_G))
        self("s_lshl_b32 s3, s%d, 7" % S_W)
        self("s_add_u32 s3, s3, %d" % LDS_CSX)
        self("v_add_u32 v%d, s3, v%d" % (b, b))
        self("v_cmp_eq_u32 vcc, 0, v%d" % V_L15)
        self("s_and_saveexec_b64 s[%d:%d], vcc" % (S_SAVE, S_SAVE + 1))
        self("ds_write_b128 v%d, %s" % (b, vr(acc, 4)))
        self("ds_write_b128 v%d, %s offset:64" % (b, vr(acc + 4, 4)))
        self.exec_restore()
        self.lg_wait_all()
    def colsum_fetch(self):
        b = 144
        self("v_lshlrev_b32 v%d, 4, v%d" % (b, V_G))
        self("v_add_u32 v%d, %d, v%d" % (b, LDS_CSX, b))
        for u in range(7):
            self.lg("ds_read_b128 %s, v%d offset:%d" % (vr(V_CS + 4 * u, 4), b, 64 * u), "cs")

    G1_ACC = 4; G1_AF = [60, 88]; G1_XR = 116; G1_DEPTH = 7; G1_LA = 172; G1_XA = 183; G1_ST = 174; G1_L16 = 182
    def g1_aloads(self, t, buf):
        l = []
        for i in range(7):
            for h in range(2):
                l.append(("lg", "ds_read_b64_tr_b16 %s, v%d offset:%d" % (vr(self.G1_AF[buf] + 4 * i + 2 * h, 2), self.G1_LA, h * 16 * W1_STRIDE + 32 * i), "a%d" % t))
        return l
    def g1_setup(self, xf_off, hf_off):
        self("s_lshl_b32 s3, s%d, 4" % S_G)
        self("s_lshl_b32 s%d, s%d, 3" % (S_T0, S_RT))
        self("s_add_u32 s3, s3, s%d" % S_T0)
        self("s_lshl_b32 s%d, s%d, 1" % (S_T0, S_W))
        self("s_add_u32 s%d, s3, s%d" % (S_RU0, S_T0))
        self("s_mul_i32 s3, s%d, %d" % (S_RU0, 20 * 1024))
        self("s_add_u32 s3, s3, s%d" % xf_off)
        self.addr_pair(S_XFB, P_WS, 0, 3)
        self.addr_pair(S_TMPQ, S_XFB, 20 * 1024)
        self("v_lshlrev_b32 v%d, 4, v%d" % (self.G1_XA, V_LANE))
        self("v_lshlrev_b32 v%d, 4, v%d" % (self.G1_L16, V_LANE))
        self("s_mul_i32 s%d, s%d, %d" % (S_T0 + 3, S_RU0, 54 * 1024))
        self("s_add_u32 s%d, s%d, %s" % (S_T0 + 3, S_T0 + 3, hf_off))
        for i in range(7):
            self("s_add_u32 s%d, s%d, %d" % (S_T0 + 1, S_UOFF, i))
            self("s_lshr_b32 s%d, s%d, 1" % (S_T0 + 2, S_T0 + 1))
            self("s_lshl_b32 s%d, s%d, 10" % (S_T0 + 2, S_T0 + 2))
            self("s_and_b32 s%d, s%d, 1" % (S_T0 + 1, S_T0 + 1))
            self("s_lshl_b32 s%d, s%d, 3" % (S_T0 + 1, S_T0 + 1))
            self("s_add_u32 s%d, s%d, s%d" % (S_T0 + 1, S_T0 + 1, S_T0 + 2))
            self("s_add_u32 s%d, s%d, s%d" % (S_T0 + 1, S_T0 + 1, S_T0 + 3))
            self("s_add_u32 s%d, s%d, s%d" % (72 + 2 * i, P_WS, S_T0 + 1))
            self("s_addc_u32 s%d, s%d, 0" % (73 + 2 * i, P_WS + 1))
        self.w1_lane_addr(self.G1_LA, 59)
        for x in self.g1_aloads(0, 0): self.lg(x[1], x[2])
        self("v_add_u32 v%d, 7168, v%d" % (self.G1_LA, self.G1_LA))
    def g1_main(self, statbuf, sb=None, w2range=None, ldf='', pretouch=False, hwt=False, main_only=False, neg=False):
        ACC, AF, XR, DEPTH, la, xa, ST = self.G1_ACC, self.G1_AF, self.G1_XR, self.G1_DEPTH, self.G1_LA, self.G1_XA, self.G1_ST
        def xload(t):
            for rho in range(2):
                base = S_XFB if rho == 0 else S_TMPQ
                d = XR + ((t % DEPTH) * 2 + rho) * 4
                self.vm("global_load_dwordx4 %s, v%d, s[%d:%d] offset:%d %s" % (vr(d, 4), xa, base, base + 1, (t % 4) * 1024, ldf), "x%d" % t)
            if t % 4 == 3: self("v_add_u32 v%d, 4096, v%d" % (xa, xa))
        for t in range(3): xload(t)
        sa = 59
        self("s_lshl_b32 s3, s%d, 11" % S_RU0)
        self("s_add_u32 s3, s3, %d" % (WS_STAT + statbuf * STAT_SZ))
        self("v_lshlrev_b32 v%d, 7, v%d" % (sa, V_L15))
        self("v_lshl_add_u32 v%d, v%d, 5, v%d" % (sa, V_G, sa))
        self("v_add_u32 v%d, s3, v%d" % (sa, sa))
        for rho in range(2):
            for k in range(2):
                self.vm("global_load_dwordx2 %s, v%d, s[%d:%d] offset:%d" % (vr(ST + 4 * rho + 2 * k, 2), sa, P_WS, P_WS + 1, 2048 * rho + 16 * k), "st")
        for t in range(3, DEPTH): xload(t)
        if pretouch:
            self("s_mul_i32 s3, s%d, %d" % (S_RU0, 54 * 1024))
            self("s_lshr_b32 s%d, s%d, 1" % (S_T0, S_UOFF))
            self("s_lshl_b32 s%d, s%d, 10" % (S_T0, S_T0))
            self("s_add_u32 s3, s3, s%d" % S_T0)
            self("s_and_b32 s%d, s%d, 1" % (S_T0, S_UOFF))
            self("s_lshl_b32 s%d, s%d, 3" % (S_T0, S_T0))
            self("s_add_u32 s3, s3, s%d" % S_T0)
            self("s_add_u32 s3, s3, %d" % WS_HF1)
            self("v_lshrrev_b32 v57, 5, v%d" % V_LANE)
            self("v_mul_u32_u24 v57, %d, v57" % (54 * 1024))
            self("v_and_b32 v58, 31, v%d" % V_LANE)
            self("v_lshl_add_u32 v58, v58, 7, v57")
            self("v_add_u32 v58, s3, v58")
            Lp = self.label("L_pth")
            self("s_cmp_lg_u32 s%d, 0" % S_MODE)
            self("s_cbranch_scc1 %s" % Lp)
            self("global_store_dword v58, v58, s[%d:%d]" % (P_WS, P_WS + 1))
            self("%s:" % Lp)
        w2items = self.w2_items(w2range[0], w2range[1], self.G1_L16) if w2range else []
        nper = -(-len(w2items) // 16)
        for t in range(20):
            if t == 1 and sb: self.stamp(sb)
            buf = t & 1
            nxt = self.g1_aloads(t + 1, buf ^ 1) if t < 19 else []
            self.lg_wait_all()
            self.vm_wait("x%d" % t)
            self.bg_add(nxt)
            if t >= 1:
                self.bg_add(w2items[:nper]); w2items = w2items[nper:]
            nbg = len(self.bgq); done = 0
            k = 0
            for i in range(7):
                for rho in range(2):
                    acc = ACC + (rho * 7 + i) * 4
                    c = vr(acc, 4) if t else "0"
                    self("v_mfma_f32_16x16x32_bf16 %s, %s, %s, %s" % (vr(acc, 4), vr(AF[buf] + 4 * i, 4), vr(XR + ((t % DEPTH) * 2 + rho) * 4, 4), c))
                    k += 1
                    want = min(nbg, -(-nbg * k // 11))
                    self.bg_step(want - done); done = want
            self.bg_flush()
            if t < 19: self("v_add_u32 v%d, 7168, v%d" % (la, la))
            if t + DEPTH < 20: xload(t + DEPTH)
        if sb: self.stamp(sb + 1)
        if main_only: return
        self.g1_epilogue(hwt, neg)
    def g1_epilogue(self, hwt=False, neg=False):
        ACC, AF, XR, DEPTH, la, xa, ST = self.G1_ACC, self.G1_AF, self.G1_XR, self.G1_DEPTH, self.G1_LA, self.G1_XA, self.G1_ST
        M = [60, 64]; RS = [62, 66]
        self.vm_wait_all()
        for rho in range(2):
            for i in range(4): self("v_mov_b32 v%d, v%d" % (72 + i, ST + 4 * rho + i))
            self.row_stats_finish(72, M[rho], RS[rho])
            if neg: self("v_xor_b32 v%d, 0x80000000, v%d" % (RS[rho], RS[rho]))
        if neg: self("s_mov_b32 s%d, 0x80008000" % S_T0)
        ha = 80
        self("v_add_u32 v%d, %d, v%d" % (ha, 54 * 1024, self.G1_L16))
        HA = [self.G1_L16, ha]
        lines = []
        O = 100
        for rho in range(2):
            for i in range(7):
                acc = ACC + (rho * 7 + i) * 4
                for p in range(2):
                    A = acc + 2 * p; C = V_CS + 4 * i + 2 * p
                    self("v_pk_fma_f32 %s, %s, %s, %s op_sel_hi:[1,0,1] neg_lo:[0,1,0] neg_hi:[0,1,0]" % (vr(A, 2), vr(C, 2), vr(M[rho], 2), vr(A, 2)))
                    self("v_pk_mul_f32 %s, %s, %s op_sel_hi:[1,0]" % (vr(A, 2), vr(A, 2), vr(RS[rho], 2)))
                    o = O + (rho * 7 + i) * 2 + p
                    self("v_cvt_pk_bf16_f32 v%d, v%d, v%d" % (o, A, A + 1))
                    if neg: self("v_pk_max_u16 v%d, v%d, s%d" % (o, o, S_T0))
                    else: self("v_pk_max_i16 v%d, v%d, 0" % (o, o))
        def st(rho, i, n):
            return "global_store_dwordx%d v%d, %s, s[%d:%d]" % (n, HA[rho], vr(O + (rho * 7 + i) * 2, n), 72 + 2 * i, 73 + 2 * i)
        Lo, Ld = self.label("L_ho"), self.label("L_hd")
        self("s_bitcmp1_b32 s%d, 0" % S_UOFF)
        self("s_cbranch_scc1 %s" % Lo)
        def emit(lines):
            if hwt:
                for l in lines: self(l + " sc0 sc1")
            else: self.handoff_stores(lines, record=False)
        emit([st(rho, i, 4 if i < 6 else 2) for rho in range(2) for i in (0, 2, 4, 6)])
        self("s_branch %s" % Ld)
        self("%s:" % Lo)
        emit([st(rho, i, 4 if i > 0 else 2) for rho in range(2) for i in (0, 1, 3, 5)])
        self("%s:" % Ld)
        self.vmq.extend(["h"] * 8)

    G2_ACC = [4, 24]; G2_HR = 44; G2_HA = 100; G2_RA = 104; G2_TMP = 108; G2_SUM = 128
    def g2_setup(self, hf_off):
        ha, ra = self.G2_HA, self.G2_RA
        for s in range(14):
            self("s_mul_i32 s3, s%d, 14" % S_W)
            self("s_add_u32 s3, s3, %d" % s)
            self("s_min_u32 s3, s3, 53")
            self("s_lshl_b32 s%d, s3, 10" % (S_HSTEP + s))
        self.srd(SRD_A, P_WS, 0x10000000 - self.o.get('wsbase', 0))
        for k in range(4):
            self("s_add_u32 s3, s%d, %d" % (S_W, 1 + k))
            self("s_and_b32 s3, s3, 3")
            self("s_mul_i32 s%d, s3, 5120" % (S_T0 + 1))
            self("s_lshl_b32 s%d, s%d, 4" % (S_T0, S_G))
            self("s_add_u32 s3, s3, s%d" % S_T0)
            self("s_lshl_b32 s%d, s%d, 2" % (S_T0, S_RB))
            self("s_add_u32 s3, s3, s%d" % S_T0)
            self("s_mul_i32 s3, s3, %d" % (54 * 1024))
            self("s_add_u32 s3, s3, %s" % hf_off)
            self("v_lshlrev_b32 v%d, 4, v%d" % (ha + k, V_LANE))
            self("v_add_u32 v%d, s3, v%d" % (ha + k, ha + k))
            self("v_lshlrev_b32 v%d, 4, v%d" % (ra + k, V_LANE))
            self("s_add_u32 s3, s%d, %d" % (S_T0 + 1, LDS_SCR))
            self("v_add_u32 v%d, s3, v%d" % (ra + k, ra + k))
    def g2_main(self, sb=None, ldf='', val=None):
        ACC, HR, ha, ra, TMP, SUM = self.G2_ACC, self.G2_HR, self.G2_HA, self.G2_RA, self.G2_TMP, self.G2_SUM
        def hload(p):
            k, s = divmod(p, 14)
            if self.o.get("g2_noload") and p >= 14: return
            self.vm("buffer_load_dwordx4 %s, v%d, s[%d:%d], s%d offen %s" % (vr(HR + 4 * s, 4), ha + k, SRD_A, SRD_A + 3, S_HSTEP + s, ldf), "h%d" % p)
        CK = 148
        retry_blocks = []
        def bad_ops(regs):
            op = "v_or" if val == 1 else "v_and"
            l = []
            acc_ = regs[0]; rest = regs[1:]
            first = True
            while rest:
                if len(rest) >= 2 and val == 1:
                    l.append("v_or3_b32 v%d, v%d, v%d, v%d" % (CK, acc_, rest[0], rest[1])); rest = rest[2:]
                else:
                    l.append("%s_b32 v%d, v%d, v%d" % (op, CK, acc_, rest[0])); rest = rest[1:]
                acc_ = CK
            l.append(("v_cmp_gt_i32 vcc, 0, v%d" if val == 1 else "v_cmp_le_i32 vcc, 0, v%d") % CK)
            return l
        for p in range(14): hload(p)
        if val:
            Lsp, Lok = self.label("L_hsp"), self.label("L_hok")
            self.vm_wait("h0")
            for l in bad_ops([HR, HR + 2]): self(l)
            self("s_cbranch_vccz %s" % Lok)
            self("s_mov_b32 s%d, %d" % (S_TMO, TIMEOUT))
            self("%s:" % Lsp)
            self("buffer_load_dwordx4 %s, v%d, s[%d:%d], s%d offen %s" % (vr(HR, 4), ha, SRD_A, SRD_A + 3, S_HSTEP, ldf))
            self("s_sub_u32 s%d, s%d, 1" % (S_TMO, S_TMO))
            self("s_cmp_eq_u32 s%d, 0" % S_TMO)
            self("s_cbranch_scc1 L_abort")
            self("s_waitcnt vmcnt(0)")
            for l in bad_ops([HR, HR + 2]): self(l)
            self("s_cbranch_vccnz %s" % Lsp)
            self("%s:" % Lok)
            self.stamp(45 if val == 1 else 46)
        if sb: self.stamp(sb)
        late = []
        for k in range(4):
            acc = ACC[k & 1]; prev = ACC[(k & 1) ^ 1]
            for s in range(14):
                p = 14 * k + s
                if k > 0 and not self.o.get("g2_nobar"):
                    sA, sB = self.o.get("g2_sA", 7), self.o.get("g2_sB", 11)
                    w0 = self.o.get("g2_w0", 1)
                    X = self.o.get("g2_x", "wbra")
                    if w0 <= s < w0 + 5 and "w" in X:
                        i = s - w0
                        late.append(("lg", "ds_write_b128 v%d, %s offset:%d" % (ra + k - 1, vr(prev + 4 * i, 4), 1024 * i), "rw"))
                    if s == sA:
                        self.bg_flush()
                        if "b" in X: self.lg_wait_all(); self("s_barrier")
                        rd = [("lg", "ds_read_b128 %s, v%d offset:%d" % (vr(TMP + 4 * i, 4), ra + 3, 1024 * i), "rr") for i in range(5)]
                        if "r" in X: self.bg_add(rd)
                    if s == sB:
                        self.bg_flush()
                        if "b" in X: self.lg_wait_all(); self("s_barrier")
                        if "a" not in X: pass
                        elif k == 1:
                            self.bg_add(["v_mov_b32 v%d, v%d" % (SUM + j, TMP + j) for j in range(20)])
                        else:
                            self.bg_add(["v_pk_add_f32 %s, %s, %s" % (vr(SUM + j, 2), vr(SUM + j, 2), vr(TMP + j, 2)) for j in range(0, 20, 2)])
                chk = []
                if val:
                    pn = p + 1
                    if pn < 56:
                        self.vm_wait("h%d" % pn)
                        rn = HR + 4 * (pn % 14)
                        chk = bad_ops([rn, rn + 2])
                else:
                    self.vm_wait("h%d" % p)
                for i in range(5):
                    c = vr(acc + 4 * i, 4) if s > 0 else "0"
                    self("v_mfma_f32_16x16x32_bf16 %s, %s, %s, %s" % (vr(acc + 4 * i, 4), w2reg(s * 5 + i), vr(HR + 4 * s, 4), c))
                    if chk and i < 2:
                        self(chk[i])
                    elif i == 2 and late:
                        x = late.pop(0); self.lg(x[1], x[2])
                    else:
                        self.bg_step(2 if k == 1 and s >= 11 else 1)
                if chk:
                    Lr, Lb = self.label("L_hr"), self.label("L_hb")
                    self("s_cbranch_vccnz %s ; nohaz" % Lr)
                    self("%s: ; nohaz" % Lb)
                    kn, sn = divmod(pn, 14)
                    retry_blocks.append((Lr, Lb, "buffer_load_dwordx4 %s, v%d, s[%d:%d], s%d offen %s" % (vr(HR + 4 * sn, 4), ha + kn, SRD_A, SRD_A + 3, S_HSTEP + sn, ldf), bad_ops([rn, rn + 2])))
                if p + 14 < 56: hload(p + 14)
            self.bg_flush()
        if retry_blocks:
            Lx = self.label("L_hx")
            self("s_branch %s" % Lx)
            for (Lr, Lb, ld, ops) in retry_blocks:
                Li = self.label("L_hi")
                self("%s:" % Lr)
                self("s_mov_b32 s%d, %d" % (S_TMO, TIMEOUT))
                self("%s:" % Li)
                self(ld)
                self("s_sub_u32 s%d, s%d, 1" % (S_TMO, S_TMO))
                self("s_cmp_eq_u32 s%d, 0" % S_TMO)
                self("s_cbranch_scc1 L_abort")
                self("s_waitcnt vmcnt(0)")
                for l in ops: self(l)
                self("s_cbranch_vccnz %s" % Li)
                self("s_branch %s" % Lb)
            self("%s:" % Lx)
        if sb: self.stamp(sb + 1)
        acc = ACC[1]
        for j in range(0, 20, 2):
            self("v_pk_add_f32 %s, %s, %s" % (vr(SUM + j, 2), vr(SUM + j, 2), vr(acc + j, 2)))
        return SUM

    def residual_add(self, RES, XF, neg=False):
        t = 178
        self.unpack_tile(XF, V_X)
        for i in range(10):
            self.rnd_pair(RES + 2 * i, t)
            self("v_pk_add_f32 %s, %s, %s %s" % (vr(XF + 2 * i, 2), vr(XF + 2 * i, 2), vr(RES + 2 * i, 2), "neg_lo:[0,1] neg_hi:[0,1]" if neg else ""))
            self("v_cvt_pk_bf16_f32 v%d, v%d, v%d" % (V_X + i, XF + 2 * i, XF + 2 * i + 1))
            self.unpack(XF + 2 * i, V_X + i)

    def store_out(self):
        t2 = 164
        self.rowbase()
        self("v_add_u32 v%d, s3, v%d" % (t2, V_L15))
        self("v_mul_u32_u24 v%d, 1280, v%d" % (t2, t2))
        self("s_mul_i32 s3, s%d, 160" % S_CS)
        self("v_lshlrev_b32 v%d, 3, v%d" % (t2 + 1, V_G))
        self("v_add3_u32 v%d, v%d, v%d, s3" % (t2, t2, t2 + 1))
        for u in range(5):
            self.vm("global_store_dwordx2 v%d, %s, s[%d:%d] offset:%d %s" % (t2, vr(V_X + 2 * u, 2), P_OUT, P_OUT + 1, 32 * u, self.o.get("outf", "")), "out")

    def epoch_update(self):
        L = self.label("L_ep")
        self("s_add_u32 s3, s2, s%d" % S_W)
        self("s_cmp_lg_u32 s3, 0")
        self("s_cbranch_scc1 %s" % L)
        self("s_sub_u32 s3, s%d, 0x%x" % (S_TAG, TAG0))
        self("s_add_u32 s3, s3, 16")
        self("v_mov_b32 v176, s3")
        self("v_mov_b32 v177, %d" % WS_EPOCH)
        self.exec_set("1")
        self("global_store_dword v177, v176, s[%d:%d] sc0 sc1" % (P_WS, P_WS + 1))
        self.exec_restore()
        self("%s:" % L)

    def build(self):
        o = self.o
        self.prologue()
        if o.get("stamps"): self("v_mov_b32 v%d, 0" % V_STAMP)
        self.stamp(0)
        self.prep_loads()
        self.stamp(38)
        self.prep_compute()
        self.stamp(2)
        self.mode_check()
        self.lg_wait_all()
        self("s_barrier")
        self.mode_fetch()
        self.stamp(3)
        self.prep_store_ur()
        self.stamp(4)
        self.barrier_arrive(1, drain=False)
        self.build_kcopies()
        self.w1_stage_setup()
        self.w2_setup()
        self.stamp(5)
        self.barrier_wait(1)
        self.stamp(6)
        self.vmq = []; self.lgq = []
        self.conv()
        self.stamp(9)
        self.post_conv()
        self.stamp(13)
        L = self.if_wave(3, eq=False)
        self.w1_dma(list(range(o.get("w1c2", 34), 47)))
        self.close(L)
        self.barrier_arrive(2)
        na, nb = o.get("w2a", 22), o.get("w2b", 48)
        self("v_lshlrev_b32 v163, 4, v%d" % V_LANE)
        self.bg_add(self.w2_items(0, na, 163)); self.bg_flush()
        self.colsum()
        self("s_barrier")
        self.colsum_fetch()
        self.stamp(14)
        self.g1_setup(S_XO1, str(WS_HF1))
        self.lg_wait_all()
        self.barrier_wait(2)
        self.stamp(15)
        self.g1_main(1, 16, w2range=(na, nb), ldf='sc1', main_only=True)
        self.g1_epilogue(hwt=o.get('hwt', 0))
        self.stamp(18)
        sv = o.get("selfval", 1)
        def slow_barrier(ph):
            L = self.label("L_sb")
            self("s_cmp_eq_u32 s%d, 0" % S_MODE)
            self("s_cbranch_scc1 %s" % L)
            q = (list(self.vmq), list(self.lgq))
            self.barrier_arrive(ph)
            self.barrier_wait(ph)
            self("%s:" % L)
            self.vmq, self.lgq = q
        self("v_lshlrev_b32 v163, 4, v%d" % V_LANE)
        if sv:
            self.bg_add(self.w2_items(nb, 70, 163)); self.bg_flush()
            self.g2_setup(str(WS_HF1))
            slow_barrier(3)
        else:
            self.barrier_arrive(3)
            self.bg_add(self.w2_items(nb, 70, 163)); self.bg_flush()
            self.g2_setup(str(WS_HF1))
            self.barrier_wait(3)
        self.stamp(21)
        RES = self.g2_main(22, ldf='sc1' if sv else '', val=1 if sv else None)
        self.stamp(24)
        XF = 4
        self.residual_add(RES, XF)
        self.tile_stats(XF, 2, 28)
        self.row_stats_issue(2, 60)
        self.xf_store_setup(S_XO3)
        self.stamp(25)
        self.vm_wait("rs")
        self.row_stats_validate(2, 60)
        self.stamp(26)
        self.row_stats_finish(60, 24, 26)
        self.mixer_update(24, 26, XF, 28)
        self.xf_store()
        self.tile_stats(XF, 3, 28)
        self.stamp(27)
        self.barrier_arrive(4)
        self.g1_setup(S_XO3, 's%d' % S_HO2)
        self.barrier_wait(4)
        self.stamp(28)
        self.g1_main(3, 29, ldf='sc1', neg=bool(sv))
        self.stamp(31)
        if sv:
            self.g2_setup('s%d' % S_HO2)
            slow_barrier(5)
        else:
            self.barrier_arrive(5)
            self.g2_setup('s%d' % S_HO2)
            self.barrier_wait(5)
        if o.get("wbl2"):
            L = self.label("L_wb")
            self("s_lshl_b32 s3, s%d, 2" % S_J)
            self("s_add_u32 s3, s3, s%d" % S_W)
            self("s_cmp_lg_u32 s3, %d" % o.get("wbl2_who", 1))
            self("s_cbranch_scc1 %s" % L)
            self("buffer_wbl2 sc1")
            self("%s:" % L)
        self.stamp(32)
        RES = self.g2_main(33, ldf='sc1', val=2 if sv else None)
        self.stamp(35)
        self.residual_add(RES, 4, neg=bool(sv))
        self.store_out()
        self.epoch_update()
        self.stamp(36)
        self("s_waitcnt vmcnt(0)")
        self.stamp(37)
        self.stamp_dump()
        if self.o.get("dbgtime"):
            L = self.label("L_dt")
            self("s_add_u32 s3, s%d, s%d" % (S_J, S_W))
            self("s_cmp_lg_u32 s3, 0")
            self("s_cbranch_scc1 %s" % L)
            self("s_memrealtime s[94:95]")
            self("s_memtime s[92:93]")
            self("s_waitcnt lgkmcnt(0)")
            self("s_sub_u32 s94, s94, s98")
            self("s_sub_u32 s92, s92, s100")
            self("v_mov_b32 v4, s94")
            self("v_mov_b32 v5, s92")
            self("s_lshl_b32 s3, s%d, 3" % S_G)
            self("v_mov_b32 v6, s3")
            self("s_mov_b64 exec, 1")
            self("global_store_dwordx2 v6, v[4:5], s[%d:%d]" % (P_DBG, P_DBG + 1))
            self("%s:" % L)
        self("s_waitcnt vmcnt(0)")
        self("s_branch L_end")
        self("L_abort:")
        self("L_end:")
        self("s_endpgm")

def make(opts):
    k = K(opts)
    k.build()
    body, added = k.text()
    hdr = open("interleave_layers__ssm_conv_h3__dense_activation_relu__prompt.s.ref").read().split("\n")
    head = [l for l in hdr if l.startswith(";") and "@launch" not in l and "Override launch" not in l and "grid=ceil" not in l][:13]
    txt = "\n".join(head) + "\n"
    txt += "; @launch grid=(256,1,1) block=(256,1,1) lds=%d\n" % LDS_TOTAL
    txt += '.amdgcn_target "amdgcn-amd-amdhsa--gfx950"\n.text\n.globl %s\n.p2align 8\n.type %s,@function\n%s:\n' % (KNAME, KNAME, KNAME)
    txt += body
    txt += """.section .rodata,"a"
.p2align 6
.amdhsa_kernel %s
  .amdhsa_next_free_vgpr 512
  .amdhsa_next_free_sgpr 102
  .amdhsa_accum_offset 256
  .amdhsa_group_segment_fixed_size 0
  .amdhsa_kernarg_size 96
  .amdhsa_user_sgpr_count 2
  .amdhsa_user_sgpr_kernarg_segment_ptr 1
  .amdhsa_system_sgpr_workgroup_id_x 1
.end_amdhsa_kernel
""" % KNAME
    return txt, added, len(k.ins)

if __name__ == "__main__":
    import argparse, json
    ap = argparse.ArgumentParser()
    ap.add_argument("-o", default="interleave_layers__ssm_conv_h3__dense_activation_relu__prompt.s")
    ap.add_argument("--opts", default="{}")
    a = ap.parse_args()
    txt, added, n = make(json.loads(a.opts))
    open(a.o, "w").write(txt)
    print("wrote", a.o, "instructions", n, "nop states added", added, "bytes", len(txt))
```

```python
import sys
sys.path.insert(0, "work")
from gen import *

KNAME = "interleave_layers__ssm_conv_h3__dense_activation_relu__prompt_kernel"

WS_EPOCH = 0x0
WS_XCCF  = 0x400
WS_LFLAG = 0x1000
WS_YFLAG = 0x2000
WS_PKFLAG = 0x3000
WS_STAT  = 0x100000
STAT_SZ  = 0x40000
WS_UR    = 0x200000
WS_YT    = 0x500000
WS_W1P   = 0x800000
WS_W2P   = 0xB00000
WP_SZ    = 2211840
WS_XF1   = 0xE00000
WS_XF3   = 0x1100000
WS_HF1   = 0x1400000
WS_HF2   = 0x1B00000
WS_STAMP = 0x2200000
KX = 0x5BD1E995
TAG0 = 0x9E3779B9

KC_STRIDE = 4160
SLOT = 8 * KC_STRIDE + 4608
U_OFF = 8 * KC_STRIDE
LDS_T = 3 * SLOT
T_STRIDE = 144
LDS_W1 = 0
W1_STRIDE = 224
LDS_SCR = 140 * 1024
LDS_TOTAL = 163840
LDS_MODE = LDS_TOTAL - 16
LDS_CSX = LDS_SCR + 16384
LDS_RP = LDS_T + 80 * T_STRIDE
LDS_Q = LDS_RP + 3 * 4096

S_G, S_J, S_W, S_MODE = 4, 5, 6, 7
SRD_A, SRD_B = 8, 12
P_Q, P_K, P_V, P_SK, P_SSM, P_D, P_W1 = 16, 18, 20, 22, 24, 26, 30
P_W2, P_OUT, P_DBG, P_WS = 32, 34, 36, 38
S_TAG = 28
S_KX = 29
S_RB, S_CS, S_RT, S_CT, S_UOFF = 40, 41, 42, 43, 44
S_MASK = 45
S_XCC = 46
S_CH = 47
S_HASCH = 48
S_DVAL = 49
S_T0 = 50
SRD_W2 = 56
S_W2B = 60
S_RU0 = 63
S_LFLAG = 64
S_TMPP = 66
S_TMPQ = 68
S_SLOT = 70
S_TMO = 71
S_HSTEP = 72
S_XFB = 86
S_M2 = 88
S_XO1, S_XO3, S_HO2 = 90, 91, 96
S_SAVE = 92
S_TS = 94

V_TID, V_LANE, V_L15, V_G = 0, 1, 2, 3
V_STAMP = 173
V_CS = 184
V_Y = 212
V_X = 222
V_W2X = 232

def w2reg(f):
    return ar(4 * f, 4) if f < 64 else vr(V_W2X + 4 * (f - 64), 4)

TIMEOUT = 400000

class K(Gen):
    def __init__(self, opts):
        super().__init__()
        self.o = opts
        self.bgq = []

    def stamp(self, idx):
        if not self.o.get("stamps"): return
        self("s_memtime s[%d:%d]" % (S_TS, S_TS + 1))
        self("s_waitcnt lgkmcnt(0)")
        self("v_writelane_b32 v%d, s%d, %d" % (V_STAMP, S_TS, idx))
        self.lgq = []
    def stamp_dump(self):
        if not self.o.get("stamps"): return
        self("s_memrealtime s[%d:%d]" % (S_TS, S_TS + 1))
        self("s_waitcnt lgkmcnt(0)")
        self("v_writelane_b32 v%d, s%d, 63" % (V_STAMP, S_TS))
        self("v_writelane_b32 v%d, s98, 62" % V_STAMP)
        self("s_lshl_b32 s3, s2, 2")
        self("s_add_u32 s3, s3, s%d" % S_W)
        self("s_lshl_b32 s3, s3, 8")
        self("s_add_u32 s3, s3, %d" % WS_STAMP)
        self("v_lshlrev_b32 v180, 2, v%d" % V_LANE)
        self("v_add_u32 v180, s3, v180")
        self("global_store_dword v180, v%d, s[%d:%d]" % (V_STAMP, P_WS, P_WS + 1))
        if self.o.get("dbgstamps"):
            L = self.label("L_ds")
            self("s_lshl_b32 s3, s2, 2")
            self("s_add_u32 s3, s3, s%d" % S_W)
            self("s_cmp_lg_u32 s3, %d" % (self.o.get("dbgwave", 37)))
            self("s_cbranch_scc1 %s" % L)
            self("v_readlane_b32 s50, v%d, 0" % V_STAMP)
            self("v_mov_b32 v181, 0")
            for i, idx in enumerate(self.o["dbgstamps"]):
                self("v_readlane_b32 s51, v%d, %d" % (V_STAMP, idx))
                self("s_sub_u32 s51, s51, s50")
                self("v_writelane_b32 v181, s51, %d" % i)
            self("v_lshlrev_b32 v180, 2, v%d" % V_LANE)
            self("s_mov_b64 exec, 0xffff")
            self("global_store_dword v180, v181, s[%d:%d]" % (P_DBG, P_DBG + 1))
            self("s_mov_b64 exec, -1")
            self("%s:" % L)
    def bg_add(self, items): self.bgq.extend(items)
    def bg_step(self, n=1):
        q = self.bgq
        while n > 0 and q:
            it = q.pop(0)
            if callable(it): it()
            elif isinstance(it, tuple):
                kind, text, tag = it
                (self.vm if kind == "vm" else self.lg)(text, tag)
            else: self(it)
            n -= 1
    def bg_flush(self): self.bg_step(1 << 30)
    def if_wave(self, w, eq=True):
        L = self.label("L_iw")
        self("s_cmp_%s_u32 s%d, %d" % ("lg" if eq else "eq", S_W, w))
        self("s_cbranch_scc1 %s" % L)
        return L
    def close(self, L): self("%s:" % L)
    def exec_set(self, mask):
        self("s_mov_b64 s[%d:%d], exec" % (S_SAVE, S_SAVE + 1))
        self("s_mov_b64 exec, %s" % mask)
    def exec_restore(self): self("s_mov_b64 exec, s[%d:%d]" % (S_SAVE, S_SAVE + 1))
    def rnd_pair(self, p, t):
        self("v_cvt_pk_bf16_f32 v%d, v%d, v%d" % (t, p, p + 1))
        self("v_lshlrev_b32 v%d, 16, v%d" % (p, t))
        self("v_and_b32 v%d, s%d, v%d" % (p + 1, S_MASK, t))
    def unpack(self, dst, src):
        self("v_lshlrev_b32 v%d, 16, v%d" % (dst, src))
        self("v_and_b32 v%d, s%d, v%d" % (dst + 1, S_MASK, src))
    def unpack_tile(self, dst, src):
        for i in range(10): self.unpack(dst + 2 * i, src + i)
    def rnd1(self, r, t):
        self("v_cvt_pk_bf16_f32 v%d, v%d, v%d" % (t, r, r))
        self("v_lshlrev_b32 v%d, 16, v%d" % (r, t))
    def xg_sum(self, r, t):
        self("v_mov_b32 v%d, v%d" % (t, r))
        self("v_permlane16_swap_b32 v%d, v%d" % (r, t))
        self("v_add_f32 v%d, v%d, v%d" % (r, r, t))
        self("v_mov_b32 v%d, v%d" % (t, r))
        self("v_permlane32_swap_b32 v%d, v%d" % (r, t))
        self("v_add_f32 v%d, v%d, v%d" % (r, r, t))
    def srd(self, q, ptr, nbytes, const=0, add_sgpr=None):
        self("s_add_u32 s%d, s%d, %d" % (q, ptr, const))
        self("s_addc_u32 s%d, s%d, 0" % (q + 1, ptr + 1))
        if add_sgpr is not None:
            self("s_add_u32 s%d, s%d, s%d" % (q, q, add_sgpr))
            self("s_addc_u32 s%d, s%d, 0" % (q + 1, q + 1))
        self("s_and_b32 s%d, s%d, 0xffff" % (q + 1, q + 1))
        self("s_mov_b32 s%d, %d" % (q + 2, nbytes))
        self("s_mov_b32 s%d, 0x20000" % (q + 3))
    def addr_pair(self, dst, ptr, const=0, add_sgpr=None):
        self("s_add_u32 s%d, s%d, %d" % (dst, ptr, const))
        self("s_addc_u32 s%d, s%d, 0" % (dst + 1, ptr + 1))
        if add_sgpr is not None:
            self("s_add_u32 s%d, s%d, s%d" % (dst, dst, add_sgpr))
            self("s_addc_u32 s%d, s%d, 0" % (dst + 1, dst + 1))
    def handoff_stores(self, lines, tagname="st", record=True):
        Ls, Ld = self.label("L_slow"), self.label("L_sd")
        self("s_cmp_eq_u32 s%d, 0" % S_MODE)
        self("s_cbranch_scc0 %s" % Ls)
        for l in lines: self(l + " " + getattr(self, "fastflag", ""))
        self("s_branch %s" % Ld)
        self("%s:" % Ls)
        for l in lines: self(l + " sc0 sc1")
        self("%s:" % Ld)
        if record:
            for l in lines: self.vmq.append(tagname)
    def rowbase(self):
        self("s_lshl_b32 s3, s%d, 8" % S_G)
        self("s_lshl_b32 s%d, s%d, 6" % (S_T0, S_RB))
        self("s_add_u32 s3, s3, s%d" % S_T0)
        self("s_lshl_b32 s%d, s%d, 4" % (S_T0, S_W))
        self("s_add_u32 s3, s3, s%d" % S_T0)

    def flag_store(self, base_pair, off_sgpr, val, device, vt=176):
        if isinstance(val, int): self("s_add_u32 s3, s%d, %d" % (S_TAG, val))
        else: self("s_add_u32 s3, s%d, %s" % (S_TAG, val))
        self("v_mov_b32 v%d, s3" % vt)
        self("s_xor_b32 s3, s3, s%d" % S_KX)
        self("v_mov_b32 v%d, s3" % (vt + 1))
        self("v_mov_b32 v%d, s%d" % (vt + 2, off_sgpr))
        self.exec_set("1")
        line = "global_store_dwordx2 v%d, %s, s[%d:%d]" % (vt + 2, vr(vt, 2), base_pair, base_pair + 1)
        if device: self(line + " sc0 sc1")
        else: self.handoff_stores([line], record=False)
        self.exec_restore()
    def pair_bad(self, w0, w1, lo, span, t, acc=None):
        self("v_subrev_u32 v%d, s%d, v%d" % (t, lo, w0))
        self("v_cmp_lt_u32 vcc, %d, v%d" % (span, t))
        self("v_xor_b32 v%d, v%d, v%d" % (t, w0, w1))
        self("v_cmp_ne_u32 s[%d:%d], s%d, v%d" % (S_M2, S_M2 + 1, S_KX, t))
        self("s_or_b64 s[%d:%d], vcc, s[%d:%d]" % (S_M2, S_M2 + 1, S_M2, S_M2 + 1))
    def poll_pairs(self, base_pair, voff, lo, span, vt, npair=1):
        L = self.label("L_poll")
        self("s_add_u32 s%d, s%d, %d" % (S_T0 + 5, S_TAG, lo))
        self("s_mov_b32 s%d, %d" % (S_TMO, TIMEOUT))
        self("%s:" % L)
        if npair == 1:
            self("global_load_dwordx2 %s, v%d, s[%d:%d] sc1" % (vr(vt, 2), voff, base_pair, base_pair + 1))
        else:
            for k in range(npair // 2):
                self("global_load_dwordx4 %s, v%d, s[%d:%d] offset:%d sc1" % (vr(vt + 4 * k, 4), voff, base_pair, base_pair + 1, 16 * k))
        self("s_sub_u32 s%d, s%d, 1" % (S_TMO, S_TMO))
        self("s_cmp_eq_u32 s%d, 0" % S_TMO)
        self("s_cbranch_scc1 L_abort")
        self("s_waitcnt vmcnt(0)")
        for k in range(npair):
            self.pair_bad(vt + 2 * k, vt + 2 * k + 1, S_T0 + 5, span, vt + 2 * npair)
            self("s_cbranch_scc1 %s" % L)

    def barrier_arrive(self, phase, drain=True, wave=0):
        if drain: self.wait_all()
        self("s_barrier")
        L = self.if_wave(wave)
        self("s_lshl_b32 s%d, s%d, 3" % (S_T0, S_J))
        self.flag_store(S_LFLAG, S_T0, phase, device=False)
        self.close(L)
    def pk_wait(self):
        L = self.if_wave(3)
        self.addr_pair(S_TMPP, P_WS, WS_PKFLAG)
        self("v_lshlrev_b32 v174, 5, v%d" % V_LANE)
        self.poll_pairs(S_TMPP, 174, 1, 0, 4, npair=4)
        self.stamp(40)
        self.close(L)
    def barrier_wait(self, phase, wave=0, vt=176):
        L = self.if_wave(wave)
        self("v_and_b32 v%d, 31, v%d" % (vt + 4, V_LANE))
        self("v_lshlrev_b32 v%d, 3, v%d" % (vt + 4, vt + 4))
        self.poll_pairs(S_LFLAG, vt + 4, phase, 7 - phase, vt)
        self.close(L)
        self("s_barrier")

    def prologue(self):
        self("s_cmp_ge_u32 s2, 256")
        self("s_cbranch_scc1 L_end")
        if self.o.get("dbgtime") or self.o.get("stamps"):
            self("s_memrealtime s[98:99]")
            self("s_memtime s[100:101]")
        self("s_load_dwordx16 s[16:31], s[0:1], 0")
        self("s_load_dwordx8 s[32:39], s[0:1], 64")
        self("s_and_b32 s%d, s2, 7" % S_G)
        self("s_lshr_b32 s%d, s2, 3" % S_J)
        self("v_lshrrev_b32 v4, 6, v0")
        self("v_readfirstlane_b32 s%d, v4" % S_W)
        self("v_and_b32 v%d, 63, v0" % V_LANE)
        self("v_and_b32 v%d, 15, v0" % V_L15)
        self("v_bfe_u32 v%d, v0, 4, 2" % V_G)
        self("s_getreg_b32 s%d, hwreg(HW_REG_XCC_ID, 0, 4)" % S_XCC)
        self("s_mov_b32 s%d, 0xffff0000" % S_MASK)
        self("s_lshr_b32 s%d, s%d, 3" % (S_RB, S_J))
        self("s_and_b32 s%d, s%d, 7" % (S_CS, S_J))
        self("s_lshr_b32 s%d, s%d, 4" % (S_RT, S_J))
        self("s_and_b32 s%d, s%d, 15" % (S_CT, S_J))
        self("s_mul_i32 s3, s%d, %d" % (S_CT, 11 * 4370))
        self("s_lshr_b32 s3, s3, 16")
        self("s_mul_i32 s%d, s%d, 6" % (S_UOFF, S_CT))
        self("s_add_u32 s%d, s%d, s3" % (S_UOFF, S_UOFF))
        self("s_mov_b32 s%d, 0" % S_MODE)
        self("s_waitcnt lgkmcnt(0)")
        wsb = self.o.get("wsbase", 0)
        if wsb:
            self("s_add_u32 s%d, s%d, 0x%x" % (P_WS, P_WS, wsb))
            self("s_addc_u32 s%d, s%d, 0" % (P_WS + 1, P_WS + 1))
        self("s_load_dword s%d, s[%d:%d], %d" % (S_TAG, P_WS, P_WS + 1, WS_EPOCH))
        self("s_mov_b32 s%d, 0x%x" % (S_KX, KX))
        self("s_lshl_b32 s3, s%d, 8" % S_G)
        self.addr_pair(S_LFLAG, P_WS, WS_LFLAG, 3)

    def repack_issue(self):
        L = self.if_wave(3)
        row, ch, off = 100, 101, 102
        self("v_lshrrev_b32 v%d, 3, v%d" % (row, V_LANE))
        self("v_and_b32 v%d, 7, v%d" % (ch, V_LANE))
        self("v_lshlrev_b32 v%d, 4, v%d" % (ch, ch))
        self("v_mul_u32_u24 v%d, 1280, v%d" % (103, row))
        self("v_add_u32 v%d, v%d, v%d" % (103, 103, ch))
        for k in range(3):
            Lk = None
            if k == 2:
                Lk = self.label("L_rp3")
                self("s_cmp_ge_u32 s2, 28")
                self("s_cbranch_scc1 %s" % Lk)
            a, b = S_T0, S_T0 + 1
            self("s_add_u32 s%d, s2, %d" % (S_T0 + 3, 256 * k))
            self("s_mul_hi_u32 s%d, s%d, %d" % (a, S_T0 + 3, (1 << 32) // 10 + 1))
            self("s_mul_i32 s%d, s%d, 10" % (b, a))
            self("s_sub_u32 s%d, s%d, s%d" % (b, S_T0 + 3, b))
            self("s_mul_i32 s3, s%d, %d" % (a, 32 * 1280))
            self("s_lshl_b32 s%d, s%d, 7" % (S_T0 + 2, b))
            self("s_add_u32 s3, s3, s%d" % (S_T0 + 2))
            self.addr_pair(S_TMPP, P_W2, 0, 3)
            self("s_mul_i32 s3, s%d, 40" % a)
            self("s_lshl_b32 s%d, s%d, 2" % (b, b))
            self("s_add_u32 s3, s3, s%d" % b)
            self("s_lshl_b32 s3, s3, 10")
            self("s_add_u32 s%d, s3, %d" % (74 + k, WS_W2P))
            self("v_mov_b32 v%d, v103" % off)
            for r in range(4):
                self("s_mov_b32 m0, %d" % (LDS_RP + 4096 * k + 1024 * r))
                if r: self("v_add_u32 v%d, %d, v%d" % (off, 8 * 1280, off))
                self("global_load_lds_dwordx4 v%d, s[%d:%d] %s" % (off, S_TMPP, S_TMPP + 1, self.o.get("nt_w", "nt")))
            if Lk: self("%s:" % Lk)
        self("s_lshl_b32 s3, s%d, 8" % S_G)
        self("s_lshl_b32 s%d, s%d, 6" % (S_T0, S_RB))
        self("s_add_u32 s3, s3, s%d" % S_T0)
        self("s_mul_i32 s3, s3, 1280")
        self("s_mul_i32 s%d, s%d, 160" % (S_T0, S_CS))
        self("s_add_u32 s3, s3, s%d" % S_T0)
        self.addr_pair(S_TMPP, P_Q, 0, 3)
        self("s_mov_b32 s%d, %d" % (S_T0, (1 << 32) // 10 + 1))
        for i in range(10):
            self("v_add_u32 v%d, %d, v%d" % (off, 64 * i, V_LANE))
            self("v_mul_hi_u32 v%d, v%d, s%d" % (row, off, S_T0))
            self("v_mul_u32_u24 v%d, 10, v%d" % (ch, row))
            self("v_sub_u32 v%d, v%d, v%d" % (ch, off, ch))
            self("v_mul_u32_u24 v%d, 1280, v%d" % (row, row))
            self("v_lshl_add_u32 v%d, v%d, 4, v%d" % (off, ch, row))
            self("s_mov_b32 m0, %d" % (LDS_Q + 1024 * i))
            self("global_load_lds_dwordx4 v%d, s[%d:%d]" % (off, S_TMPP, S_TMPP + 1))
        self.close(L)
    def repack_finish(self):
        a, sa = 100, 101
        self("s_waitcnt vmcnt(0)")
        self("v_bfe_u32 v%d, v%d, 2, 2" % (a, V_LANE))
        self("v_lshl_add_u32 v%d, v%d, 2, v%d" % (a, V_G, a))
        self("v_lshlrev_b32 v%d, 7, v%d" % (a, a))
        self("v_and_b32 v%d, 3, v%d" % (sa, V_LANE))
        self("v_lshl_add_u32 v%d, v%d, 3, v%d" % (a, sa, a))
        self("v_add_u32 v%d, %d, v%d" % (a, LDS_RP, a))
        for k in range(3):
            Lk = None
            if k == 2:
                Lk = self.label("L_rf3")
                self("s_cmp_ge_u32 s2, 28")
                self("s_cbranch_scc1 %s" % Lk)
            F = 104 + 16 * k
            for u in range(4):
                for h in range(2):
                    self("ds_read_b64_tr_b16 %s, v%d offset:%d" % (vr(F + 4 * u + 2 * h, 2), a, 4096 * k + h * 2048 + 32 * u))
            self("v_lshlrev_b32 v%d, 4, v%d" % (sa, V_LANE))
            self("v_add_u32 v%d, s%d, v%d" % (sa, 74 + k, sa))
            self("s_waitcnt lgkmcnt(0)")
            for u in range(4):
                self("global_store_dwordx4 v%d, %s, s[%d:%d] offset:%d sc0 sc1" % (sa, vr(F + 4 * u, 4), P_WS, P_WS + 1, 1024 * u))
            if Lk: self("%s:" % Lk)

    def prep_loads(self):
        KR, VR, TAP, RAW = 4, 34, 46, 66
        self.KR, self.VR, self.TAP, self.RAW = KR, VR, TAP, RAW
        c10, rp, off = 110, 111, 112
        self("v_and_b32 v%d, 7, v0" % c10)
        self("v_lshrrev_b32 v%d, 3, v0" % rp)
        self("s_lshl_b32 s3, s%d, 6" % S_J)
        self("s_sub_u32 s3, s3, 3")
        self("v_lshlrev_b32 v%d, 1, v%d" % (off, rp))
        self("v_add_u32 v%d, s3, v%d" % (off, off))
        self("s_movk_i32 s%d, 1280" % S_T0)
        self("v_mul_lo_u32 v%d, v%d, s%d" % (off, off, S_T0))
        self("s_mul_i32 s3, s%d, 160" % S_G)
        self("v_mul_u32_u24 v%d, 20, v%d" % (off + 1, c10))
        self("v_add3_u32 v%d, v%d, v%d, s3" % (off, off, off + 1))
        self.srd(SRD_A, P_K, 2621440)
        self.srd(SRD_B, P_V, 2621440)
        nk = self.o.get("nt_kv", "")
        offs = [off]
        for r in range(1, 5):
            self("v_add_u32 v%d, %d, v%d" % (off + 1 + r, 1280 * r, off))
            offs.append(off + 1 + r)
        for r in range(5):
            self.vm("buffer_load_dwordx4 %s, v%d, s[%d:%d], 0 offen %s" % (vr(KR + 6 * r, 4), offs[r], SRD_A, SRD_A + 3, nk), "k")
            self.vm("buffer_load_dword v%d, v%d, s[%d:%d], 0 offen offset:16 %s" % (KR + 6 * r + 4, offs[r], SRD_A, SRD_A + 3, nk), "k")
        for r in range(2):
            self.vm("buffer_load_dwordx4 %s, v%d, s[%d:%d], 0 offen %s" % (vr(VR + 6 * r, 4), offs[3 + r], SRD_B, SRD_B + 3, nk), "v")
            self.vm("buffer_load_dword v%d, v%d, s[%d:%d], 0 offen offset:16 %s" % (VR + 6 * r + 4, offs[3 + r], SRD_B, SRD_B + 3, nk), "v")
        t = off + 7
        self("s_mul_i32 s3, s%d, 640" % S_G)
        self("v_mul_u32_u24 v%d, 80, v%d" % (t, c10))
        self("v_add_u32 v%d, s3, v%d" % (t, t))
        for i in range(5):
            self.vm("global_load_dwordx4 %s, v%d, s[%d:%d] offset:%d" % (vr(TAP + 4 * i, 4), t, P_SK, P_SK + 1, 16 * i), "tap")
        self("s_lshl_b32 s3, s%d, 5" % S_W)
        self("s_add_u32 s3, s3, s%d" % S_J)
        self("s_cmp_lt_u32 s3, 80")
        self("s_cselect_b32 s%d, 1, 0" % S_HASCH)
        self("s_cselect_b32 s3, s3, 0")
        self("s_mul_i32 s%d, s%d, 80" % (S_CH, S_G))
        self("s_add_u32 s%d, s%d, s3" % (S_CH, S_CH))
        self("s_mul_i32 s%d, s%d, %d" % (S_SLOT, S_W, SLOT))
        self("s_cmp_lt_u32 s%d, 3" % S_W)
        self("s_cselect_b32 s%d, s%d, 0" % (S_SLOT, S_SLOT))
        self("s_lshl_b32 s3, s%d, 1" % S_CH)
        self("s_and_b32 s3, s3, 0xfffffffc")
        self("s_load_dword s%d, s[%d:%d], s3" % (S_DVAL, P_D, P_D + 1))
        self("s_lshl_b32 s3, s%d, 12" % S_CH)
        self.srd(52, P_SSM, 4096, add_sgpr=3)
        a = off + 10
        Lr = self.if_wave(3, eq=False)
        self("v_lshlrev_b32 v%d, 4, v%d" % (a, V_LANE))
        for r in range(4):
            self("v_add_u32 v%d, %d, v%d" % (a + 1, (1024 * r - 16) & 0xffffffff, a))
            self("buffer_load_dwordx4 %s, v%d, s[52:55], 0 offen %s" % (vr(RAW + 8 * r, 4), a + 1, self.o.get("nt_s", "")))
            self("buffer_load_dwordx4 %s, v%d, s[52:55], 0 offen offset:%d %s" % (vr(RAW + 8 * r + 4, 4), a, 1024 * r, self.o.get("nt_s", "")))
        self.close(Lr)
        La, Lb = self.label("L_pt"), self.label("L_ptd")
        self("s_cmp_ge_u32 s%d, 2" % S_W)
        self("s_cbranch_scc1 %s" % La)
        self("s_lshl_b32 s3, s%d, 6" % S_W)
        self("v_add_u32 v%d, s3, v%d" % (a, V_LANE))
        self("v_min_u32 v%d, 79, v%d" % (a, a))
        self("v_lshlrev_b32 v%d, 12, v%d" % (a, a))
        self("s_mul_i32 s3, s%d, %d" % (S_G, 80 * 4096))
        self("s_sub_u32 s%d, 31, s%d" % (S_T0, S_J))
        self("s_lshl_b32 s%d, s%d, 7" % (S_T0, S_T0))
        self("s_add_u32 s3, s3, s%d" % S_T0)
        self("s_add_u32 s3, s3, %d" % WS_UR)
        self("v_add_u32 v%d, s3, v%d" % (a, a))
        self("global_load_dword v%d, v%d, s[%d:%d]" % (a + 1, a, P_WS, P_WS + 1))
        self("s_branch %s" % Lb)
        self("%s:" % La)
        self("v_and_b32 v%d, 1, v%d" % (a, V_LANE))
        self("v_lshlrev_b32 v%d, 7, v%d" % (a, a))
        self("global_load_dword v%d, v%d, s[%d:%d]" % (a + 1, a, S_LFLAG, S_LFLAG + 1))
        self("%s:" % Lb)
        if self.o.get("codepf", 1):
            L = self.if_wave(1)
            self("s_getpc_b64 s[%d:%d]" % (S_TMPP, S_TMPP + 1))
            self("L_pcref:")
            self("s_sub_u32 s%d, s%d, (L_pcref - %s)" % (S_TMPP, S_TMPP, KNAME))
            self("s_subb_u32 s%d, s%d, 0" % (S_TMPP + 1, S_TMPP + 1))
            nl = self.o.get("codelines", 640)
            per = -(-nl // 32)
            self("s_mul_i32 s3, s%d, %d" % (S_J, per))
            self("v_add_u32 v%d, s3, v%d" % (a, V_LANE))
            self("v_min_u32 v%d, (L_end - %s) / 128, v%d" % (a, KNAME, a))
            self("v_lshlrev_b32 v%d, 7, v%d" % (a, a))
            self("s_mov_b64 s[%d:%d], exec" % (S_SAVE, S_SAVE + 1))
            self("s_bfm_b64 exec, %d, 0" % per)
            self("global_load_dword v%d, v%d, s[%d:%d]" % (a + 1, a, S_TMPP, S_TMPP + 1))
            self.exec_restore()
            self.close(L)
        self.repack_issue()
        self("s_waitcnt lgkmcnt(0)")
        self("s_add_u32 s%d, s%d, 0x%x" % (S_TAG, S_TAG, TAG0))
        L = self.if_wave(0)
        self("s_lshl_b32 s%d, s%d, 8" % (S_T0, S_G))
        self("s_lshl_b32 s%d, s%d, 3" % (S_T0 + 1, S_J))
        self("s_add_u32 s%d, s%d, s%d" % (S_T0, S_T0, S_T0 + 1))
        self("s_add_u32 s%d, s%d, %d" % (S_T0, S_T0, WS_XCCF))
        self.flag_store(P_WS, S_T0, "s%d" % S_XCC, device=True)
        self.close(L)

    def window_stores(self):
        a = 160
        self("s_lshl_b32 s3, s%d, 8" % S_G)
        self("s_lshl_b32 s%d, s%d, 6" % (S_T0, S_RB))
        self("s_add_u32 s3, s3, s%d" % S_T0)
        self("s_lshl_b32 s%d, s%d, 3" % (S_T0, S_CS))
        self("s_add_u32 s3, s3, s%d" % S_T0)
        self("v_and_b32 v%d, 7, v%d" % (a, V_LANE))
        self("v_add_u32 v%d, s3, v%d" % (a, a))
        self("v_lshlrev_b32 v%d, 7, v%d" % (a, a))
        self("v_bfe_u32 v%d, v%d, 3, 2" % (a + 1, V_LANE))
        self("v_mul_u32_u24 v%d, %d, v%d" % (a + 1, STAT_SZ, a + 1))
        self("v_add_u32 v%d, v%d, v%d" % (a, a, a + 1))
        self("v_add_u32 v%d, %d, v%d" % (a, WS_STAT, a))
        self("global_load_dword a0, v%d, s[%d:%d]" % (a, P_WS, P_WS + 1))
        if not self.o.get("prewrite", 1): return
        for i in range(4): self("v_mov_b32 v%d, -1" % (164 + i))
        self("s_mul_i32 s3, s%d, %d" % (S_G, 16 * 54 * 1024))
        self("s_mul_i32 s%d, s%d, %d" % (S_T0, S_J, 27 * 1024))
        self("s_add_u32 s3, s3, s%d" % S_T0)
        self("s_add_u32 s3, s3, %d" % WS_HF1)
        self("v_lshlrev_b32 v%d, 4, v%d" % (a, V_LANE))
        self("v_add_u32 v%d, s3, v%d" % (a, a))
        for i in range(27):
            if i and i % 4 == 0: self("v_add_u32 v%d, 4096, v%d" % (a, a))
            self("global_store_dwordx4 v%d, v[164:167], s[%d:%d] offset:%d sc0 sc1" % (a, P_WS, P_WS + 1, 1024 * (i % 4)))

    def prep_compute(self):
        KR, VR, TAP = self.KR, self.VR, self.TAP
        Kp, Tp, Vp = 124, 134, 142
        A0, A1, P0, P1, t0, t1 = 146, 148, 150, 152, 154, 155
        O0, O1 = 156, 157
        lad = 158
        self("v_and_b32 v%d, 7, v0" % lad)
        self("v_mul_u32_u24 v%d, %d, v%d" % (lad, 10 * T_STRIDE, lad))
        self("v_lshrrev_b32 v%d, 3, v0" % (lad + 1))
        self("v_lshlrev_b32 v%d, 2, v%d" % (lad + 1, lad + 1))
        self("v_sub_u32 v%d, v%d, v%d" % (lad, lad, lad + 1))
        self("v_add_u32 v%d, %d, v%d" % (lad, LDS_T + 124, lad))
        L3, Ld = self.label("L_w3"), self.label("L_w3d")
        self("s_cmp_eq_u32 s%d, 3" % S_W)
        self("s_cbranch_scc1 %s" % L3)
        self("s_waitcnt vmcnt(8)")
        self("s_branch %s" % Ld)
        self("%s:" % L3)
        self("s_waitcnt vmcnt(18)")
        self("%s:" % Ld)
        self.vmq = []
        self.stamp(39)
        pk = lambda op, d, a, b: self("v_pk_%s_f32 %s, %s, %s" % (op, vr(d, 2), vr(a, 2), vr(b, 2)))
        for i in range(5):
            for r in range(5): self.unpack(Kp + 2 * r, KR + 6 * r + i)
            for t in range(4):
                s0 = TAP + 4 * i + (t >> 1); s1 = s0 + 2
                if t & 1:
                    self("v_and_b32 v%d, s%d, v%d" % (Tp + 2 * t, S_MASK, s0))
                    self("v_and_b32 v%d, s%d, v%d" % (Tp + 2 * t + 1, S_MASK, s1))
                else:
                    self("v_lshlrev_b32 v%d, 16, v%d" % (Tp + 2 * t, s0))
                    self("v_lshlrev_b32 v%d, 16, v%d" % (Tp + 2 * t + 1, s1))
            for r in range(2): self.unpack(Vp + 2 * r, VR + 6 * r + i)
            pk("mul", A0, Kp + 0, Tp + 6); pk("mul", A1, Kp + 2, Tp + 6)
            self.rnd_pair(A0, t0); self.rnd_pair(A1, t1)
            for step in range(1, 4):
                T = Tp + 2 * (3 - step)
                pk("mul", P0, Kp + 2 * step, T); pk("mul", P1, Kp + 2 * (step + 1), T)
                self.rnd_pair(P0, t0); self.rnd_pair(P1, t1)
                pk("add", A0, A0, P0); pk("add", A1, A1, P1)
                self.rnd_pair(A0, t0); self.rnd_pair(A1, t1)
            pk("mul", A0, A0, Vp + 0); pk("mul", A1, A1, Vp + 2)
            self("v_cvt_pk_bf16_f32 v%d, v%d, v%d" % (O0, A1, A0))
            self("v_cvt_pk_bf16_f32 v%d, v%d, v%d" % (O1, A1 + 1, A0 + 1))
            self.lg("ds_write_b32 v%d, v%d offset:%d" % (lad, O0, (2 * i) * T_STRIDE), "tw")
            self.lg("ds_write_b32 v%d, v%d offset:%d" % (lad, O1, (2 * i + 1) * T_STRIDE), "tw")

    def mode_check(self, vt=176):
        L = self.if_wave(0)
        self("s_lshl_b32 s3, s%d, 8" % S_G)
        self.addr_pair(S_TMPP, P_WS, WS_XCCF, 3)
        self("v_and_b32 v%d, 31, v%d" % (vt + 4, V_LANE))
        self("v_lshlrev_b32 v%d, 3, v%d" % (vt + 4, vt + 4))
        self.poll_pairs(S_TMPP, vt + 4, 0, 7, vt)
        self("s_add_u32 s3, s%d, s%d" % (S_TAG, S_XCC))
        self("v_cmp_ne_u32 vcc, s3, v%d" % vt)
        self("s_nop 1")
        self("s_cmp_lg_u64 vcc, 0")
        self("s_cselect_b32 s%d, 1, 0" % S_MODE)
        if self.o.get("force_slow"): self("s_mov_b32 s%d, 1" % S_MODE)
        self("v_mov_b32 v%d, s%d" % (vt, S_MODE))
        self("v_mov_b32 v%d, %d" % (vt + 1, LDS_MODE))
        self("ds_write_b32 v%d, v%d" % (vt + 1, vt))
        self.close(L)
    def mode_fetch(self, vt=176):
        self("v_mov_b32 v%d, %d" % (vt + 1, LDS_MODE))
        self("ds_read_b32 v%d, v%d" % (vt, vt + 1))
        self("s_waitcnt lgkmcnt(0)")
        self("v_readfirstlane_b32 s%d, v%d" % (S_MODE, vt))
        self.lgq = []
        alias = self.o.get("alias", 1)
        self("s_mov_b32 s%d, %d" % (S_XO1, WS_UR if alias else WS_XF1))
        self("s_mov_b32 s%d, %d" % (S_XO3, WS_UR if alias else WS_XF3))
        self("s_mov_b32 s%d, %d" % (S_HO2, WS_HF1 if alias else WS_HF2))
        L = self.label("L_al")
        self("s_cmp_eq_u32 s%d, 0" % S_MODE)
        self("s_cbranch_scc1 %s" % L)
        self("s_mov_b32 s%d, %d" % (S_XO1, WS_XF1))
        self("s_mov_b32 s%d, %d" % (S_XO3, WS_XF3))
        self("s_mov_b32 s%d, %d" % (S_HO2, WS_HF2))
        self("%s:" % L)

    def tile_stats(self, xf, buf, tmp):
        s, t = tmp, tmp + 4
        d = tmp + 6
        m2 = tmp + 26
        pk = lambda op, dd, a, b: self("v_pk_%s_f32 %s, %s, %s" % (op, vr(dd, 2), vr(a, 2), vr(b, 2)))
        pk("add", s, xf, xf + 2)
        for i in range(2, 10): pk("add", s, s, xf + 2 * i)
        self("v_add_f32 v%d, v%d, v%d" % (s, s, s + 1))
        self.xg_sum(s, t)
        self("v_mul_f32 v%d, 0x3c4ccccd, v%d" % (s, s))
        for i in range(10):
            self("v_pk_add_f32 %s, %s, %s op_sel_hi:[1,0] neg_lo:[0,1] neg_hi:[0,1]" % (vr(d + 2 * i, 2), vr(xf + 2 * i, 2), vr(s, 2)))
        pk("mul", m2, d, d)
        for i in range(1, 10):
            self("v_pk_fma_f32 %s, %s, %s, %s" % (vr(m2, 2), vr(d + 2 * i, 2), vr(d + 2 * i, 2), vr(m2, 2)))
        self("v_add_f32 v%d, v%d, v%d" % (s + 1, m2, m2 + 1))
        self.xg_sum(s + 1, t)
        self("s_add_u32 s3, s%d, %d" % (S_TAG, buf))
        self("v_mov_b32 v%d, s3" % (s + 2))
        self("s_xor_b32 s3, s3, s%d" % S_KX)
        self("v_mov_b32 v%d, s3" % (s + 3))
        self.rowbase()
        self("s_lshl_b32 s3, s3, 7")
        self("s_lshl_b32 s%d, s%d, 4" % (S_T0, S_CS))
        self("s_add_u32 s3, s3, s%d" % S_T0)
        self("s_add_u32 s3, s3, %d" % (WS_STAT + buf * STAT_SZ))
        self("v_lshlrev_b32 v%d, 7, v%d" % (t, V_L15))
        self("v_add_u32 v%d, s3, v%d" % (t, t))
        self.exec_set("0xffff")
        self.handoff_stores(["global_store_dwordx4 v%d, %s, s[%d:%d]" % (t, vr(s, 4), P_WS, P_WS + 1)], "stat")
        self.exec_restore()
    def row_stats_issue(self, buf, tmp):
        a = tmp + 8
        self.rowbase()
        self("s_lshl_b32 s3, s3, 7")
        self("s_add_u32 s3, s3, %d" % (WS_STAT + buf * STAT_SZ))
        self("v_lshlrev_b32 v%d, 7, v%d" % (a, V_L15))
        self("v_lshl_add_u32 v%d, v%d, 5, v%d" % (a, V_G, a))
        self("v_add_u32 v%d, s3, v%d" % (a, a))
        for k in range(2):
            self.vm("global_load_dwordx4 %s, v%d, s[%d:%d] offset:%d sc1" % (vr(tmp + 4 * k, 4), a, P_WS, P_WS + 1, 16 * k), "rs")
    def row_stats_validate(self, buf, tmp):
        Lr, Lo = self.label("L_rsr"), self.label("L_rso")
        self("s_add_u32 s%d, s%d, %d" % (S_T0 + 5, S_TAG, buf))
        self("s_mov_b32 s%d, %d" % (S_TMO, TIMEOUT))
        self("%s:" % Lr)
        self.pair_bad(tmp + 2, tmp + 3, S_T0 + 5, 0, tmp + 9)
        self("s_mov_b64 s[%d:%d], s[%d:%d]" % (S_TMPQ, S_TMPQ + 1, S_M2, S_M2 + 1))
        self.pair_bad(tmp + 6, tmp + 7, S_T0 + 5, 0, tmp + 9)
        self("s_or_b64 s[%d:%d], s[%d:%d], s[%d:%d]" % (S_M2, S_M2 + 1, S_M2, S_M2 + 1, S_TMPQ, S_TMPQ + 1))
        self("s_cbranch_scc0 %s" % Lo)
        self("s_sub_u32 s%d, s%d, 1" % (S_TMO, S_TMO))
        self("s_cmp_eq_u32 s%d, 0" % S_TMO)
        self("s_cbranch_scc1 L_abort")
        for k in range(2):
            self("global_load_dwordx4 %s, v%d, s[%d:%d] offset:%d sc1" % (vr(tmp + 4 * k, 4), tmp + 8, P_WS, P_WS + 1, 16 * k))
        self("s_waitcnt vmcnt(0)")
        self("s_branch %s" % Lr)
        self("%s:" % Lo)
        self("v_mov_b32 v%d, v%d" % (tmp + 2, tmp + 4))
        self("v_mov_b32 v%d, v%d" % (tmp + 3, tmp + 5))
    def row_stats_finish_items(self, tmp, out_m, out_rs):
        m0, q0, m1, q1 = tmp, tmp + 1, tmp + 2, tmp + 3
        s, t = tmp + 4, tmp + 5
        g = Gen()
        def xs(r):
            g("v_mov_b32 v%d, v%d" % (t, r)); g("v_permlane16_swap_b32 v%d, v%d" % (r, t)); g("v_add_f32 v%d, v%d, v%d" % (r, r, t))
            g("v_mov_b32 v%d, v%d" % (t, r)); g("v_permlane32_swap_b32 v%d, v%d" % (r, t)); g("v_add_f32 v%d, v%d, v%d" % (r, r, t))
        def r1(r):
            g("v_cvt_pk_bf16_f32 v%d, v%d, v%d" % (t, r, r)); g("v_lshlrev_b32 v%d, 16, v%d" % (r, t))
        g("v_add_f32 v%d, v%d, v%d" % (s, m0, m1)); xs(s)
        g("v_mul_f32 v%d, 0x3e000000, v%d" % (s, s))
        g("v_sub_f32 v%d, v%d, v%d" % (m0, m0, s)); g("v_sub_f32 v%d, v%d, v%d" % (m1, m1, s))
        g("v_mul_f32 v%d, v%d, v%d" % (m0, m0, m0)); g("v_fmac_f32 v%d, v%d, v%d" % (m0, m1, m1))
        g("v_add_f32 v%d, v%d, v%d" % (q0, q0, q1))
        g("v_mov_b32 v%d, 0x42a00000" % t); g("v_fmac_f32 v%d, v%d, v%d" % (q0, m0, t)); xs(q0)
        g("v_mul_f32 v%d, 0x3acccccd, v%d" % (q0, q0)); r1(q0)
        g("v_add_f32 v%d, 0x3727c5ac, v%d" % (q0, q0)); r1(q0)
        g("v_sqrt_f32 v%d, v%d" % (q0, q0)); g("s_nop 0"); r1(q0)
        g("v_rcp_f32 v%d, v%d" % (out_rs, q0)); r1(s)
        g("v_mov_b32 v%d, v%d" % (out_m, s))
        return [i.text.strip() for i in g.ins]
    def row_stats_finish(self, tmp, out_m, out_rs):
        for l in self.row_stats_finish_items(tmp, out_m, out_rs): self(l)

    def prep_store_ur(self):
        L3 = self.if_wave(3, eq=False)
        a, b = 100, 101
        self("v_lshrrev_b32 v%d, 3, v0" % a)
        self("v_and_b32 v%d, 7, v0" % b)
        self("v_lshlrev_b32 v%d, 4, v%d" % (b, b))
        self("v_mul_u32_u24 v%d, %d, v%d" % (102, T_STRIDE, a))
        self("v_add3_u32 v%d, v%d, v%d, 0" % (102, 102, b))
        self("v_add_u32 v%d, %d, v%d" % (102, LDS_T, 102))
        self("s_mul_i32 s3, s%d, %d" % (S_G, 80 * 4096))
        self("s_sub_u32 s%d, 31, s%d" % (S_T0, S_J))
        self("s_lshl_b32 s%d, s%d, 7" % (S_T0, S_T0))
        self("s_add_u32 s3, s3, s%d" % S_T0)
        self("s_add_u32 s3, s3, %d" % WS_UR)
        self("v_lshlrev_b32 v%d, 12, v%d" % (103, a))
        self("v_add3_u32 v%d, v%d, v%d, s3" % (103, 103, b))
        for r in range(3):
            self("ds_read_b128 %s, v102 offset:%d" % (vr(104 + 4 * r, 4), 24 * T_STRIDE * r))
        L = self.if_wave(0)
        self("ds_read_b128 v[116:119], v102 offset:%d" % (24 * T_STRIDE * 3))
        self.close(L)
        self("v_add_u32 v120, %d, v103" % (24 * 4096))
        self("v_add_u32 v121, %d, v103" % (48 * 4096))
        self("v_add_u32 v122, %d, v103" % (72 * 4096))
        self("s_waitcnt lgkmcnt(0)")
        p = "s[%d:%d]" % (P_WS, P_WS + 1)
        self.handoff_stores(["global_store_dwordx4 v103, v[104:107], " + p, "global_store_dwordx4 v120, v[108:111], " + p,
                             "global_store_dwordx4 v121, v[112:115], " + p], record=False)
        L = self.if_wave(0)
        self.handoff_stores(["global_store_dwordx4 v122, v[116:119], " + p], record=False)
        self.close(L)
        self("s_waitcnt vmcnt(0)")
        self.close(L3)
        self.lgq = []; self.vmq = []

    def build_kcopies(self):
        RAW = self.RAW
        SETS = [(110, 116, 122), (134, 140, 146)]
        ad, z = 128, 130
        L = self.label("L_kc")
        self("s_cmp_eq_u32 s%d, 0" % S_HASCH)
        self("s_cbranch_scc1 %s" % L)
        self("v_lshlrev_b32 v%d, 4, v%d" % (ad, V_LANE))
        self("s_add_u32 s3, s%d, 16" % S_SLOT)
        self("v_add_u32 v%d, s3, v%d" % (ad, ad))
        for r in range(4):
            R = RAW + 8 * r
            A, B, C = SETS[r & 1]
            if r >= 2: self("s_waitcnt lgkmcnt(8)")
            for i in range(6):
                self("v_alignbit_b32 v%d, v%d, v%d, 16" % (A + i, R + i + 1, R + i))
            for i in range(6):
                self("v_alignbit_b32 v%d, v%d, v%d, 16" % (B + i, R + i + 2, R + i + 1))
            for i in range(6):
                self("v_mov_b32 v%d, v%d" % (C + i, R + i + 1))
            src = {0: A, 1: C, 2: B, 3: R + 2, 4: A + 2, 5: C + 2, 6: B + 2, 7: R + 4}
            for c in range(8):
                self("ds_write_b128 v%d, %s offset:%d" % (ad, vr(src[c], 4), c * KC_STRIDE + 1024 * r))
        for i in range(4): self("v_mov_b32 v%d, 0" % (z + i))
        self("v_mul_u32_u24 v%d, %d, v%d" % (ad + 1, KC_STRIDE, V_LANE))
        self("v_add_u32 v%d, s%d, v%d" % (ad + 1, S_SLOT, ad + 1))
        self.exec_set("0xff")
        self("ds_write_b128 v%d, %s" % (ad + 1, vr(z, 4)))
        self("s_mov_b64 exec, 0x3fffffff")
        self("v_lshlrev_b32 v%d, 4, v%d" % (ad + 1, V_LANE))
        self("s_add_u32 s3, s%d, %d" % (S_SLOT, U_OFF + 4096))
        self("v_add_u32 v%d, s3, v%d" % (ad + 1, ad + 1))
        self("ds_write_b128 v%d, %s" % (ad + 1, vr(z, 4)))
        self.exec_restore()
        self("%s:" % L)
        self("s_waitcnt lgkmcnt(0)")
        self.lgq = []

    def conv(self):
        Lskip = self.label("L_conv_skip"); Ldone = self.label("L_conv_done")
        self("s_cmp_eq_u32 s%d, 0" % S_HASCH)
        self("s_cbranch_scc1 %s" % Lskip)
        self("s_lshl_b32 s3, s%d, 12" % S_CH)
        self.addr_pair(S_TMPP, P_WS, WS_UR, 3)
        a = 164
        self("v_lshlrev_b32 v%d, 4, v%d" % (a, V_LANE))
        for r in range(4):
            self("s_add_u32 m0, s%d, %d" % (S_SLOT, U_OFF + 1024 * r))
            self("v_add_u32 v%d, %d, v%d" % (a + 1, 1024 * r, a))
            self.vm("global_load_lds_dwordx4 v%d, s[%d:%d]" % (a + 1, S_TMPP, S_TMPP + 1), "u")
        self("s_and_b32 s3, s%d, 1" % S_CH)
        self("s_lshl_b32 s%d, s%d, 16" % (S_T0, S_DVAL))
        self("s_and_b32 s%d, s%d, 0xffff0000" % (S_DVAL, S_DVAL))
        self("s_cmp_eq_u32 s3, 0")
        self("s_cselect_b32 s%d, s%d, s%d" % (S_DVAL, S_T0, S_DVAL))
        vA, vB = 166, 167
        self("v_and_b32 v%d, 7, v%d" % (vA, V_L15))
        self("v_mul_u32_u24 v%d, %d, v%d" % (vA, KC_STRIDE, vA))
        self("v_lshrrev_b32 v%d, 3, v%d" % (168, V_L15))
        self("v_add_u32 v%d, v%d, v%d" % (168, 168, V_G))
        self("v_lshl_add_u32 v%d, v%d, 4, v%d" % (vA, 168, vA))
        self("v_add_u32 v%d, s%d, v%d" % (vA, S_SLOT, vA))
        self("v_lshlrev_b32 v%d, 5, v%d" % (vB, V_L15))
        self("v_lshlrev_b32 v%d, 4, v%d" % (168, V_G))
        self("v_sub_u32 v%d, v%d, v%d" % (vB, 168, vB))
        self("s_add_u32 s3, s%d, %d" % (S_SLOT, U_OFF + 4064 - 3584))
        self("v_add_u32 v%d, s3, v%d" % (vB, vB))
        ACC = 4; FA = [36, 100]; FB = [68, 132]
        def loadsA(tau, buf):
            return [("lg", "ds_read_b128 %s, v%d offset:%d" % (vr(FA[buf] + 4 * i, 4), vA, 64 * tau + 512 * i), "cA") for i in range(8)]
        def loadsB(tau, buf):
            return [("lg", "ds_read_b128 %s, v%d offset:%d" % (vr(FB[buf] + 4 * i, 4), vB, 3584 - 512 * i + 64 * tau), "cB") for i in range(8)]
        self.bg_add(loadsA(0, 0)); self.bg_flush()
        ua, sa = 168, 169
        self("v_lshlrev_b32 v%d, 5, v%d" % (sa, V_L15))
        self("v_lshl_add_u32 v%d, v%d, 3, v%d" % (sa, V_G, sa))
        self("s_add_u32 s3, s%d, %d" % (S_SLOT, U_OFF + 4088 - 3584))
        self("v_sub_u32 v%d, s3, v%d" % (ua, sa))
        self("s_lshl_b32 s3, s%d, 12" % S_CH)
        self("s_add_u32 s3, s3, %d" % WS_YT)
        self("v_and_b32 v%d, 1, v%d" % (170, V_G))
        self("v_lshlrev_b32 v%d, 9, v%d" % (170, 170))
        self("v_lshrrev_b32 v%d, 1, v%d" % (171, V_G))
        self("v_lshl_add_u32 v%d, v%d, 4, v%d" % (170, 171, 170))
        self("v_lshl_add_u32 v%d, v%d, 5, v%d" % (sa, V_L15, 170))
        self("v_add_u32 v%d, s3, v%d" % (sa, sa))
        self("v_mov_b32 v170, s%d" % S_DVAL)
        self("v_lshlrev_b32 v171, 4, v%d" % V_LANE)
        if self.o.get("prewrite", 1):
            self("s_lshl_b32 s3, s%d, 12" % S_CH)
            self("s_add_u32 s3, s3, %d" % WS_YT)
            self("v_add_u32 v172, s3, v171")
            for i in range(4): self("v_mov_b32 v%d, 0" % (4 + i))
            for i in range(4):
                self.vm("global_store_dwordx4 v172, v[4:7], s[%d:%d] offset:%d sc0 sc1" % (P_WS, P_WS + 1, 1024 * i), "ypw")
        self.vm_wait("u")
        self.stamp(7)
        self.bg_add(loadsB(0, 0)); self.bg_flush()
        for tau in range(8):
            buf = tau & 1
            self.lg_wait_all()
            if tau < 7:
                la, lb = loadsA(tau + 1, buf ^ 1), loadsB(tau + 1, buf ^ 1)
                for x, y in zip(la, lb): self.bg_add([x, y])

            pairs = sorted([(i, be - i) for be in range(8) for i in range(be + 1)])
            first = set()
            for kk, (i, m) in enumerate(pairs):
                be = i + m
                c = vr(ACC + 4 * be, 4) if (tau > 0 or be in first) else "0"
                first.add(be)
                self("v_mfma_f32_16x16x32_bf16 %s, %s, %s, %s" % (vr(ACC + 4 * be, 4), vr(FA[buf] + 4 * i, 4), vr(FB[buf] + 4 * m, 4), c))
                self.bg_step(1)
            self.bg_flush()
        self.stamp(8)
        UQ = 36
        for b in range(8):
            self.lg("ds_read_b64 %s, v%d offset:%d" % (vr(UQ + 2 * b, 2), ua, 3584 - 512 * b), "uq")
        self.lg_wait_all()
        U, t, O = 56, 60, 64
        for b in range(8):
            d0, d1 = UQ + 2 * b, UQ + 2 * b + 1
            A = ACC + 4 * b
            self("v_and_b32 v%d, s%d, v%d" % (U + 0, S_MASK, d1))
            self("v_lshlrev_b32 v%d, 16, v%d" % (U + 1, d1))
            self("v_and_b32 v%d, s%d, v%d" % (U + 2, S_MASK, d0))
            self("v_lshlrev_b32 v%d, 16, v%d" % (U + 3, d0))
            self("v_pk_mul_f32 %s, %s, v[170:171] op_sel_hi:[1,0]" % (vr(U, 2), vr(U, 2)))
            self("v_pk_mul_f32 %s, %s, v[170:171] op_sel_hi:[1,0]" % (vr(U + 2, 2), vr(U + 2, 2)))
            self.rnd_pair(U, t); self.rnd_pair(U + 2, t + 1)
            self.rnd_pair(A, t); self.rnd_pair(A + 2, t + 1)
            self("v_pk_add_f32 %s, %s, %s" % (vr(A, 2), vr(A, 2), vr(U, 2)))
            self("v_pk_add_f32 %s, %s, %s" % (vr(A + 2, 2), vr(A + 2, 2), vr(U + 2, 2)))
            o = O + 2 * b
            self("v_cvt_pk_bf16_f32 v%d, v%d, v%d" % (o, A, A + 1))
            self("v_cvt_pk_bf16_f32 v%d, v%d, v%d" % (o + 1, A + 2, A + 3))
            if b & 1:
                self("v_permlane16_swap_b32 v%d, v%d" % (o - 2, o))
                self("v_permlane16_swap_b32 v%d, v%d" % (o - 1, o + 1))
                self("global_store_dwordx4 v%d, %s, s[%d:%d] offset:%d sc0 sc1" % (sa, vr(o - 2, 4), P_WS, P_WS + 1, 512 * (b - 1)))
        self("s_branch %s" % Ldone)
        self("%s:" % Lskip)
        L2 = self.if_wave(3)
        self.repack_finish()
        self("s_waitcnt vmcnt(0)")
        self("s_lshl_b32 s%d, s%d, 8" % (S_T0, S_G))
        self("s_lshl_b32 s%d, s%d, 3" % (S_T0 + 1, S_J))
        self("s_add_u32 s%d, s%d, s%d" % (S_T0, S_T0, S_T0 + 1))
        self("s_add_u32 s%d, s%d, %d" % (S_T0, S_T0, WS_PKFLAG))
        self.flag_store(P_WS, S_T0, 1, device=True)
        self.stamp(42)
        self.window_stores()
        if self.o.get("st_pw"):
            self("s_waitcnt vmcnt(0)")
            self.stamp(43)
        npf = self.o.get("w1pf", 9)
        if npf:
            self.srd(SRD_A, P_W1, 640 * 3456)
            self("s_mul_i32 s3, s%d, 69120" % S_J)
            self("v_lshlrev_b32 v160, 7, v%d" % V_LANE)
            self("v_add_u32 v160, s3, v160")
            for i in range(npf):
                if i == 8: self.exec_set("0xfffffff")
                self("buffer_load_dword a0, v160, s[%d:%d], 0 offen" % (SRD_A, SRD_A + 3))
                if i < 8: self("v_add_u32 v160, 8192, v160")
            if npf == 9: self.exec_restore()
        if self.o.get("st_pw"):
            self("s_waitcnt vmcnt(0)")
            self.stamp(44)
        self.close(L2)
        self("%s:" % Ldone)
        self.vmq = []; self.lgq = []

    def weights_prefetch(self):
        a, d = 174, 190
        self.addr_pair(S_TMPP, P_WS, WS_PKFLAG)
        self("v_lshlrev_b32 v%d, 5, v%d" % (a, V_LANE))
        self.poll_pairs(S_TMPP, a, 1, 0, 176 + 0, npair=4) if False else None
        self.poll_pairs(S_TMPP, a, 1, 0, 4, npair=4)
        self.stamp(40)
        for base in (WS_W1P, WS_W2P):
            self.srd(SRD_A, P_WS, WP_SZ, const=base)
            self("s_mul_i32 s3, s%d, 69120" % S_J)
            self("v_lshlrev_b32 v%d, 7, v%d" % (a, V_LANE))
            self("v_add_u32 v%d, s3, v%d" % (a, a))
            for i in range(9):
                if i == 8: self.exec_set("0xfffffff")
                self("buffer_load_dword v%d, v%d, s[%d:%d], 0 offen" % (d, a, SRD_A, SRD_A + 3))
                if i < 8: self("v_add_u32 v%d, 8192, v%d" % (a, a))
            self.exec_restore()

    def w1_dma(self, its):
        self.srd(SRD_B, P_W1, 640 * 3456)
        c, row, cc, off = 160, 161, 162, 163
        self("s_lshl_b32 s3, s%d, 6" % S_W)
        self("s_add_u32 s3, s3, %d" % (192 * its[0]))
        self("v_add_u32 v%d, s3, v%d" % (c, V_LANE))
        self("s_mov_b32 s%d, %d" % (S_T0, (1 << 32) // 14 + 1))
        self("s_lshl_b32 s%d, s%d, 5" % (S_T0 + 1, S_UOFF))
        self("s_movk_i32 s%d, 3456" % (S_T0 + 2))
        self("s_lshl_b32 s%d, s%d, 10" % (S_T0 + 3, S_W))
        for it in its:
            L = None
            if it == 46:
                L = self.label("L_w1l")
                self("s_cmp_eq_u32 s%d, 2" % S_W)
                self("s_cbranch_scc1 %s" % L)
            self("v_mul_hi_u32 v%d, v%d, s%d" % (row, c, S_T0))
            self("v_mul_u32_u24 v%d, 14, v%d" % (cc, row))
            self("v_sub_u32 v%d, v%d, v%d" % (cc, c, cc))
            self("v_mul_lo_u32 v%d, v%d, s%d" % (off, row, S_T0 + 2))
            self("v_lshl_add_u32 v%d, v%d, 4, v%d" % (off, cc, off))
            self("s_add_u32 m0, s%d, %d" % (S_T0 + 3, LDS_W1 + 3072 * it))
            self("v_add_u32 v%d, 192, v%d" % (c, c))
            self("buffer_load_dwordx4 v%d, s[%d:%d], s%d offen lds" % (off, SRD_B, SRD_B + 3, S_T0 + 1))
            if L: self("%s:" % L)
    W1OFF = 174
    def w1_stage_setup(self):
        self.srd(SRD_B, P_W1, 640 * 3456)
        c, row, cc = 181, 182, 183
        self("s_lshl_b32 s3, s%d, 6" % S_W)
        self("v_add_u32 v%d, s3, v%d" % (c, V_LANE))
        self("s_mov_b32 s%d, %d" % (S_T0, (1 << 32) // 14 + 1))
        self("s_movk_i32 s%d, 3456" % (S_T0 + 2))
        for r in range(7):
            o = self.W1OFF + r
            self("v_mul_hi_u32 v%d, v%d, s%d" % (row, c, S_T0))
            self("v_mul_u32_u24 v%d, 14, v%d" % (cc, row))
            self("v_sub_u32 v%d, v%d, v%d" % (cc, c, cc))
            self("v_mul_lo_u32 v%d, v%d, s%d" % (o, row, S_T0 + 2))
            self("v_lshl_add_u32 v%d, v%d, 4, v%d" % (o, cc, o))
            self("v_add_u32 v%d, 256, v%d" % (c, c))
        self("s_lshl_b32 s62, s%d, 5" % S_UOFF)
    def w1_stage_items(self, it0, it1):
        items = []
        for it in range(it0, it1):
            q, r = divmod(it, 7)
            if r == 0 or it == it0:
                items.append("s_add_u32 s61, s62, %d" % (q * 128 * 3456))
            items.append(("vm", "buffer_load_dwordx4 %s, v%d, s[%d:%d], s61 offen" % (ar(4 * it, 4), self.W1OFF + r, SRD_B, SRD_B + 3), "w1"))
        return items
    def w1_stage_to_lds(self):
        b = 160
        self("v_lshlrev_b32 v%d, 4, v%d" % (b, V_LANE))
        self("s_lshl_b32 s3, s%d, 10" % S_W)
        self("v_add_u32 v%d, s3, v%d" % (b, b))
        self("v_add_u32 v%d, 65536, v%d" % (b + 1, b))
        self("v_add_u32 v%d, 131072, v%d" % (b + 2, b))
        for it in range(35):
            o = 4096 * it
            self.lg("ds_write_b128 v%d, %s offset:%d" % (b + o // 65536, ar(4 * it, 4), o % 65536), "w1w")
    def w2_setup(self):
        self.srd(SRD_W2, P_WS, WP_SZ, const=WS_W2P)
        self("s_mul_i32 s3, s%d, %d" % (S_W, 14 * 40))
        self("s_mul_i32 s%d, s%d, 5" % (S_T0, S_CS))
        self("s_add_u32 s3, s3, s%d" % S_T0)
        self("s_lshl_b32 s%d, s3, 10" % S_W2B)
    def w2_items(self, f0, f1, vlane16):
        it = []
        last = None
        for f in range(f0, f1):
            s, i = divmod(f, 5)
            key = (s, i == 4)
            if key != last:
                it.append("s_add_u32 s61, s%d, %d" % (S_W2B, s * 40 * 1024 + (4096 if i == 4 else 0)))
                last = key
            it.append(("vm", "buffer_load_dwordx4 %s, v%d, s[%d:%d], s61 offen offset:%d" % (w2reg(f), vlane16, SRD_W2, SRD_W2 + 3, 0 if i == 4 else 1024 * i), "w2"))
        return it

    def post_conv(self):
        QN = V_CS
        self("v_lshlrev_b32 v160, 4, v%d" % V_L15)
        self("s_lshl_b32 s3, s%d, 4" % S_W)
        self("v_add_u32 v160, s3, v%d" % V_L15)
        self("v_mul_u32_u24 v160, 160, v160")
        self("v_lshl_add_u32 v160, v%d, 3, v160" % V_G)
        self("v_add_u32 v160, %d, v160" % LDS_Q)
        for u in range(5):
            self.lg("ds_read_b64 %s, v160 offset:%d" % (vr(V_X + 2 * u, 2), 32 * u), "q")
        self.lg_wait_all()
        self.unpack_tile(124, V_X)
        self.tile_stats(124, 0, 144)
        self("s_waitcnt lgkmcnt(0)")
        L = self.if_wave(3, eq=False)
        self("s_waitcnt vmcnt(0)")
        self.close(L)
        self.vmq = []; self.lgq = []
        self("s_barrier")
        self.stamp(10)
        L = self.if_wave(3)
        self("s_lshl_b32 s%d, s%d, 8" % (S_T0, S_G))
        self("s_lshl_b32 s%d, s%d, 3" % (S_T0 + 1, S_J))
        self("s_add_u32 s%d, s%d, s%d" % (S_T0, S_T0, S_T0 + 1))
        self("s_add_u32 s%d, s%d, %d" % (S_T0, S_T0, WS_YFLAG))
        self.flag_store(P_WS, S_T0, 1, device=True)
        self.close(L)
        self.row_stats_issue(0, 60)
        c1, c2 = self.o.get("w1c1", 24), self.o.get("w1c2", 34)
        L = self.if_wave(3, eq=False)
        self.w1_dma(list(range(0, c1)))
        self.close(L)
        self.stamp(11)
        La, Lb = self.label("L_qa"), self.label("L_qb")
        self("s_cmp_eq_u32 s%d, 3" % S_W)
        self("s_cbranch_scc1 %s" % La)
        self("s_waitcnt vmcnt(%d)" % c1)
        self("s_branch %s" % Lb)
        self("%s:" % La)
        self("s_waitcnt vmcnt(0)")
        self("%s:" % Lb)
        self.vmq = []
        self.row_stats_validate(0, 60)
        self.row_stats_finish(60, 24, 26)
        XF, d, t = 4, 28, 30
        self.unpack_tile(XF, V_X)
        for i in range(10):
            self("v_pk_add_f32 %s, %s, v[24:25] op_sel_hi:[1,0] neg_lo:[0,1] neg_hi:[0,1]" % (vr(d, 2), vr(XF + 2 * i, 2)))
            self.rnd_pair(d, t)
            self("v_pk_mul_f32 %s, %s, v[26:27] op_sel_hi:[1,0]" % (vr(d, 2), vr(d, 2)))
            self("v_cvt_pk_bf16_f32 v%d, v%d, v%d" % (QN + i, d, d + 1))
        Ly = self.if_wave(3)
        self.addr_pair(S_TMPP, P_WS, WS_PKFLAG)
        self("v_lshlrev_b32 v159, 5, v%d" % V_LANE)
        self.poll_pairs(S_TMPP, 159, 1, 0, 144, npair=4)
        self.stamp(40)
        self.addr_pair(S_TMPP, P_WS, WS_YFLAG)
        self("s_lshl_b32 s3, s%d, 8" % S_CS)
        self("s_lshl_b32 s%d, s%d, 8" % (S_T0, S_G))
        self("v_mov_b32 v181, s3")
        self("v_mov_b32 v180, s%d" % S_T0)
        self("v_cmp_gt_u32 vcc, 32, v%d" % V_LANE)
        self("v_cndmask_b32 v181, v180, v181, vcc")
        self("v_and_b32 v180, 31, v%d" % V_LANE)
        self("v_lshl_add_u32 v180, v180, 3, v181")
        self.poll_pairs(S_TMPP, 180, 1, 0, 176)
        self.stamp(41)
        self("s_mul_i32 s3, s%d, %d" % (S_CS, 80 * 4096))
        self("s_lshl_b32 s%d, s%d, 9" % (S_T0, S_G))
        self("s_add_u32 s3, s3, s%d" % S_T0)
        self("s_lshl_b32 s%d, s%d, 7" % (S_T0, S_RB))
        self("s_add_u32 s3, s3, s%d" % S_T0)
        self.addr_pair(S_TMPP, P_WS, WS_YT, 3)
        a, b = 164, 165
        self("v_lshrrev_b32 v%d, 3, v%d" % (a, V_LANE))
        self("v_lshlrev_b32 v%d, 12, v%d" % (a, a))
        self("v_and_b32 v%d, 7, v%d" % (b, V_LANE))
        self("v_lshl_add_u32 v%d, v%d, 4, v%d" % (a, b, a))
        for k in range(10):
            self("s_mov_b32 m0, %d" % (LDS_SCR + 1024 * k))
            self("v_add_u32 v%d, %d, v%d" % (b, 8 * 4096 * k, a))
            self("global_load_lds_dwordx4 v%d, s[%d:%d]" % (b, S_TMPP, S_TMPP + 1))
        self("s_waitcnt vmcnt(0)")
        self.close(Ly)
        self("s_barrier")
        self.stamp(12)
        L = self.if_wave(3, eq=False)
        self.w1_dma(list(range(c1, c2)))
        self.close(L)

        a, b = 164, 165
        self("v_bfe_u32 v%d, v%d, 2, 2" % (a, V_LANE))
        self("v_lshl_add_u32 v%d, v%d, 2, v%d" % (a, V_G, a))
        self("v_lshlrev_b32 v%d, 7, v%d" % (a, a))
        self("v_and_b32 v%d, 3, v%d" % (b, V_LANE))
        self("v_lshl_add_u32 v%d, v%d, 3, v%d" % (a, b, a))
        self("s_lshl_b32 s3, s%d, 5" % S_W)
        self("s_add_u32 s3, s3, %d" % LDS_SCR)
        self("v_add_u32 v%d, s3, v%d" % (a, a))
        for u in range(5):
            self.lg("ds_read_b64_tr_b16 %s, v%d offset:%d" % (vr(V_Y + 2 * u, 2), a, 16 * 128 * u), "ytr")
        self.xf_store_setup(S_XO1)
        yf, qf = 32, 34
        self.lg_wait_all()
        for i in range(10):
            self.unpack(yf, V_Y + i)
            self.unpack(qf, QN + i)
            self("v_pk_mul_f32 %s, %s, %s" % (vr(d, 2), vr(yf, 2), vr(qf, 2)))
            self.rnd_pair(d, t)
            self("v_pk_add_f32 %s, %s, %s" % (vr(XF + 2 * i, 2), vr(XF + 2 * i, 2), vr(d, 2)))
            self("v_cvt_pk_bf16_f32 v%d, v%d, v%d" % (V_X + i, XF + 2 * i, XF + 2 * i + 1))
            self.unpack(XF + 2 * i, V_X + i)
        self.xf_store()
        self.tile_stats(XF, 1, 28)

    def xf_store_setup(self, ws_off):
        self("s_lshl_b32 s3, s%d, 4" % S_G)
        self("s_lshl_b32 s%d, s%d, 2" % (S_T0, S_RB))
        self("s_add_u32 s3, s3, s%d" % S_T0)
        self("s_add_u32 s3, s3, s%d" % S_W)
        self("s_mul_i32 s3, s3, %d" % (20 * 1024))
        self("s_add_u32 s3, s3, s%d" % ws_off)
        a = 170
        self("v_lshlrev_b32 v%d, 4, v%d" % (a, V_LANE))
        self("v_add_u32 v%d, s3, v%d" % (a, a))
        self("s_mul_i32 s%d, s%d, 5" % (S_T0, S_CS))
        for u in range(5):
            self("s_add_u32 s%d, s%d, %d" % (S_T0 + 1, S_T0, u))
            self("s_lshr_b32 s%d, s%d, 1" % (S_T0 + 2, S_T0 + 1))
            self("s_lshl_b32 s%d, s%d, 10" % (S_T0 + 2, S_T0 + 2))
            self("s_and_b32 s%d, s%d, 1" % (S_T0 + 1, S_T0 + 1))
            self("s_lshl_b32 s%d, s%d, 3" % (S_T0 + 1, S_T0 + 1))
            self("s_add_u32 s%d, s%d, s%d" % (S_T0 + 1, S_T0 + 1, S_T0 + 2))
            self("v_add_u32 v%d, s%d, v%d" % (165 + u, S_T0 + 1, a))
    def xf_store(self):
        Lo, Ld = self.label("L_xo"), self.label("L_xd")
        p = "s[%d:%d]" % (P_WS, P_WS + 1)
        x4 = lambda u: "global_store_dwordx4 v%d, %s, %s" % (165 + u, vr(V_X + 2 * u, 4), p)
        x2 = lambda u: "global_store_dwordx2 v%d, %s, %s" % (165 + u, vr(V_X + 2 * u, 2), p)
        self("s_bitcmp1_b32 s%d, 0" % S_CS)
        self("s_cbranch_scc1 %s" % Lo)
        self.handoff_stores([x4(0), x4(2), x2(4)], record=False)
        self("s_branch %s" % Ld)
        self("%s:" % Lo)
        self.handoff_stores([x2(0), x4(1), x4(3)], record=False)
        self("%s:" % Ld)
        self.vmq.extend(["xf"] * 3)

    def mixer_update(self, m, rs, xf, tmp):
        yf, d = tmp, tmp + 2
        for i in range(10):
            X = xf + 2 * i
            self.unpack(yf, V_Y + i)
            self("v_pk_add_f32 %s, %s, %s op_sel_hi:[1,0] neg_lo:[0,1] neg_hi:[0,1]" % (vr(d, 2), vr(X, 2), vr(m, 2)))
            self("v_pk_mul_f32 %s, %s, %s op_sel_hi:[1,0]" % (vr(d, 2), vr(d, 2), vr(rs, 2)))
            self("v_pk_fma_f32 %s, %s, %s, %s" % (vr(X, 2), vr(d, 2), vr(yf, 2), vr(X, 2)))
            self("v_cvt_pk_bf16_f32 v%d, v%d, v%d" % (V_X + i, X, X + 1))
            self.unpack(X, V_X + i)

    def w1_lane_addr(self, a, tmp):
        self("v_bfe_u32 v%d, v%d, 2, 2" % (a, V_LANE))
        self("v_lshl_add_u32 v%d, v%d, 2, v%d" % (a, V_G, a))
        self("v_mul_u32_u24 v%d, %d, v%d" % (a, W1_STRIDE, a))
        self("v_and_b32 v%d, 3, v%d" % (tmp, V_LANE))
        self("v_lshl_add_u32 v%d, v%d, 3, v%d" % (a, tmp, a))
    def colsum(self):
        a, ones, acc = 164, 100, 104
        FR = [112, 120, 128, 136]
        for i in range(4): self("v_mov_b32 v%d, 0x3f803f80" % (ones + i))
        self.w1_lane_addr(a, a + 1)
        self("s_lshl_b32 s3, s%d, 6" % S_W)
        self("v_add_u32 v%d, s3, v%d" % (a, a))
        self("v_add_u32 v%d, %d, v%d" % (a + 1, 8 * 32 * W1_STRIDE, a))
        self("v_add_u32 v%d, %d, v%d" % (a + 2, 16 * 32 * W1_STRIDE, a))
        def loads(t):
            for i in range(2):
                for h in range(2):
                    self.lg("ds_read_b64_tr_b16 %s, v%d offset:%d" % (vr(FR[t % 4] + 4 * i + 2 * h, 2), a + (t // 8), ((t % 8) * 32 + h * 16) * W1_STRIDE + 32 * i), "cs%d" % t)
        for t in range(3): loads(t)
        for t in range(20):
            if t + 3 < 20: loads(t + 3)
            self.lg_wait("cs%d" % t)
            for i in range(2):
                c = vr(acc + 4 * i, 4) if t else "0"
                self("v_mfma_f32_16x16x32_bf16 %s, %s, %s, %s" % (vr(acc + 4 * i, 4), vr(FR[t % 4] + 4 * i, 4), vr(ones, 4), c))
        b = 144
        self("v_lshlrev_b32 v%d, 4, v%d" % (b, V_G))
        self("s_lshl_b32 s3, s%d, 7" % S_W)
        self("s_add_u32 s3, s3, %d" % LDS_CSX)
        self("v_add_u32 v%d, s3, v%d" % (b, b))
        self("v_cmp_eq_u32 vcc, 0, v%d" % V_L15)
        self("s_and_saveexec_b64 s[%d:%d], vcc" % (S_SAVE, S_SAVE + 1))
        self("ds_write_b128 v%d, %s" % (b, vr(acc, 4)))
        self("ds_write_b128 v%d, %s offset:64" % (b, vr(acc + 4, 4)))
        self.exec_restore()
        self.lg_wait_all()
    def colsum_fetch(self):
        b = 144
        self("v_lshlrev_b32 v%d, 4, v%d" % (b, V_G))
        self("v_add_u32 v%d, %d, v%d" % (b, LDS_CSX, b))
        for u in range(7):
            self.lg("ds_read_b128 %s, v%d offset:%d" % (vr(V_CS + 4 * u, 4), b, 64 * u), "cs")

    G1_ACC = 4; G1_AF = [60, 88]; G1_XR = 116; G1_DEPTH = 7; G1_LA = 172; G1_XA = 183; G1_ST = 174; G1_L16 = 182
    def g1_aloads(self, t, buf):
        l = []
        for i in range(7):
            for h in range(2):
                l.append(("lg", "ds_read_b64_tr_b16 %s, v%d offset:%d" % (vr(self.G1_AF[buf] + 4 * i + 2 * h, 2), self.G1_LA, h * 16 * W1_STRIDE + 32 * i), "a%d" % t))
        return l
    def g1_setup(self, xf_off, hf_off):
        self("s_lshl_b32 s3, s%d, 4" % S_G)
        self("s_lshl_b32 s%d, s%d, 3" % (S_T0, S_RT))
        self("s_add_u32 s3, s3, s%d" % S_T0)
        self("s_lshl_b32 s%d, s%d, 1" % (S_T0, S_W))
        self("s_add_u32 s%d, s3, s%d" % (S_RU0, S_T0))
        self("s_mul_i32 s3, s%d, %d" % (S_RU0, 20 * 1024))
        self("s_add_u32 s3, s3, s%d" % xf_off)
        self.addr_pair(S_XFB, P_WS, 0, 3)
        self.addr_pair(S_TMPQ, S_XFB, 20 * 1024)
        self("v_lshlrev_b32 v%d, 4, v%d" % (self.G1_XA, V_LANE))
        self("v_lshlrev_b32 v%d, 4, v%d" % (self.G1_L16, V_LANE))
        self("s_mul_i32 s%d, s%d, %d" % (S_T0 + 3, S_RU0, 54 * 1024))
        self("s_add_u32 s%d, s%d, %s" % (S_T0 + 3, S_T0 + 3, hf_off))
        for i in range(7):
            self("s_add_u32 s%d, s%d, %d" % (S_T0 + 1, S_UOFF, i))
            self("s_lshr_b32 s%d, s%d, 1" % (S_T0 + 2, S_T0 + 1))
            self("s_lshl_b32 s%d, s%d, 10" % (S_T0 + 2, S_T0 + 2))
            self("s_and_b32 s%d, s%d, 1" % (S_T0 + 1, S_T0 + 1))
            self("s_lshl_b32 s%d, s%d, 3" % (S_T0 + 1, S_T0 + 1))
            self("s_add_u32 s%d, s%d, s%d" % (S_T0 + 1, S_T0 + 1, S_T0 + 2))
            self("s_add_u32 s%d, s%d, s%d" % (S_T0 + 1, S_T0 + 1, S_T0 + 3))
            self("s_add_u32 s%d, s%d, s%d" % (72 + 2 * i, P_WS, S_T0 + 1))
            self("s_addc_u32 s%d, s%d, 0" % (73 + 2 * i, P_WS + 1))
        self.w1_lane_addr(self.G1_LA, 59)
        for x in self.g1_aloads(0, 0): self.lg(x[1], x[2])
        self("v_add_u32 v%d, 7168, v%d" % (self.G1_LA, self.G1_LA))
    def g1_main(self, statbuf, sb=None, w2range=None, ldf='', pretouch=False, hwt=False, main_only=False, neg=False):
        ACC, AF, XR, DEPTH, la, xa, ST = self.G1_ACC, self.G1_AF, self.G1_XR, self.G1_DEPTH, self.G1_LA, self.G1_XA, self.G1_ST
        def xload(t):
            for rho in range(2):
                base = S_XFB if rho == 0 else S_TMPQ
                d = XR + ((t % DEPTH) * 2 + rho) * 4
                self.vm("global_load_dwordx4 %s, v%d, s[%d:%d] offset:%d %s" % (vr(d, 4), xa, base, base + 1, (t % 4) * 1024, ldf), "x%d" % t)
            if t % 4 == 3: self("v_add_u32 v%d, 4096, v%d" % (xa, xa))
        for t in range(3): xload(t)
        sa = 59
        self("s_lshl_b32 s3, s%d, 11" % S_RU0)
        self("s_add_u32 s3, s3, %d" % (WS_STAT + statbuf * STAT_SZ))
        self("v_lshlrev_b32 v%d, 7, v%d" % (sa, V_L15))
        self("v_lshl_add_u32 v%d, v%d, 5, v%d" % (sa, V_G, sa))
        self("v_add_u32 v%d, s3, v%d" % (sa, sa))
        for rho in range(2):
            for k in range(2):
                self.vm("global_load_dwordx2 %s, v%d, s[%d:%d] offset:%d" % (vr(ST + 4 * rho + 2 * k, 2), sa, P_WS, P_WS + 1, 2048 * rho + 16 * k), "st")
        for t in range(3, DEPTH): xload(t)
        if pretouch:
            self("s_mul_i32 s3, s%d, %d" % (S_RU0, 54 * 1024))
            self("s_lshr_b32 s%d, s%d, 1" % (S_T0, S_UOFF))
            self("s_lshl_b32 s%d, s%d, 10" % (S_T0, S_T0))
            self("s_add_u32 s3, s3, s%d" % S_T0)
            self("s_and_b32 s%d, s%d, 1" % (S_T0, S_UOFF))
            self("s_lshl_b32 s%d, s%d, 3" % (S_T0, S_T0))
            self("s_add_u32 s3, s3, s%d" % S_T0)
            self("s_add_u32 s3, s3, %d" % WS_HF1)
            self("v_lshrrev_b32 v57, 5, v%d" % V_LANE)
            self("v_mul_u32_u24 v57, %d, v57" % (54 * 1024))
            self("v_and_b32 v58, 31, v%d" % V_LANE)
            self("v_lshl_add_u32 v58, v58, 7, v57")
            self("v_add_u32 v58, s3, v58")
            Lp = self.label("L_pth")
            self("s_cmp_lg_u32 s%d, 0" % S_MODE)
            self("s_cbranch_scc1 %s" % Lp)
            self("global_store_dword v58, v58, s[%d:%d]" % (P_WS, P_WS + 1))
            self("%s:" % Lp)
        w2items = self.w2_items(w2range[0], w2range[1], self.G1_L16) if w2range else []
        nper = -(-len(w2items) // 16)
        for t in range(20):
            if t == 1 and sb: self.stamp(sb)
            buf = t & 1
            nxt = self.g1_aloads(t + 1, buf ^ 1) if t < 19 else []
            self.lg_wait_all()
            self.vm_wait("x%d" % t)
            self.bg_add(nxt)
            if t >= 1:
                self.bg_add(w2items[:nper]); w2items = w2items[nper:]
            nbg = len(self.bgq); done = 0
            k = 0
            for i in range(7):
                for rho in range(2):
                    acc = ACC + (rho * 7 + i) * 4
                    c = vr(acc, 4) if t else "0"
                    self("v_mfma_f32_16x16x32_bf16 %s, %s, %s, %s" % (vr(acc, 4), vr(AF[buf] + 4 * i, 4), vr(XR + ((t % DEPTH) * 2 + rho) * 4, 4), c))
                    k += 1
                    want = min(nbg, -(-nbg * k // 11))
                    self.bg_step(want - done); done = want
            self.bg_flush()
            if t < 19: self("v_add_u32 v%d, 7168, v%d" % (la, la))
            if t + DEPTH < 20: xload(t + DEPTH)
        if sb: self.stamp(sb + 1)
        if main_only: return
        self.g1_epilogue(hwt, neg)
    def g1_epilogue(self, hwt=False, neg=False):
        ACC, AF, XR, DEPTH, la, xa, ST = self.G1_ACC, self.G1_AF, self.G1_XR, self.G1_DEPTH, self.G1_LA, self.G1_XA, self.G1_ST
        M = [60, 64]; RS = [62, 66]
        self.vm_wait_all()
        for rho in range(2):
            for i in range(4): self("v_mov_b32 v%d, v%d" % (72 + i, ST + 4 * rho + i))
            self.row_stats_finish(72, M[rho], RS[rho])
            if neg: self("v_xor_b32 v%d, 0x80000000, v%d" % (RS[rho], RS[rho]))
        if neg: self("s_mov_b32 s%d, 0x80008000" % S_T0)
        ha = 80
        self("v_add_u32 v%d, %d, v%d" % (ha, 54 * 1024, self.G1_L16))
        HA = [self.G1_L16, ha]
        lines = []
        O = 100
        for rho in range(2):
            for i in range(7):
                acc = ACC + (rho * 7 + i) * 4
                for p in range(2):
                    A = acc + 2 * p; C = V_CS + 4 * i + 2 * p
                    self("v_pk_fma_f32 %s, %s, %s, %s op_sel_hi:[1,0,1] neg_lo:[0,1,0] neg_hi:[0,1,0]" % (vr(A, 2), vr(C, 2), vr(M[rho], 2), vr(A, 2)))
                    self("v_pk_mul_f32 %s, %s, %s op_sel_hi:[1,0]" % (vr(A, 2), vr(A, 2), vr(RS[rho], 2)))
                    o = O + (rho * 7 + i) * 2 + p
                    self("v_cvt_pk_bf16_f32 v%d, v%d, v%d" % (o, A, A + 1))
                    if neg: self("v_pk_max_u16 v%d, v%d, s%d" % (o, o, S_T0))
                    else: self("v_pk_max_i16 v%d, v%d, 0" % (o, o))
        def st(rho, i, n):
            return "global_store_dwordx%d v%d, %s, s[%d:%d]" % (n, HA[rho], vr(O + (rho * 7 + i) * 2, n), 72 + 2 * i, 73 + 2 * i)
        Lo, Ld = self.label("L_ho"), self.label("L_hd")
        self("s_bitcmp1_b32 s%d, 0" % S_UOFF)
        self("s_cbranch_scc1 %s" % Lo)
        def emit(lines):
            if hwt:
                for l in lines: self(l + " sc0 sc1")
            else: self.handoff_stores(lines, record=False)
        emit([st(rho, i, 4 if i < 6 else 2) for rho in range(2) for i in (0, 2, 4, 6)])
        self("s_branch %s" % Ld)
        self("%s:" % Lo)
        emit([st(rho, i, 4 if i > 0 else 2) for rho in range(2) for i in (0, 1, 3, 5)])
        self("%s:" % Ld)
        self.vmq.extend(["h"] * 8)

    G2_ACC = [4, 24]; G2_HR = 44; G2_HA = 100; G2_RA = 104; G2_TMP = 108; G2_SUM = 128
    def g2_setup(self, hf_off):
        ha, ra = self.G2_HA, self.G2_RA
        for s in range(14):
            self("s_mul_i32 s3, s%d, 14" % S_W)
            self("s_add_u32 s3, s3, %d" % s)
            self("s_min_u32 s3, s3, 53")
            self("s_lshl_b32 s%d, s3, 10" % (S_HSTEP + s))
        self.srd(SRD_A, P_WS, 0x10000000 - self.o.get('wsbase', 0))
        for k in range(4):
            self("s_add_u32 s3, s%d, %d" % (S_W, 1 + k))
            self("s_and_b32 s3, s3, 3")
            self("s_mul_i32 s%d, s3, 5120" % (S_T0 + 1))
            self("s_lshl_b32 s%d, s%d, 4" % (S_T0, S_G))
            self("s_add_u32 s3, s3, s%d" % S_T0)
            self("s_lshl_b32 s%d, s%d, 2" % (S_T0, S_RB))
            self("s_add_u32 s3, s3, s%d" % S_T0)
            self("s_mul_i32 s3, s3, %d" % (54 * 1024))
            self("s_add_u32 s3, s3, %s" % hf_off)
            self("v_lshlrev_b32 v%d, 4, v%d" % (ha + k, V_LANE))
            self("v_add_u32 v%d, s3, v%d" % (ha + k, ha + k))
            self("v_lshlrev_b32 v%d, 4, v%d" % (ra + k, V_LANE))
            self("s_add_u32 s3, s%d, %d" % (S_T0 + 1, LDS_SCR))
            self("v_add_u32 v%d, s3, v%d" % (ra + k, ra + k))
    def g2_main(self, sb=None, ldf='', val=None):
        ACC, HR, ha, ra, TMP, SUM = self.G2_ACC, self.G2_HR, self.G2_HA, self.G2_RA, self.G2_TMP, self.G2_SUM
        def hload(p):
            k, s = divmod(p, 14)
            if self.o.get("g2_noload") and p >= 14: return
            self.vm("buffer_load_dwordx4 %s, v%d, s[%d:%d], s%d offen %s" % (vr(HR + 4 * s, 4), ha + k, SRD_A, SRD_A + 3, S_HSTEP + s, ldf), "h%d" % p)
        CK = 148
        retry_blocks = []
        def bad_ops(regs):
            op = "v_or" if val == 1 else "v_and"
            l = []
            acc_ = regs[0]; rest = regs[1:]
            first = True
            while rest:
                if len(rest) >= 2 and val == 1:
                    l.append("v_or3_b32 v%d, v%d, v%d, v%d" % (CK, acc_, rest[0], rest[1])); rest = rest[2:]
                else:
                    l.append("%s_b32 v%d, v%d, v%d" % (op, CK, acc_, rest[0])); rest = rest[1:]
                acc_ = CK
            l.append(("v_cmp_gt_i32 vcc, 0, v%d" if val == 1 else "v_cmp_le_i32 vcc, 0, v%d") % CK)
            return l
        for p in range(14): hload(p)
        if val:
            Lsp, Lok = self.label("L_hsp"), self.label("L_hok")
            self.vm_wait("h0")
            for l in bad_ops([HR, HR + 2]): self(l)
            self("s_cbranch_vccz %s" % Lok)
            self("s_mov_b32 s%d, %d" % (S_TMO, TIMEOUT))
            self("%s:" % Lsp)
            self("buffer_load_dwordx4 %s, v%d, s[%d:%d], s%d offen %s" % (vr(HR, 4), ha, SRD_A, SRD_A + 3, S_HSTEP, ldf))
            self("s_sub_u32 s%d, s%d, 1" % (S_TMO, S_TMO))
            self("s_cmp_eq_u32 s%d, 0" % S_TMO)
            self("s_cbranch_scc1 L_abort")
            self("s_waitcnt vmcnt(0)")
            for l in bad_ops([HR, HR + 2]): self(l)
            self("s_cbranch_vccnz %s" % Lsp)
            self("%s:" % Lok)
            self.stamp(45 if val == 1 else 46)
        if sb: self.stamp(sb)
        late = []
        for k in range(4):
            acc = ACC[k & 1]; prev = ACC[(k & 1) ^ 1]
            for s in range(14):
                p = 14 * k + s
                if k > 0 and not self.o.get("g2_nobar"):
                    sA, sB = self.o.get("g2_sA", 7), self.o.get("g2_sB", 11)
                    w0 = self.o.get("g2_w0", 1)
                    X = self.o.get("g2_x", "wbra")
                    if w0 <= s < w0 + 5 and "w" in X:
                        i = s - w0
                        late.append(("lg", "ds_write_b128 v%d, %s offset:%d" % (ra + k - 1, vr(prev + 4 * i, 4), 1024 * i), "rw"))
                    if s == sA:
                        self.bg_flush()
                        if "b" in X: self.lg_wait_all(); self("s_barrier")
                        rd = [("lg", "ds_read_b128 %s, v%d offset:%d" % (vr(TMP + 4 * i, 4), ra + 3, 1024 * i), "rr") for i in range(5)]
                        if "r" in X: self.bg_add(rd)
                    if s == sB:
                        self.bg_flush()
                        if "b" in X: self.lg_wait_all(); self("s_barrier")
                        if "a" not in X: pass
                        elif k == 1:
                            self.bg_add(["v_mov_b32 v%d, v%d" % (SUM + j, TMP + j) for j in range(20)])
                        else:
                            self.bg_add(["v_pk_add_f32 %s, %s, %s" % (vr(SUM + j, 2), vr(SUM + j, 2), vr(TMP + j, 2)) for j in range(0, 20, 2)])
                chk = []
                if val:
                    pn = p + 1
                    if pn < 56:
                        self.vm_wait("h%d" % pn)
                        rn = HR + 4 * (pn % 14)
                        chk = bad_ops([rn, rn + 2])
                else:
                    self.vm_wait("h%d" % p)
                for i in range(5):
                    c = vr(acc + 4 * i, 4) if s > 0 else "0"
                    self("v_mfma_f32_16x16x32_bf16 %s, %s, %s, %s" % (vr(acc + 4 * i, 4), w2reg(s * 5 + i), vr(HR + 4 * s, 4), c))
                    if chk and i < 2:
                        self(chk[i])
                    elif i == 2 and late:
                        x = late.pop(0); self.lg(x[1], x[2])
                    else:
                        self.bg_step(2 if k == 1 and s >= 11 else 1)
                if chk:
                    Lr, Lb = self.label("L_hr"), self.label("L_hb")
                    self("s_cbranch_vccnz %s ; nohaz" % Lr)
                    self("%s: ; nohaz" % Lb)
                    kn, sn = divmod(pn, 14)
                    retry_blocks.append((Lr, Lb, "buffer_load_dwordx4 %s, v%d, s[%d:%d], s%d offen %s" % (vr(HR + 4 * sn, 4), ha + kn, SRD_A, SRD_A + 3, S_HSTEP + sn, ldf), bad_ops([rn, rn + 2])))
                if p + 14 < 56: hload(p + 14)
            self.bg_flush()
        if retry_blocks:
            Lx = self.label("L_hx")
            self("s_branch %s" % Lx)
            for (Lr, Lb, ld, ops) in retry_blocks:
                Li = self.label("L_hi")
                self("%s:" % Lr)
                self("s_mov_b32 s%d, %d" % (S_TMO, TIMEOUT))
                self("%s:" % Li)
                self(ld)
                self("s_sub_u32 s%d, s%d, 1" % (S_TMO, S_TMO))
                self("s_cmp_eq_u32 s%d, 0" % S_TMO)
                self("s_cbranch_scc1 L_abort")
                self("s_waitcnt vmcnt(0)")
                for l in ops: self(l)
                self("s_cbranch_vccnz %s" % Li)
                self("s_branch %s" % Lb)
            self("%s:" % Lx)
        if sb: self.stamp(sb + 1)
        acc = ACC[1]
        for j in range(0, 20, 2):
            self("v_pk_add_f32 %s, %s, %s" % (vr(SUM + j, 2), vr(SUM + j, 2), vr(acc + j, 2)))
        return SUM

    def residual_add(self, RES, XF, neg=False):
        t = 178
        self.unpack_tile(XF, V_X)
        for i in range(10):
            self.rnd_pair(RES + 2 * i, t)
            self("v_pk_add_f32 %s, %s, %s %s" % (vr(XF + 2 * i, 2), vr(XF + 2 * i, 2), vr(RES + 2 * i, 2), "neg_lo:[0,1] neg_hi:[0,1]" if neg else ""))
            self("v_cvt_pk_bf16_f32 v%d, v%d, v%d" % (V_X + i, XF + 2 * i, XF + 2 * i + 1))
            self.unpack(XF + 2 * i, V_X + i)

    def store_out(self):
        t2 = 164
        self.rowbase()
        self("v_add_u32 v%d, s3, v%d" % (t2, V_L15))
        self("v_mul_u32_u24 v%d, 1280, v%d" % (t2, t2))
        self("s_mul_i32 s3, s%d, 160" % S_CS)
        self("v_lshlrev_b32 v%d, 3, v%d" % (t2 + 1, V_G))
        self("v_add3_u32 v%d, v%d, v%d, s3" % (t2, t2, t2 + 1))
        for u in range(5):
            self.vm("global_store_dwordx2 v%d, %s, s[%d:%d] offset:%d %s" % (t2, vr(V_X + 2 * u, 2), P_OUT, P_OUT + 1, 32 * u, self.o.get("outf", "")), "out")

    def epoch_update(self):
        L = self.label("L_ep")
        self("s_add_u32 s3, s2, s%d" % S_W)
        self("s_cmp_lg_u32 s3, 0")
        self("s_cbranch_scc1 %s" % L)
        self("s_sub_u32 s3, s%d, 0x%x" % (S_TAG, TAG0))
        self("s_add_u32 s3, s3, 16")
        self("v_mov_b32 v176, s3")
        self("v_mov_b32 v177, %d" % WS_EPOCH)
        self.exec_set("1")
        self("global_store_dword v177, v176, s[%d:%d] sc0 sc1" % (P_WS, P_WS + 1))
        self.exec_restore()
        self("%s:" % L)

    def build(self):
        o = self.o
        self.prologue()
        if o.get("stamps"): self("v_mov_b32 v%d, 0" % V_STAMP)
        self.stamp(0)
        self.prep_loads()
        self.stamp(38)
        self.prep_compute()
        self.stamp(2)
        self.mode_check()
        self.lg_wait_all()
        self("s_barrier")
        self.mode_fetch()
        self.stamp(3)
        self.prep_store_ur()
        self.stamp(4)
        self.barrier_arrive(1, drain=False)
        self.build_kcopies()
        self.w1_stage_setup()
        self.w2_setup()
        self.stamp(5)
        self.barrier_wait(1)
        self.stamp(6)
        self.vmq = []; self.lgq = []
        self.conv()
        self.stamp(9)
        self.post_conv()
        self.stamp(13)
        L = self.if_wave(3, eq=False)
        self.w1_dma(list(range(o.get("w1c2", 34), 47)))
        self.close(L)
        self.barrier_arrive(2)
        na, nb = o.get("w2a", 22), o.get("w2b", 48)
        self("v_lshlrev_b32 v163, 4, v%d" % V_LANE)
        self.bg_add(self.w2_items(0, na, 163)); self.bg_flush()
        self.colsum()
        self("s_barrier")
        self.colsum_fetch()
        self.stamp(14)
        self.g1_setup(S_XO1, str(WS_HF1))
        self.lg_wait_all()
        self.barrier_wait(2)
        self.stamp(15)
        self.g1_main(1, 16, w2range=(na, nb), ldf='sc1', main_only=True)
        self.g1_epilogue(hwt=o.get('hwt', 0))
        self.stamp(18)
        sv = o.get("selfval", 1)
        def slow_barrier(ph):
            L = self.label("L_sb")
            self("s_cmp_eq_u32 s%d, 0" % S_MODE)
            self("s_cbranch_scc1 %s" % L)
            q = (list(self.vmq), list(self.lgq))
            self.barrier_arrive(ph)
            self.barrier_wait(ph)
            self("%s:" % L)
            self.vmq, self.lgq = q
        self("v_lshlrev_b32 v163, 4, v%d" % V_LANE)
        if sv:
            self.bg_add(self.w2_items(nb, 70, 163)); self.bg_flush()
            self.g2_setup(str(WS_HF1))
            slow_barrier(3)
        else:
            self.barrier_arrive(3)
            self.bg_add(self.w2_items(nb, 70, 163)); self.bg_flush()
            self.g2_setup(str(WS_HF1))
            self.barrier_wait(3)
        self.stamp(21)
        RES = self.g2_main(22, ldf='sc1' if sv else '', val=1 if sv else None)
        self.stamp(24)
        XF = 4
        self.residual_add(RES, XF)
        self.tile_stats(XF, 2, 28)
        self.row_stats_issue(2, 60)
        self.xf_store_setup(S_XO3)
        self.fastflag = o.get("l2flag", "")
        self.stamp(25)
        self.vm_wait("rs")
        self.row_stats_validate(2, 60)
        self.stamp(26)
        self.row_stats_finish(60, 24, 26)
        self.mixer_update(24, 26, XF, 28)
        self.xf_store()
        self.tile_stats(XF, 3, 28)
        self.stamp(27)
        self.barrier_arrive(4)
        self.g1_setup(S_XO3, 's%d' % S_HO2)
        self.barrier_wait(4)
        self.stamp(28)
        self.g1_main(3, 29, ldf='sc1', neg=bool(sv))
        self.stamp(31)
        if sv:
            self.g2_setup('s%d' % S_HO2)
            slow_barrier(5)
        else:
            self.barrier_arrive(5)
            self.g2_setup('s%d' % S_HO2)
            self.barrier_wait(5)
        if o.get("wbl2"):
            L = self.label("L_wb")
            self("s_lshl_b32 s3, s%d, 2" % S_J)
            self("s_add_u32 s3, s3, s%d" % S_W)
            self("s_cmp_lg_u32 s3, %d" % o.get("wbl2_who", 1))
            self("s_cbranch_scc1 %s" % L)
            self("buffer_wbl2 sc1")
            self("%s:" % L)
        self.stamp(32)
        RES = self.g2_main(33, ldf='sc1', val=2 if sv else None)
        self.stamp(35)
        self.residual_add(RES, 4, neg=bool(sv))
        self.store_out()
        self.epoch_update()
        self.stamp(36)
        self("s_waitcnt vmcnt(0)")
        self.stamp(37)
        self.stamp_dump()
        if self.o.get("dbgtime"):
            L = self.label("L_dt")
            self("s_add_u32 s3, s%d, s%d" % (S_J, S_W))
            self("s_cmp_lg_u32 s3, 0")
            self("s_cbranch_scc1 %s" % L)
            self("s_memrealtime s[94:95]")
            self("s_memtime s[92:93]")
            self("s_waitcnt lgkmcnt(0)")
            self("s_sub_u32 s94, s94, s98")
            self("s_sub_u32 s92, s92, s100")
            self("v_mov_b32 v4, s94")
            self("v_mov_b32 v5, s92")
            self("s_lshl_b32 s3, s%d, 3" % S_G)
            self("v_mov_b32 v6, s3")
            self("s_mov_b64 exec, 1")
            self("global_store_dwordx2 v6, v[4:5], s[%d:%d]" % (P_DBG, P_DBG + 1))
            self("%s:" % L)
        self("s_waitcnt vmcnt(0)")
        self("s_branch L_end")
        self("L_abort:")
        self("L_end:")
        self("s_endpgm")

def make(opts):
    k = K(opts)
    k.build()
    body, added = k.text()
    hdr = open("interleave_layers__ssm_conv_h3__dense_activation_relu__prompt.s.ref").read().split("\n")
    head = [l for l in hdr if l.startswith(";") and "@launch" not in l and "Override launch" not in l and "grid=ceil" not in l][:13]
    txt = "\n".join(head) + "\n"
    txt += "; @launch grid=(256,1,1) block=(256,1,1) lds=%d\n" % LDS_TOTAL
    txt += '.amdgcn_target "amdgcn-amd-amdhsa--gfx950"\n.text\n.globl %s\n.p2align 8\n.type %s,@function\n%s:\n' % (KNAME, KNAME, KNAME)
    txt += body
    txt += """.section .rodata,"a"
.p2align 6
.amdhsa_kernel %s
  .amdhsa_next_free_vgpr 512
  .amdhsa_next_free_sgpr 102
  .amdhsa_accum_offset 256
  .amdhsa_group_segment_fixed_size 0
  .amdhsa_kernarg_size 96
  .amdhsa_user_sgpr_count 2
  .amdhsa_user_sgpr_kernarg_segment_ptr 1
  .amdhsa_system_sgpr_workgroup_id_x 1
.end_amdhsa_kernel
""" % KNAME
    return txt, added, len(k.ins)

if __name__ == "__main__":
    import argparse, json
    ap = argparse.ArgumentParser()
    ap.add_argument("-o", default="interleave_layers__ssm_conv_h3__dense_activation_relu__prompt.s")
    ap.add_argument("--opts", default="{}")
    a = ap.parse_args()
    txt, added, n = make(json.loads(a.opts))
    open(a.o, "w").write(txt)
    print("wrote", a.o, "instructions", n, "nop states added", added, "bytes", len(txt))
```

```python
import sys
sys.path.insert(0, "work")
from gen import *

KNAME = "interleave_layers__ssm_conv_h3__dense_activation_relu__prompt_kernel"

WS_EPOCH = 0x0
WS_XCCF  = 0x400
WS_LFLAG = 0x1000
WS_YFLAG = 0x2000
WS_PKFLAG = 0x3000
WS_STAT  = 0x100000
STAT_SZ  = 0x40000
WS_UR    = 0x200000
WS_YT    = 0x500000
WS_W1P   = 0x800000
WS_W2P   = 0xB00000
WP_SZ    = 2211840
WS_XF1   = 0xE00000
WS_XF3   = 0x1100000
WS_HF1   = 0x1400000
WS_HF2   = 0x1B00000
WS_STAMP = 0x2200000
KX = 0x5BD1E995
TAG0 = 0x9E3779B9

KC_STRIDE = 4160
SLOT = 8 * KC_STRIDE + 4608
U_OFF = 8 * KC_STRIDE
LDS_T = 3 * SLOT
T_STRIDE = 144
LDS_W1 = 0
W1_STRIDE = 224
LDS_SCR = 140 * 1024
LDS_TOTAL = 163840
LDS_MODE = LDS_TOTAL - 16
LDS_CSX = LDS_SCR + 16384
LDS_RP = LDS_T + 80 * T_STRIDE
LDS_Q = LDS_RP + 3 * 4096

S_G, S_J, S_W, S_MODE = 4, 5, 6, 7
SRD_A, SRD_B = 8, 12
P_Q, P_K, P_V, P_SK, P_SSM, P_D, P_W1 = 16, 18, 20, 22, 24, 26, 30
P_W2, P_OUT, P_DBG, P_WS = 32, 34, 36, 38
S_TAG = 28
S_KX = 29
S_RB, S_CS, S_RT, S_CT, S_UOFF = 40, 41, 42, 43, 44
S_MASK = 45
S_XCC = 46
S_CH = 47
S_HASCH = 48
S_DVAL = 49
S_T0 = 50
SRD_W2 = 56
S_W2B = 60
S_RU0 = 63
S_LFLAG = 64
S_TMPP = 66
S_TMPQ = 68
S_SLOT = 70
S_TMO = 71
S_HSTEP = 72
S_XFB = 86
S_M2 = 88
S_XO1, S_XO3, S_HO2 = 90, 91, 96
S_SAVE = 92
S_TS = 94

V_TID, V_LANE, V_L15, V_G = 0, 1, 2, 3
V_STAMP = 173
V_CS = 184
V_Y = 212
V_X = 222
V_W2X = 232

def w2reg(f):
    return ar(4 * f, 4) if f < 64 else vr(V_W2X + 4 * (f - 64), 4)

TIMEOUT = 400000

class K(Gen):
    def __init__(self, opts):
        super().__init__()
        self.o = opts
        self.bgq = []

    def stamp(self, idx):
        if not self.o.get("stamps"): return
        self("s_memtime s[%d:%d]" % (S_TS, S_TS + 1))
        self("s_waitcnt lgkmcnt(0)")
        self("v_writelane_b32 v%d, s%d, %d" % (V_STAMP, S_TS, idx))
        self.lgq = []
    def stamp_dump(self):
        if not self.o.get("stamps"): return
        self("s_memrealtime s[%d:%d]" % (S_TS, S_TS + 1))
        self("s_waitcnt lgkmcnt(0)")
        self("v_writelane_b32 v%d, s%d, 63" % (V_STAMP, S_TS))
        self("v_writelane_b32 v%d, s98, 62" % V_STAMP)
        self("s_lshl_b32 s3, s2, 2")
        self("s_add_u32 s3, s3, s%d" % S_W)
        self("s_lshl_b32 s3, s3, 8")
        self("s_add_u32 s3, s3, %d" % WS_STAMP)
        self("v_lshlrev_b32 v180, 2, v%d" % V_LANE)
        self("v_add_u32 v180, s3, v180")
        self("global_store_dword v180, v%d, s[%d:%d]" % (V_STAMP, P_WS, P_WS + 1))
        if self.o.get("dbgstamps"):
            L = self.label("L_ds")
            self("s_lshl_b32 s3, s2, 2")
            self("s_add_u32 s3, s3, s%d" % S_W)
            self("s_cmp_lg_u32 s3, %d" % (self.o.get("dbgwave", 37)))
            self("s_cbranch_scc1 %s" % L)
            self("v_readlane_b32 s50, v%d, 0" % V_STAMP)
            self("v_mov_b32 v181, 0")
            for i, idx in enumerate(self.o["dbgstamps"]):
                self("v_readlane_b32 s51, v%d, %d" % (V_STAMP, idx))
                self("s_sub_u32 s51, s51, s50")
                self("v_writelane_b32 v181, s51, %d" % i)
            self("v_lshlrev_b32 v180, 2, v%d" % V_LANE)
            self("s_mov_b64 exec, 0xffff")
            self("global_store_dword v180, v181, s[%d:%d]" % (P_DBG, P_DBG + 1))
            self("s_mov_b64 exec, -1")
            self("%s:" % L)
    def bg_add(self, items): self.bgq.extend(items)
    def bg_step(self, n=1):
        q = self.bgq
        while n > 0 and q:
            it = q.pop(0)
            if callable(it): it()
            elif isinstance(it, tuple):
                kind, text, tag = it
                (self.vm if kind == "vm" else self.lg)(text, tag)
            else: self(it)
            n -= 1
    def bg_flush(self): self.bg_step(1 << 30)
    def if_wave(self, w, eq=True):
        L = self.label("L_iw")
        self("s_cmp_%s_u32 s%d, %d" % ("lg" if eq else "eq", S_W, w))
        self("s_cbranch_scc1 %s" % L)
        return L
    def close(self, L): self("%s:" % L)
    def exec_set(self, mask):
        self("s_mov_b64 s[%d:%d], exec" % (S_SAVE, S_SAVE + 1))
        self("s_mov_b64 exec, %s" % mask)
    def exec_restore(self): self("s_mov_b64 exec, s[%d:%d]" % (S_SAVE, S_SAVE + 1))
    def rnd_pair(self, p, t):
        self("v_cvt_pk_bf16_f32 v%d, v%d, v%d" % (t, p, p + 1))
        self("v_lshlrev_b32 v%d, 16, v%d" % (p, t))
        self("v_and_b32 v%d, s%d, v%d" % (p + 1, S_MASK, t))
    def unpack(self, dst, src):
        self("v_lshlrev_b32 v%d, 16, v%d" % (dst, src))
        self("v_and_b32 v%d, s%d, v%d" % (dst + 1, S_MASK, src))
    def unpack_tile(self, dst, src):
        for i in range(10): self.unpack(dst + 2 * i, src + i)
    def rnd1(self, r, t):
        self("v_cvt_pk_bf16_f32 v%d, v%d, v%d" % (t, r, r))
        self("v_lshlrev_b32 v%d, 16, v%d" % (r, t))
    def xg_sum(self, r, t):
        self("v_mov_b32 v%d, v%d" % (t, r))
        self("v_permlane16_swap_b32 v%d, v%d" % (r, t))
        self("v_add_f32 v%d, v%d, v%d" % (r, r, t))
        self("v_mov_b32 v%d, v%d" % (t, r))
        self("v_permlane32_swap_b32 v%d, v%d" % (r, t))
        self("v_add_f32 v%d, v%d, v%d" % (r, r, t))
    def srd(self, q, ptr, nbytes, const=0, add_sgpr=None):
        self("s_add_u32 s%d, s%d, %d" % (q, ptr, const))
        self("s_addc_u32 s%d, s%d, 0" % (q + 1, ptr + 1))
        if add_sgpr is not None:
            self("s_add_u32 s%d, s%d, s%d" % (q, q, add_sgpr))
            self("s_addc_u32 s%d, s%d, 0" % (q + 1, q + 1))
        self("s_and_b32 s%d, s%d, 0xffff" % (q + 1, q + 1))
        self("s_mov_b32 s%d, %d" % (q + 2, nbytes))
        self("s_mov_b32 s%d, 0x20000" % (q + 3))
    def addr_pair(self, dst, ptr, const=0, add_sgpr=None):
        self("s_add_u32 s%d, s%d, %d" % (dst, ptr, const))
        self("s_addc_u32 s%d, s%d, 0" % (dst + 1, ptr + 1))
        if add_sgpr is not None:
            self("s_add_u32 s%d, s%d, s%d" % (dst, dst, add_sgpr))
            self("s_addc_u32 s%d, s%d, 0" % (dst + 1, dst + 1))
    def handoff_stores(self, lines, tagname="st", record=True):
        Ls, Ld = self.label("L_slow"), self.label("L_sd")
        self("s_cmp_eq_u32 s%d, 0" % S_MODE)
        self("s_cbranch_scc0 %s" % Ls)
        for l in lines: self(l + " " + getattr(self, "fastflag", ""))
        self("s_branch %s" % Ld)
        self("%s:" % Ls)
        for l in lines: self(l + " sc0 sc1")
        self("%s:" % Ld)
        if record:
            for l in lines: self.vmq.append(tagname)
    def rowbase(self):
        self("s_lshl_b32 s3, s%d, 8" % S_G)
        self("s_lshl_b32 s%d, s%d, 6" % (S_T0, S_RB))
        self("s_add_u32 s3, s3, s%d" % S_T0)
        self("s_lshl_b32 s%d, s%d, 4" % (S_T0, S_W))
        self("s_add_u32 s3, s3, s%d" % S_T0)

    def flag_store(self, base_pair, off_sgpr, val, device, vt=176):
        if isinstance(val, int): self("s_add_u32 s3, s%d, %d" % (S_TAG, val))
        else: self("s_add_u32 s3, s%d, %s" % (S_TAG, val))
        self("v_mov_b32 v%d, s3" % vt)
        self("s_xor_b32 s3, s3, s%d" % S_KX)
        self("v_mov_b32 v%d, s3" % (vt + 1))
        self("v_mov_b32 v%d, s%d" % (vt + 2, off_sgpr))
        self.exec_set("1")
        line = "global_store_dwordx2 v%d, %s, s[%d:%d]" % (vt + 2, vr(vt, 2), base_pair, base_pair + 1)
        if device: self(line + " sc0 sc1")
        else: self.handoff_stores([line], record=False)
        self.exec_restore()
    def pair_bad(self, w0, w1, lo, span, t, acc=None):
        self("v_subrev_u32 v%d, s%d, v%d" % (t, lo, w0))
        self("v_cmp_lt_u32 vcc, %d, v%d" % (span, t))
        self("v_xor_b32 v%d, v%d, v%d" % (t, w0, w1))
        self("v_cmp_ne_u32 s[%d:%d], s%d, v%d" % (S_M2, S_M2 + 1, S_KX, t))
        self("s_or_b64 s[%d:%d], vcc, s[%d:%d]" % (S_M2, S_M2 + 1, S_M2, S_M2 + 1))
    def poll_pairs(self, base_pair, voff, lo, span, vt, npair=1):
        L = self.label("L_poll")
        self("s_add_u32 s%d, s%d, %d" % (S_T0 + 5, S_TAG, lo))
        self("s_mov_b32 s%d, %d" % (S_TMO, TIMEOUT))
        self("%s:" % L)
        if npair == 1:
            self("global_load_dwordx2 %s, v%d, s[%d:%d] sc1" % (vr(vt, 2), voff, base_pair, base_pair + 1))
        else:
            for k in range(npair // 2):
                self("global_load_dwordx4 %s, v%d, s[%d:%d] offset:%d sc1" % (vr(vt + 4 * k, 4), voff, base_pair, base_pair + 1, 16 * k))
        self("s_sub_u32 s%d, s%d, 1" % (S_TMO, S_TMO))
        self("s_cmp_eq_u32 s%d, 0" % S_TMO)
        self("s_cbranch_scc1 L_abort")
        self("s_waitcnt vmcnt(0)")
        for k in range(npair):
            self.pair_bad(vt + 2 * k, vt + 2 * k + 1, S_T0 + 5, span, vt + 2 * npair)
            self("s_cbranch_scc1 %s" % L)

    def barrier_arrive(self, phase, drain=True, wave=0):
        if drain: self.wait_all()
        self("s_barrier")
        L = self.if_wave(wave)
        self("s_lshl_b32 s%d, s%d, 3" % (S_T0, S_J))
        self.flag_store(S_LFLAG, S_T0, phase, device=False)
        self.close(L)
    def pk_wait(self):
        L = self.if_wave(3)
        self.addr_pair(S_TMPP, P_WS, WS_PKFLAG)
        self("v_lshlrev_b32 v174, 5, v%d" % V_LANE)
        self.poll_pairs(S_TMPP, 174, 1, 0, 4, npair=4)
        self.stamp(40)
        self.close(L)
    def barrier_wait(self, phase, wave=0, vt=176):
        L = self.if_wave(wave)
        self("v_and_b32 v%d, 31, v%d" % (vt + 4, V_LANE))
        self("v_lshlrev_b32 v%d, 3, v%d" % (vt + 4, vt + 4))
        self.poll_pairs(S_LFLAG, vt + 4, phase, 7 - phase, vt)
        self.close(L)
        self("s_barrier")

    def prologue(self):
        self("s_cmp_ge_u32 s2, 256")
        self("s_cbranch_scc1 L_end")
        if self.o.get("dbgtime") or self.o.get("stamps"):
            self("s_memrealtime s[98:99]")
            self("s_memtime s[100:101]")
        self("s_load_dwordx16 s[16:31], s[0:1], 0")
        self("s_load_dwordx8 s[32:39], s[0:1], 64")
        self("s_and_b32 s%d, s2, 7" % S_G)
        self("s_lshr_b32 s%d, s2, 3" % S_J)
        self("v_lshrrev_b32 v4, 6, v0")
        self("v_readfirstlane_b32 s%d, v4" % S_W)
        self("v_and_b32 v%d, 63, v0" % V_LANE)
        self("v_and_b32 v%d, 15, v0" % V_L15)
        self("v_bfe_u32 v%d, v0, 4, 2" % V_G)
        self("s_getreg_b32 s%d, hwreg(HW_REG_XCC_ID, 0, 4)" % S_XCC)
        self("s_mov_b32 s%d, 0xffff0000" % S_MASK)
        self("s_lshr_b32 s%d, s%d, 3" % (S_RB, S_J))
        self("s_and_b32 s%d, s%d, 7" % (S_CS, S_J))
        self("s_lshr_b32 s%d, s%d, 4" % (S_RT, S_J))
        self("s_and_b32 s%d, s%d, 15" % (S_CT, S_J))
        self("s_mul_i32 s3, s%d, %d" % (S_CT, 11 * 4370))
        self("s_lshr_b32 s3, s3, 16")
        self("s_mul_i32 s%d, s%d, 6" % (S_UOFF, S_CT))
        self("s_add_u32 s%d, s%d, s3" % (S_UOFF, S_UOFF))
        self("s_mov_b32 s%d, 0" % S_MODE)
        self("s_waitcnt lgkmcnt(0)")
        wsb = self.o.get("wsbase", 0)
        if wsb:
            self("s_add_u32 s%d, s%d, 0x%x" % (P_WS, P_WS, wsb))
            self("s_addc_u32 s%d, s%d, 0" % (P_WS + 1, P_WS + 1))
        self("s_load_dword s%d, s[%d:%d], %d" % (S_TAG, P_WS, P_WS + 1, WS_EPOCH))
        self("s_mov_b32 s%d, 0x%x" % (S_KX, KX))
        self("s_lshl_b32 s3, s%d, 8" % S_G)
        self.addr_pair(S_LFLAG, P_WS, WS_LFLAG, 3)

    def repack_issue(self):
        L = self.if_wave(3)
        row, ch, off = 100, 101, 102
        self("v_lshrrev_b32 v%d, 3, v%d" % (row, V_LANE))
        self("v_and_b32 v%d, 7, v%d" % (ch, V_LANE))
        self("v_lshlrev_b32 v%d, 4, v%d" % (ch, ch))
        self("v_mul_u32_u24 v%d, 1280, v%d" % (103, row))
        self("v_add_u32 v%d, v%d, v%d" % (103, 103, ch))
        for k in range(3):
            Lk = None
            if k == 2:
                Lk = self.label("L_rp3")
                self("s_cmp_ge_u32 s2, 28")
                self("s_cbranch_scc1 %s" % Lk)
            a, b = S_T0, S_T0 + 1
            self("s_add_u32 s%d, s2, %d" % (S_T0 + 3, 256 * k))
            self("s_mul_hi_u32 s%d, s%d, %d" % (a, S_T0 + 3, (1 << 32) // 10 + 1))
            self("s_mul_i32 s%d, s%d, 10" % (b, a))
            self("s_sub_u32 s%d, s%d, s%d" % (b, S_T0 + 3, b))
            self("s_mul_i32 s3, s%d, %d" % (a, 32 * 1280))
            self("s_lshl_b32 s%d, s%d, 7" % (S_T0 + 2, b))
            self("s_add_u32 s3, s3, s%d" % (S_T0 + 2))
            self.addr_pair(S_TMPP, P_W2, 0, 3)
            self("s_mul_i32 s3, s%d, 40" % a)
            self("s_lshl_b32 s%d, s%d, 2" % (b, b))
            self("s_add_u32 s3, s3, s%d" % b)
            self("s_lshl_b32 s3, s3, 10")
            self("s_add_u32 s%d, s3, %d" % (74 + k, WS_W2P))
            self("v_mov_b32 v%d, v103" % off)
            for r in range(4):
                self("s_mov_b32 m0, %d" % (LDS_RP + 4096 * k + 1024 * r))
                if r: self("v_add_u32 v%d, %d, v%d" % (off, 8 * 1280, off))
                self("global_load_lds_dwordx4 v%d, s[%d:%d] %s" % (off, S_TMPP, S_TMPP + 1, self.o.get("nt_w", "nt")))
            if Lk: self("%s:" % Lk)
        self("s_lshl_b32 s3, s%d, 8" % S_G)
        self("s_lshl_b32 s%d, s%d, 6" % (S_T0, S_RB))
        self("s_add_u32 s3, s3, s%d" % S_T0)
        self("s_mul_i32 s3, s3, 1280")
        self("s_mul_i32 s%d, s%d, 160" % (S_T0, S_CS))
        self("s_add_u32 s3, s3, s%d" % S_T0)
        self.addr_pair(S_TMPP, P_Q, 0, 3)
        self("s_mov_b32 s%d, %d" % (S_T0, (1 << 32) // 10 + 1))
        for i in range(10):
            self("v_add_u32 v%d, %d, v%d" % (off, 64 * i, V_LANE))
            self("v_mul_hi_u32 v%d, v%d, s%d" % (row, off, S_T0))
            self("v_mul_u32_u24 v%d, 10, v%d" % (ch, row))
            self("v_sub_u32 v%d, v%d, v%d" % (ch, off, ch))
            self("v_mul_u32_u24 v%d, 1280, v%d" % (row, row))
            self("v_lshl_add_u32 v%d, v%d, 4, v%d" % (off, ch, row))
            self("s_mov_b32 m0, %d" % (LDS_Q + 1024 * i))
            self("global_load_lds_dwordx4 v%d, s[%d:%d]" % (off, S_TMPP, S_TMPP + 1))
        self.close(L)
    def repack_finish(self):
        a, sa = 100, 101
        self("s_waitcnt vmcnt(0)")
        self("v_bfe_u32 v%d, v%d, 2, 2" % (a, V_LANE))
        self("v_lshl_add_u32 v%d, v%d, 2, v%d" % (a, V_G, a))
        self("v_lshlrev_b32 v%d, 7, v%d" % (a, a))
        self("v_and_b32 v%d, 3, v%d" % (sa, V_LANE))
        self("v_lshl_add_u32 v%d, v%d, 3, v%d" % (a, sa, a))
        self("v_add_u32 v%d, %d, v%d" % (a, LDS_RP, a))
        for k in range(3):
            Lk = None
            if k == 2:
                Lk = self.label("L_rf3")
                self("s_cmp_ge_u32 s2, 28")
                self("s_cbranch_scc1 %s" % Lk)
            F = 104 + 16 * k
            for u in range(4):
                for h in range(2):
                    self("ds_read_b64_tr_b16 %s, v%d offset:%d" % (vr(F + 4 * u + 2 * h, 2), a, 4096 * k + h * 2048 + 32 * u))
            self("v_lshlrev_b32 v%d, 4, v%d" % (sa, V_LANE))
            self("v_add_u32 v%d, s%d, v%d" % (sa, 74 + k, sa))
            self("s_waitcnt lgkmcnt(0)")
            for u in range(4):
                self("global_store_dwordx4 v%d, %s, s[%d:%d] offset:%d sc0 sc1" % (sa, vr(F + 4 * u, 4), P_WS, P_WS + 1, 1024 * u))
            if Lk: self("%s:" % Lk)

    def prep_loads(self):
        KR, VR, TAP, RAW = 4, 34, 46, 66
        self.KR, self.VR, self.TAP, self.RAW = KR, VR, TAP, RAW
        c10, rp, off = 110, 111, 112
        self("v_and_b32 v%d, 7, v0" % c10)
        self("v_lshrrev_b32 v%d, 3, v0" % rp)
        self("s_lshl_b32 s3, s%d, 6" % S_J)
        self("s_sub_u32 s3, s3, 3")
        self("v_lshlrev_b32 v%d, 1, v%d" % (off, rp))
        self("v_add_u32 v%d, s3, v%d" % (off, off))
        self("s_movk_i32 s%d, 1280" % S_T0)
        self("v_mul_lo_u32 v%d, v%d, s%d" % (off, off, S_T0))
        self("s_mul_i32 s3, s%d, 160" % S_G)
        self("v_mul_u32_u24 v%d, 20, v%d" % (off + 1, c10))
        self("v_add3_u32 v%d, v%d, v%d, s3" % (off, off, off + 1))
        self.srd(SRD_A, P_K, 2621440)
        self.srd(SRD_B, P_V, 2621440)
        nk = self.o.get("nt_kv", "")
        offs = [off]
        for r in range(1, 5):
            self("v_add_u32 v%d, %d, v%d" % (off + 1 + r, 1280 * r, off))
            offs.append(off + 1 + r)
        for r in range(5):
            self.vm("buffer_load_dwordx4 %s, v%d, s[%d:%d], 0 offen %s" % (vr(KR + 6 * r, 4), offs[r], SRD_A, SRD_A + 3, nk), "k")
            self.vm("buffer_load_dword v%d, v%d, s[%d:%d], 0 offen offset:16 %s" % (KR + 6 * r + 4, offs[r], SRD_A, SRD_A + 3, nk), "k")
        for r in range(2):
            self.vm("buffer_load_dwordx4 %s, v%d, s[%d:%d], 0 offen %s" % (vr(VR + 6 * r, 4), offs[3 + r], SRD_B, SRD_B + 3, nk), "v")
            self.vm("buffer_load_dword v%d, v%d, s[%d:%d], 0 offen offset:16 %s" % (VR + 6 * r + 4, offs[3 + r], SRD_B, SRD_B + 3, nk), "v")
        t = off + 7
        self("s_mul_i32 s3, s%d, 640" % S_G)
        self("v_mul_u32_u24 v%d, 80, v%d" % (t, c10))
        self("v_add_u32 v%d, s3, v%d" % (t, t))
        for i in range(5):
            self.vm("global_load_dwordx4 %s, v%d, s[%d:%d] offset:%d" % (vr(TAP + 4 * i, 4), t, P_SK, P_SK + 1, 16 * i), "tap")
        self("s_lshl_b32 s3, s%d, 5" % S_W)
        self("s_add_u32 s3, s3, s%d" % S_J)
        self("s_cmp_lt_u32 s3, 80")
        self("s_cselect_b32 s%d, 1, 0" % S_HASCH)
        self("s_cselect_b32 s3, s3, 0")
        self("s_mul_i32 s%d, s%d, 80" % (S_CH, S_G))
        self("s_add_u32 s%d, s%d, s3" % (S_CH, S_CH))
        self("s_mul_i32 s%d, s%d, %d" % (S_SLOT, S_W, SLOT))
        self("s_cmp_lt_u32 s%d, 3" % S_W)
        self("s_cselect_b32 s%d, s%d, 0" % (S_SLOT, S_SLOT))
        self("s_lshl_b32 s3, s%d, 1" % S_CH)
        self("s_and_b32 s3, s3, 0xfffffffc")
        self("s_load_dword s%d, s[%d:%d], s3" % (S_DVAL, P_D, P_D + 1))
        self("s_lshl_b32 s3, s%d, 12" % S_CH)
        self.srd(52, P_SSM, 4096, add_sgpr=3)
        a = off + 10
        Lr = self.if_wave(3, eq=False)
        self("v_lshlrev_b32 v%d, 4, v%d" % (a, V_LANE))
        for r in range(4):
            self("v_add_u32 v%d, %d, v%d" % (a + 1, (1024 * r - 16) & 0xffffffff, a))
            self("buffer_load_dwordx4 %s, v%d, s[52:55], 0 offen %s" % (vr(RAW + 8 * r, 4), a + 1, self.o.get("nt_s", "")))
            self("buffer_load_dwordx4 %s, v%d, s[52:55], 0 offen offset:%d %s" % (vr(RAW + 8 * r + 4, 4), a, 1024 * r, self.o.get("nt_s", "")))
        self.close(Lr)
        La, Lb = self.label("L_pt"), self.label("L_ptd")
        self("s_cmp_ge_u32 s%d, 2" % S_W)
        self("s_cbranch_scc1 %s" % La)
        self("s_lshl_b32 s3, s%d, 6" % S_W)
        self("v_add_u32 v%d, s3, v%d" % (a, V_LANE))
        self("v_min_u32 v%d, 79, v%d" % (a, a))
        self("v_lshlrev_b32 v%d, 12, v%d" % (a, a))
        self("s_mul_i32 s3, s%d, %d" % (S_G, 80 * 4096))
        self("s_sub_u32 s%d, 31, s%d" % (S_T0, S_J))
        self("s_lshl_b32 s%d, s%d, 7" % (S_T0, S_T0))
        self("s_add_u32 s3, s3, s%d" % S_T0)
        self("s_add_u32 s3, s3, %d" % WS_UR)
        self("v_add_u32 v%d, s3, v%d" % (a, a))
        self("global_load_dword v%d, v%d, s[%d:%d]" % (a + 1, a, P_WS, P_WS + 1))
        self("s_branch %s" % Lb)
        self("%s:" % La)
        self("v_and_b32 v%d, 1, v%d" % (a, V_LANE))
        self("v_lshlrev_b32 v%d, 7, v%d" % (a, a))
        self("global_load_dword v%d, v%d, s[%d:%d]" % (a + 1, a, S_LFLAG, S_LFLAG + 1))
        self("%s:" % Lb)
        if self.o.get("codepf", 1):
            L = self.if_wave(1)
            self("s_getpc_b64 s[%d:%d]" % (S_TMPP, S_TMPP + 1))
            self("L_pcref:")
            self("s_sub_u32 s%d, s%d, (L_pcref - %s)" % (S_TMPP, S_TMPP, KNAME))
            self("s_subb_u32 s%d, s%d, 0" % (S_TMPP + 1, S_TMPP + 1))
            nl = self.o.get("codelines", 640)
            per = -(-nl // 32)
            self("s_mul_i32 s3, s%d, %d" % (S_J, per))
            self("v_add_u32 v%d, s3, v%d" % (a, V_LANE))
            self("v_min_u32 v%d, (L_end - %s) / 128, v%d" % (a, KNAME, a))
            self("v_lshlrev_b32 v%d, 7, v%d" % (a, a))
            self("s_mov_b64 s[%d:%d], exec" % (S_SAVE, S_SAVE + 1))
            self("s_bfm_b64 exec, %d, 0" % per)
            self("global_load_dword v%d, v%d, s[%d:%d]" % (a + 1, a, S_TMPP, S_TMPP + 1))
            self.exec_restore()
            self.close(L)
        self.repack_issue()
        self("s_waitcnt lgkmcnt(0)")
        self("s_add_u32 s%d, s%d, 0x%x" % (S_TAG, S_TAG, TAG0))
        L = self.if_wave(0)
        self("s_lshl_b32 s%d, s%d, 8" % (S_T0, S_G))
        self("s_lshl_b32 s%d, s%d, 3" % (S_T0 + 1, S_J))
        self("s_add_u32 s%d, s%d, s%d" % (S_T0, S_T0, S_T0 + 1))
        self("s_add_u32 s%d, s%d, %d" % (S_T0, S_T0, WS_XCCF))
        self.flag_store(P_WS, S_T0, "s%d" % S_XCC, device=True)
        self.close(L)

    def window_stores(self):
        a = 160
        self("s_lshl_b32 s3, s%d, 8" % S_G)
        self("s_lshl_b32 s%d, s%d, 6" % (S_T0, S_RB))
        self("s_add_u32 s3, s3, s%d" % S_T0)
        self("s_lshl_b32 s%d, s%d, 3" % (S_T0, S_CS))
        self("s_add_u32 s3, s3, s%d" % S_T0)
        self("v_and_b32 v%d, 7, v%d" % (a, V_LANE))
        self("v_add_u32 v%d, s3, v%d" % (a, a))
        self("v_lshlrev_b32 v%d, 7, v%d" % (a, a))
        self("v_bfe_u32 v%d, v%d, 3, 2" % (a + 1, V_LANE))
        self("v_mul_u32_u24 v%d, %d, v%d" % (a + 1, STAT_SZ, a + 1))
        self("v_add_u32 v%d, v%d, v%d" % (a, a, a + 1))
        self("v_add_u32 v%d, %d, v%d" % (a, WS_STAT, a))
        self("global_load_dword a0, v%d, s[%d:%d]" % (a, P_WS, P_WS + 1))
        if not self.o.get("prewrite", 0): return
        for i in range(4): self("v_mov_b32 v%d, -1" % (164 + i))
        self("s_mul_i32 s3, s%d, %d" % (S_G, 16 * 54 * 1024))
        self("s_mul_i32 s%d, s%d, %d" % (S_T0, S_J, 27 * 1024))
        self("s_add_u32 s3, s3, s%d" % S_T0)
        self("s_add_u32 s3, s3, %d" % WS_HF1)
        self("v_lshlrev_b32 v%d, 4, v%d" % (a, V_LANE))
        self("v_add_u32 v%d, s3, v%d" % (a, a))
        for i in range(27):
            if i and i % 4 == 0: self("v_add_u32 v%d, 4096, v%d" % (a, a))
            self("global_store_dwordx4 v%d, v[164:167], s[%d:%d] offset:%d sc0 sc1" % (a, P_WS, P_WS + 1, 1024 * (i % 4)))

    def prep_compute(self):
        KR, VR, TAP = self.KR, self.VR, self.TAP
        Kp, Tp, Vp = 124, 134, 142
        A0, A1, P0, P1, t0, t1 = 146, 148, 150, 152, 154, 155
        O0, O1 = 156, 157
        lad = 158
        self("v_and_b32 v%d, 7, v0" % lad)
        self("v_mul_u32_u24 v%d, %d, v%d" % (lad, 10 * T_STRIDE, lad))
        self("v_lshrrev_b32 v%d, 3, v0" % (lad + 1))
        self("v_lshlrev_b32 v%d, 2, v%d" % (lad + 1, lad + 1))
        self("v_sub_u32 v%d, v%d, v%d" % (lad, lad, lad + 1))
        self("v_add_u32 v%d, %d, v%d" % (lad, LDS_T + 124, lad))
        L3, Ld = self.label("L_w3"), self.label("L_w3d")
        self("s_cmp_eq_u32 s%d, 3" % S_W)
        self("s_cbranch_scc1 %s" % L3)
        self("s_waitcnt vmcnt(8)")
        self("s_branch %s" % Ld)
        self("%s:" % L3)
        self("s_waitcnt vmcnt(18)")
        self("%s:" % Ld)
        self.vmq = []
        self.stamp(39)
        pk = lambda op, d, a, b: self("v_pk_%s_f32 %s, %s, %s" % (op, vr(d, 2), vr(a, 2), vr(b, 2)))
        for i in range(5):
            for r in range(5): self.unpack(Kp + 2 * r, KR + 6 * r + i)
            for t in range(4):
                s0 = TAP + 4 * i + (t >> 1); s1 = s0 + 2
                if t & 1:
                    self("v_and_b32 v%d, s%d, v%d" % (Tp + 2 * t, S_MASK, s0))
                    self("v_and_b32 v%d, s%d, v%d" % (Tp + 2 * t + 1, S_MASK, s1))
                else:
                    self("v_lshlrev_b32 v%d, 16, v%d" % (Tp + 2 * t, s0))
                    self("v_lshlrev_b32 v%d, 16, v%d" % (Tp + 2 * t + 1, s1))
            for r in range(2): self.unpack(Vp + 2 * r, VR + 6 * r + i)
            pk("mul", A0, Kp + 0, Tp + 6); pk("mul", A1, Kp + 2, Tp + 6)
            self.rnd_pair(A0, t0); self.rnd_pair(A1, t1)
            for step in range(1, 4):
                T = Tp + 2 * (3 - step)
                pk("mul", P0, Kp + 2 * step, T); pk("mul", P1, Kp + 2 * (step + 1), T)
                self.rnd_pair(P0, t0); self.rnd_pair(P1, t1)
                pk("add", A0, A0, P0); pk("add", A1, A1, P1)
                self.rnd_pair(A0, t0); self.rnd_pair(A1, t1)
            pk("mul", A0, A0, Vp + 0); pk("mul", A1, A1, Vp + 2)
            self("v_cvt_pk_bf16_f32 v%d, v%d, v%d" % (O0, A1, A0))
            self("v_cvt_pk_bf16_f32 v%d, v%d, v%d" % (O1, A1 + 1, A0 + 1))
            self.lg("ds_write_b32 v%d, v%d offset:%d" % (lad, O0, (2 * i) * T_STRIDE), "tw")
            self.lg("ds_write_b32 v%d, v%d offset:%d" % (lad, O1, (2 * i + 1) * T_STRIDE), "tw")

    def mode_check(self, vt=176):
        L = self.if_wave(0)
        self("s_lshl_b32 s3, s%d, 8" % S_G)
        self.addr_pair(S_TMPP, P_WS, WS_XCCF, 3)
        self("v_and_b32 v%d, 31, v%d" % (vt + 4, V_LANE))
        self("v_lshlrev_b32 v%d, 3, v%d" % (vt + 4, vt + 4))
        self.poll_pairs(S_TMPP, vt + 4, 0, 7, vt)
        self("s_add_u32 s3, s%d, s%d" % (S_TAG, S_XCC))
        self("v_cmp_ne_u32 vcc, s3, v%d" % vt)
        self("s_nop 1")
        self("s_cmp_lg_u64 vcc, 0")
        self("s_cselect_b32 s%d, 1, 0" % S_MODE)
        if self.o.get("force_slow"): self("s_mov_b32 s%d, 1" % S_MODE)
        self("v_mov_b32 v%d, s%d" % (vt, S_MODE))
        self("v_mov_b32 v%d, %d" % (vt + 1, LDS_MODE))
        self("ds_write_b32 v%d, v%d" % (vt + 1, vt))
        self.close(L)
    def mode_fetch(self, vt=176):
        self("v_mov_b32 v%d, %d" % (vt + 1, LDS_MODE))
        self("ds_read_b32 v%d, v%d" % (vt, vt + 1))
        self("s_waitcnt lgkmcnt(0)")
        self("v_readfirstlane_b32 s%d, v%d" % (S_MODE, vt))
        self.lgq = []
        alias = self.o.get("alias", 1)
        self("s_mov_b32 s%d, %d" % (S_XO1, WS_UR if alias else WS_XF1))
        self("s_mov_b32 s%d, %d" % (S_XO3, WS_UR if alias else WS_XF3))
        self("s_mov_b32 s%d, %d" % (S_HO2, WS_HF1 if alias else WS_HF2))
        L = self.label("L_al")
        self("s_cmp_eq_u32 s%d, 0" % S_MODE)
        self("s_cbranch_scc1 %s" % L)
        self("s_mov_b32 s%d, %d" % (S_XO1, WS_XF1))
        self("s_mov_b32 s%d, %d" % (S_XO3, WS_XF3))
        self("s_mov_b32 s%d, %d" % (S_HO2, WS_HF2))
        self("%s:" % L)

    def stats_addr_items(self, va, vb):
        g = Gen()
        g("s_lshl_b32 s97, s%d, 8" % S_G)
        g("s_lshl_b32 s98, s%d, 6" % S_RB) if False else None
        g("s_lshl_b32 s100, s%d, 6" % S_RB)
        g("s_add_u32 s97, s97, s100")
        g("s_lshl_b32 s100, s%d, 4" % S_W)
        g("s_add_u32 s97, s97, s100")
        g("v_add_u32 v%d, s97, v%d" % (vb, V_L15))
        g("v_lshlrev_b32 v%d, 7, v%d" % (vb, vb))
        g("s_lshl_b32 s100, s%d, 4" % S_CS)
        g("v_add_u32 v%d, s100, v%d" % (va, vb))
        g("v_lshl_add_u32 v%d, v%d, 5, v%d" % (vb, V_G, vb))
        return [i.text.strip() for i in g.ins]
    def tile_stats(self, xf, buf, tmp, va=None):
        s, t = tmp, tmp + 4
        d = tmp + 6
        m2 = tmp + 26
        pk = lambda op, dd, a, b: self("v_pk_%s_f32 %s, %s, %s" % (op, vr(dd, 2), vr(a, 2), vr(b, 2)))
        pk("add", s, xf, xf + 2); pk("add", s + 2, xf + 4, xf + 6)
        for i in range(4, 10, 2):
            pk("add", s, s, xf + 2 * i); pk("add", s + 2, s + 2, xf + 2 * i + 2)
        pk("add", s, s, s + 2)
        self("v_add_f32 v%d, v%d, v%d" % (s, s, s + 1))
        self.xg_sum(s, t)
        self("v_mul_f32 v%d, 0x3c4ccccd, v%d" % (s, s))
        for i in range(10):
            self("v_pk_add_f32 %s, %s, %s op_sel_hi:[1,0] neg_lo:[0,1] neg_hi:[0,1]" % (vr(d + 2 * i, 2), vr(xf + 2 * i, 2), vr(s, 2)))
        pk("mul", m2, d, d); pk("mul", s + 2, d + 2, d + 2)
        for i in range(2, 10, 2):
            self("v_pk_fma_f32 %s, %s, %s, %s" % (vr(m2, 2), vr(d + 2 * i, 2), vr(d + 2 * i, 2), vr(m2, 2)))
            self("v_pk_fma_f32 %s, %s, %s, %s" % (vr(s + 2, 2), vr(d + 2 * i + 2, 2), vr(d + 2 * i + 2, 2), vr(s + 2, 2)))
        pk("add", m2, m2, s + 2)
        self("v_add_f32 v%d, v%d, v%d" % (s + 1, m2, m2 + 1))
        self("s_add_u32 s3, s%d, %d" % (S_TAG, buf))
        self("v_mov_b32 v%d, s3" % (s + 2))
        self.xg_sum(s + 1, t)
        self("s_xor_b32 s3, s3, s%d" % S_KX)
        self("v_mov_b32 v%d, s3" % (s + 3))
        if va is None:
            for l in self.stats_addr_items(t, t + 1): self(l)
            va = t
        self.addr_pair(S_TMPP, P_WS, WS_STAT + buf * STAT_SZ)
        self.exec_set("0xffff")
        self.handoff_stores(["global_store_dwordx4 v%d, %s, s[%d:%d]" % (va, vr(s, 4), S_TMPP, S_TMPP + 1)], "stat")
        self.exec_restore()
    def row_stats_issue(self, buf, tmp, vb=None):
        a = tmp + 8
        if vb is not None:
            self("v_add_u32 v%d, %d, v%d" % (a, WS_STAT + buf * STAT_SZ, vb))
        else:
            self.rowbase()
            self("s_lshl_b32 s3, s3, 7")
            self("s_add_u32 s3, s3, %d" % (WS_STAT + buf * STAT_SZ))
            self("v_lshlrev_b32 v%d, 7, v%d" % (a, V_L15))
            self("v_lshl_add_u32 v%d, v%d, 5, v%d" % (a, V_G, a))
            self("v_add_u32 v%d, s3, v%d" % (a, a))
        for k in range(2):
            self.vm("global_load_dwordx4 %s, v%d, s[%d:%d] offset:%d sc1" % (vr(tmp + 4 * k, 4), a, P_WS, P_WS + 1, 16 * k), "rs")
    def row_stats_validate(self, buf, tmp):
        Lr, Lo = self.label("L_rsr"), self.label("L_rso")
        self("s_add_u32 s%d, s%d, %d" % (S_T0 + 5, S_TAG, buf))
        self("s_mov_b32 s%d, %d" % (S_TMO, TIMEOUT))
        self("%s:" % Lr)
        self.pair_bad(tmp + 2, tmp + 3, S_T0 + 5, 0, tmp + 9)
        self("s_mov_b64 s[%d:%d], s[%d:%d]" % (S_TMPQ, S_TMPQ + 1, S_M2, S_M2 + 1))
        self.pair_bad(tmp + 6, tmp + 7, S_T0 + 5, 0, tmp + 9)
        self("s_or_b64 s[%d:%d], s[%d:%d], s[%d:%d]" % (S_M2, S_M2 + 1, S_M2, S_M2 + 1, S_TMPQ, S_TMPQ + 1))
        self("s_cbranch_scc0 %s" % Lo)
        self("s_sub_u32 s%d, s%d, 1" % (S_TMO, S_TMO))
        self("s_cmp_eq_u32 s%d, 0" % S_TMO)
        self("s_cbranch_scc1 L_abort")
        for k in range(2):
            self("global_load_dwordx4 %s, v%d, s[%d:%d] offset:%d sc1" % (vr(tmp + 4 * k, 4), tmp + 8, P_WS, P_WS + 1, 16 * k))
        self("s_waitcnt vmcnt(0)")
        self("s_branch %s" % Lr)
        self("%s:" % Lo)
        self("v_mov_b32 v%d, v%d" % (tmp + 2, tmp + 4))
        self("v_mov_b32 v%d, v%d" % (tmp + 3, tmp + 5))
    def row_stats_finish_items(self, tmp, out_m, out_rs):
        m0, q0, m1, q1 = tmp, tmp + 1, tmp + 2, tmp + 3
        s, t = tmp + 4, tmp + 5
        g = Gen()
        def xs(r):
            g("v_mov_b32 v%d, v%d" % (t, r)); g("v_permlane16_swap_b32 v%d, v%d" % (r, t)); g("v_add_f32 v%d, v%d, v%d" % (r, r, t))
            g("v_mov_b32 v%d, v%d" % (t, r)); g("v_permlane32_swap_b32 v%d, v%d" % (r, t)); g("v_add_f32 v%d, v%d, v%d" % (r, r, t))
        def r1(r):
            g("v_cvt_pk_bf16_f32 v%d, v%d, v%d" % (t, r, r)); g("v_lshlrev_b32 v%d, 16, v%d" % (r, t))
        g("v_add_f32 v%d, v%d, v%d" % (s, m0, m1)); xs(s)
        g("v_mul_f32 v%d, 0x3e000000, v%d" % (s, s))
        g("v_sub_f32 v%d, v%d, v%d" % (m0, m0, s)); g("v_sub_f32 v%d, v%d, v%d" % (m1, m1, s))
        g("v_mul_f32 v%d, v%d, v%d" % (m0, m0, m0)); g("v_fmac_f32 v%d, v%d, v%d" % (m0, m1, m1))
        g("v_add_f32 v%d, v%d, v%d" % (q0, q0, q1))
        g("v_mov_b32 v%d, 0x42a00000" % t); g("v_fmac_f32 v%d, v%d, v%d" % (q0, m0, t)); xs(q0)
        g("v_mul_f32 v%d, 0x3acccccd, v%d" % (q0, q0)); r1(q0)
        g("v_add_f32 v%d, 0x3727c5ac, v%d" % (q0, q0)); r1(q0)
        g("v_sqrt_f32 v%d, v%d" % (q0, q0)); g("s_nop 0"); r1(q0)
        g("v_rcp_f32 v%d, v%d" % (out_rs, q0)); r1(s)
        g("v_mov_b32 v%d, v%d" % (out_m, s))
        return [i.text.strip() for i in g.ins]
    def row_stats_finish(self, tmp, out_m, out_rs):
        for l in self.row_stats_finish_items(tmp, out_m, out_rs): self(l)

    def prep_store_ur(self):
        L3 = self.if_wave(3, eq=False)
        a, b = 100, 101
        self("v_lshrrev_b32 v%d, 3, v0" % a)
        self("v_and_b32 v%d, 7, v0" % b)
        self("v_lshlrev_b32 v%d, 4, v%d" % (b, b))
        self("v_mul_u32_u24 v%d, %d, v%d" % (102, T_STRIDE, a))
        self("v_add3_u32 v%d, v%d, v%d, 0" % (102, 102, b))
        self("v_add_u32 v%d, %d, v%d" % (102, LDS_T, 102))
        self("s_mul_i32 s3, s%d, %d" % (S_G, 80 * 4096))
        self("s_sub_u32 s%d, 31, s%d" % (S_T0, S_J))
        self("s_lshl_b32 s%d, s%d, 7" % (S_T0, S_T0))
        self("s_add_u32 s3, s3, s%d" % S_T0)
        self("s_add_u32 s3, s3, %d" % WS_UR)
        self("v_lshlrev_b32 v%d, 12, v%d" % (103, a))
        self("v_add3_u32 v%d, v%d, v%d, s3" % (103, 103, b))
        for r in range(3):
            self("ds_read_b128 %s, v102 offset:%d" % (vr(104 + 4 * r, 4), 24 * T_STRIDE * r))
        L = self.if_wave(0)
        self("ds_read_b128 v[116:119], v102 offset:%d" % (24 * T_STRIDE * 3))
        self.close(L)
        self("v_add_u32 v120, %d, v103" % (24 * 4096))
        self("v_add_u32 v121, %d, v103" % (48 * 4096))
        self("v_add_u32 v122, %d, v103" % (72 * 4096))
        self("s_waitcnt lgkmcnt(0)")
        p = "s[%d:%d]" % (P_WS, P_WS + 1)
        self.handoff_stores(["global_store_dwordx4 v103, v[104:107], " + p, "global_store_dwordx4 v120, v[108:111], " + p,
                             "global_store_dwordx4 v121, v[112:115], " + p], record=False)
        L = self.if_wave(0)
        self.handoff_stores(["global_store_dwordx4 v122, v[116:119], " + p], record=False)
        self.close(L)
        self("s_waitcnt vmcnt(0)")
        self.close(L3)
        self.lgq = []; self.vmq = []

    def build_kcopies(self):
        RAW = self.RAW
        SETS = [(110, 116, 122), (134, 140, 146)]
        ad, z = 128, 130
        L = self.label("L_kc")
        self("s_cmp_eq_u32 s%d, 0" % S_HASCH)
        self("s_cbranch_scc1 %s" % L)
        self("v_lshlrev_b32 v%d, 4, v%d" % (ad, V_LANE))
        self("s_add_u32 s3, s%d, 16" % S_SLOT)
        self("v_add_u32 v%d, s3, v%d" % (ad, ad))
        for r in range(4):
            R = RAW + 8 * r
            A, B, C = SETS[r & 1]
            if r >= 2: self("s_waitcnt lgkmcnt(8)")
            for i in range(6):
                self("v_alignbit_b32 v%d, v%d, v%d, 16" % (A + i, R + i + 1, R + i))
            for i in range(6):
                self("v_alignbit_b32 v%d, v%d, v%d, 16" % (B + i, R + i + 2, R + i + 1))
            for i in range(6):
                self("v_mov_b32 v%d, v%d" % (C + i, R + i + 1))
            src = {0: A, 1: C, 2: B, 3: R + 2, 4: A + 2, 5: C + 2, 6: B + 2, 7: R + 4}
            for c in range(8):
                self("ds_write_b128 v%d, %s offset:%d" % (ad, vr(src[c], 4), c * KC_STRIDE + 1024 * r))
        for i in range(4): self("v_mov_b32 v%d, 0" % (z + i))
        self("v_mul_u32_u24 v%d, %d, v%d" % (ad + 1, KC_STRIDE, V_LANE))
        self("v_add_u32 v%d, s%d, v%d" % (ad + 1, S_SLOT, ad + 1))
        self.exec_set("0xff")
        self("ds_write_b128 v%d, %s" % (ad + 1, vr(z, 4)))
        self("s_mov_b64 exec, 0x3fffffff")
        self("v_lshlrev_b32 v%d, 4, v%d" % (ad + 1, V_LANE))
        self("s_add_u32 s3, s%d, %d" % (S_SLOT, U_OFF + 4096))
        self("v_add_u32 v%d, s3, v%d" % (ad + 1, ad + 1))
        self("ds_write_b128 v%d, %s" % (ad + 1, vr(z, 4)))
        self.exec_restore()
        self("%s:" % L)
        self("s_waitcnt lgkmcnt(0)")
        self.lgq = []

    def conv(self):
        Lskip = self.label("L_conv_skip"); Ldone = self.label("L_conv_done")
        self("s_cmp_eq_u32 s%d, 0" % S_HASCH)
        self("s_cbranch_scc1 %s" % Lskip)
        self("s_lshl_b32 s3, s%d, 12" % S_CH)
        self.addr_pair(S_TMPP, P_WS, WS_UR, 3)
        a = 164
        self("v_lshlrev_b32 v%d, 4, v%d" % (a, V_LANE))
        for r in range(4):
            self("s_add_u32 m0, s%d, %d" % (S_SLOT, U_OFF + 1024 * r))
            self("v_add_u32 v%d, %d, v%d" % (a + 1, 1024 * r, a))
            self.vm("global_load_lds_dwordx4 v%d, s[%d:%d]" % (a + 1, S_TMPP, S_TMPP + 1), "u")
        self("s_and_b32 s3, s%d, 1" % S_CH)
        self("s_lshl_b32 s%d, s%d, 16" % (S_T0, S_DVAL))
        self("s_and_b32 s%d, s%d, 0xffff0000" % (S_DVAL, S_DVAL))
        self("s_cmp_eq_u32 s3, 0")
        self("s_cselect_b32 s%d, s%d, s%d" % (S_DVAL, S_T0, S_DVAL))
        vA, vB = 166, 167
        self("v_and_b32 v%d, 7, v%d" % (vA, V_L15))
        self("v_mul_u32_u24 v%d, %d, v%d" % (vA, KC_STRIDE, vA))
        self("v_lshrrev_b32 v%d, 3, v%d" % (168, V_L15))
        self("v_add_u32 v%d, v%d, v%d" % (168, 168, V_G))
        self("v_lshl_add_u32 v%d, v%d, 4, v%d" % (vA, 168, vA))
        self("v_add_u32 v%d, s%d, v%d" % (vA, S_SLOT, vA))
        self("v_lshlrev_b32 v%d, 5, v%d" % (vB, V_L15))
        self("v_lshlrev_b32 v%d, 4, v%d" % (168, V_G))
        self("v_sub_u32 v%d, v%d, v%d" % (vB, 168, vB))
        self("s_add_u32 s3, s%d, %d" % (S_SLOT, U_OFF + 4064 - 3584))
        self("v_add_u32 v%d, s3, v%d" % (vB, vB))
        ACC = 4; FA = [36, 100]; FB = [68, 132]
        def loadsA(tau, buf):
            return [("lg", "ds_read_b128 %s, v%d offset:%d" % (vr(FA[buf] + 4 * i, 4), vA, 64 * tau + 512 * i), "cA") for i in range(8)]
        def loadsB(tau, buf):
            return [("lg", "ds_read_b128 %s, v%d offset:%d" % (vr(FB[buf] + 4 * i, 4), vB, 3584 - 512 * i + 64 * tau), "cB") for i in range(8)]
        self.bg_add(loadsA(0, 0)); self.bg_flush()
        ua, sa = 168, 169
        self("v_lshlrev_b32 v%d, 5, v%d" % (sa, V_L15))
        self("v_lshl_add_u32 v%d, v%d, 3, v%d" % (sa, V_G, sa))
        self("s_add_u32 s3, s%d, %d" % (S_SLOT, U_OFF + 4088 - 3584))
        self("v_sub_u32 v%d, s3, v%d" % (ua, sa))
        self("s_lshl_b32 s3, s%d, 12" % S_CH)
        self("s_add_u32 s3, s3, %d" % WS_YT)
        self("v_and_b32 v%d, 1, v%d" % (170, V_G))
        self("v_lshlrev_b32 v%d, 9, v%d" % (170, 170))
        self("v_lshrrev_b32 v%d, 1, v%d" % (171, V_G))
        self("v_lshl_add_u32 v%d, v%d, 4, v%d" % (170, 171, 170))
        self("v_lshl_add_u32 v%d, v%d, 5, v%d" % (sa, V_L15, 170))
        self("v_add_u32 v%d, s3, v%d" % (sa, sa))
        self("v_mov_b32 v170, s%d" % S_DVAL)
        self("v_lshlrev_b32 v171, 4, v%d" % V_LANE)
        if self.o.get("prewrite", 0):
            self("s_lshl_b32 s3, s%d, 12" % S_CH)
            self("s_add_u32 s3, s3, %d" % WS_YT)
            self("v_add_u32 v172, s3, v171")
            for i in range(4): self("v_mov_b32 v%d, 0" % (4 + i))
            for i in range(4):
                self.vm("global_store_dwordx4 v172, v[4:7], s[%d:%d] offset:%d sc0 sc1" % (P_WS, P_WS + 1, 1024 * i), "ypw")
        self.vm_wait("u")
        self.stamp(7)
        self.bg_add(loadsB(0, 0)); self.bg_flush()
        for tau in range(8):
            buf = tau & 1
            self.lg_wait_all()
            if tau < 7:
                la, lb = loadsA(tau + 1, buf ^ 1), loadsB(tau + 1, buf ^ 1)
                for x, y in zip(la, lb): self.bg_add([x, y])

            pairs = sorted([(i, be - i) for be in range(8) for i in range(be + 1)])
            first = set()
            for kk, (i, m) in enumerate(pairs):
                be = i + m
                c = vr(ACC + 4 * be, 4) if (tau > 0 or be in first) else "0"
                first.add(be)
                self("v_mfma_f32_16x16x32_bf16 %s, %s, %s, %s" % (vr(ACC + 4 * be, 4), vr(FA[buf] + 4 * i, 4), vr(FB[buf] + 4 * m, 4), c))
                self.bg_step(1)
            self.bg_flush()
        self.stamp(8)
        UQ = 36
        for b in range(8):
            self.lg("ds_read_b64 %s, v%d offset:%d" % (vr(UQ + 2 * b, 2), ua, 3584 - 512 * b), "uq")
        self.lg_wait_all()
        U, t, O = 56, 60, 64
        for b in range(8):
            d0, d1 = UQ + 2 * b, UQ + 2 * b + 1
            A = ACC + 4 * b
            self("v_and_b32 v%d, s%d, v%d" % (U + 0, S_MASK, d1))
            self("v_lshlrev_b32 v%d, 16, v%d" % (U + 1, d1))
            self("v_and_b32 v%d, s%d, v%d" % (U + 2, S_MASK, d0))
            self("v_lshlrev_b32 v%d, 16, v%d" % (U + 3, d0))
            self("v_pk_mul_f32 %s, %s, v[170:171] op_sel_hi:[1,0]" % (vr(U, 2), vr(U, 2)))
            self("v_pk_mul_f32 %s, %s, v[170:171] op_sel_hi:[1,0]" % (vr(U + 2, 2), vr(U + 2, 2)))
            self.rnd_pair(U, t); self.rnd_pair(U + 2, t + 1)
            self.rnd_pair(A, t); self.rnd_pair(A + 2, t + 1)
            self("v_pk_add_f32 %s, %s, %s" % (vr(A, 2), vr(A, 2), vr(U, 2)))
            self("v_pk_add_f32 %s, %s, %s" % (vr(A + 2, 2), vr(A + 2, 2), vr(U + 2, 2)))
            o = O + 2 * b
            self("v_cvt_pk_bf16_f32 v%d, v%d, v%d" % (o, A, A + 1))
            self("v_cvt_pk_bf16_f32 v%d, v%d, v%d" % (o + 1, A + 2, A + 3))
            if b & 1:
                self("v_permlane16_swap_b32 v%d, v%d" % (o - 2, o))
                self("v_permlane16_swap_b32 v%d, v%d" % (o - 1, o + 1))
                self("global_store_dwordx4 v%d, %s, s[%d:%d] offset:%d sc0 sc1" % (sa, vr(o - 2, 4), P_WS, P_WS + 1, 512 * (b - 1)))
        self("s_branch %s" % Ldone)
        self("%s:" % Lskip)
        L2 = self.if_wave(3)
        self.repack_finish()
        self("s_waitcnt vmcnt(0)")
        self("s_lshl_b32 s%d, s%d, 8" % (S_T0, S_G))
        self("s_lshl_b32 s%d, s%d, 3" % (S_T0 + 1, S_J))
        self("s_add_u32 s%d, s%d, s%d" % (S_T0, S_T0, S_T0 + 1))
        self("s_add_u32 s%d, s%d, %d" % (S_T0, S_T0, WS_PKFLAG))
        self.flag_store(P_WS, S_T0, 1, device=True)
        self.stamp(42)
        self.window_stores()
        if self.o.get("st_pw"):
            self("s_waitcnt vmcnt(0)")
            self.stamp(43)
        npf = self.o.get("w1pf", 9)
        if npf:
            self.srd(SRD_A, P_W1, 640 * 3456)
            self("s_mul_i32 s3, s%d, 69120" % S_J)
            self("v_lshlrev_b32 v160, 7, v%d" % V_LANE)
            self("v_add_u32 v160, s3, v160")
            for i in range(npf):
                if i == 8: self.exec_set("0xfffffff")
                self("buffer_load_dword a0, v160, s[%d:%d], 0 offen" % (SRD_A, SRD_A + 3))
                if i < 8: self("v_add_u32 v160, 8192, v160")
            if npf == 9: self.exec_restore()
        if self.o.get("st_pw"):
            self("s_waitcnt vmcnt(0)")
            self.stamp(44)
        self.close(L2)
        self("%s:" % Ldone)
        self.vmq = []; self.lgq = []

    def weights_prefetch(self):
        a, d = 174, 190
        self.addr_pair(S_TMPP, P_WS, WS_PKFLAG)
        self("v_lshlrev_b32 v%d, 5, v%d" % (a, V_LANE))
        self.poll_pairs(S_TMPP, a, 1, 0, 176 + 0, npair=4) if False else None
        self.poll_pairs(S_TMPP, a, 1, 0, 4, npair=4)
        self.stamp(40)
        for base in (WS_W1P, WS_W2P):
            self.srd(SRD_A, P_WS, WP_SZ, const=base)
            self("s_mul_i32 s3, s%d, 69120" % S_J)
            self("v_lshlrev_b32 v%d, 7, v%d" % (a, V_LANE))
            self("v_add_u32 v%d, s3, v%d" % (a, a))
            for i in range(9):
                if i == 8: self.exec_set("0xfffffff")
                self("buffer_load_dword v%d, v%d, s[%d:%d], 0 offen" % (d, a, SRD_A, SRD_A + 3))
                if i < 8: self("v_add_u32 v%d, 8192, v%d" % (a, a))
            self.exec_restore()

    def w1_dma(self, its):
        self.srd(SRD_B, P_W1, 640 * 3456)
        c, row, cc, off = 160, 161, 162, 163
        self("s_lshl_b32 s3, s%d, 6" % S_W)
        self("s_add_u32 s3, s3, %d" % (192 * its[0]))
        self("v_add_u32 v%d, s3, v%d" % (c, V_LANE))
        self("s_mov_b32 s%d, %d" % (S_T0, (1 << 32) // 14 + 1))
        self("s_lshl_b32 s%d, s%d, 5" % (S_T0 + 1, S_UOFF))
        self("s_movk_i32 s%d, 3456" % (S_T0 + 2))
        self("s_lshl_b32 s%d, s%d, 10" % (S_T0 + 3, S_W))
        for it in its:
            L = None
            if it == 46:
                L = self.label("L_w1l")
                self("s_cmp_eq_u32 s%d, 2" % S_W)
                self("s_cbranch_scc1 %s" % L)
            self("v_mul_hi_u32 v%d, v%d, s%d" % (row, c, S_T0))
            self("v_mul_u32_u24 v%d, 14, v%d" % (cc, row))
            self("v_sub_u32 v%d, v%d, v%d" % (cc, c, cc))
            self("v_mul_lo_u32 v%d, v%d, s%d" % (off, row, S_T0 + 2))
            self("v_lshl_add_u32 v%d, v%d, 4, v%d" % (off, cc, off))
            self("s_add_u32 m0, s%d, %d" % (S_T0 + 3, LDS_W1 + 3072 * it))
            self("v_add_u32 v%d, 192, v%d" % (c, c))
            self("buffer_load_dwordx4 v%d, s[%d:%d], s%d offen lds" % (off, SRD_B, SRD_B + 3, S_T0 + 1))
            if L: self("%s:" % L)
    W1OFF = 174
    def w1_stage_setup(self):
        self.srd(SRD_B, P_W1, 640 * 3456)
        c, row, cc = 181, 182, 183
        self("s_lshl_b32 s3, s%d, 6" % S_W)
        self("v_add_u32 v%d, s3, v%d" % (c, V_LANE))
        self("s_mov_b32 s%d, %d" % (S_T0, (1 << 32) // 14 + 1))
        self("s_movk_i32 s%d, 3456" % (S_T0 + 2))
        for r in range(7):
            o = self.W1OFF + r
            self("v_mul_hi_u32 v%d, v%d, s%d" % (row, c, S_T0))
            self("v_mul_u32_u24 v%d, 14, v%d" % (cc, row))
            self("v_sub_u32 v%d, v%d, v%d" % (cc, c, cc))
            self("v_mul_lo_u32 v%d, v%d, s%d" % (o, row, S_T0 + 2))
            self("v_lshl_add_u32 v%d, v%d, 4, v%d" % (o, cc, o))
            self("v_add_u32 v%d, 256, v%d" % (c, c))
        self("s_lshl_b32 s62, s%d, 5" % S_UOFF)
    def w1_stage_items(self, it0, it1):
        items = []
        for it in range(it0, it1):
            q, r = divmod(it, 7)
            if r == 0 or it == it0:
                items.append("s_add_u32 s61, s62, %d" % (q * 128 * 3456))
            items.append(("vm", "buffer_load_dwordx4 %s, v%d, s[%d:%d], s61 offen" % (ar(4 * it, 4), self.W1OFF + r, SRD_B, SRD_B + 3), "w1"))
        return items
    def w1_stage_to_lds(self):
        b = 160
        self("v_lshlrev_b32 v%d, 4, v%d" % (b, V_LANE))
        self("s_lshl_b32 s3, s%d, 10" % S_W)
        self("v_add_u32 v%d, s3, v%d" % (b, b))
        self("v_add_u32 v%d, 65536, v%d" % (b + 1, b))
        self("v_add_u32 v%d, 131072, v%d" % (b + 2, b))
        for it in range(35):
            o = 4096 * it
            self.lg("ds_write_b128 v%d, %s offset:%d" % (b + o // 65536, ar(4 * it, 4), o % 65536), "w1w")
    def w2_setup(self):
        self.srd(SRD_W2, P_WS, WP_SZ, const=WS_W2P)
        self("s_mul_i32 s3, s%d, %d" % (S_W, 14 * 40))
        self("s_mul_i32 s%d, s%d, 5" % (S_T0, S_CS))
        self("s_add_u32 s3, s3, s%d" % S_T0)
        self("s_lshl_b32 s%d, s3, 10" % S_W2B)
    def w2_items(self, f0, f1, vlane16):
        it = []
        last = None
        for f in range(f0, f1):
            s, i = divmod(f, 5)
            key = (s, i == 4)
            if key != last:
                it.append("s_add_u32 s61, s%d, %d" % (S_W2B, s * 40 * 1024 + (4096 if i == 4 else 0)))
                last = key
            it.append(("vm", "buffer_load_dwordx4 %s, v%d, s[%d:%d], s61 offen offset:%d" % (w2reg(f), vlane16, SRD_W2, SRD_W2 + 3, 0 if i == 4 else 1024 * i), "w2"))
        return it

    def post_conv(self):
        QN = V_CS
        self("v_lshlrev_b32 v160, 4, v%d" % V_L15)
        self("s_lshl_b32 s3, s%d, 4" % S_W)
        self("v_add_u32 v160, s3, v%d" % V_L15)
        self("v_mul_u32_u24 v160, 160, v160")
        self("v_lshl_add_u32 v160, v%d, 3, v160" % V_G)
        self("v_add_u32 v160, %d, v160" % LDS_Q)
        for u in range(5):
            self.lg("ds_read_b64 %s, v160 offset:%d" % (vr(V_X + 2 * u, 2), 32 * u), "q")
        self.lg_wait_all()
        self.unpack_tile(124, V_X)
        self.tile_stats(124, 0, 144)
        self("s_waitcnt lgkmcnt(0)")
        L = self.if_wave(3, eq=False)
        self("s_waitcnt vmcnt(0)")
        self.close(L)
        self.vmq = []; self.lgq = []
        self("s_barrier")
        self.stamp(10)
        L = self.if_wave(3)
        self("s_lshl_b32 s%d, s%d, 8" % (S_T0, S_G))
        self("s_lshl_b32 s%d, s%d, 3" % (S_T0 + 1, S_J))
        self("s_add_u32 s%d, s%d, s%d" % (S_T0, S_T0, S_T0 + 1))
        self("s_add_u32 s%d, s%d, %d" % (S_T0, S_T0, WS_YFLAG))
        self.flag_store(P_WS, S_T0, 1, device=True)
        self.close(L)
        self.row_stats_issue(0, 60)
        c1, c2 = self.o.get("w1c1", 47), self.o.get("w1c2", 47)
        L = self.if_wave(3, eq=False)
        self.w1_dma(list(range(0, c1)))
        self.close(L)
        self.stamp(11)
        La, Lb = self.label("L_qa"), self.label("L_qb")
        self("s_cmp_eq_u32 s%d, 3" % S_W)
        self("s_cbranch_scc1 %s" % La)
        self("s_waitcnt vmcnt(%d)" % min(c1, 46))
        self("s_branch %s" % Lb)
        self("%s:" % La)
        self("s_waitcnt vmcnt(0)")
        self("%s:" % Lb)
        self.vmq = []
        self.row_stats_validate(0, 60)
        self.row_stats_finish(60, 24, 26)
        XF, d, t = 4, 28, 30
        self.unpack_tile(XF, V_X)
        for i in range(10):
            self("v_pk_add_f32 %s, %s, v[24:25] op_sel_hi:[1,0] neg_lo:[0,1] neg_hi:[0,1]" % (vr(d, 2), vr(XF + 2 * i, 2)))
            self.rnd_pair(d, t)
            self("v_pk_mul_f32 %s, %s, v[26:27] op_sel_hi:[1,0]" % (vr(d, 2), vr(d, 2)))
            self("v_cvt_pk_bf16_f32 v%d, v%d, v%d" % (QN + i, d, d + 1))
        Ly = self.if_wave(3)
        self.addr_pair(S_TMPP, P_WS, WS_PKFLAG)
        self("v_lshlrev_b32 v159, 5, v%d" % V_LANE)
        self.poll_pairs(S_TMPP, 159, 1, 0, 144, npair=4)
        self.stamp(40)
        self.addr_pair(S_TMPP, P_WS, WS_YFLAG)
        self("s_lshl_b32 s3, s%d, 8" % S_CS)
        self("s_lshl_b32 s%d, s%d, 8" % (S_T0, S_G))
        self("v_mov_b32 v181, s3")
        self("v_mov_b32 v180, s%d" % S_T0)
        self("v_cmp_gt_u32 vcc, 32, v%d" % V_LANE)
        self("v_cndmask_b32 v181, v180, v181, vcc")
        self("v_and_b32 v180, 31, v%d" % V_LANE)
        self("v_lshl_add_u32 v180, v180, 3, v181")
        self.poll_pairs(S_TMPP, 180, 1, 0, 176)
        self.stamp(41)
        self("s_mul_i32 s3, s%d, %d" % (S_CS, 80 * 4096))
        self("s_lshl_b32 s%d, s%d, 9" % (S_T0, S_G))
        self("s_add_u32 s3, s3, s%d" % S_T0)
        self("s_lshl_b32 s%d, s%d, 7" % (S_T0, S_RB))
        self("s_add_u32 s3, s3, s%d" % S_T0)
        self.addr_pair(S_TMPP, P_WS, WS_YT, 3)
        a, b = 164, 165
        self("v_lshrrev_b32 v%d, 3, v%d" % (a, V_LANE))
        self("v_lshlrev_b32 v%d, 12, v%d" % (a, a))
        self("v_and_b32 v%d, 7, v%d" % (b, V_LANE))
        self("v_lshl_add_u32 v%d, v%d, 4, v%d" % (a, b, a))
        for k in range(10):
            self("s_mov_b32 m0, %d" % (LDS_SCR + 1024 * k))
            self("v_add_u32 v%d, %d, v%d" % (b, 8 * 4096 * k, a))
            self("global_load_lds_dwordx4 v%d, s[%d:%d]" % (b, S_TMPP, S_TMPP + 1))
        self("s_waitcnt vmcnt(0)")
        self.close(Ly)
        self("s_barrier")
        self.stamp(12)
        if c2 > c1:
            L = self.if_wave(3, eq=False)
            self.w1_dma(list(range(c1, c2)))
            self.close(L)

        a, b = 164, 165
        self("v_bfe_u32 v%d, v%d, 2, 2" % (a, V_LANE))
        self("v_lshl_add_u32 v%d, v%d, 2, v%d" % (a, V_G, a))
        self("v_lshlrev_b32 v%d, 7, v%d" % (a, a))
        self("v_and_b32 v%d, 3, v%d" % (b, V_LANE))
        self("v_lshl_add_u32 v%d, v%d, 3, v%d" % (a, b, a))
        self("s_lshl_b32 s3, s%d, 5" % S_W)
        self("s_add_u32 s3, s3, %d" % LDS_SCR)
        self("v_add_u32 v%d, s3, v%d" % (a, a))
        for u in range(5):
            self.lg("ds_read_b64_tr_b16 %s, v%d offset:%d" % (vr(V_Y + 2 * u, 2), a, 16 * 128 * u), "ytr")
        self.xf_store_setup(S_XO1)
        yf, qf = 32, 34
        self.lg_wait_all()
        for i in range(10):
            self.unpack(yf, V_Y + i)
            self.unpack(qf, QN + i)
            self("v_pk_mul_f32 %s, %s, %s" % (vr(d, 2), vr(yf, 2), vr(qf, 2)))
            self.rnd_pair(d, t)
            self("v_pk_add_f32 %s, %s, %s" % (vr(XF + 2 * i, 2), vr(XF + 2 * i, 2), vr(d, 2)))
            self("v_cvt_pk_bf16_f32 v%d, v%d, v%d" % (V_X + i, XF + 2 * i, XF + 2 * i + 1))
            self.unpack(XF + 2 * i, V_X + i)
        self.xf_store()

    XA0 = 165
    def xf_addr_items(self, ws_off, base):
        g = Gen()
        a = base + 5
        g("s_lshl_b32 s97, s%d, 4" % S_G)
        g("s_lshl_b32 s100, s%d, 2" % S_RB)
        g("s_add_u32 s97, s97, s100")
        g("s_add_u32 s97, s97, s%d" % S_W)
        g("s_mul_i32 s97, s97, %d" % (20 * 1024))
        g("s_add_u32 s97, s97, s%d" % ws_off)
        g("v_lshlrev_b32 v%d, 4, v%d" % (a, V_LANE))
        g("v_add_u32 v%d, s97, v%d" % (a, a))
        g("s_mul_i32 s97, s%d, 5" % S_CS)
        for u in range(5):
            g("s_add_u32 s100, s97, %d" % u)
            g("s_lshr_b32 s101, s100, 1")
            g("s_lshl_b32 s101, s101, 10")
            g("s_and_b32 s100, s100, 1")
            g("s_lshl_b32 s100, s100, 3")
            g("s_add_u32 s100, s100, s101")
            g("v_add_u32 v%d, s100, v%d" % (base + u, a))
        return [i.text.strip() for i in g.ins]
    def xf_store_setup(self, ws_off):
        self.XA0 = 165
        for l in self.xf_addr_items(ws_off, 165): self(l)
    def xf_store(self):
        Lo, Ld = self.label("L_xo"), self.label("L_xd")
        p = "s[%d:%d]" % (P_WS, P_WS + 1)
        b = self.XA0
        x4 = lambda u: "global_store_dwordx4 v%d, %s, %s" % (b + u, vr(V_X + 2 * u, 4), p)
        x2 = lambda u: "global_store_dwordx2 v%d, %s, %s" % (b + u, vr(V_X + 2 * u, 2), p)
        self("s_bitcmp1_b32 s%d, 0" % S_CS)
        self("s_cbranch_scc1 %s" % Lo)
        self.handoff_stores([x4(0), x4(2), x2(4)], record=False)
        self("s_branch %s" % Ld)
        self("%s:" % Lo)
        self.handoff_stores([x2(0), x4(1), x4(3)], record=False)
        self("%s:" % Ld)
        self.vmq.extend(["xf"] * 3)

    def mixer_update(self, m, rs, xf, tmp):
        yf, d = tmp, tmp + 2
        for i in range(10):
            X = xf + 2 * i
            self.unpack(yf, V_Y + i)
            self("v_pk_add_f32 %s, %s, %s op_sel_hi:[1,0] neg_lo:[0,1] neg_hi:[0,1]" % (vr(d, 2), vr(X, 2), vr(m, 2)))
            self("v_pk_mul_f32 %s, %s, %s op_sel_hi:[1,0]" % (vr(d, 2), vr(d, 2), vr(rs, 2)))
            self("v_pk_fma_f32 %s, %s, %s, %s" % (vr(X, 2), vr(d, 2), vr(yf, 2), vr(X, 2)))
            self("v_cvt_pk_bf16_f32 v%d, v%d, v%d" % (V_X + i, X, X + 1))
            self.unpack(X, V_X + i)

    def w1_lane_addr(self, a, tmp):
        self("v_bfe_u32 v%d, v%d, 2, 2" % (a, V_LANE))
        self("v_lshl_add_u32 v%d, v%d, 2, v%d" % (a, V_G, a))
        self("v_mul_u32_u24 v%d, %d, v%d" % (a, W1_STRIDE, a))
        self("v_and_b32 v%d, 3, v%d" % (tmp, V_LANE))
        self("v_lshl_add_u32 v%d, v%d, 3, v%d" % (a, tmp, a))
    def colsum(self):
        a, ones, acc = 164, 100, 104
        FR = [112, 120, 128, 136]
        for i in range(4): self("v_mov_b32 v%d, 0x3f803f80" % (ones + i))
        self.w1_lane_addr(a, a + 1)
        self("s_lshl_b32 s3, s%d, 6" % S_W)
        self("v_add_u32 v%d, s3, v%d" % (a, a))
        self("v_add_u32 v%d, %d, v%d" % (a + 1, 8 * 32 * W1_STRIDE, a))
        self("v_add_u32 v%d, %d, v%d" % (a + 2, 16 * 32 * W1_STRIDE, a))
        def loads(t):
            for i in range(2):
                for h in range(2):
                    self.lg("ds_read_b64_tr_b16 %s, v%d offset:%d" % (vr(FR[t % 4] + 4 * i + 2 * h, 2), a + (t // 8), ((t % 8) * 32 + h * 16) * W1_STRIDE + 32 * i), "cs%d" % t)
        for t in range(3): loads(t)
        for t in range(20):
            if t + 3 < 20: loads(t + 3)
            self.lg_wait("cs%d" % t)
            for i in range(2):
                c = vr(acc + 4 * i, 4) if t else "0"
                self("v_mfma_f32_16x16x32_bf16 %s, %s, %s, %s" % (vr(acc + 4 * i, 4), vr(FR[t % 4] + 4 * i, 4), vr(ones, 4), c))
        b = 144
        self("v_lshlrev_b32 v%d, 4, v%d" % (b, V_G))
        self("s_lshl_b32 s3, s%d, 7" % S_W)
        self("s_add_u32 s3, s3, %d" % LDS_CSX)
        self("v_add_u32 v%d, s3, v%d" % (b, b))
        self("v_cmp_eq_u32 vcc, 0, v%d" % V_L15)
        self("s_and_saveexec_b64 s[%d:%d], vcc" % (S_SAVE, S_SAVE + 1))
        self("ds_write_b128 v%d, %s" % (b, vr(acc, 4)))
        self("ds_write_b128 v%d, %s offset:64" % (b, vr(acc + 4, 4)))
        self.exec_restore()
        self.lg_wait_all()
    def colsum_fetch(self):
        b = 144
        self("v_lshlrev_b32 v%d, 4, v%d" % (b, V_G))
        self("v_add_u32 v%d, %d, v%d" % (b, LDS_CSX, b))
        for u in range(7):
            self.lg("ds_read_b128 %s, v%d offset:%d" % (vr(V_CS + 4 * u, 4), b, 64 * u), "cs")

    G1_ACC = 4; G1_AF = [60, 88]; G1_XR = 116; G1_DEPTH = 6; G1_LA = 172; G1_XA = 183; G1_ST = 174; G1_L16 = 182
    def g1_aloads(self, t, buf):
        l = []
        for i in range(7):
            for h in range(2):
                l.append(("lg", "ds_read_b64_tr_b16 %s, v%d offset:%d" % (vr(self.G1_AF[buf] + 4 * i + 2 * h, 2), self.G1_LA, h * 16 * W1_STRIDE + 32 * i), "a%d" % t))
        return l
    def g1_setup(self, xf_off, hf_off):
        self("s_lshl_b32 s3, s%d, 4" % S_G)
        self("s_lshl_b32 s%d, s%d, 3" % (S_T0, S_RT))
        self("s_add_u32 s3, s3, s%d" % S_T0)
        self("s_lshl_b32 s%d, s%d, 1" % (S_T0, S_W))
        self("s_add_u32 s%d, s3, s%d" % (S_RU0, S_T0))
        self("s_mul_i32 s3, s%d, %d" % (S_RU0, 20 * 1024))
        self("s_add_u32 s3, s3, s%d" % xf_off)
        self.addr_pair(S_XFB, P_WS, 0, 3)
        self.addr_pair(S_TMPQ, S_XFB, 20 * 1024)
        self("v_lshlrev_b32 v%d, 4, v%d" % (self.G1_XA, V_LANE))
        self("v_lshlrev_b32 v%d, 4, v%d" % (self.G1_L16, V_LANE))
        self("s_mul_i32 s%d, s%d, %d" % (S_T0 + 3, S_RU0, 54 * 1024))
        self("s_add_u32 s%d, s%d, %s" % (S_T0 + 3, S_T0 + 3, hf_off))
        for i in range(7):
            self("s_add_u32 s%d, s%d, %d" % (S_T0 + 1, S_UOFF, i))
            self("s_lshr_b32 s%d, s%d, 1" % (S_T0 + 2, S_T0 + 1))
            self("s_lshl_b32 s%d, s%d, 10" % (S_T0 + 2, S_T0 + 2))
            self("s_and_b32 s%d, s%d, 1" % (S_T0 + 1, S_T0 + 1))
            self("s_lshl_b32 s%d, s%d, 3" % (S_T0 + 1, S_T0 + 1))
            self("s_add_u32 s%d, s%d, s%d" % (S_T0 + 1, S_T0 + 1, S_T0 + 2))
            self("s_add_u32 s%d, s%d, s%d" % (S_T0 + 1, S_T0 + 1, S_T0 + 3))
            self("s_add_u32 s%d, s%d, s%d" % (72 + 2 * i, P_WS, S_T0 + 1))
            self("s_addc_u32 s%d, s%d, 0" % (73 + 2 * i, P_WS + 1))
        self.w1_lane_addr(self.G1_LA, 59)
        for x in self.g1_aloads(0, 0): self.lg(x[1], x[2])
        self("v_add_u32 v%d, 7168, v%d" % (self.G1_LA, self.G1_LA))
    def g1_main(self, statbuf, sb=None, w2range=None, ldf='', pretouch=False, hwt=False, main_only=False, neg=False):
        ACC, AF, XR, DEPTH, la, xa, ST = self.G1_ACC, self.G1_AF, self.G1_XR, self.G1_DEPTH, self.G1_LA, self.G1_XA, self.G1_ST
        def xload(t):
            for rho in range(2):
                base = S_XFB if rho == 0 else S_TMPQ
                d = XR + ((t % DEPTH) * 2 + rho) * 4
                self.vm("global_load_dwordx4 %s, v%d, s[%d:%d] offset:%d %s" % (vr(d, 4), xa, base, base + 1, (t % 4) * 1024, ldf), "x%d" % t)
            if t % 4 == 3: self("v_add_u32 v%d, 4096, v%d" % (xa, xa))
        for t in range(3): xload(t)
        sa = 169
        self("s_lshl_b32 s3, s%d, 11" % S_RU0)
        self("s_add_u32 s3, s3, %d" % (WS_STAT + statbuf * STAT_SZ))
        self("v_lshlrev_b32 v%d, 7, v%d" % (sa, V_L15))
        self("v_lshl_add_u32 v%d, v%d, 5, v%d" % (sa, V_G, sa))
        self("v_add_u32 v%d, s3, v%d" % (sa, sa))
        self("s_add_u32 s101, s%d, %d" % (S_TAG, statbuf))
        retries = []
        def st_load(rho):
            return [("vm", "global_load_dwordx4 %s, v%d, s[%d:%d] offset:%d sc1" % (vr(ST + 4 * k, 4), sa, P_WS, P_WS + 1, 2048 * rho + 16 * k), "st%d" % rho) for k in range(2)]
        def st_check(rho):
            Lr, Lb = self.label("L_str"), self.label("L_stb")
            def emit():
                self.vm_wait("st%d" % rho)
                self("v_xor_b32 v170, s101, v%d" % (ST + 2))
                self("v_xor_b32 v171, s101, v%d" % (ST + 6))
                self("v_or_b32 v170, v170, v171")
                self("v_xor_b32 v171, v%d, v%d" % (ST + 2, ST + 3))
                self("v_xor_b32 v171, s%d, v171" % S_KX)
                self("v_or_b32 v170, v170, v171")
                self("v_xor_b32 v171, v%d, v%d" % (ST + 6, ST + 7))
                self("v_xor_b32 v171, s%d, v171" % S_KX)
                self("v_or_b32 v170, v170, v171")
                self("v_cmp_ne_u32 vcc, 0, v170")
                self("s_cbranch_vccnz %s ; nohaz" % Lr)
                self("%s: ; nohaz" % Lb)
            retries.append((Lr, Lb, rho))
            return [emit, "v_mov_b32 v%d, v%d" % (ST + 2, ST + 4), "v_mov_b32 v%d, v%d" % (ST + 3, ST + 5)]
        MR = [164, 166]
        def st_finish(rho):
            it = self.row_stats_finish_items(ST, MR[rho], MR[rho] + 1)
            if neg: it.append("v_xor_b32 v%d, 0x80000000, v%d" % (MR[rho] + 1, MR[rho] + 1))
            return it
        stq = {6: st_load(0), 9: st_check(0), 10: st_finish(0)[:20], 11: st_finish(0)[20:], 12: st_load(1), 15: st_check(1), 16: st_finish(1)[:20], 17: st_finish(1)[20:]}
        self._g1_retries = (retries, sa)
        for t in range(3, DEPTH): xload(t)
        if pretouch:
            self("s_mul_i32 s3, s%d, %d" % (S_RU0, 54 * 1024))
            self("s_lshr_b32 s%d, s%d, 1" % (S_T0, S_UOFF))
            self("s_lshl_b32 s%d, s%d, 10" % (S_T0, S_T0))
            self("s_add_u32 s3, s3, s%d" % S_T0)
            self("s_and_b32 s%d, s%d, 1" % (S_T0, S_UOFF))
            self("s_lshl_b32 s%d, s%d, 3" % (S_T0, S_T0))
            self("s_add_u32 s3, s3, s%d" % S_T0)
            self("s_add_u32 s3, s3, %d" % WS_HF1)
            self("v_lshrrev_b32 v57, 5, v%d" % V_LANE)
            self("v_mul_u32_u24 v57, %d, v57" % (54 * 1024))
            self("v_and_b32 v58, 31, v%d" % V_LANE)
            self("v_lshl_add_u32 v58, v58, 7, v57")
            self("v_add_u32 v58, s3, v58")
            Lp = self.label("L_pth")
            self("s_cmp_lg_u32 s%d, 0" % S_MODE)
            self("s_cbranch_scc1 %s" % Lp)
            self("global_store_dword v58, v58, s[%d:%d]" % (P_WS, P_WS + 1))
            self("%s:" % Lp)
        w2items = self.w2_items(w2range[0], w2range[1], self.G1_L16) if w2range else []
        nper = -(-len(w2items) // 16)
        for t in range(20):
            if t == 1 and sb: self.stamp(sb)
            buf = t & 1
            nxt = self.g1_aloads(t + 1, buf ^ 1) if t < 19 else []
            self.lg_wait_all()
            self.vm_wait("x%d" % t)
            self.bg_add(nxt)
            self.bg_add(stq.get(t, []))
            if t >= 1:
                self.bg_add(w2items[:nper]); w2items = w2items[nper:]
            nbg = len(self.bgq); done = 0
            k = 0
            for i in range(7):
                for rho in range(2):
                    acc = ACC + (rho * 7 + i) * 4
                    c = vr(acc, 4) if t else "0"
                    self("v_mfma_f32_16x16x32_bf16 %s, %s, %s, %s" % (vr(acc, 4), vr(AF[buf] + 4 * i, 4), vr(XR + ((t % DEPTH) * 2 + rho) * 4, 4), c))
                    k += 1
                    want = min(nbg, -(-nbg * k // 13))
                    self.bg_step(want - done); done = want
            self.bg_flush()
            if t < 19: self("v_add_u32 v%d, 7168, v%d" % (la, la))
            if t + DEPTH < 20: xload(t + DEPTH)
        if sb: self.stamp(sb + 1)
        if main_only: return
        self.g1_epilogue(hwt, neg)
    def g1_epilogue(self, hwt=False, neg=False):
        ACC, ST = self.G1_ACC, self.G1_ST
        MR = [164, 166]
        if neg: self("s_mov_b32 s%d, 0x80008000" % S_T0)
        ha = 80
        self("v_add_u32 v%d, %d, v%d" % (ha, 54 * 1024, self.G1_L16))
        HA = [self.G1_L16, ha]
        O = 100
        def st(rho, i, n):
            return "global_store_dwordx%d v%d, %s, s[%d:%d]" % (n, HA[rho], vr(O + (rho * 7 + i) * 2, n), 72 + 2 * i, 73 + 2 * i)
        def compute(rho, i):
            acc = ACC + (rho * 7 + i) * 4
            for p in range(2):
                A = acc + 2 * p; C = V_CS + 4 * i + 2 * p
                self("v_pk_fma_f32 %s, %s, %s, %s op_sel_hi:[1,0,1] neg_lo:[0,1,0] neg_hi:[0,1,0]" % (vr(A, 2), vr(C, 2), vr(MR[rho], 2), vr(A, 2)))
                self("v_pk_mul_f32 %s, %s, %s op_sel:[0,1] op_sel_hi:[1,1]" % (vr(A, 2), vr(A, 2), vr(MR[rho], 2)))
                o = O + (rho * 7 + i) * 2 + p
                self("v_cvt_pk_bf16_f32 v%d, v%d, v%d" % (o, A, A + 1))
                if neg: self("v_pk_max_u16 v%d, v%d, s%d" % (o, o, S_T0))
                else: self("v_pk_max_i16 v%d, v%d, 0" % (o, o))
        Lo, Ld = self.label("L_ho"), self.label("L_hd")
        def path(odd, flag):
            for rho in range(2):
                seq = [(0, 2), (1, 4), (3, 4), (5, 4)] if odd else [(0, 4), (2, 4), (4, 4), (6, 2)]
                for (i, n) in seq:
                    for ii in range(i, i + n // 2): compute(rho, ii)
                    self(st(rho, i, n) + flag)
        Ls = [self.label("L_he") for _ in range(4)]
        self("s_and_b32 s3, s%d, 1" % S_UOFF)
        self("s_lshl_b32 s%d, s%d, 1" % (S_T0 + 1, S_MODE))
        self("s_or_b32 s3, s3, s%d" % (S_T0 + 1))
        for c in (1, 2, 3):
            self("s_cmp_eq_u32 s3, %d" % c)
            self("s_cbranch_scc1 %s" % Ls[c])
        for c in range(4):
            if c: self("%s:" % Ls[c])
            path(c & 1, " sc0 sc1" if (c >> 1 or hwt) else (" " + getattr(self, "fastflag", "")))
            if c < 3: self("s_branch %s" % Ld)
        self("%s:" % Ld)
        self.vmq.extend(["h"] * 8)
        retries, sa = self._g1_retries
        Lx = self.label("L_stx")
        self("s_branch %s" % Lx)
        for (Lr, Lb, rho) in retries:
            Li = self.label("L_sti")
            self("%s:" % Lr)
            self("s_mov_b32 s%d, %d" % (S_TMO, TIMEOUT))
            self("%s:" % Li)
            for k in range(2):
                self("global_load_dwordx4 %s, v%d, s[%d:%d] offset:%d sc1" % (vr(ST + 4 * k, 4), sa, P_WS, P_WS + 1, 2048 * rho + 16 * k))
            self("s_sub_u32 s%d, s%d, 1" % (S_TMO, S_TMO))
            self("s_cmp_eq_u32 s%d, 0" % S_TMO)
            self("s_cbranch_scc1 L_abort")
            self("s_waitcnt vmcnt(0)")
            self("v_xor_b32 v170, s101, v%d" % (ST + 2))
            self("v_xor_b32 v171, s101, v%d" % (ST + 6))
            self("v_or_b32 v170, v170, v171")
            self("v_xor_b32 v171, v%d, v%d" % (ST + 2, ST + 3))
            self("v_xor_b32 v171, s%d, v171" % S_KX)
            self("v_or_b32 v170, v170, v171")
            self("v_xor_b32 v171, v%d, v%d" % (ST + 6, ST + 7))
            self("v_xor_b32 v171, s%d, v171" % S_KX)
            self("v_or_b32 v170, v170, v171")
            self("v_cmp_ne_u32 vcc, 0, v170")
            self("s_cbranch_vccnz %s" % Li)
            self("s_branch %s" % Lb)
        self("%s:" % Lx)

    G2_ACC = [4, 24]; G2_HR = 44; G2_HA = 100; G2_RA = 104; G2_TMP = 108; G2_SUM = 128
    def g2_setup(self, hf_off):
        ha, ra = self.G2_HA, self.G2_RA
        for s in range(14):
            self("s_mul_i32 s3, s%d, 14" % S_W)
            self("s_add_u32 s3, s3, %d" % s)
            self("s_min_u32 s3, s3, 53")
            self("s_lshl_b32 s%d, s3, 10" % (S_HSTEP + s))
        self.srd(SRD_A, P_WS, 0x10000000 - self.o.get('wsbase', 0))
        for k in range(4):
            self("s_add_u32 s3, s%d, %d" % (S_W, 1 + k))
            self("s_and_b32 s3, s3, 3")
            self("s_mul_i32 s%d, s3, 5120" % (S_T0 + 1))
            self("s_lshl_b32 s%d, s%d, 4" % (S_T0, S_G))
            self("s_add_u32 s3, s3, s%d" % S_T0)
            self("s_lshl_b32 s%d, s%d, 2" % (S_T0, S_RB))
            self("s_add_u32 s3, s3, s%d" % S_T0)
            self("s_mul_i32 s3, s3, %d" % (54 * 1024))
            self("s_add_u32 s3, s3, %s" % hf_off)
            self("v_lshlrev_b32 v%d, 4, v%d" % (ha + k, V_LANE))
            self("v_add_u32 v%d, s3, v%d" % (ha + k, ha + k))
            self("v_lshlrev_b32 v%d, 4, v%d" % (ra + k, V_LANE))
            self("s_add_u32 s3, s%d, %d" % (S_T0 + 1, LDS_SCR))
            self("v_add_u32 v%d, s3, v%d" % (ra + k, ra + k))
    def g2_main(self, sb=None, ldf='', val=None, extra=()):
        ACC, HR, ha, ra, TMP, SUM = self.G2_ACC, self.G2_HR, self.G2_HA, self.G2_RA, self.G2_TMP, self.G2_SUM
        def hload(p):
            k, s = divmod(p, 14)
            if self.o.get("g2_noload") and p >= 14: return
            self.vm("buffer_load_dwordx4 %s, v%d, s[%d:%d], s%d offen %s" % (vr(HR + 4 * s, 4), ha + k, SRD_A, SRD_A + 3, S_HSTEP + s, ldf), "h%d" % p)
        CK = 148
        retry_blocks = []
        def bad_ops(regs):
            op = "v_or" if val == 1 else "v_and"
            l = []
            acc_ = regs[0]; rest = regs[1:]
            first = True
            while rest:
                if len(rest) >= 2 and val == 1:
                    l.append("v_or3_b32 v%d, v%d, v%d, v%d" % (CK, acc_, rest[0], rest[1])); rest = rest[2:]
                else:
                    l.append("%s_b32 v%d, v%d, v%d" % (op, CK, acc_, rest[0])); rest = rest[1:]
                acc_ = CK
            l.append(("v_cmp_gt_i32 vcc, 0, v%d" if val == 1 else "v_cmp_le_i32 vcc, 0, v%d") % CK)
            return l
        for p in range(14): hload(p)
        if val:
            Lsp, Lok = self.label("L_hsp"), self.label("L_hok")
            self.vm_wait("h0")
            for l in bad_ops([HR, HR + 2]): self(l)
            self("s_cbranch_vccz %s" % Lok)
            self("s_mov_b32 s%d, %d" % (S_TMO, TIMEOUT))
            self("%s:" % Lsp)
            self("buffer_load_dwordx4 %s, v%d, s[%d:%d], s%d offen %s" % (vr(HR, 4), ha, SRD_A, SRD_A + 3, S_HSTEP, ldf))
            self("s_sub_u32 s%d, s%d, 1" % (S_TMO, S_TMO))
            self("s_cmp_eq_u32 s%d, 0" % S_TMO)
            self("s_cbranch_scc1 L_abort")
            self("s_waitcnt vmcnt(0)")
            for l in bad_ops([HR, HR + 2]): self(l)
            self("s_cbranch_vccnz %s" % Lsp)
            self("%s:" % Lok)
            self.stamp(45 if val == 1 else 46)
        if sb: self.stamp(sb)
        late = []
        self.bg_add(list(extra))
        for k in range(4):
            acc = ACC[k & 1]; prev = ACC[(k & 1) ^ 1]
            for s in range(14):
                p = 14 * k + s
                if k > 0 and not self.o.get("g2_nobar"):
                    sA, sB = self.o.get("g2_sA", 7), self.o.get("g2_sB", 11)
                    w0 = self.o.get("g2_w0", 1)
                    X = self.o.get("g2_x", "wbra")
                    if w0 <= s < w0 + 5 and "w" in X:
                        i = s - w0
                        late.append(("lg", "ds_write_b128 v%d, %s offset:%d" % (ra + k - 1, vr(prev + 4 * i, 4), 1024 * i), "rw"))
                    if s == sA:
                        self.bg_flush()
                        if "b" in X: self.lg_wait_all(); self("s_barrier")
                        rd = [("lg", "ds_read_b128 %s, v%d offset:%d" % (vr((SUM if k == 1 else TMP) + 4 * i, 4), ra + 3, 1024 * i), "rr") for i in range(5)]
                        if "r" in X: self.bg_add(rd)
                    if s == sB:
                        self.bg_flush()
                        if "b" in X: self.lg_wait_all(); self("s_barrier")
                        if "a" not in X: pass
                        elif k > 1:
                            self.bg_add(["v_add_f32 v%d, v%d, v%d" % (SUM + j, SUM + j, TMP + j) for j in range(20)])
                chk = []
                if val:
                    pn = p + 1
                    if pn < 56:
                        self.vm_wait("h%d" % pn)
                        rn = HR + 4 * (pn % 14)
                        chk = bad_ops([rn, rn + 2])
                else:
                    self.vm_wait("h%d" % p)
                for i in range(5):
                    c = vr(acc + 4 * i, 4) if s > 0 else "0"
                    self("v_mfma_f32_16x16x32_bf16 %s, %s, %s, %s" % (vr(acc + 4 * i, 4), w2reg(s * 5 + i), vr(HR + 4 * s, 4), c))
                    if chk and i < 2:
                        self(chk[i])
                    elif i == 2 and late:
                        x = late.pop(0); self.lg(x[1], x[2])
                    else:
                        self.bg_step(2 if k >= 2 and s >= 11 else 1)
                if chk:
                    Lr, Lb = self.label("L_hr"), self.label("L_hb")
                    self("s_cbranch_vccnz %s ; nohaz" % Lr)
                    self("%s: ; nohaz" % Lb)
                    kn, sn = divmod(pn, 14)
                    retry_blocks.append((Lr, Lb, "buffer_load_dwordx4 %s, v%d, s[%d:%d], s%d offen %s" % (vr(HR + 4 * sn, 4), ha + kn, SRD_A, SRD_A + 3, S_HSTEP + sn, ldf), bad_ops([rn, rn + 2])))
                if p + 14 < 56: hload(p + 14)
            self.bg_flush()
        if retry_blocks:
            Lx = self.label("L_hx")
            self("s_branch %s" % Lx)
            for (Lr, Lb, ld, ops) in retry_blocks:
                Li = self.label("L_hi")
                self("%s:" % Lr)
                self("s_mov_b32 s%d, %d" % (S_TMO, TIMEOUT))
                self("%s:" % Li)
                self(ld)
                self("s_sub_u32 s%d, s%d, 1" % (S_TMO, S_TMO))
                self("s_cmp_eq_u32 s%d, 0" % S_TMO)
                self("s_cbranch_scc1 L_abort")
                self("s_waitcnt vmcnt(0)")
                for l in ops: self(l)
                self("s_cbranch_vccnz %s" % Li)
                self("s_branch %s" % Lb)
            self("%s:" % Lx)
        if sb: self.stamp(sb + 1)
        acc = ACC[1]
        for j in range(0, 20, 2):
            self("v_pk_add_f32 %s, %s, %s" % (vr(SUM + j, 2), vr(SUM + j, 2), vr(acc + j, 2)))
        return SUM

    def unpack_items(self, dst, src):
        it = []
        for i in range(10):
            it += ["v_lshlrev_b32 v%d, 16, v%d" % (dst + 2 * i, src + i), "v_and_b32 v%d, s%d, v%d" % (dst + 2 * i + 1, S_MASK, src + i)]
        return it
    def residual_add(self, RES, XF, neg=False, unpack_after=True):
        t = 180
        for i in range(10):
            if self.o.get("rnd_mlp", 1): self.rnd_pair(RES + 2 * i, t + (i & 1))
            self("v_pk_add_f32 %s, %s, %s %s" % (vr(XF + 2 * i, 2), vr(XF + 2 * i, 2), vr(RES + 2 * i, 2), "neg_lo:[0,1] neg_hi:[0,1]" if neg else ""))
            self("v_cvt_pk_bf16_f32 v%d, v%d, v%d" % (V_X + i, XF + 2 * i, XF + 2 * i + 1))
        if unpack_after:
            for i in range(10): self.unpack(XF + 2 * i, V_X + i)

    def out_addr_items(self, t2):
        g = Gen()
        g("s_lshl_b32 s97, s%d, 8" % S_G)
        g("s_lshl_b32 s100, s%d, 6" % S_RB)
        g("s_add_u32 s97, s97, s100")
        g("s_lshl_b32 s100, s%d, 4" % S_W)
        g("s_add_u32 s97, s97, s100")
        g("v_add_u32 v%d, s97, v%d" % (t2, V_L15))
        g("v_mul_u32_u24 v%d, 1280, v%d" % (t2, t2))
        g("s_mul_i32 s97, s%d, 160" % S_CS)
        g("v_lshlrev_b32 v%d, 3, v%d" % (t2 + 1, V_G))
        g("v_add3_u32 v%d, v%d, v%d, s97" % (t2, t2, t2 + 1))
        return [i.text.strip() for i in g.ins]
    def store_out(self, t2):
        for u in range(5):
            self.vm("global_store_dwordx2 v%d, %s, s[%d:%d] offset:%d %s" % (t2, vr(V_X + 2 * u, 2), P_OUT, P_OUT + 1, 32 * u, self.o.get("outf", "")), "out")

    def epoch_update(self):
        L = self.label("L_ep")
        self("s_add_u32 s3, s2, s%d" % S_W)
        self("s_cmp_lg_u32 s3, 0")
        self("s_cbranch_scc1 %s" % L)
        self("s_sub_u32 s3, s%d, 0x%x" % (S_TAG, TAG0))
        self("s_add_u32 s3, s3, 16")
        self("v_mov_b32 v176, s3")
        self("v_mov_b32 v177, %d" % WS_EPOCH)
        self.exec_set("1")
        self("global_store_dword v177, v176, s[%d:%d] sc0 sc1" % (P_WS, P_WS + 1))
        self.exec_restore()
        self("%s:" % L)

    def build(self):
        o = self.o
        self.prologue()
        if o.get("stamps"): self("v_mov_b32 v%d, 0" % V_STAMP)
        self.stamp(0)
        self.prep_loads()
        self.stamp(38)
        self.prep_compute()
        self.stamp(2)
        self.mode_check()
        self.lg_wait_all()
        self("s_barrier")
        self.mode_fetch()
        self.stamp(3)
        self.prep_store_ur()
        self.stamp(4)
        self.barrier_arrive(1, drain=False)
        self.build_kcopies()
        self.w1_stage_setup()
        self.w2_setup()
        self.stamp(5)
        self.barrier_wait(1)
        self.stamp(6)
        self.vmq = []; self.lgq = []
        self.conv()
        self.stamp(9)
        self.post_conv()
        self.stamp(13)
        if o.get("w1c2", 47) < 47:
            L = self.if_wave(3, eq=False)
            self.w1_dma(list(range(o.get("w1c2", 47), 47)))
            self.close(L)
        self.barrier_arrive(2)
        self.tile_stats(4, 1, 28)
        self.colsum()
        self("s_barrier")
        self.colsum_fetch()
        self.stamp(14)
        self.g1_setup(S_XO1, str(WS_HF1))
        self.lg_wait_all()
        na, nb = o.get("w2a", 12), o.get("w2b", 48)
        L = self.if_wave(3, eq=False)
        q = list(self.vmq)
        self.bg_add(self.w2_items(0, na, self.G1_L16)); self.bg_flush()
        self.vmq = q
        self.close(L)
        self.barrier_wait(2, wave=3)
        L = self.if_wave(3)
        self.bg_add(self.w2_items(0, na, self.G1_L16)); self.bg_flush()
        self.vmq = q
        self.close(L)
        self.stamp(15)
        self.g1_main(1, 16, w2range=(na, nb), ldf='sc1', main_only=True)
        self.g1_epilogue(hwt=o.get('hwt', 0))
        self.stamp(18)
        sv = o.get("selfval", 0)
        def slow_barrier(ph):
            L = self.label("L_sb")
            self("s_cmp_eq_u32 s%d, 0" % S_MODE)
            self("s_cbranch_scc1 %s" % L)
            q = (list(self.vmq), list(self.lgq))
            self.barrier_arrive(ph)
            self.barrier_wait(ph)
            self("%s:" % L)
            self.vmq, self.lgq = q
        self("v_lshlrev_b32 v163, 4, v%d" % V_LANE)
        if sv:
            self.bg_add(self.w2_items(nb, 70, 163)); self.bg_flush()
            self.g2_setup(str(WS_HF1))
            slow_barrier(3)
        else:
            self.barrier_arrive(3)
            self.bg_add(self.w2_items(nb, 70, 163)); self.bg_flush()
            self.g2_setup(str(WS_HF1))
            self.barrier_wait(3)
        self.stamp(21)
        XF, VA, VB = 150, 170, 171
        self.XA0 = 174
        extra = self.unpack_items(XF, V_X) + self.stats_addr_items(VA, VB) + self.xf_addr_items(S_XO3, 174)
        RES = self.g2_main(22, ldf='sc1' if sv else '', val=1 if sv else None, extra=extra)
        self.stamp(24)
        self.residual_add(RES, XF)
        self.tile_stats(XF, 2, 28, va=VA)
        self.row_stats_issue(2, 60, vb=VB)
        self.stamp(25)
        self.vm_wait("rs")
        self.row_stats_validate(2, 60)
        self.stamp(26)
        self.row_stats_finish(60, 24, 26)
        self.mixer_update(24, 26, XF, 28)
        self.xf_store()
        self.stamp(27)
        self.barrier_arrive(4)
        self.tile_stats(XF, 3, 28, va=VA)
        self.g1_setup(S_XO3, 's%d' % S_HO2)
        self.barrier_wait(4)
        self.stamp(28)
        self.g1_main(3, 29, ldf='sc1', neg=bool(sv))
        self.stamp(31)
        if sv:
            self.g2_setup('s%d' % S_HO2)
            slow_barrier(5)
        else:
            self.barrier_arrive(5)
            self.g2_setup('s%d' % S_HO2)
            self.barrier_wait(5)
        if o.get("wbl2"):
            L = self.label("L_wb")
            self("s_lshl_b32 s3, s%d, 2" % S_J)
            self("s_add_u32 s3, s3, s%d" % S_W)
            self("s_cmp_lg_u32 s3, %d" % o.get("wbl2_who", 1))
            self("s_cbranch_scc1 %s" % L)
            self("buffer_wbl2 sc1")
            self("%s:" % L)
        self.stamp(32)
        RES = self.g2_main(33, ldf='sc1', val=2 if sv else None, extra=self.unpack_items(XF, V_X) + self.out_addr_items(170))
        self.stamp(35)
        self.residual_add(RES, XF, neg=bool(sv), unpack_after=False)
        self.store_out(170)
        self.epoch_update()
        self.stamp(36)
        self("s_waitcnt vmcnt(0)")
        self.stamp(37)
        self.stamp_dump()
        if self.o.get("dbgtime"):
            L = self.label("L_dt")
            self("s_add_u32 s3, s%d, s%d" % (S_J, S_W))
            self("s_cmp_lg_u32 s3, 0")
            self("s_cbranch_scc1 %s" % L)
            self("s_memrealtime s[94:95]")
            self("s_memtime s[92:93]")
            self("s_waitcnt lgkmcnt(0)")
            self("s_sub_u32 s94, s94, s98")
            self("s_sub_u32 s92, s92, s100")
            self("v_mov_b32 v4, s94")
            self("v_mov_b32 v5, s92")
            self("s_lshl_b32 s3, s%d, 3" % S_G)
            self("v_mov_b32 v6, s3")
            self("s_mov_b64 exec, 1")
            self("global_store_dwordx2 v6, v[4:5], s[%d:%d]" % (P_DBG, P_DBG + 1))
            self("%s:" % L)
        self("s_waitcnt vmcnt(0)")
        self("s_branch L_end")
        self("L_abort:")
        self("L_end:")
        self("s_endpgm")

def make(opts):
    k = K(opts)
    k.build()
    body, added = k.text()
    hdr = open("interleave_layers__ssm_conv_h3__dense_activation_relu__prompt.s.ref").read().split("\n")
    head = [l for l in hdr if l.startswith(";") and "@launch" not in l and "Override launch" not in l and "grid=ceil" not in l][:13]
    txt = "\n".join(head) + "\n"
    txt += "; @launch grid=(256,1,1) block=(256,1,1) lds=%d\n" % LDS_TOTAL
    txt += '.amdgcn_target "amdgcn-amd-amdhsa--gfx950"\n.text\n.globl %s\n.p2align 8\n.type %s,@function\n%s:\n' % (KNAME, KNAME, KNAME)
    txt += body
    txt += """.section .rodata,"a"
.p2align 6
.amdhsa_kernel %s
  .amdhsa_next_free_vgpr 512
  .amdhsa_next_free_sgpr 102
  .amdhsa_accum_offset 256
  .amdhsa_group_segment_fixed_size 0
  .amdhsa_kernarg_size 96
  .amdhsa_user_sgpr_count 2
  .amdhsa_user_sgpr_kernarg_segment_ptr 1
  .amdhsa_system_sgpr_workgroup_id_x 1
.end_amdhsa_kernel
""" % KNAME
    return txt, added, len(k.ins)

if __name__ == "__main__":
    import argparse, json
    ap = argparse.ArgumentParser()
    ap.add_argument("-o", default="interleave_layers__ssm_conv_h3__dense_activation_relu__prompt.s")
    ap.add_argument("--opts", default="{}")
    a = ap.parse_args()
    txt, added, n = make(json.loads(a.opts))
    open(a.o, "w").write(txt)
    print("wrote", a.o, "instructions", n, "nop states added", added, "bytes", len(txt))
```

```python
import sys
sys.path.insert(0, "work")
from gen import *

KNAME = "interleave_layers__ssm_conv_h3__dense_activation_relu__prompt_kernel"

WS_EPOCH = 0x0
WS_XCCF  = 0x400
WS_LFLAG = 0x1000
WS_YFLAG = 0x2000
WS_PKFLAG = 0x3000
WS_STAT  = 0x100000
STAT_SZ  = 0x40000
WS_UR    = 0x200000
WS_YT    = 0x500000
WS_W1P   = 0x800000
WS_W2P   = 0xB00000
WP_SZ    = 2211840
WS_XF1   = 0xE00000
WS_XF3   = 0x1100000
WS_HF1   = 0x1400000
WS_HF2   = 0x1B00000
WS_STAMP = 0x2200000
KX = 0x5BD1E995
TAG0 = 0x9E3779B9

KC_STRIDE = 4160
SLOT = 8 * KC_STRIDE + 4608
U_OFF = 8 * KC_STRIDE
LDS_T = 3 * SLOT
T_STRIDE = 144
LDS_W1 = 0
W1_STRIDE = 224
LDS_SCR = 140 * 1024
LDS_TOTAL = 163840
LDS_MODE = LDS_TOTAL - 16
LDS_CSX = LDS_SCR + 16384
LDS_RP = LDS_T + 80 * T_STRIDE
LDS_Q = LDS_RP + 3 * 4096

S_G, S_J, S_W, S_MODE = 4, 5, 6, 7
SRD_A, SRD_B = 8, 12
P_Q, P_K, P_V, P_SK, P_SSM, P_D, P_W1 = 16, 18, 20, 22, 24, 26, 30
P_W2, P_OUT, P_DBG, P_WS = 32, 34, 36, 38
S_TAG = 28
S_KX = 29
S_RB, S_CS, S_RT, S_CT, S_UOFF = 40, 41, 42, 43, 44
S_MASK = 45
S_XCC = 46
S_CH = 47
S_HASCH = 48
S_DVAL = 49
S_T0 = 50
SRD_W2 = 56
S_W2B = 60
S_RU0 = 63
S_LFLAG = 64
S_TMPP = 66
S_TMPQ = 68
S_SLOT = 70
S_TMO = 71
S_HSTEP = 72
S_XFB = 86
S_M2 = 88
S_XO1, S_XO3, S_HO2 = 90, 91, 96
S_SAVE = 92
S_TS = 94

V_TID, V_LANE, V_L15, V_G = 0, 1, 2, 3
V_STAMP = 173
V_CS = 184
V_Y = 212
V_X = 222
V_W2X = 232

def w2reg(f):
    return ar(4 * f, 4) if f < 64 else vr(V_W2X + 4 * (f - 64), 4)

TIMEOUT = 400000

class K(Gen):
    def __init__(self, opts):
        super().__init__()
        self.o = opts
        self.bgq = []

    def stamp(self, idx):
        if not self.o.get("stamps"): return
        self("s_memtime s[%d:%d]" % (S_TS, S_TS + 1))
        self("s_waitcnt lgkmcnt(0)")
        self("v_writelane_b32 v%d, s%d, %d" % (V_STAMP, S_TS, idx))
        self.lgq = []
    def stamp_dump(self):
        if not self.o.get("stamps"): return
        self("s_memrealtime s[%d:%d]" % (S_TS, S_TS + 1))
        self("s_waitcnt lgkmcnt(0)")
        self("v_writelane_b32 v%d, s%d, 63" % (V_STAMP, S_TS))
        self("v_writelane_b32 v%d, s98, 62" % V_STAMP)
        self("s_lshl_b32 s3, s2, 2")
        self("s_add_u32 s3, s3, s%d" % S_W)
        self("s_lshl_b32 s3, s3, 8")
        self("s_add_u32 s3, s3, %d" % WS_STAMP)
        self("v_lshlrev_b32 v180, 2, v%d" % V_LANE)
        self("v_add_u32 v180, s3, v180")
        self("global_store_dword v180, v%d, s[%d:%d]" % (V_STAMP, P_WS, P_WS + 1))
        if self.o.get("dbgstamps"):
            L = self.label("L_ds")
            self("s_lshl_b32 s3, s2, 2")
            self("s_add_u32 s3, s3, s%d" % S_W)
            self("s_cmp_lg_u32 s3, %d" % (self.o.get("dbgwave", 37)))
            self("s_cbranch_scc1 %s" % L)
            self("v_readlane_b32 s50, v%d, 0" % V_STAMP)
            self("v_mov_b32 v181, 0")
            for i, idx in enumerate(self.o["dbgstamps"]):
                self("v_readlane_b32 s51, v%d, %d" % (V_STAMP, idx))
                self("s_sub_u32 s51, s51, s50")
                self("v_writelane_b32 v181, s51, %d" % i)
            self("v_lshlrev_b32 v180, 2, v%d" % V_LANE)
            self("s_mov_b64 exec, 0xffff")
            self("global_store_dword v180, v181, s[%d:%d]" % (P_DBG, P_DBG + 1))
            self("s_mov_b64 exec, -1")
            self("%s:" % L)
    def bg_add(self, items): self.bgq.extend(items)
    def bg_step(self, n=1):
        q = self.bgq
        while n > 0 and q:
            it = q.pop(0)
            if callable(it): it()
            elif isinstance(it, tuple):
                kind, text, tag = it
                (self.vm if kind == "vm" else self.lg)(text, tag)
            else: self(it)
            n -= 1
    def bg_flush(self): self.bg_step(1 << 30)
    def if_wave(self, w, eq=True):
        L = self.label("L_iw")
        self("s_cmp_%s_u32 s%d, %d" % ("lg" if eq else "eq", S_W, w))
        self("s_cbranch_scc1 %s" % L)
        return L
    def close(self, L): self("%s:" % L)
    def exec_set(self, mask):
        self("s_mov_b64 s[%d:%d], exec" % (S_SAVE, S_SAVE + 1))
        self("s_mov_b64 exec, %s" % mask)
    def exec_restore(self): self("s_mov_b64 exec, s[%d:%d]" % (S_SAVE, S_SAVE + 1))
    def rnd_pair(self, p, t):
        self("v_cvt_pk_bf16_f32 v%d, v%d, v%d" % (t, p, p + 1))
        self("v_lshlrev_b32 v%d, 16, v%d" % (p, t))
        self("v_and_b32 v%d, s%d, v%d" % (p + 1, S_MASK, t))
    def unpack(self, dst, src):
        self("v_lshlrev_b32 v%d, 16, v%d" % (dst, src))
        self("v_and_b32 v%d, s%d, v%d" % (dst + 1, S_MASK, src))
    def unpack_tile(self, dst, src):
        for i in range(10): self.unpack(dst + 2 * i, src + i)
    def rnd1(self, r, t):
        self("v_cvt_pk_bf16_f32 v%d, v%d, v%d" % (t, r, r))
        self("v_lshlrev_b32 v%d, 16, v%d" % (r, t))
    def xg_sum(self, r, t):
        self("v_mov_b32 v%d, v%d" % (t, r))
        self("v_permlane16_swap_b32 v%d, v%d" % (r, t))
        self("v_add_f32 v%d, v%d, v%d" % (r, r, t))
        self("v_mov_b32 v%d, v%d" % (t, r))
        self("v_permlane32_swap_b32 v%d, v%d" % (r, t))
        self("v_add_f32 v%d, v%d, v%d" % (r, r, t))
    def srd(self, q, ptr, nbytes, const=0, add_sgpr=None):
        self("s_add_u32 s%d, s%d, %d" % (q, ptr, const))
        self("s_addc_u32 s%d, s%d, 0" % (q + 1, ptr + 1))
        if add_sgpr is not None:
            self("s_add_u32 s%d, s%d, s%d" % (q, q, add_sgpr))
            self("s_addc_u32 s%d, s%d, 0" % (q + 1, q + 1))
        self("s_and_b32 s%d, s%d, 0xffff" % (q + 1, q + 1))
        self("s_mov_b32 s%d, %d" % (q + 2, nbytes))
        self("s_mov_b32 s%d, 0x20000" % (q + 3))
    def addr_pair(self, dst, ptr, const=0, add_sgpr=None):
        self("s_add_u32 s%d, s%d, %d" % (dst, ptr, const))
        self("s_addc_u32 s%d, s%d, 0" % (dst + 1, ptr + 1))
        if add_sgpr is not None:
            self("s_add_u32 s%d, s%d, s%d" % (dst, dst, add_sgpr))
            self("s_addc_u32 s%d, s%d, 0" % (dst + 1, dst + 1))
    def handoff_stores(self, lines, tagname="st", record=True):
        Ls, Ld = self.label("L_slow"), self.label("L_sd")
        self("s_cmp_eq_u32 s%d, 0" % S_MODE)
        self("s_cbranch_scc0 %s" % Ls)
        for l in lines: self(l + " " + getattr(self, "fastflag", ""))
        self("s_branch %s" % Ld)
        self("%s:" % Ls)
        for l in lines: self(l + " sc0 sc1")
        self("%s:" % Ld)
        if record:
            for l in lines: self.vmq.append(tagname)
    def rowbase(self):
        self("s_lshl_b32 s3, s%d, 8" % S_G)
        self("s_lshl_b32 s%d, s%d, 6" % (S_T0, S_RB))
        self("s_add_u32 s3, s3, s%d" % S_T0)
        self("s_lshl_b32 s%d, s%d, 4" % (S_T0, S_W))
        self("s_add_u32 s3, s3, s%d" % S_T0)

    def flag_store(self, base_pair, off_sgpr, val, device, vt=176):
        if isinstance(val, int): self("s_add_u32 s3, s%d, %d" % (S_TAG, val))
        else: self("s_add_u32 s3, s%d, %s" % (S_TAG, val))
        self("v_mov_b32 v%d, s3" % vt)
        self("s_xor_b32 s3, s3, s%d" % S_KX)
        self("v_mov_b32 v%d, s3" % (vt + 1))
        self("v_mov_b32 v%d, s%d" % (vt + 2, off_sgpr))
        self.exec_set("1")
        line = "global_store_dwordx2 v%d, %s, s[%d:%d]" % (vt + 2, vr(vt, 2), base_pair, base_pair + 1)
        if device: self(line + " sc0 sc1")
        else: self.handoff_stores([line], record=False)
        self.exec_restore()
    def pair_bad(self, w0, w1, lo, span, t, acc=None):
        self("v_subrev_u32 v%d, s%d, v%d" % (t, lo, w0))
        self("v_cmp_lt_u32 vcc, %d, v%d" % (span, t))
        self("v_xor_b32 v%d, v%d, v%d" % (t, w0, w1))
        self("v_cmp_ne_u32 s[%d:%d], s%d, v%d" % (S_M2, S_M2 + 1, S_KX, t))
        self("s_or_b64 s[%d:%d], vcc, s[%d:%d]" % (S_M2, S_M2 + 1, S_M2, S_M2 + 1))
    def poll_pairs(self, base_pair, voff, lo, span, vt, npair=1):
        L = self.label("L_poll")
        self("s_add_u32 s%d, s%d, %d" % (S_T0 + 5, S_TAG, lo))
        self("s_mov_b32 s%d, %d" % (S_TMO, TIMEOUT))
        self("%s:" % L)
        if npair == 1:
            self("global_load_dwordx2 %s, v%d, s[%d:%d] sc1" % (vr(vt, 2), voff, base_pair, base_pair + 1))
        else:
            for k in range(npair // 2):
                self("global_load_dwordx4 %s, v%d, s[%d:%d] offset:%d sc1" % (vr(vt + 4 * k, 4), voff, base_pair, base_pair + 1, 16 * k))
        self("s_sub_u32 s%d, s%d, 1" % (S_TMO, S_TMO))
        self("s_cmp_eq_u32 s%d, 0" % S_TMO)
        self("s_cbranch_scc1 L_abort")
        self("s_waitcnt vmcnt(0)")
        for k in range(npair):
            self.pair_bad(vt + 2 * k, vt + 2 * k + 1, S_T0 + 5, span, vt + 2 * npair)
            self("s_cbranch_scc1 %s" % L)

    def barrier_arrive(self, phase, drain=True, wave=0):
        if drain: self.wait_all()
        self("s_barrier")
        L = self.if_wave(wave)
        self("s_lshl_b32 s%d, s%d, 3" % (S_T0, S_J))
        self.flag_store(S_LFLAG, S_T0, phase, device=False)
        self.close(L)
    def pk_wait(self):
        L = self.if_wave(3)
        self.addr_pair(S_TMPP, P_WS, WS_PKFLAG)
        self("v_lshlrev_b32 v174, 5, v%d" % V_LANE)
        self.poll_pairs(S_TMPP, 174, 1, 0, 4, npair=4)
        self.stamp(40)
        self.close(L)
    def barrier_wait(self, phase, wave=0, vt=176):
        L = self.if_wave(wave)
        self("v_and_b32 v%d, 31, v%d" % (vt + 4, V_LANE))
        self("v_lshlrev_b32 v%d, 3, v%d" % (vt + 4, vt + 4))
        self.poll_pairs(S_LFLAG, vt + 4, phase, 7 - phase, vt)
        self.close(L)
        self("s_barrier")

    def prologue(self):
        self("s_cmp_ge_u32 s2, 256")
        self("s_cbranch_scc1 L_end")
        if self.o.get("dbgtime") or self.o.get("stamps"):
            self("s_memrealtime s[98:99]")
            self("s_memtime s[100:101]")
        self("s_load_dwordx16 s[16:31], s[0:1], 0")
        self("s_load_dwordx8 s[32:39], s[0:1], 64")
        self("s_and_b32 s%d, s2, 7" % S_G)
        self("s_lshr_b32 s%d, s2, 3" % S_J)
        self("v_lshrrev_b32 v4, 6, v0")
        self("v_readfirstlane_b32 s%d, v4" % S_W)
        self("v_and_b32 v%d, 63, v0" % V_LANE)
        self("v_and_b32 v%d, 15, v0" % V_L15)
        self("v_bfe_u32 v%d, v0, 4, 2" % V_G)
        self("s_getreg_b32 s%d, hwreg(HW_REG_XCC_ID, 0, 4)" % S_XCC)
        self("s_mov_b32 s%d, 0xffff0000" % S_MASK)
        self("s_lshr_b32 s%d, s%d, 3" % (S_RB, S_J))
        self("s_and_b32 s%d, s%d, 7" % (S_CS, S_J))
        self("s_lshr_b32 s%d, s%d, 4" % (S_RT, S_J))
        self("s_and_b32 s%d, s%d, 15" % (S_CT, S_J))
        self("s_mul_i32 s3, s%d, %d" % (S_CT, 11 * 4370))
        self("s_lshr_b32 s3, s3, 16")
        self("s_mul_i32 s%d, s%d, 6" % (S_UOFF, S_CT))
        self("s_add_u32 s%d, s%d, s3" % (S_UOFF, S_UOFF))
        self("s_mov_b32 s%d, 0" % S_MODE)
        self("s_waitcnt lgkmcnt(0)")
        wsb = self.o.get("wsbase", 0)
        if wsb:
            self("s_add_u32 s%d, s%d, 0x%x" % (P_WS, P_WS, wsb))
            self("s_addc_u32 s%d, s%d, 0" % (P_WS + 1, P_WS + 1))
        self("s_load_dword s%d, s[%d:%d], %d" % (S_TAG, P_WS, P_WS + 1, WS_EPOCH))
        self("s_mov_b32 s%d, 0x%x" % (S_KX, KX))
        self("s_lshl_b32 s3, s%d, 8" % S_G)
        self.addr_pair(S_LFLAG, P_WS, WS_LFLAG, 3)

    def repack_issue(self):
        L = self.if_wave(3)
        row, ch, off = 100, 101, 102
        self("v_lshrrev_b32 v%d, 3, v%d" % (row, V_LANE))
        self("v_and_b32 v%d, 7, v%d" % (ch, V_LANE))
        self("v_lshlrev_b32 v%d, 4, v%d" % (ch, ch))
        self("v_mul_u32_u24 v%d, 1280, v%d" % (103, row))
        self("v_add_u32 v%d, v%d, v%d" % (103, 103, ch))
        for k in range(3):
            Lk = None
            if k == 2:
                Lk = self.label("L_rp3")
                self("s_cmp_ge_u32 s2, 28")
                self("s_cbranch_scc1 %s" % Lk)
            a, b = S_T0, S_T0 + 1
            self("s_add_u32 s%d, s2, %d" % (S_T0 + 3, 256 * k))
            self("s_mul_hi_u32 s%d, s%d, %d" % (a, S_T0 + 3, (1 << 32) // 10 + 1))
            self("s_mul_i32 s%d, s%d, 10" % (b, a))
            self("s_sub_u32 s%d, s%d, s%d" % (b, S_T0 + 3, b))
            self("s_mul_i32 s3, s%d, %d" % (a, 32 * 1280))
            self("s_lshl_b32 s%d, s%d, 7" % (S_T0 + 2, b))
            self("s_add_u32 s3, s3, s%d" % (S_T0 + 2))
            self.addr_pair(S_TMPP, P_W2, 0, 3)
            self("s_mul_i32 s3, s%d, 40" % a)
            self("s_lshl_b32 s%d, s%d, 2" % (b, b))
            self("s_add_u32 s3, s3, s%d" % b)
            self("s_lshl_b32 s3, s3, 10")
            self("s_add_u32 s%d, s3, %d" % (74 + k, WS_W2P))
            self("v_mov_b32 v%d, v103" % off)
            for r in range(4):
                self("s_mov_b32 m0, %d" % (LDS_RP + 4096 * k + 1024 * r))
                if r: self("v_add_u32 v%d, %d, v%d" % (off, 8 * 1280, off))
                self("global_load_lds_dwordx4 v%d, s[%d:%d] %s" % (off, S_TMPP, S_TMPP + 1, self.o.get("nt_w", "nt")))
            if Lk: self("%s:" % Lk)
        self("s_lshl_b32 s3, s%d, 8" % S_G)
        self("s_lshl_b32 s%d, s%d, 6" % (S_T0, S_RB))
        self("s_add_u32 s3, s3, s%d" % S_T0)
        self("s_mul_i32 s3, s3, 1280")
        self("s_mul_i32 s%d, s%d, 160" % (S_T0, S_CS))
        self("s_add_u32 s3, s3, s%d" % S_T0)
        self.addr_pair(S_TMPP, P_Q, 0, 3)
        self("s_mov_b32 s%d, %d" % (S_T0, (1 << 32) // 10 + 1))
        for i in range(10):
            self("v_add_u32 v%d, %d, v%d" % (off, 64 * i, V_LANE))
            self("v_mul_hi_u32 v%d, v%d, s%d" % (row, off, S_T0))
            self("v_mul_u32_u24 v%d, 10, v%d" % (ch, row))
            self("v_sub_u32 v%d, v%d, v%d" % (ch, off, ch))
            self("v_mul_u32_u24 v%d, 1280, v%d" % (row, row))
            self("v_lshl_add_u32 v%d, v%d, 4, v%d" % (off, ch, row))
            self("s_mov_b32 m0, %d" % (LDS_Q + 1024 * i))
            self("global_load_lds_dwordx4 v%d, s[%d:%d]" % (off, S_TMPP, S_TMPP + 1))
        self.close(L)
    def repack_finish(self):
        a, sa = 100, 101
        self("s_waitcnt vmcnt(0)")
        self("v_bfe_u32 v%d, v%d, 2, 2" % (a, V_LANE))
        self("v_lshl_add_u32 v%d, v%d, 2, v%d" % (a, V_G, a))
        self("v_lshlrev_b32 v%d, 7, v%d" % (a, a))
        self("v_and_b32 v%d, 3, v%d" % (sa, V_LANE))
        self("v_lshl_add_u32 v%d, v%d, 3, v%d" % (a, sa, a))
        self("v_add_u32 v%d, %d, v%d" % (a, LDS_RP, a))
        for k in range(3):
            Lk = None
            if k == 2:
                Lk = self.label("L_rf3")
                self("s_cmp_ge_u32 s2, 28")
                self("s_cbranch_scc1 %s" % Lk)
            F = 104 + 16 * k
            for u in range(4):
                for h in range(2):
                    self("ds_read_b64_tr_b16 %s, v%d offset:%d" % (vr(F + 4 * u + 2 * h, 2), a, 4096 * k + h * 2048 + 32 * u))
            self("v_lshlrev_b32 v%d, 4, v%d" % (sa, V_LANE))
            self("v_add_u32 v%d, s%d, v%d" % (sa, 74 + k, sa))
            self("s_waitcnt lgkmcnt(0)")
            for u in range(4):
                self("global_store_dwordx4 v%d, %s, s[%d:%d] offset:%d sc0 sc1" % (sa, vr(F + 4 * u, 4), P_WS, P_WS + 1, 1024 * u))
            if Lk: self("%s:" % Lk)

    def prep_loads(self):
        KR, VR, TAP, RAW = 4, 34, 46, 66
        self.KR, self.VR, self.TAP, self.RAW = KR, VR, TAP, RAW
        c10, rp, off = 110, 111, 112
        self("v_and_b32 v%d, 7, v0" % c10)
        self("v_lshrrev_b32 v%d, 3, v0" % rp)
        self("s_lshl_b32 s3, s%d, 6" % S_J)
        self("s_sub_u32 s3, s3, 3")
        self("v_lshlrev_b32 v%d, 1, v%d" % (off, rp))
        self("v_add_u32 v%d, s3, v%d" % (off, off))
        self("s_movk_i32 s%d, 1280" % S_T0)
        self("v_mul_lo_u32 v%d, v%d, s%d" % (off, off, S_T0))
        self("s_mul_i32 s3, s%d, 160" % S_G)
        self("v_mul_u32_u24 v%d, 20, v%d" % (off + 1, c10))
        self("v_add3_u32 v%d, v%d, v%d, s3" % (off, off, off + 1))
        self.srd(SRD_A, P_K, 2621440)
        self.srd(SRD_B, P_V, 2621440)
        nk = self.o.get("nt_kv", "")
        offs = [off]
        for r in range(1, 5):
            self("v_add_u32 v%d, %d, v%d" % (off + 1 + r, 1280 * r, off))
            offs.append(off + 1 + r)
        for r in range(5):
            self.vm("buffer_load_dwordx4 %s, v%d, s[%d:%d], 0 offen %s" % (vr(KR + 6 * r, 4), offs[r], SRD_A, SRD_A + 3, nk), "k")
            self.vm("buffer_load_dword v%d, v%d, s[%d:%d], 0 offen offset:16 %s" % (KR + 6 * r + 4, offs[r], SRD_A, SRD_A + 3, nk), "k")
        for r in range(2):
            self.vm("buffer_load_dwordx4 %s, v%d, s[%d:%d], 0 offen %s" % (vr(VR + 6 * r, 4), offs[3 + r], SRD_B, SRD_B + 3, nk), "v")
            self.vm("buffer_load_dword v%d, v%d, s[%d:%d], 0 offen offset:16 %s" % (VR + 6 * r + 4, offs[3 + r], SRD_B, SRD_B + 3, nk), "v")
        t = off + 7
        self("s_mul_i32 s3, s%d, 640" % S_G)
        self("v_mul_u32_u24 v%d, 80, v%d" % (t, c10))
        self("v_add_u32 v%d, s3, v%d" % (t, t))
        for i in range(5):
            self.vm("global_load_dwordx4 %s, v%d, s[%d:%d] offset:%d" % (vr(TAP + 4 * i, 4), t, P_SK, P_SK + 1, 16 * i), "tap")
        self("s_lshl_b32 s3, s%d, 5" % S_W)
        self("s_add_u32 s3, s3, s%d" % S_J)
        self("s_cmp_lt_u32 s3, 80")
        self("s_cselect_b32 s%d, 1, 0" % S_HASCH)
        self("s_cselect_b32 s3, s3, 0")
        self("s_mul_i32 s%d, s%d, 80" % (S_CH, S_G))
        self("s_add_u32 s%d, s%d, s3" % (S_CH, S_CH))
        self("s_mul_i32 s%d, s%d, %d" % (S_SLOT, S_W, SLOT))
        self("s_cmp_lt_u32 s%d, 3" % S_W)
        self("s_cselect_b32 s%d, s%d, 0" % (S_SLOT, S_SLOT))
        self("s_lshl_b32 s3, s%d, 1" % S_CH)
        self("s_and_b32 s3, s3, 0xfffffffc")
        self("s_load_dword s%d, s[%d:%d], s3" % (S_DVAL, P_D, P_D + 1))
        self("s_lshl_b32 s3, s%d, 12" % S_CH)
        self.srd(52, P_SSM, 4096, add_sgpr=3)
        a = off + 10
        Lr = self.if_wave(3, eq=False)
        self("v_lshlrev_b32 v%d, 4, v%d" % (a, V_LANE))
        for r in range(4):
            self("v_add_u32 v%d, %d, v%d" % (a + 1, (1024 * r - 16) & 0xffffffff, a))
            self("buffer_load_dwordx4 %s, v%d, s[52:55], 0 offen %s" % (vr(RAW + 8 * r, 4), a + 1, self.o.get("nt_s", "")))
            self("buffer_load_dwordx4 %s, v%d, s[52:55], 0 offen offset:%d %s" % (vr(RAW + 8 * r + 4, 4), a, 1024 * r, self.o.get("nt_s", "")))
        self.close(Lr)
        La, Lb = self.label("L_pt"), self.label("L_ptd")
        self("s_cmp_ge_u32 s%d, 2" % S_W)
        self("s_cbranch_scc1 %s" % La)
        self("s_lshl_b32 s3, s%d, 6" % S_W)
        self("v_add_u32 v%d, s3, v%d" % (a, V_LANE))
        self("v_min_u32 v%d, 79, v%d" % (a, a))
        self("v_lshlrev_b32 v%d, 12, v%d" % (a, a))
        self("s_mul_i32 s3, s%d, %d" % (S_G, 80 * 4096))
        self("s_sub_u32 s%d, 31, s%d" % (S_T0, S_J))
        self("s_lshl_b32 s%d, s%d, 7" % (S_T0, S_T0))
        self("s_add_u32 s3, s3, s%d" % S_T0)
        self("s_add_u32 s3, s3, %d" % WS_UR)
        self("v_add_u32 v%d, s3, v%d" % (a, a))
        self("global_load_dword v%d, v%d, s[%d:%d]" % (a + 1, a, P_WS, P_WS + 1))
        self("s_branch %s" % Lb)
        self("%s:" % La)
        self("v_and_b32 v%d, 1, v%d" % (a, V_LANE))
        self("v_lshlrev_b32 v%d, 7, v%d" % (a, a))
        self("global_load_dword v%d, v%d, s[%d:%d]" % (a + 1, a, S_LFLAG, S_LFLAG + 1))
        self("%s:" % Lb)
        if self.o.get("codepf", 1):
            L = self.if_wave(1)
            self("s_getpc_b64 s[%d:%d]" % (S_TMPP, S_TMPP + 1))
            self("L_pcref:")
            self("s_sub_u32 s%d, s%d, (L_pcref - %s)" % (S_TMPP, S_TMPP, KNAME))
            self("s_subb_u32 s%d, s%d, 0" % (S_TMPP + 1, S_TMPP + 1))
            nl = self.o.get("codelines", 640)
            per = -(-nl // 32)
            self("s_mul_i32 s3, s%d, %d" % (S_J, per))
            self("v_add_u32 v%d, s3, v%d" % (a, V_LANE))
            self("v_min_u32 v%d, (L_end - %s) / 128, v%d" % (a, KNAME, a))
            self("v_lshlrev_b32 v%d, 7, v%d" % (a, a))
            self("s_mov_b64 s[%d:%d], exec" % (S_SAVE, S_SAVE + 1))
            self("s_bfm_b64 exec, %d, 0" % per)
            self("global_load_dword v%d, v%d, s[%d:%d]" % (a + 1, a, S_TMPP, S_TMPP + 1))
            self.exec_restore()
            self.close(L)
        self.repack_issue()
        if self.o.get("pw0"):
            for i in range(4): self("v_mov_b32 v%d, -1" % (104 + i))
            self("s_lshl_b32 s%d, s%d, 2" % (S_T0, S_J))
            self("s_add_u32 s%d, s%d, s%d" % (S_T0, S_T0, S_W))
            for (base, gsz, per) in ((WS_HF1, 16 * 54 * 1024, 6912), (WS_XF1, 16 * 20 * 1024, 2560), (WS_XF3, 16 * 20 * 1024, 2560)):
                self("s_mul_i32 s3, s%d, %d" % (S_G, gsz))
                self("s_mul_i32 s%d, s%d, %d" % (S_T0 + 1, S_T0, per))
                self("s_add_u32 s3, s3, s%d" % (S_T0 + 1))
                self("s_add_u32 s3, s3, %d" % base)
                self("v_lshlrev_b32 v108, 4, v%d" % V_LANE)
                self("v_add_u32 v108, s3, v108")
                n = -(-per // 1024)
                for i in range(n):
                    rem = per - 1024 * i
                    if rem < 1024:
                        self("s_mov_b64 s[%d:%d], exec" % (S_SAVE, S_SAVE + 1))
                        self("s_bfm_b64 exec, %d, 0" % (rem // 16))
                    if i == 4: self("v_add_u32 v108, 4096, v108")
                    self("global_store_dwordx4 v108, v[104:107], s[%d:%d] offset:%d sc0 sc1" % (P_WS, P_WS + 1, 1024 * (i % 4)))
                    if rem < 1024: self.exec_restore()
            self.NPW = 13
        self("s_waitcnt lgkmcnt(0)")
        self("s_add_u32 s%d, s%d, 0x%x" % (S_TAG, S_TAG, TAG0))
        L = self.if_wave(0)
        self("s_lshl_b32 s%d, s%d, 8" % (S_T0, S_G))
        self("s_lshl_b32 s%d, s%d, 3" % (S_T0 + 1, S_J))
        self("s_add_u32 s%d, s%d, s%d" % (S_T0, S_T0, S_T0 + 1))
        self("s_add_u32 s%d, s%d, %d" % (S_T0, S_T0, WS_XCCF))
        self.flag_store(P_WS, S_T0, "s%d" % S_XCC, device=True)
        self.close(L)

    def window_stores(self):
        a = 160
        self("s_lshl_b32 s3, s%d, 8" % S_G)
        self("s_lshl_b32 s%d, s%d, 6" % (S_T0, S_RB))
        self("s_add_u32 s3, s3, s%d" % S_T0)
        self("s_lshl_b32 s%d, s%d, 3" % (S_T0, S_CS))
        self("s_add_u32 s3, s3, s%d" % S_T0)
        self("v_and_b32 v%d, 7, v%d" % (a, V_LANE))
        self("v_add_u32 v%d, s3, v%d" % (a, a))
        self("v_lshlrev_b32 v%d, 7, v%d" % (a, a))
        self("v_bfe_u32 v%d, v%d, 3, 2" % (a + 1, V_LANE))
        self("v_mul_u32_u24 v%d, %d, v%d" % (a + 1, STAT_SZ, a + 1))
        self("v_add_u32 v%d, v%d, v%d" % (a, a, a + 1))
        self("v_add_u32 v%d, %d, v%d" % (a, WS_STAT, a))
        self("global_load_dword a0, v%d, s[%d:%d]" % (a, P_WS, P_WS + 1))
        if not self.o.get("prewrite", 0): return
        for i in range(4): self("v_mov_b32 v%d, -1" % (164 + i))
        self("s_mul_i32 s3, s%d, %d" % (S_G, 16 * 54 * 1024))
        self("s_mul_i32 s%d, s%d, %d" % (S_T0, S_J, 27 * 1024))
        self("s_add_u32 s3, s3, s%d" % S_T0)
        self("s_add_u32 s3, s3, %d" % WS_HF1)
        self("v_lshlrev_b32 v%d, 4, v%d" % (a, V_LANE))
        self("v_add_u32 v%d, s3, v%d" % (a, a))
        for i in range(27):
            if i and i % 4 == 0: self("v_add_u32 v%d, 4096, v%d" % (a, a))
            self("global_store_dwordx4 v%d, v[164:167], s[%d:%d] offset:%d sc0 sc1" % (a, P_WS, P_WS + 1, 1024 * (i % 4)))

    def prep_compute(self):
        KR, VR, TAP = self.KR, self.VR, self.TAP
        Kp, Tp, Vp = 124, 134, 142
        A0, A1, P0, P1, t0, t1 = 146, 148, 150, 152, 154, 155
        O0, O1 = 156, 157
        lad = 158
        self("v_and_b32 v%d, 7, v0" % lad)
        self("v_mul_u32_u24 v%d, %d, v%d" % (lad, 10 * T_STRIDE, lad))
        self("v_lshrrev_b32 v%d, 3, v0" % (lad + 1))
        self("v_lshlrev_b32 v%d, 2, v%d" % (lad + 1, lad + 1))
        self("v_sub_u32 v%d, v%d, v%d" % (lad, lad, lad + 1))
        self("v_add_u32 v%d, %d, v%d" % (lad, LDS_T + 124, lad))
        L3, Ld = self.label("L_w3"), self.label("L_w3d")
        self("s_cmp_eq_u32 s%d, 3" % S_W)
        self("s_cbranch_scc1 %s" % L3)
        npw = getattr(self, "NPW", 0)
        self("s_waitcnt vmcnt(%d)" % (8 + npw))
        self("s_branch %s" % Ld)
        self("%s:" % L3)
        self("s_waitcnt vmcnt(%d)" % (18 + npw))
        self("%s:" % Ld)
        self.vmq = []
        self.stamp(39)
        pk = lambda op, d, a, b: self("v_pk_%s_f32 %s, %s, %s" % (op, vr(d, 2), vr(a, 2), vr(b, 2)))
        for i in range(5):
            for r in range(5): self.unpack(Kp + 2 * r, KR + 6 * r + i)
            for t in range(4):
                s0 = TAP + 4 * i + (t >> 1); s1 = s0 + 2
                if t & 1:
                    self("v_and_b32 v%d, s%d, v%d" % (Tp + 2 * t, S_MASK, s0))
                    self("v_and_b32 v%d, s%d, v%d" % (Tp + 2 * t + 1, S_MASK, s1))
                else:
                    self("v_lshlrev_b32 v%d, 16, v%d" % (Tp + 2 * t, s0))
                    self("v_lshlrev_b32 v%d, 16, v%d" % (Tp + 2 * t + 1, s1))
            for r in range(2): self.unpack(Vp + 2 * r, VR + 6 * r + i)
            pk("mul", A0, Kp + 0, Tp + 6); pk("mul", A1, Kp + 2, Tp + 6)
            self.rnd_pair(A0, t0); self.rnd_pair(A1, t1)
            for step in range(1, 4):
                T = Tp + 2 * (3 - step)
                pk("mul", P0, Kp + 2 * step, T); pk("mul", P1, Kp + 2 * (step + 1), T)
                self.rnd_pair(P0, t0); self.rnd_pair(P1, t1)
                pk("add", A0, A0, P0); pk("add", A1, A1, P1)
                self.rnd_pair(A0, t0); self.rnd_pair(A1, t1)
            pk("mul", A0, A0, Vp + 0); pk("mul", A1, A1, Vp + 2)
            self("v_cvt_pk_bf16_f32 v%d, v%d, v%d" % (O0, A1, A0))
            self("v_cvt_pk_bf16_f32 v%d, v%d, v%d" % (O1, A1 + 1, A0 + 1))
            self.lg("ds_write_b32 v%d, v%d offset:%d" % (lad, O0, (2 * i) * T_STRIDE), "tw")
            self.lg("ds_write_b32 v%d, v%d offset:%d" % (lad, O1, (2 * i + 1) * T_STRIDE), "tw")

    def mode_check(self, vt=176):
        L = self.if_wave(0)
        self("s_lshl_b32 s3, s%d, 8" % S_G)
        self.addr_pair(S_TMPP, P_WS, WS_XCCF, 3)
        self("v_and_b32 v%d, 31, v%d" % (vt + 4, V_LANE))
        self("v_lshlrev_b32 v%d, 3, v%d" % (vt + 4, vt + 4))
        self.poll_pairs(S_TMPP, vt + 4, 0, 7, vt)
        self("s_add_u32 s3, s%d, s%d" % (S_TAG, S_XCC))
        self("v_cmp_ne_u32 vcc, s3, v%d" % vt)
        self("s_nop 1")
        self("s_cmp_lg_u64 vcc, 0")
        self("s_cselect_b32 s%d, 1, 0" % S_MODE)
        if self.o.get("force_slow"): self("s_mov_b32 s%d, 1" % S_MODE)
        self("v_mov_b32 v%d, s%d" % (vt, S_MODE))
        self("v_mov_b32 v%d, %d" % (vt + 1, LDS_MODE))
        self("ds_write_b32 v%d, v%d" % (vt + 1, vt))
        self.close(L)
    def mode_fetch(self, vt=176):
        self("v_mov_b32 v%d, %d" % (vt + 1, LDS_MODE))
        self("ds_read_b32 v%d, v%d" % (vt, vt + 1))
        self("s_waitcnt lgkmcnt(0)")
        self("v_readfirstlane_b32 s%d, v%d" % (S_MODE, vt))
        self.lgq = []
        alias = self.o.get("alias", 1)
        self("s_mov_b32 s%d, %d" % (S_XO1, WS_UR if alias else WS_XF1))
        self("s_mov_b32 s%d, %d" % (S_XO3, WS_UR if alias else WS_XF3))
        self("s_mov_b32 s%d, %d" % (S_HO2, WS_HF1 if alias else WS_HF2))
        L = self.label("L_al")
        self("s_cmp_eq_u32 s%d, 0" % S_MODE)
        self("s_cbranch_scc1 %s" % L)
        self("s_mov_b32 s%d, %d" % (S_XO1, WS_XF1))
        self("s_mov_b32 s%d, %d" % (S_XO3, WS_XF3))
        self("s_mov_b32 s%d, %d" % (S_HO2, WS_HF2))
        self("%s:" % L)

    def stats_addr_items(self, va, vb):
        g = Gen()
        g("s_lshl_b32 s97, s%d, 8" % S_G)
        g("s_lshl_b32 s98, s%d, 6" % S_RB) if False else None
        g("s_lshl_b32 s100, s%d, 6" % S_RB)
        g("s_add_u32 s97, s97, s100")
        g("s_lshl_b32 s100, s%d, 4" % S_W)
        g("s_add_u32 s97, s97, s100")
        g("v_add_u32 v%d, s97, v%d" % (vb, V_L15))
        g("v_lshlrev_b32 v%d, 7, v%d" % (vb, vb))
        g("s_lshl_b32 s100, s%d, 4" % S_CS)
        g("v_add_u32 v%d, s100, v%d" % (va, vb))
        g("v_lshl_add_u32 v%d, v%d, 5, v%d" % (vb, V_G, vb))
        return [i.text.strip() for i in g.ins]
    def tile_stats(self, xf, buf, tmp, va=None):
        s, t = tmp, tmp + 4
        d = tmp + 6
        m2 = tmp + 26
        pk = lambda op, dd, a, b: self("v_pk_%s_f32 %s, %s, %s" % (op, vr(dd, 2), vr(a, 2), vr(b, 2)))
        pk("add", s, xf, xf + 2); pk("add", s + 2, xf + 4, xf + 6)
        for i in range(4, 10, 2):
            pk("add", s, s, xf + 2 * i); pk("add", s + 2, s + 2, xf + 2 * i + 2)
        pk("add", s, s, s + 2)
        self("v_add_f32 v%d, v%d, v%d" % (s, s, s + 1))
        self.xg_sum(s, t)
        self("v_mul_f32 v%d, 0x3c4ccccd, v%d" % (s, s))
        for i in range(10):
            self("v_pk_add_f32 %s, %s, %s op_sel_hi:[1,0] neg_lo:[0,1] neg_hi:[0,1]" % (vr(d + 2 * i, 2), vr(xf + 2 * i, 2), vr(s, 2)))
        pk("mul", m2, d, d); pk("mul", s + 2, d + 2, d + 2)
        for i in range(2, 10, 2):
            self("v_pk_fma_f32 %s, %s, %s, %s" % (vr(m2, 2), vr(d + 2 * i, 2), vr(d + 2 * i, 2), vr(m2, 2)))
            self("v_pk_fma_f32 %s, %s, %s, %s" % (vr(s + 2, 2), vr(d + 2 * i + 2, 2), vr(d + 2 * i + 2, 2), vr(s + 2, 2)))
        pk("add", m2, m2, s + 2)
        self("v_add_f32 v%d, v%d, v%d" % (s + 1, m2, m2 + 1))
        self("s_add_u32 s3, s%d, %d" % (S_TAG, buf))
        self("v_mov_b32 v%d, s3" % (s + 2))
        self.xg_sum(s + 1, t)
        self("s_xor_b32 s3, s3, s%d" % S_KX)
        self("v_mov_b32 v%d, s3" % (s + 3))
        if va is None:
            for l in self.stats_addr_items(t, t + 1): self(l)
            va = t
        self.addr_pair(S_TMPP, P_WS, WS_STAT + buf * STAT_SZ)
        self.exec_set("0xffff")
        self.handoff_stores(["global_store_dwordx4 v%d, %s, s[%d:%d]" % (va, vr(s, 4), S_TMPP, S_TMPP + 1)], "stat")
        self.exec_restore()
    def row_stats_issue(self, buf, tmp, vb=None):
        a = tmp + 8
        if vb is not None:
            self("v_add_u32 v%d, %d, v%d" % (a, WS_STAT + buf * STAT_SZ, vb))
        else:
            self.rowbase()
            self("s_lshl_b32 s3, s3, 7")
            self("s_add_u32 s3, s3, %d" % (WS_STAT + buf * STAT_SZ))
            self("v_lshlrev_b32 v%d, 7, v%d" % (a, V_L15))
            self("v_lshl_add_u32 v%d, v%d, 5, v%d" % (a, V_G, a))
            self("v_add_u32 v%d, s3, v%d" % (a, a))
        for k in range(2):
            self.vm("global_load_dwordx4 %s, v%d, s[%d:%d] offset:%d sc1" % (vr(tmp + 4 * k, 4), a, P_WS, P_WS + 1, 16 * k), "rs")
    def row_stats_validate(self, buf, tmp):
        Lr, Lo = self.label("L_rsr"), self.label("L_rso")
        self("s_add_u32 s%d, s%d, %d" % (S_T0 + 5, S_TAG, buf))
        self("s_mov_b32 s%d, %d" % (S_TMO, TIMEOUT))
        self("%s:" % Lr)
        self.pair_bad(tmp + 2, tmp + 3, S_T0 + 5, 0, tmp + 9)
        self("s_mov_b64 s[%d:%d], s[%d:%d]" % (S_TMPQ, S_TMPQ + 1, S_M2, S_M2 + 1))
        self.pair_bad(tmp + 6, tmp + 7, S_T0 + 5, 0, tmp + 9)
        self("s_or_b64 s[%d:%d], s[%d:%d], s[%d:%d]" % (S_M2, S_M2 + 1, S_M2, S_M2 + 1, S_TMPQ, S_TMPQ + 1))
        self("s_cbranch_scc0 %s" % Lo)
        self("s_sub_u32 s%d, s%d, 1" % (S_TMO, S_TMO))
        self("s_cmp_eq_u32 s%d, 0" % S_TMO)
        self("s_cbranch_scc1 L_abort")
        for k in range(2):
            self("global_load_dwordx4 %s, v%d, s[%d:%d] offset:%d sc1" % (vr(tmp + 4 * k, 4), tmp + 8, P_WS, P_WS + 1, 16 * k))
        self("s_waitcnt vmcnt(0)")
        self("s_branch %s" % Lr)
        self("%s:" % Lo)
        self("v_mov_b32 v%d, v%d" % (tmp + 2, tmp + 4))
        self("v_mov_b32 v%d, v%d" % (tmp + 3, tmp + 5))
    def row_stats_finish_items(self, tmp, out_m, out_rs):
        m0, q0, m1, q1 = tmp, tmp + 1, tmp + 2, tmp + 3
        s, t = tmp + 4, tmp + 5
        g = Gen()
        def xs(r):
            g("v_mov_b32 v%d, v%d" % (t, r)); g("v_permlane16_swap_b32 v%d, v%d" % (r, t)); g("v_add_f32 v%d, v%d, v%d" % (r, r, t))
            g("v_mov_b32 v%d, v%d" % (t, r)); g("v_permlane32_swap_b32 v%d, v%d" % (r, t)); g("v_add_f32 v%d, v%d, v%d" % (r, r, t))
        def r1(r):
            g("v_cvt_pk_bf16_f32 v%d, v%d, v%d" % (t, r, r)); g("v_lshlrev_b32 v%d, 16, v%d" % (r, t))
        g("v_add_f32 v%d, v%d, v%d" % (s, m0, m1)); xs(s)
        g("v_mul_f32 v%d, 0x3e000000, v%d" % (s, s))
        g("v_sub_f32 v%d, v%d, v%d" % (m0, m0, s)); g("v_sub_f32 v%d, v%d, v%d" % (m1, m1, s))
        g("v_mul_f32 v%d, v%d, v%d" % (m0, m0, m0)); g("v_fmac_f32 v%d, v%d, v%d" % (m0, m1, m1))
        g("v_add_f32 v%d, v%d, v%d" % (q0, q0, q1))
        g("v_mov_b32 v%d, 0x42a00000" % t); g("v_fmac_f32 v%d, v%d, v%d" % (q0, m0, t)); xs(q0)
        g("v_mul_f32 v%d, 0x3acccccd, v%d" % (q0, q0)); r1(q0)
        g("v_add_f32 v%d, 0x3727c5ac, v%d" % (q0, q0)); r1(q0)
        g("v_sqrt_f32 v%d, v%d" % (q0, q0)); g("s_nop 0"); r1(q0)
        g("v_rcp_f32 v%d, v%d" % (out_rs, q0)); r1(s)
        g("v_mov_b32 v%d, v%d" % (out_m, s))
        return [i.text.strip() for i in g.ins]
    def row_stats_finish(self, tmp, out_m, out_rs):
        for l in self.row_stats_finish_items(tmp, out_m, out_rs): self(l)

    def prep_store_ur(self):
        L3 = self.if_wave(3, eq=False)
        a, b = 100, 101
        self("v_lshrrev_b32 v%d, 3, v0" % a)
        self("v_and_b32 v%d, 7, v0" % b)
        self("v_lshlrev_b32 v%d, 4, v%d" % (b, b))
        self("v_mul_u32_u24 v%d, %d, v%d" % (102, T_STRIDE, a))
        self("v_add3_u32 v%d, v%d, v%d, 0" % (102, 102, b))
        self("v_add_u32 v%d, %d, v%d" % (102, LDS_T, 102))
        self("s_mul_i32 s3, s%d, %d" % (S_G, 80 * 4096))
        self("s_sub_u32 s%d, 31, s%d" % (S_T0, S_J))
        self("s_lshl_b32 s%d, s%d, 7" % (S_T0, S_T0))
        self("s_add_u32 s3, s3, s%d" % S_T0)
        self("s_add_u32 s3, s3, %d" % WS_UR)
        self("v_lshlrev_b32 v%d, 12, v%d" % (103, a))
        self("v_add3_u32 v%d, v%d, v%d, s3" % (103, 103, b))
        for r in range(3):
            self("ds_read_b128 %s, v102 offset:%d" % (vr(104 + 4 * r, 4), 24 * T_STRIDE * r))
        L = self.if_wave(0)
        self("ds_read_b128 v[116:119], v102 offset:%d" % (24 * T_STRIDE * 3))
        self.close(L)
        self("v_add_u32 v120, %d, v103" % (24 * 4096))
        self("v_add_u32 v121, %d, v103" % (48 * 4096))
        self("v_add_u32 v122, %d, v103" % (72 * 4096))
        self("s_waitcnt lgkmcnt(0)")
        p = "s[%d:%d]" % (P_WS, P_WS + 1)
        self.handoff_stores(["global_store_dwordx4 v103, v[104:107], " + p, "global_store_dwordx4 v120, v[108:111], " + p,
                             "global_store_dwordx4 v121, v[112:115], " + p], record=False)
        L = self.if_wave(0)
        self.handoff_stores(["global_store_dwordx4 v122, v[116:119], " + p], record=False)
        self.close(L)
        self("s_waitcnt vmcnt(0)")
        self.close(L3)
        self.lgq = []; self.vmq = []

    def build_kcopies(self):
        RAW = self.RAW
        SETS = [(110, 116, 122), (134, 140, 146)]
        ad, z = 128, 130
        L = self.label("L_kc")
        self("s_cmp_eq_u32 s%d, 0" % S_HASCH)
        self("s_cbranch_scc1 %s" % L)
        self("v_lshlrev_b32 v%d, 4, v%d" % (ad, V_LANE))
        self("s_add_u32 s3, s%d, 16" % S_SLOT)
        self("v_add_u32 v%d, s3, v%d" % (ad, ad))
        for r in range(4):
            R = RAW + 8 * r
            A, B, C = SETS[r & 1]
            if r >= 2: self("s_waitcnt lgkmcnt(8)")
            for i in range(6):
                self("v_alignbit_b32 v%d, v%d, v%d, 16" % (A + i, R + i + 1, R + i))
            for i in range(6):
                self("v_alignbit_b32 v%d, v%d, v%d, 16" % (B + i, R + i + 2, R + i + 1))
            for i in range(6):
                self("v_mov_b32 v%d, v%d" % (C + i, R + i + 1))
            src = {0: A, 1: C, 2: B, 3: R + 2, 4: A + 2, 5: C + 2, 6: B + 2, 7: R + 4}
            for c in range(8):
                self("ds_write_b128 v%d, %s offset:%d" % (ad, vr(src[c], 4), c * KC_STRIDE + 1024 * r))
        for i in range(4): self("v_mov_b32 v%d, 0" % (z + i))
        self("v_mul_u32_u24 v%d, %d, v%d" % (ad + 1, KC_STRIDE, V_LANE))
        self("v_add_u32 v%d, s%d, v%d" % (ad + 1, S_SLOT, ad + 1))
        self.exec_set("0xff")
        self("ds_write_b128 v%d, %s" % (ad + 1, vr(z, 4)))
        self("s_mov_b64 exec, 0x3fffffff")
        self("v_lshlrev_b32 v%d, 4, v%d" % (ad + 1, V_LANE))
        self("s_add_u32 s3, s%d, %d" % (S_SLOT, U_OFF + 4096))
        self("v_add_u32 v%d, s3, v%d" % (ad + 1, ad + 1))
        self("ds_write_b128 v%d, %s" % (ad + 1, vr(z, 4)))
        self.exec_restore()
        self("%s:" % L)
        self("s_waitcnt lgkmcnt(0)")
        self.lgq = []

    def conv(self):
        Lskip = self.label("L_conv_skip"); Ldone = self.label("L_conv_done")
        self("s_cmp_eq_u32 s%d, 0" % S_HASCH)
        self("s_cbranch_scc1 %s" % Lskip)
        self("s_lshl_b32 s3, s%d, 12" % S_CH)
        self.addr_pair(S_TMPP, P_WS, WS_UR, 3)
        a = 164
        self("v_lshlrev_b32 v%d, 4, v%d" % (a, V_LANE))
        for r in range(4):
            self("s_add_u32 m0, s%d, %d" % (S_SLOT, U_OFF + 1024 * r))
            self("v_add_u32 v%d, %d, v%d" % (a + 1, 1024 * r, a))
            self.vm("global_load_lds_dwordx4 v%d, s[%d:%d]" % (a + 1, S_TMPP, S_TMPP + 1), "u")
        self("s_and_b32 s3, s%d, 1" % S_CH)
        self("s_lshl_b32 s%d, s%d, 16" % (S_T0, S_DVAL))
        self("s_and_b32 s%d, s%d, 0xffff0000" % (S_DVAL, S_DVAL))
        self("s_cmp_eq_u32 s3, 0")
        self("s_cselect_b32 s%d, s%d, s%d" % (S_DVAL, S_T0, S_DVAL))
        vA, vB = 166, 167
        self("v_and_b32 v%d, 7, v%d" % (vA, V_L15))
        self("v_mul_u32_u24 v%d, %d, v%d" % (vA, KC_STRIDE, vA))
        self("v_lshrrev_b32 v%d, 3, v%d" % (168, V_L15))
        self("v_add_u32 v%d, v%d, v%d" % (168, 168, V_G))
        self("v_lshl_add_u32 v%d, v%d, 4, v%d" % (vA, 168, vA))
        self("v_add_u32 v%d, s%d, v%d" % (vA, S_SLOT, vA))
        self("v_lshlrev_b32 v%d, 5, v%d" % (vB, V_L15))
        self("v_lshlrev_b32 v%d, 4, v%d" % (168, V_G))
        self("v_sub_u32 v%d, v%d, v%d" % (vB, 168, vB))
        self("s_add_u32 s3, s%d, %d" % (S_SLOT, U_OFF + 4064 - 3584))
        self("v_add_u32 v%d, s3, v%d" % (vB, vB))
        ACC = 4; FA = [36, 100]; FB = [68, 132]
        def loadsA(tau, buf):
            return [("lg", "ds_read_b128 %s, v%d offset:%d" % (vr(FA[buf] + 4 * i, 4), vA, 64 * tau + 512 * i), "cA") for i in range(8)]
        def loadsB(tau, buf):
            return [("lg", "ds_read_b128 %s, v%d offset:%d" % (vr(FB[buf] + 4 * i, 4), vB, 3584 - 512 * i + 64 * tau), "cB") for i in range(8)]
        self.bg_add(loadsA(0, 0)); self.bg_flush()
        ua, sa = 168, 169
        self("v_lshlrev_b32 v%d, 5, v%d" % (sa, V_L15))
        self("v_lshl_add_u32 v%d, v%d, 3, v%d" % (sa, V_G, sa))
        self("s_add_u32 s3, s%d, %d" % (S_SLOT, U_OFF + 4088 - 3584))
        self("v_sub_u32 v%d, s3, v%d" % (ua, sa))
        self("s_lshl_b32 s3, s%d, 12" % S_CH)
        self("s_add_u32 s3, s3, %d" % WS_YT)
        self("v_and_b32 v%d, 1, v%d" % (170, V_G))
        self("v_lshlrev_b32 v%d, 9, v%d" % (170, 170))
        self("v_lshrrev_b32 v%d, 1, v%d" % (171, V_G))
        self("v_lshl_add_u32 v%d, v%d, 4, v%d" % (170, 171, 170))
        self("v_lshl_add_u32 v%d, v%d, 5, v%d" % (sa, V_L15, 170))
        self("v_add_u32 v%d, s3, v%d" % (sa, sa))
        self("v_mov_b32 v170, s%d" % S_DVAL)
        self("v_lshlrev_b32 v171, 4, v%d" % V_LANE)
        if self.o.get("prewrite", 0):
            self("s_lshl_b32 s3, s%d, 12" % S_CH)
            self("s_add_u32 s3, s3, %d" % WS_YT)
            self("v_add_u32 v172, s3, v171")
            for i in range(4): self("v_mov_b32 v%d, 0" % (4 + i))
            for i in range(4):
                self.vm("global_store_dwordx4 v172, v[4:7], s[%d:%d] offset:%d sc0 sc1" % (P_WS, P_WS + 1, 1024 * i), "ypw")
        self.vm_wait("u")
        self.stamp(7)
        self.bg_add(loadsB(0, 0)); self.bg_flush()
        for tau in range(8):
            buf = tau & 1
            self.lg_wait_all()
            if tau < 7:
                la, lb = loadsA(tau + 1, buf ^ 1), loadsB(tau + 1, buf ^ 1)
                for x, y in zip(la, lb): self.bg_add([x, y])

            pairs = sorted([(i, be - i) for be in range(8) for i in range(be + 1)])
            first = set()
            for kk, (i, m) in enumerate(pairs):
                be = i + m
                c = vr(ACC + 4 * be, 4) if (tau > 0 or be in first) else "0"
                first.add(be)
                self("v_mfma_f32_16x16x32_bf16 %s, %s, %s, %s" % (vr(ACC + 4 * be, 4), vr(FA[buf] + 4 * i, 4), vr(FB[buf] + 4 * m, 4), c))
                self.bg_step(1)
            self.bg_flush()
        self.stamp(8)
        UQ = 36
        for b in range(8):
            self.lg("ds_read_b64 %s, v%d offset:%d" % (vr(UQ + 2 * b, 2), ua, 3584 - 512 * b), "uq")
        self.lg_wait_all()
        U, t, O = 56, 60, 64
        for b in range(8):
            d0, d1 = UQ + 2 * b, UQ + 2 * b + 1
            A = ACC + 4 * b
            self("v_and_b32 v%d, s%d, v%d" % (U + 0, S_MASK, d1))
            self("v_lshlrev_b32 v%d, 16, v%d" % (U + 1, d1))
            self("v_and_b32 v%d, s%d, v%d" % (U + 2, S_MASK, d0))
            self("v_lshlrev_b32 v%d, 16, v%d" % (U + 3, d0))
            self("v_pk_mul_f32 %s, %s, v[170:171] op_sel_hi:[1,0]" % (vr(U, 2), vr(U, 2)))
            self("v_pk_mul_f32 %s, %s, v[170:171] op_sel_hi:[1,0]" % (vr(U + 2, 2), vr(U + 2, 2)))
            self.rnd_pair(U, t); self.rnd_pair(U + 2, t + 1)
            self.rnd_pair(A, t); self.rnd_pair(A + 2, t + 1)
            self("v_pk_add_f32 %s, %s, %s" % (vr(A, 2), vr(A, 2), vr(U, 2)))
            self("v_pk_add_f32 %s, %s, %s" % (vr(A + 2, 2), vr(A + 2, 2), vr(U + 2, 2)))
            o = O + 2 * b
            self("v_cvt_pk_bf16_f32 v%d, v%d, v%d" % (o, A, A + 1))
            self("v_cvt_pk_bf16_f32 v%d, v%d, v%d" % (o + 1, A + 2, A + 3))
            if b & 1:
                self("v_permlane16_swap_b32 v%d, v%d" % (o - 2, o))
                self("v_permlane16_swap_b32 v%d, v%d" % (o - 1, o + 1))
                self("global_store_dwordx4 v%d, %s, s[%d:%d] offset:%d sc0 sc1" % (sa, vr(o - 2, 4), P_WS, P_WS + 1, 512 * (b - 1)))
        self("s_branch %s" % Ldone)
        self("%s:" % Lskip)
        L2 = self.if_wave(3)
        self.repack_finish()
        self("s_waitcnt vmcnt(0)")
        self("s_lshl_b32 s%d, s%d, 8" % (S_T0, S_G))
        self("s_lshl_b32 s%d, s%d, 3" % (S_T0 + 1, S_J))
        self("s_add_u32 s%d, s%d, s%d" % (S_T0, S_T0, S_T0 + 1))
        self("s_add_u32 s%d, s%d, %d" % (S_T0, S_T0, WS_PKFLAG))
        self.flag_store(P_WS, S_T0, 1, device=True)
        self.stamp(42)
        self.window_stores()
        if self.o.get("st_pw"):
            self("s_waitcnt vmcnt(0)")
            self.stamp(43)
        npf = self.o.get("w1pf", 9)
        if npf:
            self.srd(SRD_A, P_W1, 640 * 3456)
            self("s_mul_i32 s3, s%d, 69120" % S_J)
            self("v_lshlrev_b32 v160, 7, v%d" % V_LANE)
            self("v_add_u32 v160, s3, v160")
            for i in range(npf):
                if i == 8: self.exec_set("0xfffffff")
                self("buffer_load_dword a0, v160, s[%d:%d], 0 offen" % (SRD_A, SRD_A + 3))
                if i < 8: self("v_add_u32 v160, 8192, v160")
            if npf == 9: self.exec_restore()
        if self.o.get("st_pw"):
            self("s_waitcnt vmcnt(0)")
            self.stamp(44)
        self.close(L2)
        self("%s:" % Ldone)
        self.vmq = []; self.lgq = []

    def weights_prefetch(self):
        a, d = 174, 190
        self.addr_pair(S_TMPP, P_WS, WS_PKFLAG)
        self("v_lshlrev_b32 v%d, 5, v%d" % (a, V_LANE))
        self.poll_pairs(S_TMPP, a, 1, 0, 176 + 0, npair=4) if False else None
        self.poll_pairs(S_TMPP, a, 1, 0, 4, npair=4)
        self.stamp(40)
        for base in (WS_W1P, WS_W2P):
            self.srd(SRD_A, P_WS, WP_SZ, const=base)
            self("s_mul_i32 s3, s%d, 69120" % S_J)
            self("v_lshlrev_b32 v%d, 7, v%d" % (a, V_LANE))
            self("v_add_u32 v%d, s3, v%d" % (a, a))
            for i in range(9):
                if i == 8: self.exec_set("0xfffffff")
                self("buffer_load_dword v%d, v%d, s[%d:%d], 0 offen" % (d, a, SRD_A, SRD_A + 3))
                if i < 8: self("v_add_u32 v%d, 8192, v%d" % (a, a))
            self.exec_restore()

    def w1_dma(self, its):
        self.srd(SRD_B, P_W1, 640 * 3456)
        c, row, cc, off = 160, 161, 162, 163
        self("s_lshl_b32 s3, s%d, 6" % S_W)
        self("s_add_u32 s3, s3, %d" % (192 * its[0]))
        self("v_add_u32 v%d, s3, v%d" % (c, V_LANE))
        self("s_mov_b32 s%d, %d" % (S_T0, (1 << 32) // 14 + 1))
        self("s_lshl_b32 s%d, s%d, 5" % (S_T0 + 1, S_UOFF))
        self("s_movk_i32 s%d, 3456" % (S_T0 + 2))
        self("s_lshl_b32 s%d, s%d, 10" % (S_T0 + 3, S_W))
        for it in its:
            L = None
            if it == 46:
                L = self.label("L_w1l")
                self("s_cmp_eq_u32 s%d, 2" % S_W)
                self("s_cbranch_scc1 %s" % L)
            self("v_mul_hi_u32 v%d, v%d, s%d" % (row, c, S_T0))
            self("v_mul_u32_u24 v%d, 14, v%d" % (cc, row))
            self("v_sub_u32 v%d, v%d, v%d" % (cc, c, cc))
            self("v_mul_lo_u32 v%d, v%d, s%d" % (off, row, S_T0 + 2))
            self("v_lshl_add_u32 v%d, v%d, 4, v%d" % (off, cc, off))
            self("s_add_u32 m0, s%d, %d" % (S_T0 + 3, LDS_W1 + 3072 * it))
            self("v_add_u32 v%d, 192, v%d" % (c, c))
            self("buffer_load_dwordx4 v%d, s[%d:%d], s%d offen lds" % (off, SRD_B, SRD_B + 3, S_T0 + 1))
            if L: self("%s:" % L)
    W1OFF = 174
    def w1_stage_setup(self):
        self.srd(SRD_B, P_W1, 640 * 3456)
        c, row, cc = 181, 182, 183
        self("s_lshl_b32 s3, s%d, 6" % S_W)
        self("v_add_u32 v%d, s3, v%d" % (c, V_LANE))
        self("s_mov_b32 s%d, %d" % (S_T0, (1 << 32) // 14 + 1))
        self("s_movk_i32 s%d, 3456" % (S_T0 + 2))
        for r in range(7):
            o = self.W1OFF + r
            self("v_mul_hi_u32 v%d, v%d, s%d" % (row, c, S_T0))
            self("v_mul_u32_u24 v%d, 14, v%d" % (cc, row))
            self("v_sub_u32 v%d, v%d, v%d" % (cc, c, cc))
            self("v_mul_lo_u32 v%d, v%d, s%d" % (o, row, S_T0 + 2))
            self("v_lshl_add_u32 v%d, v%d, 4, v%d" % (o, cc, o))
            self("v_add_u32 v%d, 256, v%d" % (c, c))
        self("s_lshl_b32 s62, s%d, 5" % S_UOFF)
    def w1_stage_items(self, it0, it1):
        items = []
        for it in range(it0, it1):
            q, r = divmod(it, 7)
            if r == 0 or it == it0:
                items.append("s_add_u32 s61, s62, %d" % (q * 128 * 3456))
            items.append(("vm", "buffer_load_dwordx4 %s, v%d, s[%d:%d], s61 offen" % (ar(4 * it, 4), self.W1OFF + r, SRD_B, SRD_B + 3), "w1"))
        return items
    def w1_stage_to_lds(self):
        b = 160
        self("v_lshlrev_b32 v%d, 4, v%d" % (b, V_LANE))
        self("s_lshl_b32 s3, s%d, 10" % S_W)
        self("v_add_u32 v%d, s3, v%d" % (b, b))
        self("v_add_u32 v%d, 65536, v%d" % (b + 1, b))
        self("v_add_u32 v%d, 131072, v%d" % (b + 2, b))
        for it in range(35):
            o = 4096 * it
            self.lg("ds_write_b128 v%d, %s offset:%d" % (b + o // 65536, ar(4 * it, 4), o % 65536), "w1w")
    def w2_setup(self):
        self.srd(SRD_W2, P_WS, WP_SZ, const=WS_W2P)
        self("s_mul_i32 s3, s%d, %d" % (S_W, 14 * 40))
        self("s_mul_i32 s%d, s%d, 5" % (S_T0, S_CS))
        self("s_add_u32 s3, s3, s%d" % S_T0)
        self("s_lshl_b32 s%d, s3, 10" % S_W2B)
    def w2_items(self, f0, f1, vlane16):
        it = []
        last = None
        for f in range(f0, f1):
            s, i = divmod(f, 5)
            key = (s, i == 4)
            if key != last:
                it.append("s_add_u32 s61, s%d, %d" % (S_W2B, s * 40 * 1024 + (4096 if i == 4 else 0)))
                last = key
            it.append(("vm", "buffer_load_dwordx4 %s, v%d, s[%d:%d], s61 offen offset:%d" % (w2reg(f), vlane16, SRD_W2, SRD_W2 + 3, 0 if i == 4 else 1024 * i), "w2"))
        return it

    def post_conv(self):
        QN = V_CS
        self("v_lshlrev_b32 v160, 4, v%d" % V_L15)
        self("s_lshl_b32 s3, s%d, 4" % S_W)
        self("v_add_u32 v160, s3, v%d" % V_L15)
        self("v_mul_u32_u24 v160, 160, v160")
        self("v_lshl_add_u32 v160, v%d, 3, v160" % V_G)
        self("v_add_u32 v160, %d, v160" % LDS_Q)
        for u in range(5):
            self.lg("ds_read_b64 %s, v160 offset:%d" % (vr(V_X + 2 * u, 2), 32 * u), "q")
        self.lg_wait_all()
        self.unpack_tile(124, V_X)
        self.tile_stats(124, 0, 144)
        self("s_waitcnt lgkmcnt(0)")
        L = self.if_wave(3, eq=False)
        self("s_waitcnt vmcnt(0)")
        self.close(L)
        self.vmq = []; self.lgq = []
        self("s_barrier")
        self.stamp(10)
        L = self.if_wave(3)
        self("s_lshl_b32 s%d, s%d, 8" % (S_T0, S_G))
        self("s_lshl_b32 s%d, s%d, 3" % (S_T0 + 1, S_J))
        self("s_add_u32 s%d, s%d, s%d" % (S_T0, S_T0, S_T0 + 1))
        self("s_add_u32 s%d, s%d, %d" % (S_T0, S_T0, WS_YFLAG))
        self.flag_store(P_WS, S_T0, 1, device=True)
        self.close(L)
        self.row_stats_issue(0, 60)
        c1, c2 = self.o.get("w1c1", 47), self.o.get("w1c2", 47)
        L = self.if_wave(3, eq=False)
        self.w1_dma(list(range(0, c1)))
        self.close(L)
        self.stamp(11)
        La, Lb = self.label("L_qa"), self.label("L_qb")
        self("s_cmp_eq_u32 s%d, 3" % S_W)
        self("s_cbranch_scc1 %s" % La)
        self("s_waitcnt vmcnt(%d)" % min(c1, 46))
        self("s_branch %s" % Lb)
        self("%s:" % La)
        self("s_waitcnt vmcnt(0)")
        self("%s:" % Lb)
        self.vmq = []
        self.row_stats_validate(0, 60)
        self.row_stats_finish(60, 24, 26)
        XF, d, t = 4, 28, 30
        self.unpack_tile(XF, V_X)
        for i in range(10):
            self("v_pk_add_f32 %s, %s, v[24:25] op_sel_hi:[1,0] neg_lo:[0,1] neg_hi:[0,1]" % (vr(d, 2), vr(XF + 2 * i, 2)))
            self.rnd_pair(d, t)
            self("v_pk_mul_f32 %s, %s, v[26:27] op_sel_hi:[1,0]" % (vr(d, 2), vr(d, 2)))
            self("v_cvt_pk_bf16_f32 v%d, v%d, v%d" % (QN + i, d, d + 1))
        Ly = self.if_wave(3)
        self.addr_pair(S_TMPP, P_WS, WS_PKFLAG)
        self("v_lshlrev_b32 v159, 5, v%d" % V_LANE)
        self.poll_pairs(S_TMPP, 159, 1, 0, 144, npair=4)
        self.stamp(40)
        self.addr_pair(S_TMPP, P_WS, WS_YFLAG)
        self("s_lshl_b32 s3, s%d, 8" % S_CS)
        self("s_lshl_b32 s%d, s%d, 8" % (S_T0, S_G))
        self("v_mov_b32 v181, s3")
        self("v_mov_b32 v180, s%d" % S_T0)
        self("v_cmp_gt_u32 vcc, 32, v%d" % V_LANE)
        self("v_cndmask_b32 v181, v180, v181, vcc")
        self("v_and_b32 v180, 31, v%d" % V_LANE)
        self("v_lshl_add_u32 v180, v180, 3, v181")
        self.poll_pairs(S_TMPP, 180, 1, 0, 176)
        self.stamp(41)
        self("s_mul_i32 s3, s%d, %d" % (S_CS, 80 * 4096))
        self("s_lshl_b32 s%d, s%d, 9" % (S_T0, S_G))
        self("s_add_u32 s3, s3, s%d" % S_T0)
        self("s_lshl_b32 s%d, s%d, 7" % (S_T0, S_RB))
        self("s_add_u32 s3, s3, s%d" % S_T0)
        self.addr_pair(S_TMPP, P_WS, WS_YT, 3)
        a, b = 164, 165
        self("v_lshrrev_b32 v%d, 3, v%d" % (a, V_LANE))
        self("v_lshlrev_b32 v%d, 12, v%d" % (a, a))
        self("v_and_b32 v%d, 7, v%d" % (b, V_LANE))
        self("v_lshl_add_u32 v%d, v%d, 4, v%d" % (a, b, a))
        for k in range(10):
            self("s_mov_b32 m0, %d" % (LDS_SCR + 1024 * k))
            self("v_add_u32 v%d, %d, v%d" % (b, 8 * 4096 * k, a))
            self("global_load_lds_dwordx4 v%d, s[%d:%d]" % (b, S_TMPP, S_TMPP + 1))
        self("s_waitcnt vmcnt(0)")
        self.close(Ly)
        self("s_barrier")
        self.stamp(12)
        if c2 > c1:
            L = self.if_wave(3, eq=False)
            self.w1_dma(list(range(c1, c2)))
            self.close(L)
        nr = self.o.get("w2r", 0)
        if nr:
            self("v_lshlrev_b32 v163, 4, v%d" % V_LANE)
            q = list(self.vmq)
            self.bg_add(self.w2_items(0, nr, 163)); self.bg_flush()
            self.vmq = q

        a, b = 164, 165
        self("v_bfe_u32 v%d, v%d, 2, 2" % (a, V_LANE))
        self("v_lshl_add_u32 v%d, v%d, 2, v%d" % (a, V_G, a))
        self("v_lshlrev_b32 v%d, 7, v%d" % (a, a))
        self("v_and_b32 v%d, 3, v%d" % (b, V_LANE))
        self("v_lshl_add_u32 v%d, v%d, 3, v%d" % (a, b, a))
        self("s_lshl_b32 s3, s%d, 5" % S_W)
        self("s_add_u32 s3, s3, %d" % LDS_SCR)
        self("v_add_u32 v%d, s3, v%d" % (a, a))
        for u in range(5):
            self.lg("ds_read_b64_tr_b16 %s, v%d offset:%d" % (vr(V_Y + 2 * u, 2), a, 16 * 128 * u), "ytr")
        self.xf_store_setup(S_XO1)
        yf, qf = 32, 34
        self.lg_wait_all()
        for i in range(10):
            self.unpack(yf, V_Y + i)
            self.unpack(qf, QN + i)
            self("v_pk_mul_f32 %s, %s, %s" % (vr(d, 2), vr(yf, 2), vr(qf, 2)))
            self.rnd_pair(d, t)
            self("v_pk_add_f32 %s, %s, %s" % (vr(XF + 2 * i, 2), vr(XF + 2 * i, 2), vr(d, 2)))
            self("v_cvt_pk_bf16_f32 v%d, v%d, v%d" % (V_X + i, XF + 2 * i, XF + 2 * i + 1))
            self.unpack(XF + 2 * i, V_X + i)
        self.xf_store()

    XA0 = 165
    def xf_addr_items(self, ws_off, base):
        g = Gen()
        a = base + 5
        g("s_lshl_b32 s97, s%d, 4" % S_G)
        g("s_lshl_b32 s100, s%d, 2" % S_RB)
        g("s_add_u32 s97, s97, s100")
        g("s_add_u32 s97, s97, s%d" % S_W)
        g("s_mul_i32 s97, s97, %d" % (20 * 1024))
        g("s_add_u32 s97, s97, s%d" % ws_off)
        g("v_lshlrev_b32 v%d, 4, v%d" % (a, V_LANE))
        g("v_add_u32 v%d, s97, v%d" % (a, a))
        g("s_mul_i32 s97, s%d, 5" % S_CS)
        for u in range(5):
            g("s_add_u32 s100, s97, %d" % u)
            g("s_lshr_b32 s101, s100, 1")
            g("s_lshl_b32 s101, s101, 10")
            g("s_and_b32 s100, s100, 1")
            g("s_lshl_b32 s100, s100, 3")
            g("s_add_u32 s100, s100, s101")
            g("v_add_u32 v%d, s100, v%d" % (base + u, a))
        return [i.text.strip() for i in g.ins]
    def xf_store_setup(self, ws_off):
        self.XA0 = 165
        for l in self.xf_addr_items(ws_off, 165): self(l)
    def xf_store(self):
        Lo, Ld = self.label("L_xo"), self.label("L_xd")
        p = "s[%d:%d]" % (P_WS, P_WS + 1)
        b = self.XA0
        x4 = lambda u: "global_store_dwordx4 v%d, %s, %s" % (b + u, vr(V_X + 2 * u, 4), p)
        x2 = lambda u: "global_store_dwordx2 v%d, %s, %s" % (b + u, vr(V_X + 2 * u, 2), p)
        self("s_bitcmp1_b32 s%d, 0" % S_CS)
        self("s_cbranch_scc1 %s" % Lo)
        self.handoff_stores([x4(0), x4(2), x2(4)], record=False)
        self("s_branch %s" % Ld)
        self("%s:" % Lo)
        self.handoff_stores([x2(0), x4(1), x4(3)], record=False)
        self("%s:" % Ld)
        self.vmq.extend(["xf"] * 3)

    def mixer_update(self, m, rs, xf, tmp):
        yf, d = tmp, tmp + 2
        for i in range(10):
            X = xf + 2 * i
            self.unpack(yf, V_Y + i)
            self("v_pk_add_f32 %s, %s, %s op_sel_hi:[1,0] neg_lo:[0,1] neg_hi:[0,1]" % (vr(d, 2), vr(X, 2), vr(m, 2)))
            self("v_pk_mul_f32 %s, %s, %s op_sel_hi:[1,0]" % (vr(d, 2), vr(d, 2), vr(rs, 2)))
            self("v_pk_fma_f32 %s, %s, %s, %s" % (vr(X, 2), vr(d, 2), vr(yf, 2), vr(X, 2)))
            self("v_cvt_pk_bf16_f32 v%d, v%d, v%d" % (V_X + i, X, X + 1))
            self.unpack(X, V_X + i)

    def w1_lane_addr(self, a, tmp):
        self("v_bfe_u32 v%d, v%d, 2, 2" % (a, V_LANE))
        self("v_lshl_add_u32 v%d, v%d, 2, v%d" % (a, V_G, a))
        self("v_mul_u32_u24 v%d, %d, v%d" % (a, W1_STRIDE, a))
        self("v_and_b32 v%d, 3, v%d" % (tmp, V_LANE))
        self("v_lshl_add_u32 v%d, v%d, 3, v%d" % (a, tmp, a))
    def colsum(self):
        a, ones, acc = 164, 100, 104
        FR = [112, 120, 128, 136]
        for i in range(4): self("v_mov_b32 v%d, 0x3f803f80" % (ones + i))
        self.w1_lane_addr(a, a + 1)
        self("s_lshl_b32 s3, s%d, 6" % S_W)
        self("v_add_u32 v%d, s3, v%d" % (a, a))
        self("v_add_u32 v%d, %d, v%d" % (a + 1, 8 * 32 * W1_STRIDE, a))
        self("v_add_u32 v%d, %d, v%d" % (a + 2, 16 * 32 * W1_STRIDE, a))
        def loads(t):
            for i in range(2):
                for h in range(2):
                    self.lg("ds_read_b64_tr_b16 %s, v%d offset:%d" % (vr(FR[t % 4] + 4 * i + 2 * h, 2), a + (t // 8), ((t % 8) * 32 + h * 16) * W1_STRIDE + 32 * i), "cs%d" % t)
        for t in range(3): loads(t)
        for t in range(20):
            if t + 3 < 20: loads(t + 3)
            self.lg_wait("cs%d" % t)
            for i in range(2):
                c = vr(acc + 4 * i, 4) if t else "0"
                self("v_mfma_f32_16x16x32_bf16 %s, %s, %s, %s" % (vr(acc + 4 * i, 4), vr(FR[t % 4] + 4 * i, 4), vr(ones, 4), c))
        b = 144
        self("v_lshlrev_b32 v%d, 4, v%d" % (b, V_G))
        self("s_lshl_b32 s3, s%d, 7" % S_W)
        self("s_add_u32 s3, s3, %d" % LDS_CSX)
        self("v_add_u32 v%d, s3, v%d" % (b, b))
        self("v_cmp_eq_u32 vcc, 0, v%d" % V_L15)
        self("s_and_saveexec_b64 s[%d:%d], vcc" % (S_SAVE, S_SAVE + 1))
        self("ds_write_b128 v%d, %s" % (b, vr(acc, 4)))
        self("ds_write_b128 v%d, %s offset:64" % (b, vr(acc + 4, 4)))
        self.exec_restore()
        self.lg_wait_all()
    def colsum_fetch(self):
        b = 144
        self("v_lshlrev_b32 v%d, 4, v%d" % (b, V_G))
        self("v_add_u32 v%d, %d, v%d" % (b, LDS_CSX, b))
        for u in range(7):
            self.lg("ds_read_b128 %s, v%d offset:%d" % (vr(V_CS + 4 * u, 4), b, 64 * u), "cs")

    G1_ACC = 4; G1_AF = [60, 88]; G1_XR = 116; G1_DEPTH = 6; G1_LA = 172; G1_XA = 183; G1_ST = 174; G1_L16 = 182
    def g1_aloads(self, t, buf):
        l = []
        for i in range(7):
            for h in range(2):
                l.append(("lg", "ds_read_b64_tr_b16 %s, v%d offset:%d" % (vr(self.G1_AF[buf] + 4 * i + 2 * h, 2), self.G1_LA, h * 16 * W1_STRIDE + 32 * i), "a%d" % t))
        return l
    def g1_setup(self, xf_off, hf_off):
        self("s_lshl_b32 s3, s%d, 4" % S_G)
        self("s_lshl_b32 s%d, s%d, 3" % (S_T0, S_RT))
        self("s_add_u32 s3, s3, s%d" % S_T0)
        self("s_lshl_b32 s%d, s%d, 1" % (S_T0, S_W))
        self("s_add_u32 s%d, s3, s%d" % (S_RU0, S_T0))
        self("s_mul_i32 s3, s%d, %d" % (S_RU0, 20 * 1024))
        self("s_add_u32 s3, s3, s%d" % xf_off)
        self.addr_pair(S_XFB, P_WS, 0, 3)
        self.addr_pair(S_TMPQ, S_XFB, 20 * 1024)
        self("v_lshlrev_b32 v%d, 4, v%d" % (self.G1_XA, V_LANE))
        self("v_lshlrev_b32 v%d, 4, v%d" % (self.G1_L16, V_LANE))
        self("s_mul_i32 s%d, s%d, %d" % (S_T0 + 3, S_RU0, 54 * 1024))
        self("s_add_u32 s%d, s%d, %s" % (S_T0 + 3, S_T0 + 3, hf_off))
        for i in range(7):
            self("s_add_u32 s%d, s%d, %d" % (S_T0 + 1, S_UOFF, i))
            self("s_lshr_b32 s%d, s%d, 1" % (S_T0 + 2, S_T0 + 1))
            self("s_lshl_b32 s%d, s%d, 10" % (S_T0 + 2, S_T0 + 2))
            self("s_and_b32 s%d, s%d, 1" % (S_T0 + 1, S_T0 + 1))
            self("s_lshl_b32 s%d, s%d, 3" % (S_T0 + 1, S_T0 + 1))
            self("s_add_u32 s%d, s%d, s%d" % (S_T0 + 1, S_T0 + 1, S_T0 + 2))
            self("s_add_u32 s%d, s%d, s%d" % (S_T0 + 1, S_T0 + 1, S_T0 + 3))
            self("s_add_u32 s%d, s%d, s%d" % (72 + 2 * i, P_WS, S_T0 + 1))
            self("s_addc_u32 s%d, s%d, 0" % (73 + 2 * i, P_WS + 1))
        self.w1_lane_addr(self.G1_LA, 59)
        for x in self.g1_aloads(0, 0): self.lg(x[1], x[2])
        self("v_add_u32 v%d, 7168, v%d" % (self.G1_LA, self.G1_LA))
    def g1_main(self, statbuf, sb=None, w2range=None, ldf='', pretouch=False, hwt=False, main_only=False, neg=False):
        ACC, AF, XR, DEPTH, la, xa, ST = self.G1_ACC, self.G1_AF, self.G1_XR, self.G1_DEPTH, self.G1_LA, self.G1_XA, self.G1_ST
        def xload(t):
            for rho in range(2):
                base = S_XFB if rho == 0 else S_TMPQ
                d = XR + ((t % DEPTH) * 2 + rho) * 4
                self.vm("global_load_dwordx4 %s, v%d, s[%d:%d] offset:%d %s" % (vr(d, 4), xa, base, base + 1, (t % 4) * 1024, ldf), "x%d" % t)
            if t % 4 == 3: self("v_add_u32 v%d, 4096, v%d" % (xa, xa))
        for t in range(3): xload(t)
        sa = 169
        self("s_lshl_b32 s3, s%d, 11" % S_RU0)
        self("s_add_u32 s3, s3, %d" % (WS_STAT + statbuf * STAT_SZ))
        self("v_lshlrev_b32 v%d, 7, v%d" % (sa, V_L15))
        self("v_lshl_add_u32 v%d, v%d, 5, v%d" % (sa, V_G, sa))
        self("v_add_u32 v%d, s3, v%d" % (sa, sa))
        self("s_add_u32 s101, s%d, %d" % (S_TAG, statbuf))
        retries = []
        def st_load(rho):
            return [("vm", "global_load_dwordx4 %s, v%d, s[%d:%d] offset:%d sc1" % (vr(ST + 4 * k, 4), sa, P_WS, P_WS + 1, 2048 * rho + 16 * k), "st%d" % rho) for k in range(2)]
        def st_check(rho):
            Lr, Lb = self.label("L_str"), self.label("L_stb")
            def emit():
                self.vm_wait("st%d" % rho)
                self("v_xor_b32 v170, s101, v%d" % (ST + 2))
                self("v_xor_b32 v171, s101, v%d" % (ST + 6))
                self("v_or_b32 v170, v170, v171")
                self("v_xor_b32 v171, v%d, v%d" % (ST + 2, ST + 3))
                self("v_xor_b32 v171, s%d, v171" % S_KX)
                self("v_or_b32 v170, v170, v171")
                self("v_xor_b32 v171, v%d, v%d" % (ST + 6, ST + 7))
                self("v_xor_b32 v171, s%d, v171" % S_KX)
                self("v_or_b32 v170, v170, v171")
                self("v_cmp_ne_u32 vcc, 0, v170")
                self("s_cbranch_vccnz %s ; nohaz" % Lr)
                self("%s: ; nohaz" % Lb)
            retries.append((Lr, Lb, rho))
            return [emit, "v_mov_b32 v%d, v%d" % (ST + 2, ST + 4), "v_mov_b32 v%d, v%d" % (ST + 3, ST + 5)]
        MR = [164, 166]
        def st_finish(rho):
            it = self.row_stats_finish_items(ST, MR[rho], MR[rho] + 1)
            if neg: it.append("v_xor_b32 v%d, 0x80000000, v%d" % (MR[rho] + 1, MR[rho] + 1))
            return it
        f0, f1 = st_finish(0), st_finish(1)
        n4 = -(-len(f0) // 4)
        stq = {2: st_load(0), 5: st_check(0), 10: st_load(1), 13: st_check(1)}
        for j in range(4):
            stq[6 + j] = f0[j * n4:(j + 1) * n4]
            stq[14 + j] = f1[j * n4:(j + 1) * n4]
        self._g1_retries = (retries, sa)
        for t in range(3, DEPTH): xload(t)
        if pretouch:
            self("s_mul_i32 s3, s%d, %d" % (S_RU0, 54 * 1024))
            self("s_lshr_b32 s%d, s%d, 1" % (S_T0, S_UOFF))
            self("s_lshl_b32 s%d, s%d, 10" % (S_T0, S_T0))
            self("s_add_u32 s3, s3, s%d" % S_T0)
            self("s_and_b32 s%d, s%d, 1" % (S_T0, S_UOFF))
            self("s_lshl_b32 s%d, s%d, 3" % (S_T0, S_T0))
            self("s_add_u32 s3, s3, s%d" % S_T0)
            self("s_add_u32 s3, s3, %d" % WS_HF1)
            self("v_lshrrev_b32 v57, 5, v%d" % V_LANE)
            self("v_mul_u32_u24 v57, %d, v57" % (54 * 1024))
            self("v_and_b32 v58, 31, v%d" % V_LANE)
            self("v_lshl_add_u32 v58, v58, 7, v57")
            self("v_add_u32 v58, s3, v58")
            Lp = self.label("L_pth")
            self("s_cmp_lg_u32 s%d, 0" % S_MODE)
            self("s_cbranch_scc1 %s" % Lp)
            self("global_store_dword v58, v58, s[%d:%d]" % (P_WS, P_WS + 1))
            self("%s:" % Lp)
        w2items = self.w2_items(w2range[0], w2range[1], self.G1_L16) if w2range else []
        nper = -(-len(w2items) // 16)
        for t in range(20):
            if t == 1 and sb: self.stamp(sb)
            buf = t & 1
            nxt = self.g1_aloads(t + 1, buf ^ 1) if t < 19 else []
            self.lg_wait_all()
            self.vm_wait("x%d" % t)
            self.bg_add(nxt)
            self.bg_add(stq.get(t, []))
            if t >= 1:
                self.bg_add(w2items[:nper]); w2items = w2items[nper:]
            nbg = len(self.bgq); done = 0
            k = 0
            for i in range(7):
                for rho in range(2):
                    acc = ACC + (rho * 7 + i) * 4
                    c = vr(acc, 4) if t else "0"
                    self("v_mfma_f32_16x16x32_bf16 %s, %s, %s, %s" % (vr(acc, 4), vr(AF[buf] + 4 * i, 4), vr(XR + ((t % DEPTH) * 2 + rho) * 4, 4), c))
                    k += 1
                    want = min(nbg, -(-nbg * k // 13))
                    self.bg_step(want - done); done = want
            self.bg_flush()
            if t < 19: self("v_add_u32 v%d, 7168, v%d" % (la, la))
            if t + DEPTH < 20: xload(t + DEPTH)
        if sb: self.stamp(sb + 1)
        if main_only: return
        self.g1_epilogue(hwt, neg)
    def g1_epilogue(self, hwt=False, neg=False):
        ACC, ST = self.G1_ACC, self.G1_ST
        MR = [164, 166]
        if neg: self("s_mov_b32 s%d, 0x80008000" % S_T0)
        ha = 80
        self("v_add_u32 v%d, %d, v%d" % (ha, 54 * 1024, self.G1_L16))
        HA = [self.G1_L16, ha]
        O = 100
        def st(rho, i, n):
            return "global_store_dwordx%d v%d, %s, s[%d:%d]" % (n, HA[rho], vr(O + (rho * 7 + i) * 2, n), 72 + 2 * i, 73 + 2 * i)
        def compute(rho, i):
            acc = ACC + (rho * 7 + i) * 4
            for p in range(2):
                A = acc + 2 * p; C = V_CS + 4 * i + 2 * p
                self("v_pk_fma_f32 %s, %s, %s, %s op_sel_hi:[1,0,1] neg_lo:[0,1,0] neg_hi:[0,1,0]" % (vr(A, 2), vr(C, 2), vr(MR[rho], 2), vr(A, 2)))
                self("v_pk_mul_f32 %s, %s, %s op_sel:[0,1] op_sel_hi:[1,1]" % (vr(A, 2), vr(A, 2), vr(MR[rho], 2)))
                o = O + (rho * 7 + i) * 2 + p
                self("v_cvt_pk_bf16_f32 v%d, v%d, v%d" % (o, A, A + 1))
                if neg: self("v_pk_max_u16 v%d, v%d, s%d" % (o, o, S_T0))
                else: self("v_pk_max_i16 v%d, v%d, 0" % (o, o))
        Lo, Ld = self.label("L_ho"), self.label("L_hd")
        def path(odd, flag):
            for rho in range(2):
                seq = [(0, 2), (1, 4), (3, 4), (5, 4)] if odd else [(0, 4), (2, 4), (4, 4), (6, 2)]
                for (i, n) in seq:
                    for ii in range(i, i + n // 2): compute(rho, ii)
                    self(st(rho, i, n) + flag)
        Ls = [self.label("L_he") for _ in range(4)]
        self("s_and_b32 s3, s%d, 1" % S_UOFF)
        self("s_lshl_b32 s%d, s%d, 1" % (S_T0 + 1, S_MODE))
        self("s_or_b32 s3, s3, s%d" % (S_T0 + 1))
        for c in (1, 2, 3):
            self("s_cmp_eq_u32 s3, %d" % c)
            self("s_cbranch_scc1 %s" % Ls[c])
        for c in range(4):
            if c: self("%s:" % Ls[c])
            path(c & 1, " sc0 sc1" if (c >> 1 or hwt) else (" " + getattr(self, "fastflag", "")))
            if c < 3: self("s_branch %s" % Ld)
        self("%s:" % Ld)
        self.vmq.extend(["h"] * 8)
        retries, sa = self._g1_retries
        Lx = self.label("L_stx")
        self("s_branch %s" % Lx)
        for (Lr, Lb, rho) in retries:
            Li = self.label("L_sti")
            self("%s:" % Lr)
            self("s_mov_b32 s%d, %d" % (S_TMO, TIMEOUT))
            self("%s:" % Li)
            for k in range(2):
                self("global_load_dwordx4 %s, v%d, s[%d:%d] offset:%d sc1" % (vr(ST + 4 * k, 4), sa, P_WS, P_WS + 1, 2048 * rho + 16 * k))
            self("s_sub_u32 s%d, s%d, 1" % (S_TMO, S_TMO))
            self("s_cmp_eq_u32 s%d, 0" % S_TMO)
            self("s_cbranch_scc1 L_abort")
            self("s_waitcnt vmcnt(0)")
            self("v_xor_b32 v170, s101, v%d" % (ST + 2))
            self("v_xor_b32 v171, s101, v%d" % (ST + 6))
            self("v_or_b32 v170, v170, v171")
            self("v_xor_b32 v171, v%d, v%d" % (ST + 2, ST + 3))
            self("v_xor_b32 v171, s%d, v171" % S_KX)
            self("v_or_b32 v170, v170, v171")
            self("v_xor_b32 v171, v%d, v%d" % (ST + 6, ST + 7))
            self("v_xor_b32 v171, s%d, v171" % S_KX)
            self("v_or_b32 v170, v170, v171")
            self("v_cmp_ne_u32 vcc, 0, v170")
            self("s_cbranch_vccnz %s" % Li)
            self("s_branch %s" % Lb)
        self("%s:" % Lx)

    G2_ACC = [4, 24]; G2_HR = 44; G2_HA = 100; G2_RA = 104; G2_TMP = 108; G2_SUM = 128
    def g2_setup(self, hf_off):
        ha, ra = self.G2_HA, self.G2_RA
        for s in range(14):
            self("s_mul_i32 s3, s%d, 14" % S_W)
            self("s_add_u32 s3, s3, %d" % s)
            self("s_min_u32 s3, s3, 53")
            self("s_lshl_b32 s%d, s3, 10" % (S_HSTEP + s))
        self.srd(SRD_A, P_WS, 0x10000000 - self.o.get('wsbase', 0))
        for k in range(4):
            self("s_add_u32 s3, s%d, %d" % (S_W, 1 + k))
            self("s_and_b32 s3, s3, 3")
            self("s_mul_i32 s%d, s3, 5120" % (S_T0 + 1))
            self("s_lshl_b32 s%d, s%d, 4" % (S_T0, S_G))
            self("s_add_u32 s3, s3, s%d" % S_T0)
            self("s_lshl_b32 s%d, s%d, 2" % (S_T0, S_RB))
            self("s_add_u32 s3, s3, s%d" % S_T0)
            self("s_mul_i32 s3, s3, %d" % (54 * 1024))
            self("s_add_u32 s3, s3, %s" % hf_off)
            self("v_lshlrev_b32 v%d, 4, v%d" % (ha + k, V_LANE))
            self("v_add_u32 v%d, s3, v%d" % (ha + k, ha + k))
            self("v_lshlrev_b32 v%d, 4, v%d" % (ra + k, V_LANE))
            self("s_add_u32 s3, s%d, %d" % (S_T0 + 1, LDS_SCR))
            self("v_add_u32 v%d, s3, v%d" % (ra + k, ra + k))
    def g2_main(self, sb=None, ldf='', val=None, extra=()):
        ACC, HR, ha, ra, TMP, SUM = self.G2_ACC, self.G2_HR, self.G2_HA, self.G2_RA, self.G2_TMP, self.G2_SUM
        def hload(p):
            k, s = divmod(p, 14)
            if self.o.get("g2_noload") and p >= 14: return
            self.vm("buffer_load_dwordx4 %s, v%d, s[%d:%d], s%d offen %s" % (vr(HR + 4 * s, 4), ha + k, SRD_A, SRD_A + 3, S_HSTEP + s, ldf), "h%d" % p)
        CK = 148
        retry_blocks = []
        def bad_ops(regs):
            op = "v_or" if val == 1 else "v_and"
            l = []
            acc_ = regs[0]; rest = regs[1:]
            first = True
            while rest:
                if len(rest) >= 2 and val == 1:
                    l.append("v_or3_b32 v%d, v%d, v%d, v%d" % (CK, acc_, rest[0], rest[1])); rest = rest[2:]
                else:
                    l.append("%s_b32 v%d, v%d, v%d" % (op, CK, acc_, rest[0])); rest = rest[1:]
                acc_ = CK
            l.append(("v_cmp_gt_i32 vcc, 0, v%d" if val == 1 else "v_cmp_le_i32 vcc, 0, v%d") % CK)
            return l
        for p in range(14): hload(p)
        if val:
            Lsp, Lok = self.label("L_hsp"), self.label("L_hok")
            self.vm_wait("h0")
            for l in bad_ops([HR, HR + 2]): self(l)
            self("s_cbranch_vccz %s" % Lok)
            self("s_mov_b32 s%d, %d" % (S_TMO, TIMEOUT))
            self("%s:" % Lsp)
            self("buffer_load_dwordx4 %s, v%d, s[%d:%d], s%d offen %s" % (vr(HR, 4), ha, SRD_A, SRD_A + 3, S_HSTEP, ldf))
            self("s_sub_u32 s%d, s%d, 1" % (S_TMO, S_TMO))
            self("s_cmp_eq_u32 s%d, 0" % S_TMO)
            self("s_cbranch_scc1 L_abort")
            self("s_waitcnt vmcnt(0)")
            for l in bad_ops([HR, HR + 2]): self(l)
            self("s_cbranch_vccnz %s" % Lsp)
            self("%s:" % Lok)
            self.stamp(45 if val == 1 else 46)
        if sb: self.stamp(sb)
        late = []
        self.bg_add(list(extra))
        for k in range(4):
            acc = ACC[k & 1]; prev = ACC[(k & 1) ^ 1]
            for s in range(14):
                p = 14 * k + s
                if k > 0 and not self.o.get("g2_nobar"):
                    sA, sB = self.o.get("g2_sA", 7), self.o.get("g2_sB", 11)
                    w0 = self.o.get("g2_w0", 1)
                    X = self.o.get("g2_x", "wbra")
                    if w0 <= s < w0 + 5 and "w" in X:
                        i = s - w0
                        late.append(("lg", "ds_write_b128 v%d, %s offset:%d" % (ra + k - 1, vr(prev + 4 * i, 4), 1024 * i), "rw"))
                    if s == sA:
                        self.bg_flush()
                        if "b" in X: self.lg_wait_all(); self("s_barrier")
                        rd = [("lg", "ds_read_b128 %s, v%d offset:%d" % (vr((SUM if k == 1 else TMP) + 4 * i, 4), ra + 3, 1024 * i), "rr") for i in range(5)]
                        if "r" in X: self.bg_add(rd)
                    if s == sB:
                        self.bg_flush()
                        if "b" in X: self.lg_wait_all(); self("s_barrier")
                        if "a" not in X: pass
                        elif k > 1:
                            self.bg_add(["v_add_f32 v%d, v%d, v%d" % (SUM + j, SUM + j, TMP + j) for j in range(20)])
                chk = []
                if val:
                    pn = p + 1
                    if pn < 56:
                        self.vm_wait("h%d" % pn)
                        rn = HR + 4 * (pn % 14)
                        chk = bad_ops([rn, rn + 2])
                else:
                    self.vm_wait("h%d" % p)
                for i in range(5):
                    c = vr(acc + 4 * i, 4) if s > 0 else "0"
                    self("v_mfma_f32_16x16x32_bf16 %s, %s, %s, %s" % (vr(acc + 4 * i, 4), w2reg(s * 5 + i), vr(HR + 4 * s, 4), c))
                    if chk and i < 2:
                        self(chk[i])
                    elif i == 2 and late:
                        x = late.pop(0); self.lg(x[1], x[2])
                    else:
                        self.bg_step(2 if k >= 2 and s >= 11 else 1)
                if chk:
                    Lr, Lb = self.label("L_hr"), self.label("L_hb")
                    self("s_cbranch_vccnz %s ; nohaz" % Lr)
                    self("%s: ; nohaz" % Lb)
                    kn, sn = divmod(pn, 14)
                    retry_blocks.append((Lr, Lb, "buffer_load_dwordx4 %s, v%d, s[%d:%d], s%d offen %s" % (vr(HR + 4 * sn, 4), ha + kn, SRD_A, SRD_A + 3, S_HSTEP + sn, ldf), bad_ops([rn, rn + 2])))
                if p + 14 < 56: hload(p + 14)
            self.bg_flush()
        if retry_blocks:
            Lx = self.label("L_hx")
            self("s_branch %s" % Lx)
            for (Lr, Lb, ld, ops) in retry_blocks:
                Li = self.label("L_hi")
                self("%s:" % Lr)
                self("s_mov_b32 s%d, %d" % (S_TMO, TIMEOUT))
                self("%s:" % Li)
                self(ld)
                self("s_sub_u32 s%d, s%d, 1" % (S_TMO, S_TMO))
                self("s_cmp_eq_u32 s%d, 0" % S_TMO)
                self("s_cbranch_scc1 L_abort")
                self("s_waitcnt vmcnt(0)")
                for l in ops: self(l)
                self("s_cbranch_vccnz %s" % Li)
                self("s_branch %s" % Lb)
            self("%s:" % Lx)
        if sb: self.stamp(sb + 1)
        acc = ACC[1]
        for j in range(0, 20, 2):
            self("v_pk_add_f32 %s, %s, %s" % (vr(SUM + j, 2), vr(SUM + j, 2), vr(acc + j, 2)))
        return SUM

    def unpack_items(self, dst, src):
        it = []
        for i in range(10):
            it += ["v_lshlrev_b32 v%d, 16, v%d" % (dst + 2 * i, src + i), "v_and_b32 v%d, s%d, v%d" % (dst + 2 * i + 1, S_MASK, src + i)]
        return it
    def residual_add(self, RES, XF, neg=False, unpack_after=True):
        t = 180
        for i in range(10):
            if self.o.get("rnd_mlp", 1): self.rnd_pair(RES + 2 * i, t + (i & 1))
            self("v_pk_add_f32 %s, %s, %s %s" % (vr(XF + 2 * i, 2), vr(XF + 2 * i, 2), vr(RES + 2 * i, 2), "neg_lo:[0,1] neg_hi:[0,1]" if neg else ""))
            self("v_cvt_pk_bf16_f32 v%d, v%d, v%d" % (V_X + i, XF + 2 * i, XF + 2 * i + 1))
        if unpack_after:
            for i in range(10): self.unpack(XF + 2 * i, V_X + i)

    def out_addr_items(self, t2):
        g = Gen()
        g("s_lshl_b32 s97, s%d, 8" % S_G)
        g("s_lshl_b32 s100, s%d, 6" % S_RB)
        g("s_add_u32 s97, s97, s100")
        g("s_lshl_b32 s100, s%d, 4" % S_W)
        g("s_add_u32 s97, s97, s100")
        g("v_add_u32 v%d, s97, v%d" % (t2, V_L15))
        g("v_mul_u32_u24 v%d, 1280, v%d" % (t2, t2))
        g("s_mul_i32 s97, s%d, 160" % S_CS)
        g("v_lshlrev_b32 v%d, 3, v%d" % (t2 + 1, V_G))
        g("v_add3_u32 v%d, v%d, v%d, s97" % (t2, t2, t2 + 1))
        return [i.text.strip() for i in g.ins]
    def store_out(self, t2):
        for u in range(5):
            self.vm("global_store_dwordx2 v%d, %s, s[%d:%d] offset:%d %s" % (t2, vr(V_X + 2 * u, 2), P_OUT, P_OUT + 1, 32 * u, self.o.get("outf", "")), "out")

    def epoch_update(self):
        L = self.label("L_ep")
        self("s_add_u32 s3, s2, s%d" % S_W)
        self("s_cmp_lg_u32 s3, 0")
        self("s_cbranch_scc1 %s" % L)
        self("s_sub_u32 s3, s%d, 0x%x" % (S_TAG, TAG0))
        self("s_add_u32 s3, s3, 16")
        self("v_mov_b32 v176, s3")
        self("v_mov_b32 v177, %d" % WS_EPOCH)
        self.exec_set("1")
        self("global_store_dword v177, v176, s[%d:%d] sc0 sc1" % (P_WS, P_WS + 1))
        self.exec_restore()
        self("%s:" % L)

    def build(self):
        o = self.o
        self.prologue()
        if o.get("stamps"): self("v_mov_b32 v%d, 0" % V_STAMP)
        self.stamp(0)
        self.prep_loads()
        self.stamp(38)
        self.prep_compute()
        self.stamp(2)
        self.mode_check()
        self.lg_wait_all()
        self("s_barrier")
        self.mode_fetch()
        self.stamp(3)
        self.prep_store_ur()
        self.stamp(4)
        self.barrier_arrive(1, drain=False)
        self.build_kcopies()
        self.w1_stage_setup()
        self.w2_setup()
        self.stamp(5)
        self.barrier_wait(1)
        self.stamp(6)
        self.vmq = []; self.lgq = []
        self.conv()
        self.stamp(9)
        self.post_conv()
        self.stamp(13)
        if o.get("w1c2", 47) < 47:
            L = self.if_wave(3, eq=False)
            self.w1_dma(list(range(o.get("w1c2", 47), 47)))
            self.close(L)
        self.barrier_arrive(2)
        self.tile_stats(4, 1, 28)
        self.colsum()
        self("s_barrier")
        self.colsum_fetch()
        self.stamp(14)
        self.g1_setup(S_XO1, str(WS_HF1))
        self.lg_wait_all()
        nr = o.get("w2r", 0)
        na, nb = nr + o.get("w2a", 12), o.get("w2b", 48)
        L = self.if_wave(3, eq=False)
        q = list(self.vmq)
        self.bg_add(self.w2_items(nr, na, self.G1_L16)); self.bg_flush()
        self.vmq = q
        self.close(L)
        self.barrier_wait(2, wave=3)
        L = self.if_wave(3)
        self.bg_add(self.w2_items(nr, na, self.G1_L16)); self.bg_flush()
        self.vmq = q
        self.close(L)
        self.stamp(15)
        self.g1_main(1, 16, w2range=(na, nb), ldf='sc1', main_only=True)
        ne = min(70, nb + o.get("w2e", 0))
        self.bg_add(self.w2_items(nb, ne, self.G1_L16)); self.bg_flush()
        nb = ne
        self.g1_epilogue(hwt=o.get('hwt', 0))
        self.stamp(18)
        sv = o.get("selfval", 0)
        def slow_barrier(ph):
            L = self.label("L_sb")
            self("s_cmp_eq_u32 s%d, 0" % S_MODE)
            self("s_cbranch_scc1 %s" % L)
            q = (list(self.vmq), list(self.lgq))
            self.barrier_arrive(ph)
            self.barrier_wait(ph)
            self("%s:" % L)
            self.vmq, self.lgq = q
        self("v_lshlrev_b32 v163, 4, v%d" % V_LANE)
        if sv:
            self.bg_add(self.w2_items(nb, 70, 163)); self.bg_flush()
            self.g2_setup(str(WS_HF1))
            slow_barrier(3)
        else:
            self.barrier_arrive(3)
            self.bg_add(self.w2_items(nb, 70, 163)); self.bg_flush()
            self.g2_setup(str(WS_HF1))
            self.barrier_wait(3)
        self.stamp(21)
        XF, VA, VB = 150, 170, 171
        self.XA0 = 174
        extra = self.unpack_items(XF, V_X) + self.stats_addr_items(VA, VB) + self.xf_addr_items(S_XO3, 174)
        RES = self.g2_main(22, ldf='sc1' if sv else '', val=1 if sv else None, extra=extra)
        self.stamp(24)
        self.residual_add(RES, XF)
        self.tile_stats(XF, 2, 28, va=VA)
        self.row_stats_issue(2, 60, vb=VB)
        self.stamp(25)
        self.vm_wait("rs")
        self.row_stats_validate(2, 60)
        self.stamp(26)
        self.row_stats_finish(60, 24, 26)
        self.mixer_update(24, 26, XF, 28)
        self.xf_store()
        self.stamp(27)
        self.barrier_arrive(4)
        self.tile_stats(XF, 3, 28, va=VA)
        self.g1_setup(S_XO3, 's%d' % S_HO2)
        self.barrier_wait(4)
        self.stamp(28)
        self.g1_main(3, 29, ldf='sc1', neg=bool(sv))
        self.stamp(31)
        if sv:
            self.g2_setup('s%d' % S_HO2)
            slow_barrier(5)
        else:
            self.barrier_arrive(5)
            self.g2_setup('s%d' % S_HO2)
            self.barrier_wait(5)
        if o.get("wbl2"):
            L = self.label("L_wb")
            self("s_lshl_b32 s3, s%d, 2" % S_J)
            self("s_add_u32 s3, s3, s%d" % S_W)
            self("s_cmp_lg_u32 s3, %d" % o.get("wbl2_who", 1))
            self("s_cbranch_scc1 %s" % L)
            self("buffer_wbl2 sc1")
            self("%s:" % L)
        self.stamp(32)
        RES = self.g2_main(33, ldf='sc1', val=2 if sv else None, extra=self.unpack_items(XF, V_X) + self.out_addr_items(170))
        self.stamp(35)
        self.residual_add(RES, XF, neg=bool(sv), unpack_after=False)
        self.store_out(170)
        self.epoch_update()
        self.stamp(36)
        self("s_waitcnt vmcnt(0)")
        self.stamp(37)
        self.stamp_dump()
        if self.o.get("dbgtime"):
            L = self.label("L_dt")
            self("s_add_u32 s3, s%d, s%d" % (S_J, S_W))
            self("s_cmp_lg_u32 s3, 0")
            self("s_cbranch_scc1 %s" % L)
            self("s_memrealtime s[94:95]")
            self("s_memtime s[92:93]")
            self("s_waitcnt lgkmcnt(0)")
            self("s_sub_u32 s94, s94, s98")
            self("s_sub_u32 s92, s92, s100")
            self("v_mov_b32 v4, s94")
            self("v_mov_b32 v5, s92")
            self("s_lshl_b32 s3, s%d, 3" % S_G)
            self("v_mov_b32 v6, s3")
            self("s_mov_b64 exec, 1")
            self("global_store_dwordx2 v6, v[4:5], s[%d:%d]" % (P_DBG, P_DBG + 1))
            self("%s:" % L)
        self("s_waitcnt vmcnt(0)")
        self("s_branch L_end")
        self("L_abort:")
        self("L_end:")
        self("s_endpgm")

def make(opts):
    k = K(opts)
    k.build()
    body, added = k.text()
    hdr = open("interleave_layers__ssm_conv_h3__dense_activation_relu__prompt.s.ref").read().split("\n")
    head = [l for l in hdr if l.startswith(";") and "@launch" not in l and "Override launch" not in l and "grid=ceil" not in l][:13]
    txt = "\n".join(head) + "\n"
    txt += "; @launch grid=(256,1,1) block=(256,1,1) lds=%d\n" % LDS_TOTAL
    txt += '.amdgcn_target "amdgcn-amd-amdhsa--gfx950"\n.text\n.globl %s\n.p2align 8\n.type %s,@function\n%s:\n' % (KNAME, KNAME, KNAME)
    txt += body
    txt += """.section .rodata,"a"
.p2align 6
.amdhsa_kernel %s
  .amdhsa_next_free_vgpr 512
  .amdhsa_next_free_sgpr 102
  .amdhsa_accum_offset 256
  .amdhsa_group_segment_fixed_size 0
  .amdhsa_kernarg_size 96
  .amdhsa_user_sgpr_count 2
  .amdhsa_user_sgpr_kernarg_segment_ptr 1
  .amdhsa_system_sgpr_workgroup_id_x 1
.end_amdhsa_kernel
""" % KNAME
    return txt, added, len(k.ins)

if __name__ == "__main__":
    import argparse, json
    ap = argparse.ArgumentParser()
    ap.add_argument("-o", default="interleave_layers__ssm_conv_h3__dense_activation_relu__prompt.s")
    ap.add_argument("--opts", default="{}")
    a = ap.parse_args()
    txt, added, n = make(json.loads(a.opts))
    open(a.o, "w").write(txt)
    print("wrote", a.o, "instructions", n, "nop states added", added, "bytes", len(txt))
```

```python
import sys
sys.path.insert(0, "work")
from gen import *

KNAME = "interleave_layers__ssm_conv_h3__dense_activation_relu__prompt_kernel"

WS_EPOCH = 0x0
WS_XCCF  = 0x400
WS_LFLAG = 0x1000
WS_YFLAG = 0x2000
WS_PKFLAG = 0x3000
WS_STAT  = 0x100000
STAT_SZ  = 0x40000
WS_UR    = 0x200000
WS_YT    = 0x500000
WS_W1P   = 0x800000
WS_W2P   = 0xB00000
WP_SZ    = 2211840
WS_XF1   = 0xE00000
WS_XF3   = 0x1100000
WS_HF1   = 0x1400000
WS_HF2   = 0x1B00000
WS_STAMP = 0x2200000
KX = 0x5BD1E995
TAG0 = 0x9E3779B9

KC_STRIDE = 4160
SLOT = 8 * KC_STRIDE + 4608
U_OFF = 8 * KC_STRIDE
LDS_T = 3 * SLOT
T_STRIDE = 144
LDS_W1 = 0
W1_STRIDE = 224
LDS_SCR = 140 * 1024
LDS_TOTAL = 163840
LDS_MODE = LDS_TOTAL - 16
LDS_CSX = LDS_SCR + 16384
LDS_RP = LDS_T + 80 * T_STRIDE
LDS_Q = LDS_RP + 3 * 4096

S_G, S_J, S_W, S_MODE = 4, 5, 6, 7
SRD_A, SRD_B = 8, 12
P_Q, P_K, P_V, P_SK, P_SSM, P_D, P_W1 = 16, 18, 20, 22, 24, 26, 30
P_W2, P_OUT, P_DBG, P_WS = 32, 34, 36, 38
S_TAG = 28
S_KX = 29
S_RB, S_CS, S_RT, S_CT, S_UOFF = 40, 41, 42, 43, 44
S_MASK = 45
S_XCC = 46
S_CH = 47
S_HASCH = 48
S_DVAL = 49
S_T0 = 50
SRD_W2 = 56
S_W2B = 60
S_RU0 = 63
S_LFLAG = 64
S_TMPP = 66
S_TMPQ = 68
S_SLOT = 70
S_TMO = 71
S_HSTEP = 72
S_XFB = 86
S_M2 = 88
S_XO1, S_XO3, S_HO2 = 90, 91, 96
S_SAVE = 92
S_TS = 94

V_TID, V_LANE, V_L15, V_G = 0, 1, 2, 3
V_STAMP = 173
V_CS = 184
V_Y = 212
V_X = 222
V_W2X = 232

def w2reg(f):
    return ar(4 * f, 4) if f < 64 else vr(V_W2X + 4 * (f - 64), 4)

TIMEOUT = 400000

class K(Gen):
    def __init__(self, opts):
        super().__init__()
        self.o = opts
        self.bgq = []

    def stamp(self, idx):
        if not self.o.get("stamps"): return
        self("s_memtime s[%d:%d]" % (S_TS, S_TS + 1))
        self("s_waitcnt lgkmcnt(0)")
        self("v_writelane_b32 v%d, s%d, %d" % (V_STAMP, S_TS, idx))
        self.lgq = []
    def stamp_dump(self):
        if not self.o.get("stamps"): return
        self("s_memrealtime s[%d:%d]" % (S_TS, S_TS + 1))
        self("s_waitcnt lgkmcnt(0)")
        self("v_writelane_b32 v%d, s%d, 63" % (V_STAMP, S_TS))
        self("v_writelane_b32 v%d, s98, 62" % V_STAMP)
        self("s_lshl_b32 s3, s2, 2")
        self("s_add_u32 s3, s3, s%d" % S_W)
        self("s_lshl_b32 s3, s3, 8")
        self("s_add_u32 s3, s3, %d" % WS_STAMP)
        self("v_lshlrev_b32 v180, 2, v%d" % V_LANE)
        self("v_add_u32 v180, s3, v180")
        self("global_store_dword v180, v%d, s[%d:%d]" % (V_STAMP, P_WS, P_WS + 1))
        if self.o.get("dbgstamps"):
            L = self.label("L_ds")
            self("s_lshl_b32 s3, s2, 2")
            self("s_add_u32 s3, s3, s%d" % S_W)
            self("s_cmp_lg_u32 s3, %d" % (self.o.get("dbgwave", 37)))
            self("s_cbranch_scc1 %s" % L)
            self("v_readlane_b32 s50, v%d, 0" % V_STAMP)
            self("v_mov_b32 v181, 0")
            for i, idx in enumerate(self.o["dbgstamps"]):
                self("v_readlane_b32 s51, v%d, %d" % (V_STAMP, idx))
                self("s_sub_u32 s51, s51, s50")
                self("v_writelane_b32 v181, s51, %d" % i)
            self("v_lshlrev_b32 v180, 2, v%d" % V_LANE)
            self("s_mov_b64 exec, 0xffff")
            self("global_store_dword v180, v181, s[%d:%d]" % (P_DBG, P_DBG + 1))
            self("s_mov_b64 exec, -1")
            self("%s:" % L)
    def bg_add(self, items): self.bgq.extend(items)
    def bg_step(self, n=1):
        q = self.bgq
        while n > 0 and q:
            it = q.pop(0)
            if callable(it): it()
            elif isinstance(it, tuple):
                kind, text, tag = it
                (self.vm if kind == "vm" else self.lg)(text, tag)
            else: self(it)
            n -= 1
    def bg_flush(self): self.bg_step(1 << 30)
    def if_wave(self, w, eq=True):
        L = self.label("L_iw")
        self("s_cmp_%s_u32 s%d, %d" % ("lg" if eq else "eq", S_W, w))
        self("s_cbranch_scc1 %s" % L)
        return L
    def close(self, L): self("%s:" % L)
    def exec_set(self, mask):
        self("s_mov_b64 s[%d:%d], exec" % (S_SAVE, S_SAVE + 1))
        self("s_mov_b64 exec, %s" % mask)
    def exec_restore(self): self("s_mov_b64 exec, s[%d:%d]" % (S_SAVE, S_SAVE + 1))
    def rnd_pair(self, p, t):
        self("v_cvt_pk_bf16_f32 v%d, v%d, v%d" % (t, p, p + 1))
        self("v_lshlrev_b32 v%d, 16, v%d" % (p, t))
        self("v_and_b32 v%d, s%d, v%d" % (p + 1, S_MASK, t))
    def unpack(self, dst, src):
        self("v_lshlrev_b32 v%d, 16, v%d" % (dst, src))
        self("v_and_b32 v%d, s%d, v%d" % (dst + 1, S_MASK, src))
    def unpack_tile(self, dst, src):
        for i in range(10): self.unpack(dst + 2 * i, src + i)
    def rnd1(self, r, t):
        self("v_cvt_pk_bf16_f32 v%d, v%d, v%d" % (t, r, r))
        self("v_lshlrev_b32 v%d, 16, v%d" % (r, t))
    def xg_sum(self, r, t):
        self("v_mov_b32 v%d, v%d" % (t, r))
        self("v_permlane16_swap_b32 v%d, v%d" % (r, t))
        self("v_add_f32 v%d, v%d, v%d" % (r, r, t))
        self("v_mov_b32 v%d, v%d" % (t, r))
        self("v_permlane32_swap_b32 v%d, v%d" % (r, t))
        self("v_add_f32 v%d, v%d, v%d" % (r, r, t))
    def srd(self, q, ptr, nbytes, const=0, add_sgpr=None):
        self("s_add_u32 s%d, s%d, %d" % (q, ptr, const))
        self("s_addc_u32 s%d, s%d, 0" % (q + 1, ptr + 1))
        if add_sgpr is not None:
            self("s_add_u32 s%d, s%d, s%d" % (q, q, add_sgpr))
            self("s_addc_u32 s%d, s%d, 0" % (q + 1, q + 1))
        self("s_and_b32 s%d, s%d, 0xffff" % (q + 1, q + 1))
        self("s_mov_b32 s%d, %d" % (q + 2, nbytes))
        self("s_mov_b32 s%d, 0x20000" % (q + 3))
    def addr_pair(self, dst, ptr, const=0, add_sgpr=None):
        self("s_add_u32 s%d, s%d, %d" % (dst, ptr, const))
        self("s_addc_u32 s%d, s%d, 0" % (dst + 1, ptr + 1))
        if add_sgpr is not None:
            self("s_add_u32 s%d, s%d, s%d" % (dst, dst, add_sgpr))
            self("s_addc_u32 s%d, s%d, 0" % (dst + 1, dst + 1))
    def handoff_stores(self, lines, tagname="st", record=True):
        Ls, Ld = self.label("L_slow"), self.label("L_sd")
        self("s_cmp_eq_u32 s%d, 0" % S_MODE)
        self("s_cbranch_scc0 %s" % Ls)
        for l in lines: self(l + " " + getattr(self, "fastflag", ""))
        self("s_branch %s" % Ld)
        self("%s:" % Ls)
        for l in lines: self(l + " sc0 sc1")
        self("%s:" % Ld)
        if record:
            for l in lines: self.vmq.append(tagname)
    def rowbase(self):
        self("s_lshl_b32 s3, s%d, 8" % S_G)
        self("s_lshl_b32 s%d, s%d, 6" % (S_T0, S_RB))
        self("s_add_u32 s3, s3, s%d" % S_T0)
        self("s_lshl_b32 s%d, s%d, 4" % (S_T0, S_W))
        self("s_add_u32 s3, s3, s%d" % S_T0)

    def flag_store(self, base_pair, off_sgpr, val, device, vt=176):
        if isinstance(val, int): self("s_add_u32 s3, s%d, %d" % (S_TAG, val))
        else: self("s_add_u32 s3, s%d, %s" % (S_TAG, val))
        self("v_mov_b32 v%d, s3" % vt)
        self("s_xor_b32 s3, s3, s%d" % S_KX)
        self("v_mov_b32 v%d, s3" % (vt + 1))
        self("v_mov_b32 v%d, s%d" % (vt + 2, off_sgpr))
        self.exec_set("1")
        line = "global_store_dwordx2 v%d, %s, s[%d:%d]" % (vt + 2, vr(vt, 2), base_pair, base_pair + 1)
        if device: self(line + " sc0 sc1")
        else: self.handoff_stores([line], record=False)
        self.exec_restore()
    def pair_bad(self, w0, w1, lo, span, t, acc=None):
        self("v_subrev_u32 v%d, s%d, v%d" % (t, lo, w0))
        self("v_cmp_lt_u32 vcc, %d, v%d" % (span, t))
        self("v_xor_b32 v%d, v%d, v%d" % (t, w0, w1))
        self("v_cmp_ne_u32 s[%d:%d], s%d, v%d" % (S_M2, S_M2 + 1, S_KX, t))
        self("s_or_b64 s[%d:%d], vcc, s[%d:%d]" % (S_M2, S_M2 + 1, S_M2, S_M2 + 1))
    def poll_pairs(self, base_pair, voff, lo, span, vt, npair=1, sleep=0):
        L = self.label("L_poll")
        self("s_add_u32 s%d, s%d, %d" % (S_T0 + 5, S_TAG, lo))
        self("s_mov_b32 s%d, %d" % (S_TMO, TIMEOUT))
        self("%s:" % L)
        if sleep: self("s_sleep %d" % sleep)
        if npair == 1:
            self("global_load_dwordx2 %s, v%d, s[%d:%d] sc1" % (vr(vt, 2), voff, base_pair, base_pair + 1))
        else:
            for k in range(npair // 2):
                self("global_load_dwordx4 %s, v%d, s[%d:%d] offset:%d sc1" % (vr(vt + 4 * k, 4), voff, base_pair, base_pair + 1, 16 * k))
        self("s_sub_u32 s%d, s%d, 1" % (S_TMO, S_TMO))
        self("s_cmp_eq_u32 s%d, 0" % S_TMO)
        self("s_cbranch_scc1 L_abort")
        self("s_waitcnt vmcnt(0)")
        for k in range(npair):
            self.pair_bad(vt + 2 * k, vt + 2 * k + 1, S_T0 + 5, span, vt + 2 * npair)
            self("s_cbranch_scc1 %s" % L)

    def barrier_arrive(self, phase, drain=True, wave=0):
        if drain: self.wait_all()
        self("s_barrier")
        L = self.if_wave(wave)
        self("s_lshl_b32 s%d, s%d, 3" % (S_T0, S_J))
        self.flag_store(S_LFLAG, S_T0, phase, device=False)
        self.close(L)
    def pk_wait(self):
        L = self.if_wave(3)
        self.addr_pair(S_TMPP, P_WS, WS_PKFLAG)
        self("v_lshlrev_b32 v174, 5, v%d" % V_LANE)
        self.poll_pairs(S_TMPP, 174, 1, 0, 4, npair=4)
        self.stamp(40)
        self.close(L)
    def barrier_wait(self, phase, wave=0, vt=176):
        L = self.if_wave(wave)
        self("v_and_b32 v%d, 31, v%d" % (vt + 4, V_LANE))
        self("v_lshlrev_b32 v%d, 3, v%d" % (vt + 4, vt + 4))
        self.poll_pairs(S_LFLAG, vt + 4, phase, 7 - phase, vt)
        self.close(L)
        self("s_barrier")

    def prologue(self):
        self("s_cmp_ge_u32 s2, 256")
        self("s_cbranch_scc1 L_end")
        if self.o.get("dbgtime") or self.o.get("stamps"):
            self("s_memrealtime s[98:99]")
            self("s_memtime s[100:101]")
        self("s_load_dwordx16 s[16:31], s[0:1], 0")
        self("s_load_dwordx8 s[32:39], s[0:1], 64")
        self("s_and_b32 s%d, s2, 7" % S_G)
        self("s_lshr_b32 s%d, s2, 3" % S_J)
        self("v_lshrrev_b32 v4, 6, v0")
        self("v_readfirstlane_b32 s%d, v4" % S_W)
        self("v_and_b32 v%d, 63, v0" % V_LANE)
        self("v_and_b32 v%d, 15, v0" % V_L15)
        self("v_bfe_u32 v%d, v0, 4, 2" % V_G)
        self("s_getreg_b32 s%d, hwreg(HW_REG_XCC_ID, 0, 4)" % S_XCC)
        self("s_mov_b32 s%d, 0xffff0000" % S_MASK)
        self("s_lshr_b32 s%d, s%d, 3" % (S_RB, S_J))
        self("s_and_b32 s%d, s%d, 7" % (S_CS, S_J))
        self("s_lshr_b32 s%d, s%d, 4" % (S_RT, S_J))
        self("s_and_b32 s%d, s%d, 15" % (S_CT, S_J))
        self("s_mul_i32 s3, s%d, %d" % (S_CT, 11 * 4370))
        self("s_lshr_b32 s3, s3, 16")
        self("s_mul_i32 s%d, s%d, 6" % (S_UOFF, S_CT))
        self("s_add_u32 s%d, s%d, s3" % (S_UOFF, S_UOFF))
        self("s_mov_b32 s%d, 0" % S_MODE)
        self("s_waitcnt lgkmcnt(0)")
        wsb = self.o.get("wsbase", 0)
        if wsb:
            self("s_add_u32 s%d, s%d, 0x%x" % (P_WS, P_WS, wsb))
            self("s_addc_u32 s%d, s%d, 0" % (P_WS + 1, P_WS + 1))
        self("s_load_dword s%d, s[%d:%d], %d" % (S_TAG, P_WS, P_WS + 1, WS_EPOCH))
        self("s_mov_b32 s%d, 0x%x" % (S_KX, KX))
        self("s_lshl_b32 s3, s%d, 8" % S_G)
        self.addr_pair(S_LFLAG, P_WS, WS_LFLAG, 3)

    def repack_issue(self):
        L = self.if_wave(3)
        row, ch, off = 100, 101, 102
        self("v_lshrrev_b32 v%d, 3, v%d" % (row, V_LANE))
        self("v_and_b32 v%d, 7, v%d" % (ch, V_LANE))
        self("v_lshlrev_b32 v%d, 4, v%d" % (ch, ch))
        self("v_mul_u32_u24 v%d, 1280, v%d" % (103, row))
        self("v_add_u32 v%d, v%d, v%d" % (103, 103, ch))
        for k in range(3):
            Lk = None
            if k == 2:
                Lk = self.label("L_rp3")
                self("s_cmp_ge_u32 s2, 28")
                self("s_cbranch_scc1 %s" % Lk)
            a, b = S_T0, S_T0 + 1
            self("s_add_u32 s%d, s2, %d" % (S_T0 + 3, 256 * k))
            self("s_mul_hi_u32 s%d, s%d, %d" % (a, S_T0 + 3, (1 << 32) // 10 + 1))
            self("s_mul_i32 s%d, s%d, 10" % (b, a))
            self("s_sub_u32 s%d, s%d, s%d" % (b, S_T0 + 3, b))
            self("s_mul_i32 s3, s%d, %d" % (a, 32 * 1280))
            self("s_lshl_b32 s%d, s%d, 7" % (S_T0 + 2, b))
            self("s_add_u32 s3, s3, s%d" % (S_T0 + 2))
            self.addr_pair(S_TMPP, P_W2, 0, 3)
            self("s_mul_i32 s3, s%d, 40" % a)
            self("s_lshl_b32 s%d, s%d, 2" % (b, b))
            self("s_add_u32 s3, s3, s%d" % b)
            self("s_lshl_b32 s3, s3, 10")
            self("s_add_u32 s%d, s3, %d" % (74 + k, WS_W2P))
            self("v_mov_b32 v%d, v103" % off)
            for r in range(4):
                self("s_mov_b32 m0, %d" % (LDS_RP + 4096 * k + 1024 * r))
                if r: self("v_add_u32 v%d, %d, v%d" % (off, 8 * 1280, off))
                self("global_load_lds_dwordx4 v%d, s[%d:%d] %s" % (off, S_TMPP, S_TMPP + 1, self.o.get("nt_w", "nt")))
            if Lk: self("%s:" % Lk)
        self("s_lshl_b32 s3, s%d, 8" % S_G)
        self("s_lshl_b32 s%d, s%d, 6" % (S_T0, S_RB))
        self("s_add_u32 s3, s3, s%d" % S_T0)
        self("s_mul_i32 s3, s3, 1280")
        self("s_mul_i32 s%d, s%d, 160" % (S_T0, S_CS))
        self("s_add_u32 s3, s3, s%d" % S_T0)
        self.addr_pair(S_TMPP, P_Q, 0, 3)
        self("s_mov_b32 s%d, %d" % (S_T0, (1 << 32) // 10 + 1))
        for i in range(10):
            self("v_add_u32 v%d, %d, v%d" % (off, 64 * i, V_LANE))
            self("v_mul_hi_u32 v%d, v%d, s%d" % (row, off, S_T0))
            self("v_mul_u32_u24 v%d, 10, v%d" % (ch, row))
            self("v_sub_u32 v%d, v%d, v%d" % (ch, off, ch))
            self("v_mul_u32_u24 v%d, 1280, v%d" % (row, row))
            self("v_lshl_add_u32 v%d, v%d, 4, v%d" % (off, ch, row))
            self("s_mov_b32 m0, %d" % (LDS_Q + 1024 * i))
            self("global_load_lds_dwordx4 v%d, s[%d:%d]" % (off, S_TMPP, S_TMPP + 1))
        self.close(L)
    def repack_finish(self):
        a, sa = 100, 101
        self("s_waitcnt vmcnt(0)")
        self("v_bfe_u32 v%d, v%d, 2, 2" % (a, V_LANE))
        self("v_lshl_add_u32 v%d, v%d, 2, v%d" % (a, V_G, a))
        self("v_lshlrev_b32 v%d, 7, v%d" % (a, a))
        self("v_and_b32 v%d, 3, v%d" % (sa, V_LANE))
        self("v_lshl_add_u32 v%d, v%d, 3, v%d" % (a, sa, a))
        self("v_add_u32 v%d, %d, v%d" % (a, LDS_RP, a))
        for k in range(3):
            Lk = None
            if k == 2:
                Lk = self.label("L_rf3")
                self("s_cmp_ge_u32 s2, 28")
                self("s_cbranch_scc1 %s" % Lk)
            F = 104 + 16 * k
            for u in range(4):
                for h in range(2):
                    self("ds_read_b64_tr_b16 %s, v%d offset:%d" % (vr(F + 4 * u + 2 * h, 2), a, 4096 * k + h * 2048 + 32 * u))
            self("v_lshlrev_b32 v%d, 4, v%d" % (sa, V_LANE))
            self("v_add_u32 v%d, s%d, v%d" % (sa, 74 + k, sa))
            self("s_waitcnt lgkmcnt(0)")
            for u in range(4):
                self("global_store_dwordx4 v%d, %s, s[%d:%d] offset:%d sc0 sc1" % (sa, vr(F + 4 * u, 4), P_WS, P_WS + 1, 1024 * u))
            if Lk: self("%s:" % Lk)

    def prep_loads(self):
        KR, VR, TAP, RAW = 4, 34, 46, 66
        self.KR, self.VR, self.TAP, self.RAW = KR, VR, TAP, RAW
        c10, rp, off = 110, 111, 112
        self("v_and_b32 v%d, 7, v0" % c10)
        self("v_lshrrev_b32 v%d, 3, v0" % rp)
        self("s_lshl_b32 s3, s%d, 6" % S_J)
        self("s_sub_u32 s3, s3, 3")
        self("v_lshlrev_b32 v%d, 1, v%d" % (off, rp))
        self("v_add_u32 v%d, s3, v%d" % (off, off))
        self("s_movk_i32 s%d, 1280" % S_T0)
        self("v_mul_lo_u32 v%d, v%d, s%d" % (off, off, S_T0))
        self("s_mul_i32 s3, s%d, 160" % S_G)
        self("v_mul_u32_u24 v%d, 20, v%d" % (off + 1, c10))
        self("v_add3_u32 v%d, v%d, v%d, s3" % (off, off, off + 1))
        self.srd(SRD_A, P_K, 2621440)
        self.srd(SRD_B, P_V, 2621440)
        nk = self.o.get("nt_kv", "")
        offs = [off]
        for r in range(1, 5):
            self("v_add_u32 v%d, %d, v%d" % (off + 1 + r, 1280 * r, off))
            offs.append(off + 1 + r)
        for r in range(5):
            self.vm("buffer_load_dwordx4 %s, v%d, s[%d:%d], 0 offen %s" % (vr(KR + 6 * r, 4), offs[r], SRD_A, SRD_A + 3, nk), "k")
            self.vm("buffer_load_dword v%d, v%d, s[%d:%d], 0 offen offset:16 %s" % (KR + 6 * r + 4, offs[r], SRD_A, SRD_A + 3, nk), "k")
        for r in range(2):
            self.vm("buffer_load_dwordx4 %s, v%d, s[%d:%d], 0 offen %s" % (vr(VR + 6 * r, 4), offs[3 + r], SRD_B, SRD_B + 3, nk), "v")
            self.vm("buffer_load_dword v%d, v%d, s[%d:%d], 0 offen offset:16 %s" % (VR + 6 * r + 4, offs[3 + r], SRD_B, SRD_B + 3, nk), "v")
        t = off + 7
        self("s_mul_i32 s3, s%d, 640" % S_G)
        self("v_mul_u32_u24 v%d, 80, v%d" % (t, c10))
        self("v_add_u32 v%d, s3, v%d" % (t, t))
        for i in range(5):
            self.vm("global_load_dwordx4 %s, v%d, s[%d:%d] offset:%d" % (vr(TAP + 4 * i, 4), t, P_SK, P_SK + 1, 16 * i), "tap")
        self("s_lshl_b32 s3, s%d, 5" % S_W)
        self("s_add_u32 s3, s3, s%d" % S_J)
        self("s_cmp_lt_u32 s3, 80")
        self("s_cselect_b32 s%d, 1, 0" % S_HASCH)
        self("s_cselect_b32 s3, s3, 0")
        self("s_mul_i32 s%d, s%d, 80" % (S_CH, S_G))
        self("s_add_u32 s%d, s%d, s3" % (S_CH, S_CH))
        self("s_mul_i32 s%d, s%d, %d" % (S_SLOT, S_W, SLOT))
        self("s_cmp_lt_u32 s%d, 3" % S_W)
        self("s_cselect_b32 s%d, s%d, 0" % (S_SLOT, S_SLOT))
        self("s_lshl_b32 s3, s%d, 1" % S_CH)
        self("s_and_b32 s3, s3, 0xfffffffc")
        self("s_load_dword s%d, s[%d:%d], s3" % (S_DVAL, P_D, P_D + 1))
        self("s_lshl_b32 s3, s%d, 12" % S_CH)
        self.srd(52, P_SSM, 4096, add_sgpr=3)
        a = off + 10
        defer = self.o.get("defer", 0)
        if not defer: self.prep_loads_b()
        if self.o.get("codepf", 1):
            L = self.if_wave(1)
            self("s_getpc_b64 s[%d:%d]" % (S_TMPP, S_TMPP + 1))
            self("L_pcref:")
            self("s_sub_u32 s%d, s%d, (L_pcref - %s)" % (S_TMPP, S_TMPP, KNAME))
            self("s_subb_u32 s%d, s%d, 0" % (S_TMPP + 1, S_TMPP + 1))
            nl = self.o.get("codelines", 640)
            per = -(-nl // 32)
            self("s_mul_i32 s3, s%d, %d" % (S_J, per))
            self("v_add_u32 v%d, s3, v%d" % (a, V_LANE))
            self("v_min_u32 v%d, (L_end - %s) / 128, v%d" % (a, KNAME, a))
            self("v_lshlrev_b32 v%d, 7, v%d" % (a, a))
            self("s_mov_b64 s[%d:%d], exec" % (S_SAVE, S_SAVE + 1))
            self("s_bfm_b64 exec, %d, 0" % per)
            self("global_load_dword a0, v%d, s[%d:%d]" % (a, S_TMPP, S_TMPP + 1))
            self.exec_restore()
            self.close(L)
        if not defer: self.repack_issue()
        self("s_waitcnt lgkmcnt(0)")
        self("s_add_u32 s%d, s%d, 0x%x" % (S_TAG, S_TAG, TAG0))
        L = self.if_wave(0)
        self("s_lshl_b32 s%d, s%d, 8" % (S_T0, S_G))
        self("s_lshl_b32 s%d, s%d, 3" % (S_T0 + 1, S_J))
        self("s_add_u32 s%d, s%d, s%d" % (S_T0, S_T0, S_T0 + 1))
        self("s_add_u32 s%d, s%d, %d" % (S_T0, S_T0, WS_XCCF))
        self.flag_store(P_WS, S_T0, "s%d" % S_XCC, device=True)
        self.close(L)

    def prep_loads_b(self):
        RAW = self.RAW
        off = 112
        a = off + 10
        Lr = self.if_wave(3, eq=False)
        self("v_lshlrev_b32 v%d, 4, v%d" % (a, V_LANE))
        for r in range(4):
            self("v_add_u32 v%d, %d, v%d" % (a + 1, (1024 * r - 16) & 0xffffffff, a))
            self("buffer_load_dwordx4 %s, v%d, s[52:55], 0 offen %s" % (vr(RAW + 8 * r, 4), a + 1, self.o.get("nt_s", "")))
            self("buffer_load_dwordx4 %s, v%d, s[52:55], 0 offen offset:%d %s" % (vr(RAW + 8 * r + 4, 4), a, 1024 * r, self.o.get("nt_s", "")))
        self.close(Lr)
        La, Lb = self.label("L_pt"), self.label("L_ptd")
        self("s_cmp_ge_u32 s%d, 2" % S_W)
        self("s_cbranch_scc1 %s" % La)
        self("s_lshl_b32 s3, s%d, 6" % S_W)
        self("v_add_u32 v%d, s3, v%d" % (a, V_LANE))
        self("v_min_u32 v%d, 79, v%d" % (a, a))
        self("v_lshlrev_b32 v%d, 12, v%d" % (a, a))
        self("s_mul_i32 s3, s%d, %d" % (S_G, 80 * 4096))
        self("s_sub_u32 s%d, 31, s%d" % (S_T0, S_J))
        self("s_lshl_b32 s%d, s%d, 7" % (S_T0, S_T0))
        self("s_add_u32 s3, s3, s%d" % S_T0)
        self("s_add_u32 s3, s3, %d" % WS_UR)
        self("v_add_u32 v%d, s3, v%d" % (a, a))
        self("global_load_dword a0, v%d, s[%d:%d]" % (a, P_WS, P_WS + 1))
        self("s_branch %s" % Lb)
        self("%s:" % La)
        self("v_and_b32 v%d, 1, v%d" % (a, V_LANE))
        self("v_lshlrev_b32 v%d, 7, v%d" % (a, a))
        self("global_load_dword a0, v%d, s[%d:%d]" % (a, S_LFLAG, S_LFLAG + 1))
        self("%s:" % Lb)

    def window_stores(self):
        a = 160
        self("s_lshl_b32 s3, s%d, 8" % S_G)
        self("s_lshl_b32 s%d, s%d, 6" % (S_T0, S_RB))
        self("s_add_u32 s3, s3, s%d" % S_T0)
        self("s_lshl_b32 s%d, s%d, 3" % (S_T0, S_CS))
        self("s_add_u32 s3, s3, s%d" % S_T0)
        self("v_and_b32 v%d, 7, v%d" % (a, V_LANE))
        self("v_add_u32 v%d, s3, v%d" % (a, a))
        self("v_lshlrev_b32 v%d, 7, v%d" % (a, a))
        self("v_bfe_u32 v%d, v%d, 3, 2" % (a + 1, V_LANE))
        self("v_mul_u32_u24 v%d, %d, v%d" % (a + 1, STAT_SZ, a + 1))
        self("v_add_u32 v%d, v%d, v%d" % (a, a, a + 1))
        self("v_add_u32 v%d, %d, v%d" % (a, WS_STAT, a))
        self("global_load_dword a0, v%d, s[%d:%d]" % (a, P_WS, P_WS + 1))
        if not self.o.get("prewrite", 0): return
        for i in range(4): self("v_mov_b32 v%d, -1" % (164 + i))
        self("s_mul_i32 s3, s%d, %d" % (S_G, 16 * 54 * 1024))
        self("s_mul_i32 s%d, s%d, %d" % (S_T0, S_J, 27 * 1024))
        self("s_add_u32 s3, s3, s%d" % S_T0)
        self("s_add_u32 s3, s3, %d" % WS_HF1)
        self("v_lshlrev_b32 v%d, 4, v%d" % (a, V_LANE))
        self("v_add_u32 v%d, s3, v%d" % (a, a))
        for i in range(27):
            if i and i % 4 == 0: self("v_add_u32 v%d, 4096, v%d" % (a, a))
            self("global_store_dwordx4 v%d, v[164:167], s[%d:%d] offset:%d sc0 sc1" % (a, P_WS, P_WS + 1, 1024 * (i % 4)))

    def prep_compute(self):
        KR, VR, TAP = self.KR, self.VR, self.TAP
        Kp, Tp, Vp = 124, 134, 142
        A0, A1, P0, P1, t0, t1 = 146, 148, 150, 152, 154, 155
        O0, O1 = 156, 157
        lad = 158
        self("v_and_b32 v%d, 7, v0" % lad)
        self("v_mul_u32_u24 v%d, %d, v%d" % (lad, 10 * T_STRIDE, lad))
        self("v_lshrrev_b32 v%d, 3, v0" % (lad + 1))
        self("v_lshlrev_b32 v%d, 2, v%d" % (lad + 1, lad + 1))
        self("v_sub_u32 v%d, v%d, v%d" % (lad, lad, lad + 1))
        self("v_add_u32 v%d, %d, v%d" % (lad, LDS_T + 124, lad))
        L3, Ld = self.label("L_w3"), self.label("L_w3d")
        if not self.o.get("defer", 0):
            self("s_cmp_eq_u32 s%d, 3" % S_W)
            self("s_cbranch_scc1 %s" % L3)
        if self.o.get("defer", 0):
            self("s_cmp_ge_u32 s%d, 2" % S_W)
            self("s_cbranch_scc1 %s" % L3)
            self("s_waitcnt vmcnt(1)")
            self("s_branch %s" % Ld)
            self("%s:" % L3)
            self("s_waitcnt vmcnt(0)")
            self("%s:" % Ld)
            self.prep_loads_b()
            self.repack_issue()
        else:
            self("s_waitcnt vmcnt(8)")
            self("s_branch %s" % Ld)
            self("%s:" % L3)
            self("s_waitcnt vmcnt(18)")
            self("%s:" % Ld)
        self.vmq = []
        if self.o.get("mode_early"): self.mode_load()
        else:
            self("s_lshl_b32 s3, s%d, 8" % S_G)
            self.addr_pair(S_TMPQ, P_WS, WS_XCCF, 3)
            self("v_and_b32 v180, 31, v%d" % V_LANE)
            self("v_lshlrev_b32 v180, 3, v180")
        self.stamp(39)
        pk = lambda op, d, a, b: self("v_pk_%s_f32 %s, %s, %s" % (op, vr(d, 2), vr(a, 2), vr(b, 2)))
        for i in range(5):
            for r in range(5): self.unpack(Kp + 2 * r, KR + 6 * r + i)
            for t in range(4):
                s0 = TAP + 4 * i + (t >> 1); s1 = s0 + 2
                if t & 1:
                    self("v_and_b32 v%d, s%d, v%d" % (Tp + 2 * t, S_MASK, s0))
                    self("v_and_b32 v%d, s%d, v%d" % (Tp + 2 * t + 1, S_MASK, s1))
                else:
                    self("v_lshlrev_b32 v%d, 16, v%d" % (Tp + 2 * t, s0))
                    self("v_lshlrev_b32 v%d, 16, v%d" % (Tp + 2 * t + 1, s1))
            for r in range(2): self.unpack(Vp + 2 * r, VR + 6 * r + i)
            pk("mul", A0, Kp + 0, Tp + 6); pk("mul", A1, Kp + 2, Tp + 6)
            self.rnd_pair(A0, t0); self.rnd_pair(A1, t1)
            for step in range(1, 4):
                T = Tp + 2 * (3 - step)
                pk("mul", P0, Kp + 2 * step, T); pk("mul", P1, Kp + 2 * (step + 1), T)
                self.rnd_pair(P0, t0); self.rnd_pair(P1, t1)
                pk("add", A0, A0, P0); pk("add", A1, A1, P1)
                self.rnd_pair(A0, t0); self.rnd_pair(A1, t1)
            pk("mul", A0, A0, Vp + 0); pk("mul", A1, A1, Vp + 2)
            self("v_cvt_pk_bf16_f32 v%d, v%d, v%d" % (O0, A1, A0))
            self("v_cvt_pk_bf16_f32 v%d, v%d, v%d" % (O1, A1 + 1, A0 + 1))
            self.lg("ds_write_b32 v%d, v%d offset:%d" % (lad, O0, (2 * i) * T_STRIDE), "tw")
            self.lg("ds_write_b32 v%d, v%d offset:%d" % (lad, O1, (2 * i + 1) * T_STRIDE), "tw")

    def mode_load(self):
        self("s_lshl_b32 s3, s%d, 8" % S_G)
        self.addr_pair(S_TMPQ, P_WS, WS_XCCF, 3)
        self("v_and_b32 v180, 31, v%d" % V_LANE)
        self("v_lshlrev_b32 v180, 3, v180")
        L = self.if_wave(0)
        self("global_load_dwordx2 v[176:177], v180, s[%d:%d] sc1" % (S_TMPQ, S_TMPQ + 1))
        self.close(L)
    def mode_check(self, vt=176):
        L = self.if_wave(0)
        Lok = self.label("L_mok")
        if self.o.get("mode_early"):
            self("s_waitcnt vmcnt(0)")
            self("s_add_u32 s%d, s%d, 0" % (S_T0 + 5, S_TAG))
            self.pair_bad(vt, vt + 1, S_T0 + 5, 7, vt + 2)
            self("s_cbranch_scc0 %s" % Lok)
        self.poll_pairs(S_TMPQ, vt + 4, 0, 7, vt)
        self("%s:" % Lok)
        self("s_add_u32 s3, s%d, s%d" % (S_TAG, S_XCC))
        self("v_cmp_ne_u32 vcc, s3, v%d" % vt)
        self("s_nop 1")
        self("s_cmp_lg_u64 vcc, 0")
        self("s_cselect_b32 s%d, 1, 0" % S_MODE)
        if self.o.get("force_slow"): self("s_mov_b32 s%d, 1" % S_MODE)
        self("v_mov_b32 v%d, s%d" % (vt, S_MODE))
        self("v_mov_b32 v%d, %d" % (vt + 1, LDS_MODE))
        self("ds_write_b32 v%d, v%d" % (vt + 1, vt))
        self.close(L)
    def mode_fetch(self, vt=176):
        self("v_mov_b32 v%d, %d" % (vt + 1, LDS_MODE))
        self("ds_read_b32 v%d, v%d" % (vt, vt + 1))
        self("s_waitcnt lgkmcnt(0)")
        self("v_readfirstlane_b32 s%d, v%d" % (S_MODE, vt))
        self.lgq = []
        alias = self.o.get("alias", 1)
        self("s_mov_b32 s%d, %d" % (S_XO1, WS_UR if alias else WS_XF1))
        self("s_mov_b32 s%d, %d" % (S_XO3, WS_UR if alias else WS_XF3))
        self("s_mov_b32 s%d, %d" % (S_HO2, WS_HF1 if alias else WS_HF2))
        L = self.label("L_al")
        self("s_cmp_eq_u32 s%d, 0" % S_MODE)
        self("s_cbranch_scc1 %s" % L)
        self("s_mov_b32 s%d, %d" % (S_XO1, WS_XF1))
        self("s_mov_b32 s%d, %d" % (S_XO3, WS_XF3))
        self("s_mov_b32 s%d, %d" % (S_HO2, WS_HF2))
        self("%s:" % L)

    def stats_addr_items(self, va, vb):
        g = Gen()
        g("s_lshl_b32 s97, s%d, 8" % S_G)
        g("s_lshl_b32 s98, s%d, 6" % S_RB) if False else None
        g("s_lshl_b32 s100, s%d, 6" % S_RB)
        g("s_add_u32 s97, s97, s100")
        g("s_lshl_b32 s100, s%d, 4" % S_W)
        g("s_add_u32 s97, s97, s100")
        g("v_add_u32 v%d, s97, v%d" % (vb, V_L15))
        g("v_lshlrev_b32 v%d, 7, v%d" % (vb, vb))
        g("s_lshl_b32 s100, s%d, 4" % S_CS)
        g("v_add_u32 v%d, s100, v%d" % (va, vb))
        g("v_lshl_add_u32 v%d, v%d, 5, v%d" % (vb, V_G, vb))
        return [i.text.strip() for i in g.ins]
    def tile_stats(self, xf, buf, tmp, va=None):
        s, t = tmp, tmp + 4
        d = tmp + 6
        m2 = tmp + 26
        pk = lambda op, dd, a, b: self("v_pk_%s_f32 %s, %s, %s" % (op, vr(dd, 2), vr(a, 2), vr(b, 2)))
        pk("add", s, xf, xf + 2); pk("add", s + 2, xf + 4, xf + 6)
        for i in range(4, 10, 2):
            pk("add", s, s, xf + 2 * i); pk("add", s + 2, s + 2, xf + 2 * i + 2)
        pk("add", s, s, s + 2)
        self("v_add_f32 v%d, v%d, v%d" % (s, s, s + 1))
        self.xg_sum(s, t)
        self("v_mul_f32 v%d, 0x3c4ccccd, v%d" % (s, s))
        for i in range(10):
            self("v_pk_add_f32 %s, %s, %s op_sel_hi:[1,0] neg_lo:[0,1] neg_hi:[0,1]" % (vr(d + 2 * i, 2), vr(xf + 2 * i, 2), vr(s, 2)))
        pk("mul", m2, d, d); pk("mul", s + 2, d + 2, d + 2)
        for i in range(2, 10, 2):
            self("v_pk_fma_f32 %s, %s, %s, %s" % (vr(m2, 2), vr(d + 2 * i, 2), vr(d + 2 * i, 2), vr(m2, 2)))
            self("v_pk_fma_f32 %s, %s, %s, %s" % (vr(s + 2, 2), vr(d + 2 * i + 2, 2), vr(d + 2 * i + 2, 2), vr(s + 2, 2)))
        pk("add", m2, m2, s + 2)
        self("v_add_f32 v%d, v%d, v%d" % (s + 1, m2, m2 + 1))
        self("s_add_u32 s3, s%d, %d" % (S_TAG, buf))
        self("v_mov_b32 v%d, s3" % (s + 2))
        self.xg_sum(s + 1, t)
        self("s_xor_b32 s3, s3, s%d" % S_KX)
        self("v_mov_b32 v%d, s3" % (s + 3))
        if va is None:
            for l in self.stats_addr_items(t, t + 1): self(l)
            va = t
        self.addr_pair(S_TMPP, P_WS, WS_STAT + buf * STAT_SZ)
        self.exec_set("0xffff")
        self.handoff_stores(["global_store_dwordx4 v%d, %s, s[%d:%d]" % (va, vr(s, 4), S_TMPP, S_TMPP + 1)], "stat")
        self.exec_restore()
    def row_stats_issue(self, buf, tmp, vb=None):
        a = tmp + 8
        if vb is not None:
            self("v_add_u32 v%d, %d, v%d" % (a, WS_STAT + buf * STAT_SZ, vb))
        else:
            self.rowbase()
            self("s_lshl_b32 s3, s3, 7")
            self("s_add_u32 s3, s3, %d" % (WS_STAT + buf * STAT_SZ))
            self("v_lshlrev_b32 v%d, 7, v%d" % (a, V_L15))
            self("v_lshl_add_u32 v%d, v%d, 5, v%d" % (a, V_G, a))
            self("v_add_u32 v%d, s3, v%d" % (a, a))
        for k in range(2):
            self.vm("global_load_dwordx4 %s, v%d, s[%d:%d] offset:%d sc1" % (vr(tmp + 4 * k, 4), a, P_WS, P_WS + 1, 16 * k), "rs")
    def row_stats_validate(self, buf, tmp):
        Lr, Lo = self.label("L_rsr"), self.label("L_rso")
        self("s_add_u32 s%d, s%d, %d" % (S_T0 + 5, S_TAG, buf))
        self("s_mov_b32 s%d, %d" % (S_TMO, TIMEOUT))
        self("%s:" % Lr)
        self.pair_bad(tmp + 2, tmp + 3, S_T0 + 5, 0, tmp + 9)
        self("s_mov_b64 s[%d:%d], s[%d:%d]" % (S_TMPQ, S_TMPQ + 1, S_M2, S_M2 + 1))
        self.pair_bad(tmp + 6, tmp + 7, S_T0 + 5, 0, tmp + 9)
        self("s_or_b64 s[%d:%d], s[%d:%d], s[%d:%d]" % (S_M2, S_M2 + 1, S_M2, S_M2 + 1, S_TMPQ, S_TMPQ + 1))
        self("s_cbranch_scc0 %s" % Lo)
        self("s_sub_u32 s%d, s%d, 1" % (S_TMO, S_TMO))
        self("s_cmp_eq_u32 s%d, 0" % S_TMO)
        self("s_cbranch_scc1 L_abort")
        for k in range(2):
            self("global_load_dwordx4 %s, v%d, s[%d:%d] offset:%d sc1" % (vr(tmp + 4 * k, 4), tmp + 8, P_WS, P_WS + 1, 16 * k))
        self("s_waitcnt vmcnt(0)")
        self("s_branch %s" % Lr)
        self("%s:" % Lo)
        self("v_mov_b32 v%d, v%d" % (tmp + 2, tmp + 4))
        self("v_mov_b32 v%d, v%d" % (tmp + 3, tmp + 5))
    def row_stats_finish_items(self, tmp, out_m, out_rs):
        m0, q0, m1, q1 = tmp, tmp + 1, tmp + 2, tmp + 3
        s, t = tmp + 4, tmp + 5
        g = Gen()
        def xs(r):
            g("v_mov_b32 v%d, v%d" % (t, r)); g("v_permlane16_swap_b32 v%d, v%d" % (r, t)); g("v_add_f32 v%d, v%d, v%d" % (r, r, t))
            g("v_mov_b32 v%d, v%d" % (t, r)); g("v_permlane32_swap_b32 v%d, v%d" % (r, t)); g("v_add_f32 v%d, v%d, v%d" % (r, r, t))
        def r1(r):
            g("v_cvt_pk_bf16_f32 v%d, v%d, v%d" % (t, r, r)); g("v_lshlrev_b32 v%d, 16, v%d" % (r, t))
        g("v_add_f32 v%d, v%d, v%d" % (s, m0, m1)); xs(s)
        g("v_mul_f32 v%d, 0x3e000000, v%d" % (s, s))
        g("v_sub_f32 v%d, v%d, v%d" % (m0, m0, s)); g("v_sub_f32 v%d, v%d, v%d" % (m1, m1, s))
        g("v_mul_f32 v%d, v%d, v%d" % (m0, m0, m0)); g("v_fmac_f32 v%d, v%d, v%d" % (m0, m1, m1))
        g("v_add_f32 v%d, v%d, v%d" % (q0, q0, q1))
        g("v_mov_b32 v%d, 0x42a00000" % t); g("v_fmac_f32 v%d, v%d, v%d" % (q0, m0, t)); xs(q0)
        g("v_mul_f32 v%d, 0x3acccccd, v%d" % (q0, q0)); r1(q0)
        g("v_add_f32 v%d, 0x3727c5ac, v%d" % (q0, q0)); r1(q0)
        g("v_sqrt_f32 v%d, v%d" % (q0, q0)); g("s_nop 0"); r1(q0)
        g("v_rcp_f32 v%d, v%d" % (out_rs, q0)); r1(s)
        g("v_mov_b32 v%d, v%d" % (out_m, s))
        return [i.text.strip() for i in g.ins]
    def row_stats_finish(self, tmp, out_m, out_rs):
        for l in self.row_stats_finish_items(tmp, out_m, out_rs): self(l)

    def prep_store_ur(self):
        L3 = self.if_wave(3, eq=False)
        a, b = 100, 101
        self("v_lshrrev_b32 v%d, 3, v0" % a)
        self("v_and_b32 v%d, 7, v0" % b)
        self("v_lshlrev_b32 v%d, 4, v%d" % (b, b))
        self("v_mul_u32_u24 v%d, %d, v%d" % (102, T_STRIDE, a))
        self("v_add3_u32 v%d, v%d, v%d, 0" % (102, 102, b))
        self("v_add_u32 v%d, %d, v%d" % (102, LDS_T, 102))
        self("s_mul_i32 s3, s%d, %d" % (S_G, 80 * 4096))
        self("s_sub_u32 s%d, 31, s%d" % (S_T0, S_J))
        self("s_lshl_b32 s%d, s%d, 7" % (S_T0, S_T0))
        self("s_add_u32 s3, s3, s%d" % S_T0)
        self("s_add_u32 s3, s3, %d" % WS_UR)
        self("v_lshlrev_b32 v%d, 12, v%d" % (103, a))
        self("v_add3_u32 v%d, v%d, v%d, s3" % (103, 103, b))
        for r in range(3):
            self("ds_read_b128 %s, v102 offset:%d" % (vr(104 + 4 * r, 4), 24 * T_STRIDE * r))
        L = self.if_wave(0)
        self("ds_read_b128 v[116:119], v102 offset:%d" % (24 * T_STRIDE * 3))
        self.close(L)
        self("v_add_u32 v120, %d, v103" % (24 * 4096))
        self("v_add_u32 v121, %d, v103" % (48 * 4096))
        self("v_add_u32 v122, %d, v103" % (72 * 4096))
        self("s_waitcnt lgkmcnt(0)")
        p = "s[%d:%d]" % (P_WS, P_WS + 1)
        self.handoff_stores(["global_store_dwordx4 v103, v[104:107], " + p, "global_store_dwordx4 v120, v[108:111], " + p,
                             "global_store_dwordx4 v121, v[112:115], " + p], record=False)
        L = self.if_wave(0)
        self.handoff_stores(["global_store_dwordx4 v122, v[116:119], " + p], record=False)
        self.close(L)
        self("s_waitcnt vmcnt(0)")
        self.close(L3)
        self.lgq = []; self.vmq = []

    def build_kcopies(self):
        RAW = self.RAW
        SETS = [(110, 116, 122), (134, 140, 146)]
        ad, z = 128, 130
        L = self.label("L_kc")
        self("s_cmp_eq_u32 s%d, 0" % S_HASCH)
        self("s_cbranch_scc1 %s" % L)
        self("v_lshlrev_b32 v%d, 4, v%d" % (ad, V_LANE))
        self("s_add_u32 s3, s%d, 16" % S_SLOT)
        self("v_add_u32 v%d, s3, v%d" % (ad, ad))
        for r in range(4):
            R = RAW + 8 * r
            A, B, C = SETS[r & 1]
            if r >= 2: self("s_waitcnt lgkmcnt(8)")
            for i in range(6):
                self("v_alignbit_b32 v%d, v%d, v%d, 16" % (A + i, R + i + 1, R + i))
            for i in range(6):
                self("v_alignbit_b32 v%d, v%d, v%d, 16" % (B + i, R + i + 2, R + i + 1))
            for i in range(6):
                self("v_mov_b32 v%d, v%d" % (C + i, R + i + 1))
            src = {0: A, 1: C, 2: B, 3: R + 2, 4: A + 2, 5: C + 2, 6: B + 2, 7: R + 4}
            for c in range(8):
                self("ds_write_b128 v%d, %s offset:%d" % (ad, vr(src[c], 4), c * KC_STRIDE + 1024 * r))
        for i in range(4): self("v_mov_b32 v%d, 0" % (z + i))
        self("v_mul_u32_u24 v%d, %d, v%d" % (ad + 1, KC_STRIDE, V_LANE))
        self("v_add_u32 v%d, s%d, v%d" % (ad + 1, S_SLOT, ad + 1))
        self.exec_set("0xff")
        self("ds_write_b128 v%d, %s" % (ad + 1, vr(z, 4)))
        self("s_mov_b64 exec, 0x3fffffff")
        self("v_lshlrev_b32 v%d, 4, v%d" % (ad + 1, V_LANE))
        self("s_add_u32 s3, s%d, %d" % (S_SLOT, U_OFF + 4096))
        self("v_add_u32 v%d, s3, v%d" % (ad + 1, ad + 1))
        self("ds_write_b128 v%d, %s" % (ad + 1, vr(z, 4)))
        self.exec_restore()
        self("%s:" % L)
        self("s_waitcnt lgkmcnt(0)")
        self.lgq = []

    def conv(self):
        Lskip = self.label("L_conv_skip"); Ldone = self.label("L_conv_done")
        self("s_cmp_eq_u32 s%d, 0" % S_HASCH)
        self("s_cbranch_scc1 %s" % Lskip)
        self("s_lshl_b32 s3, s%d, 12" % S_CH)
        self.addr_pair(S_TMPP, P_WS, WS_UR, 3)
        a = 164
        self("v_lshlrev_b32 v%d, 4, v%d" % (a, V_LANE))
        for r in range(4):
            self("s_add_u32 m0, s%d, %d" % (S_SLOT, U_OFF + 1024 * r))
            self("v_add_u32 v%d, %d, v%d" % (a + 1, 1024 * r, a))
            self.vm("global_load_lds_dwordx4 v%d, s[%d:%d]" % (a + 1, S_TMPP, S_TMPP + 1), "u")
        self("s_and_b32 s3, s%d, 1" % S_CH)
        self("s_lshl_b32 s%d, s%d, 16" % (S_T0, S_DVAL))
        self("s_and_b32 s%d, s%d, 0xffff0000" % (S_DVAL, S_DVAL))
        self("s_cmp_eq_u32 s3, 0")
        self("s_cselect_b32 s%d, s%d, s%d" % (S_DVAL, S_T0, S_DVAL))
        vA, vB = 166, 167
        self("v_and_b32 v%d, 7, v%d" % (vA, V_L15))
        self("v_mul_u32_u24 v%d, %d, v%d" % (vA, KC_STRIDE, vA))
        self("v_lshrrev_b32 v%d, 3, v%d" % (168, V_L15))
        self("v_add_u32 v%d, v%d, v%d" % (168, 168, V_G))
        self("v_lshl_add_u32 v%d, v%d, 4, v%d" % (vA, 168, vA))
        self("v_add_u32 v%d, s%d, v%d" % (vA, S_SLOT, vA))
        self("v_lshlrev_b32 v%d, 5, v%d" % (vB, V_L15))
        self("v_lshlrev_b32 v%d, 4, v%d" % (168, V_G))
        self("v_sub_u32 v%d, v%d, v%d" % (vB, 168, vB))
        self("s_add_u32 s3, s%d, %d" % (S_SLOT, U_OFF + 4064 - 3584))
        self("v_add_u32 v%d, s3, v%d" % (vB, vB))
        ACC = 4; FA = [36, 100]; FB = [68, 132]
        def loadsA(tau, buf):
            return [("lg", "ds_read_b128 %s, v%d offset:%d" % (vr(FA[buf] + 4 * i, 4), vA, 64 * tau + 512 * i), "cA") for i in range(8)]
        def loadsB(tau, buf):
            return [("lg", "ds_read_b128 %s, v%d offset:%d" % (vr(FB[buf] + 4 * i, 4), vB, 3584 - 512 * i + 64 * tau), "cB") for i in range(8)]
        self.bg_add(loadsA(0, 0)); self.bg_flush()
        ua, sa = 168, 169
        self("v_lshlrev_b32 v%d, 5, v%d" % (sa, V_L15))
        self("v_lshl_add_u32 v%d, v%d, 3, v%d" % (sa, V_G, sa))
        self("s_add_u32 s3, s%d, %d" % (S_SLOT, U_OFF + 4088 - 3584))
        self("v_sub_u32 v%d, s3, v%d" % (ua, sa))
        self("s_lshl_b32 s3, s%d, 12" % S_CH)
        self("s_add_u32 s3, s3, %d" % WS_YT)
        self("v_and_b32 v%d, 1, v%d" % (170, V_G))
        self("v_lshlrev_b32 v%d, 9, v%d" % (170, 170))
        self("v_lshrrev_b32 v%d, 1, v%d" % (171, V_G))
        self("v_lshl_add_u32 v%d, v%d, 4, v%d" % (170, 171, 170))
        self("v_lshl_add_u32 v%d, v%d, 5, v%d" % (sa, V_L15, 170))
        self("v_add_u32 v%d, s3, v%d" % (sa, sa))
        self("v_mov_b32 v170, s%d" % S_DVAL)
        self("v_lshlrev_b32 v171, 4, v%d" % V_LANE)
        if self.o.get("prewrite", 0):
            self("s_lshl_b32 s3, s%d, 12" % S_CH)
            self("s_add_u32 s3, s3, %d" % WS_YT)
            self("v_add_u32 v172, s3, v171")
            for i in range(4): self("v_mov_b32 v%d, 0" % (4 + i))
            for i in range(4):
                self.vm("global_store_dwordx4 v172, v[4:7], s[%d:%d] offset:%d sc0 sc1" % (P_WS, P_WS + 1, 1024 * i), "ypw")
        self.vm_wait("u")
        self.stamp(7)
        self.bg_add(loadsB(0, 0)); self.bg_flush()
        for tau in range(8):
            buf = tau & 1
            self.lg_wait_all()
            if tau < 7:
                la, lb = loadsA(tau + 1, buf ^ 1), loadsB(tau + 1, buf ^ 1)
                for x, y in zip(la, lb): self.bg_add([x, y])

            pairs = sorted([(i, be - i) for be in range(8) for i in range(be + 1)])
            first = set()
            for kk, (i, m) in enumerate(pairs):
                be = i + m
                c = vr(ACC + 4 * be, 4) if (tau > 0 or be in first) else "0"
                first.add(be)
                self("v_mfma_f32_16x16x32_bf16 %s, %s, %s, %s" % (vr(ACC + 4 * be, 4), vr(FA[buf] + 4 * i, 4), vr(FB[buf] + 4 * m, 4), c))
                self.bg_step(1)
            self.bg_flush()
        self.stamp(8)
        UQ = 36
        for b in range(8):
            self.lg("ds_read_b64 %s, v%d offset:%d" % (vr(UQ + 2 * b, 2), ua, 3584 - 512 * b), "uq")
        self.lg_wait_all()
        U, t, O = 56, 60, 64
        for b in range(8):
            d0, d1 = UQ + 2 * b, UQ + 2 * b + 1
            A = ACC + 4 * b
            self("v_and_b32 v%d, s%d, v%d" % (U + 0, S_MASK, d1))
            self("v_lshlrev_b32 v%d, 16, v%d" % (U + 1, d1))
            self("v_and_b32 v%d, s%d, v%d" % (U + 2, S_MASK, d0))
            self("v_lshlrev_b32 v%d, 16, v%d" % (U + 3, d0))
            self("v_pk_mul_f32 %s, %s, v[170:171] op_sel_hi:[1,0]" % (vr(U, 2), vr(U, 2)))
            self("v_pk_mul_f32 %s, %s, v[170:171] op_sel_hi:[1,0]" % (vr(U + 2, 2), vr(U + 2, 2)))
            self.rnd_pair(U, t); self.rnd_pair(U + 2, t + 1)
            self.rnd_pair(A, t); self.rnd_pair(A + 2, t + 1)
            self("v_pk_add_f32 %s, %s, %s" % (vr(A, 2), vr(A, 2), vr(U, 2)))
            self("v_pk_add_f32 %s, %s, %s" % (vr(A + 2, 2), vr(A + 2, 2), vr(U + 2, 2)))
            o = O + 2 * b
            self("v_cvt_pk_bf16_f32 v%d, v%d, v%d" % (o, A, A + 1))
            self("v_cvt_pk_bf16_f32 v%d, v%d, v%d" % (o + 1, A + 2, A + 3))
            if b & 1:
                self("v_permlane16_swap_b32 v%d, v%d" % (o - 2, o))
                self("v_permlane16_swap_b32 v%d, v%d" % (o - 1, o + 1))
                self("global_store_dwordx4 v%d, %s, s[%d:%d] offset:%d sc0 sc1" % (sa, vr(o - 2, 4), P_WS, P_WS + 1, 512 * (b - 1)))
        self("s_branch %s" % Ldone)
        self("%s:" % Lskip)
        L2 = self.if_wave(3)
        self.repack_finish()
        self("s_waitcnt vmcnt(0)")
        self("s_lshl_b32 s%d, s%d, 8" % (S_T0, S_G))
        self("s_lshl_b32 s%d, s%d, 3" % (S_T0 + 1, S_J))
        self("s_add_u32 s%d, s%d, s%d" % (S_T0, S_T0, S_T0 + 1))
        self("s_add_u32 s%d, s%d, %d" % (S_T0, S_T0, WS_PKFLAG))
        self.flag_store(P_WS, S_T0, 1, device=True)
        self.stamp(42)
        self.window_stores()
        if self.o.get("st_pw"):
            self("s_waitcnt vmcnt(0)")
            self.stamp(43)
        npf = self.o.get("w1pf", 9)
        if npf:
            self.srd(SRD_A, P_W1, 640 * 3456)
            self("s_mul_i32 s3, s%d, 69120" % S_J)
            self("v_lshlrev_b32 v160, 7, v%d" % V_LANE)
            self("v_add_u32 v160, s3, v160")
            for i in range(npf):
                if i == 8: self.exec_set("0xfffffff")
                self("buffer_load_dword a0, v160, s[%d:%d], 0 offen" % (SRD_A, SRD_A + 3))
                if i < 8: self("v_add_u32 v160, 8192, v160")
            if npf == 9: self.exec_restore()
        if self.o.get("st_pw"):
            self("s_waitcnt vmcnt(0)")
            self.stamp(44)
        self.close(L2)
        self("%s:" % Ldone)
        self.vmq = []; self.lgq = []

    def weights_prefetch(self):
        a, d = 174, 190
        self.addr_pair(S_TMPP, P_WS, WS_PKFLAG)
        self("v_lshlrev_b32 v%d, 5, v%d" % (a, V_LANE))
        self.poll_pairs(S_TMPP, a, 1, 0, 176 + 0, npair=4) if False else None
        self.poll_pairs(S_TMPP, a, 1, 0, 4, npair=4)
        self.stamp(40)
        for base in (WS_W1P, WS_W2P):
            self.srd(SRD_A, P_WS, WP_SZ, const=base)
            self("s_mul_i32 s3, s%d, 69120" % S_J)
            self("v_lshlrev_b32 v%d, 7, v%d" % (a, V_LANE))
            self("v_add_u32 v%d, s3, v%d" % (a, a))
            for i in range(9):
                if i == 8: self.exec_set("0xfffffff")
                self("buffer_load_dword v%d, v%d, s[%d:%d], 0 offen" % (d, a, SRD_A, SRD_A + 3))
                if i < 8: self("v_add_u32 v%d, 8192, v%d" % (a, a))
            self.exec_restore()

    def w1_dma(self, its):
        self.srd(SRD_B, P_W1, 640 * 3456)
        c, row, cc, off = 160, 161, 162, 163
        self("s_lshl_b32 s3, s%d, 6" % S_W)
        self("s_add_u32 s3, s3, %d" % (192 * its[0]))
        self("v_add_u32 v%d, s3, v%d" % (c, V_LANE))
        self("s_mov_b32 s%d, %d" % (S_T0, (1 << 32) // 14 + 1))
        self("s_lshl_b32 s%d, s%d, 5" % (S_T0 + 1, S_UOFF))
        self("s_movk_i32 s%d, 3456" % (S_T0 + 2))
        self("s_lshl_b32 s%d, s%d, 10" % (S_T0 + 3, S_W))
        for it in its:
            L = None
            if it == 46:
                L = self.label("L_w1l")
                self("s_cmp_eq_u32 s%d, 2" % S_W)
                self("s_cbranch_scc1 %s" % L)
            self("v_mul_hi_u32 v%d, v%d, s%d" % (row, c, S_T0))
            self("v_mul_u32_u24 v%d, 14, v%d" % (cc, row))
            self("v_sub_u32 v%d, v%d, v%d" % (cc, c, cc))
            self("v_mul_lo_u32 v%d, v%d, s%d" % (off, row, S_T0 + 2))
            self("v_lshl_add_u32 v%d, v%d, 4, v%d" % (off, cc, off))
            self("s_add_u32 m0, s%d, %d" % (S_T0 + 3, LDS_W1 + 3072 * it))
            self("v_add_u32 v%d, 192, v%d" % (c, c))
            self("buffer_load_dwordx4 v%d, s[%d:%d], s%d offen lds" % (off, SRD_B, SRD_B + 3, S_T0 + 1))
            if L: self("%s:" % L)
    W1OFF = 174
    def w1_stage_setup(self):
        self.srd(SRD_B, P_W1, 640 * 3456)
        c, row, cc = 181, 182, 183
        self("s_lshl_b32 s3, s%d, 6" % S_W)
        self("v_add_u32 v%d, s3, v%d" % (c, V_LANE))
        self("s_mov_b32 s%d, %d" % (S_T0, (1 << 32) // 14 + 1))
        self("s_movk_i32 s%d, 3456" % (S_T0 + 2))
        for r in range(7):
            o = self.W1OFF + r
            self("v_mul_hi_u32 v%d, v%d, s%d" % (row, c, S_T0))
            self("v_mul_u32_u24 v%d, 14, v%d" % (cc, row))
            self("v_sub_u32 v%d, v%d, v%d" % (cc, c, cc))
            self("v_mul_lo_u32 v%d, v%d, s%d" % (o, row, S_T0 + 2))
            self("v_lshl_add_u32 v%d, v%d, 4, v%d" % (o, cc, o))
            self("v_add_u32 v%d, 256, v%d" % (c, c))
        self("s_lshl_b32 s62, s%d, 5" % S_UOFF)
    def w1_stage_items(self, it0, it1):
        items = []
        for it in range(it0, it1):
            q, r = divmod(it, 7)
            if r == 0 or it == it0:
                items.append("s_add_u32 s61, s62, %d" % (q * 128 * 3456))
            items.append(("vm", "buffer_load_dwordx4 %s, v%d, s[%d:%d], s61 offen" % (ar(4 * it, 4), self.W1OFF + r, SRD_B, SRD_B + 3), "w1"))
        return items
    def w1_stage_to_lds(self):
        b = 160
        self("v_lshlrev_b32 v%d, 4, v%d" % (b, V_LANE))
        self("s_lshl_b32 s3, s%d, 10" % S_W)
        self("v_add_u32 v%d, s3, v%d" % (b, b))
        self("v_add_u32 v%d, 65536, v%d" % (b + 1, b))
        self("v_add_u32 v%d, 131072, v%d" % (b + 2, b))
        for it in range(35):
            o = 4096 * it
            self.lg("ds_write_b128 v%d, %s offset:%d" % (b + o // 65536, ar(4 * it, 4), o % 65536), "w1w")
    def w2_setup(self):
        self.srd(SRD_W2, P_WS, WP_SZ, const=WS_W2P)
        self("s_mul_i32 s3, s%d, %d" % (S_W, 14 * 40))
        self("s_mul_i32 s%d, s%d, 5" % (S_T0, S_CS))
        self("s_add_u32 s3, s3, s%d" % S_T0)
        self("s_lshl_b32 s%d, s3, 10" % S_W2B)
    def w2_items(self, f0, f1, vlane16):
        it = []
        last = None
        for f in range(f0, f1):
            s, i = divmod(f, 5)
            key = (s, i == 4)
            if key != last:
                it.append("s_add_u32 s61, s%d, %d" % (S_W2B, s * 40 * 1024 + (4096 if i == 4 else 0)))
                last = key
            it.append(("vm", "buffer_load_dwordx4 %s, v%d, s[%d:%d], s61 offen offset:%d" % (w2reg(f), vlane16, SRD_W2, SRD_W2 + 3, 0 if i == 4 else 1024 * i), "w2"))
        return it

    def post_conv(self):
        QN = V_CS
        self("v_lshlrev_b32 v160, 4, v%d" % V_L15)
        self("s_lshl_b32 s3, s%d, 4" % S_W)
        self("v_add_u32 v160, s3, v%d" % V_L15)
        self("v_mul_u32_u24 v160, 160, v160")
        self("v_lshl_add_u32 v160, v%d, 3, v160" % V_G)
        self("v_add_u32 v160, %d, v160" % LDS_Q)
        for u in range(5):
            self.lg("ds_read_b64 %s, v160 offset:%d" % (vr(V_X + 2 * u, 2), 32 * u), "q")
        self.lg_wait_all()
        self.unpack_tile(124, V_X)
        self.tile_stats(124, 0, 144)
        self("s_waitcnt lgkmcnt(0)")
        L = self.if_wave(3, eq=False)
        self("s_waitcnt vmcnt(0)")
        self.close(L)
        self.vmq = []; self.lgq = []
        self("s_barrier")
        self.stamp(10)
        L = self.if_wave(0)
        self("s_lshl_b32 s%d, s%d, 3" % (S_T0, S_J))
        self.flag_store(S_LFLAG, S_T0, 2, device=False)
        self.close(L)
        self.row_stats_issue(0, 60)
        c1, c2 = self.o.get("w1c1", 12), 47
        L3, Ld = self.label("L_pc3"), self.label("L_pcd")
        self("s_cmp_eq_u32 s%d, 3" % S_W)
        self("s_cbranch_scc1 %s" % L3)
        L = self.if_wave(1)
        self.addr_pair(S_TMPP, P_WS, WS_PKFLAG)
        self("v_lshlrev_b32 v159, 5, v%d" % V_LANE)
        self.poll_pairs(S_TMPP, 159, 1, 0, 144, npair=4)
        self.stamp(40)
        self.close(L)
        self.w1_dma(list(range(0, c1)))
        self("s_waitcnt vmcnt(%d)" % c1)
        self("s_branch %s" % Ld)
        self("%s:" % L3)
        self("v_and_b32 v180, 31, v%d" % V_LANE)
        self("v_lshlrev_b32 v180, 3, v180")
        self.poll_pairs(S_LFLAG, 180, 2, 5, 176)
        Lm = self.label("L_ylead")
        self("s_cmp_lg_u32 s%d, 0" % S_J)
        self("s_cbranch_scc1 %s" % Lm)
        self("s_lshl_b32 s%d, s%d, 8" % (S_T0, S_G))
        self("s_add_u32 s%d, s%d, %d" % (S_T0, S_T0, WS_YFLAG))
        self.flag_store(P_WS, S_T0, 1, device=True)
        self("%s:" % Lm)
        self.stamp(44)
        self("%s:" % Ld)
        self.vmq = []
        self.stamp(11)
        self.row_stats_validate(0, 60)
        self.row_stats_finish(60, 24, 26)
        XF, d, t = 4, 28, 30
        self.unpack_tile(XF, V_X)
        for i in range(10):
            self("v_pk_add_f32 %s, %s, v[24:25] op_sel_hi:[1,0] neg_lo:[0,1] neg_hi:[0,1]" % (vr(d, 2), vr(XF + 2 * i, 2)))
            self.rnd_pair(d, t)
            self("v_pk_mul_f32 %s, %s, v[26:27] op_sel_hi:[1,0]" % (vr(d, 2), vr(d, 2)))
            self("v_cvt_pk_bf16_f32 v%d, v%d, v%d" % (QN + i, d, d + 1))
        Ly = self.if_wave(3)
        self("s_lshl_b32 s3, s%d, 8" % S_CS)
        self.addr_pair(S_TMPP, P_WS, WS_YFLAG, 3)
        self("v_mov_b32 v180, 0")
        self.poll_pairs(S_TMPP, 180, 1, 0, 176, sleep=self.o.get("ysleep", 0))
        self.stamp(41)
        self("s_mul_i32 s3, s%d, %d" % (S_CS, 80 * 4096))
        self("s_lshl_b32 s%d, s%d, 9" % (S_T0, S_G))
        self("s_add_u32 s3, s3, s%d" % S_T0)
        self("s_lshl_b32 s%d, s%d, 7" % (S_T0, S_RB))
        self("s_add_u32 s3, s3, s%d" % S_T0)
        self.addr_pair(S_TMPP, P_WS, WS_YT, 3)
        a, b = 164, 165
        self("v_lshrrev_b32 v%d, 3, v%d" % (a, V_LANE))
        self("v_lshlrev_b32 v%d, 12, v%d" % (a, a))
        self("v_and_b32 v%d, 7, v%d" % (b, V_LANE))
        self("v_lshl_add_u32 v%d, v%d, 4, v%d" % (a, b, a))
        for k in range(10):
            self("s_mov_b32 m0, %d" % (LDS_SCR + 1024 * k))
            self("v_add_u32 v%d, %d, v%d" % (b, 8 * 4096 * k, a))
            self("global_load_lds_dwordx4 v%d, s[%d:%d]" % (b, S_TMPP, S_TMPP + 1))
        self("s_waitcnt vmcnt(0)")
        self.close(Ly)
        self("s_barrier")
        self.stamp(12)
        if c2 > c1:
            L = self.if_wave(3, eq=False)
            self.w1_dma(list(range(c1, c2)))
            self.close(L)
        nr = self.o.get("w2r", 0)
        if nr:
            self("v_lshlrev_b32 v163, 4, v%d" % V_LANE)
            q = list(self.vmq)
            self.bg_add(self.w2_items(0, nr, 163)); self.bg_flush()
            self.vmq = q

        a, b = 164, 165
        self("v_bfe_u32 v%d, v%d, 2, 2" % (a, V_LANE))
        self("v_lshl_add_u32 v%d, v%d, 2, v%d" % (a, V_G, a))
        self("v_lshlrev_b32 v%d, 7, v%d" % (a, a))
        self("v_and_b32 v%d, 3, v%d" % (b, V_LANE))
        self("v_lshl_add_u32 v%d, v%d, 3, v%d" % (a, b, a))
        self("s_lshl_b32 s3, s%d, 5" % S_W)
        self("s_add_u32 s3, s3, %d" % LDS_SCR)
        self("v_add_u32 v%d, s3, v%d" % (a, a))
        for u in range(5):
            self.lg("ds_read_b64_tr_b16 %s, v%d offset:%d" % (vr(V_Y + 2 * u, 2), a, 16 * 128 * u), "ytr")
        self.xf_store_setup(S_XO1)
        yf, qf = 32, 34
        self.lg_wait_all()
        for i in range(10):
            self.unpack(yf, V_Y + i)
            self.unpack(qf, QN + i)
            self("v_pk_mul_f32 %s, %s, %s" % (vr(d, 2), vr(yf, 2), vr(qf, 2)))
            self.rnd_pair(d, t)
            self("v_pk_add_f32 %s, %s, %s" % (vr(XF + 2 * i, 2), vr(XF + 2 * i, 2), vr(d, 2)))
            self("v_cvt_pk_bf16_f32 v%d, v%d, v%d" % (V_X + i, XF + 2 * i, XF + 2 * i + 1))
            self.unpack(XF + 2 * i, V_X + i)
        self.xf_store()

    XA0 = 165
    def xf_addr_items(self, ws_off, base):
        g = Gen()
        a = base + 5
        g("s_lshl_b32 s97, s%d, 4" % S_G)
        g("s_lshl_b32 s100, s%d, 2" % S_RB)
        g("s_add_u32 s97, s97, s100")
        g("s_add_u32 s97, s97, s%d" % S_W)
        g("s_mul_i32 s97, s97, %d" % (20 * 1024))
        g("s_add_u32 s97, s97, s%d" % ws_off)
        g("v_lshlrev_b32 v%d, 4, v%d" % (a, V_LANE))
        g("v_add_u32 v%d, s97, v%d" % (a, a))
        g("s_mul_i32 s97, s%d, 5" % S_CS)
        for u in range(5):
            g("s_add_u32 s100, s97, %d" % u)
            g("s_lshr_b32 s101, s100, 1")
            g("s_lshl_b32 s101, s101, 10")
            g("s_and_b32 s100, s100, 1")
            g("s_lshl_b32 s100, s100, 3")
            g("s_add_u32 s100, s100, s101")
            g("v_add_u32 v%d, s100, v%d" % (base + u, a))
        return [i.text.strip() for i in g.ins]
    def xf_store_setup(self, ws_off):
        self.XA0 = 165
        for l in self.xf_addr_items(ws_off, 165): self(l)
    def xf_store(self):
        Lo, Ld = self.label("L_xo"), self.label("L_xd")
        p = "s[%d:%d]" % (P_WS, P_WS + 1)
        b = self.XA0
        x4 = lambda u: "global_store_dwordx4 v%d, %s, %s" % (b + u, vr(V_X + 2 * u, 4), p)
        x2 = lambda u: "global_store_dwordx2 v%d, %s, %s" % (b + u, vr(V_X + 2 * u, 2), p)
        self("s_bitcmp1_b32 s%d, 0" % S_CS)
        self("s_cbranch_scc1 %s" % Lo)
        self.handoff_stores([x4(0), x4(2), x2(4)], record=False)
        self("s_branch %s" % Ld)
        self("%s:" % Lo)
        self.handoff_stores([x2(0), x4(1), x4(3)], record=False)
        self("%s:" % Ld)
        self.vmq.extend(["xf"] * 3)

    def mixer_update(self, m, rs, xf, tmp):
        yf, d = tmp, tmp + 2
        for i in range(10):
            X = xf + 2 * i
            self.unpack(yf, V_Y + i)
            self("v_pk_add_f32 %s, %s, %s op_sel_hi:[1,0] neg_lo:[0,1] neg_hi:[0,1]" % (vr(d, 2), vr(X, 2), vr(m, 2)))
            self("v_pk_mul_f32 %s, %s, %s op_sel_hi:[1,0]" % (vr(d, 2), vr(d, 2), vr(rs, 2)))
            self("v_pk_fma_f32 %s, %s, %s, %s" % (vr(X, 2), vr(d, 2), vr(yf, 2), vr(X, 2)))
            self("v_cvt_pk_bf16_f32 v%d, v%d, v%d" % (V_X + i, X, X + 1))
            self.unpack(X, V_X + i)

    def w1_lane_addr(self, a, tmp):
        self("v_bfe_u32 v%d, v%d, 2, 2" % (a, V_LANE))
        self("v_lshl_add_u32 v%d, v%d, 2, v%d" % (a, V_G, a))
        self("v_mul_u32_u24 v%d, %d, v%d" % (a, W1_STRIDE, a))
        self("v_and_b32 v%d, 3, v%d" % (tmp, V_LANE))
        self("v_lshl_add_u32 v%d, v%d, 3, v%d" % (a, tmp, a))
    def colsum(self):
        a, ones, acc = 164, 100, 104
        FR = [112, 120, 128, 136]
        for i in range(4): self("v_mov_b32 v%d, 0x3f803f80" % (ones + i))
        self.w1_lane_addr(a, a + 1)
        self("s_lshl_b32 s3, s%d, 6" % S_W)
        self("v_add_u32 v%d, s3, v%d" % (a, a))
        self("v_add_u32 v%d, %d, v%d" % (a + 1, 8 * 32 * W1_STRIDE, a))
        self("v_add_u32 v%d, %d, v%d" % (a + 2, 16 * 32 * W1_STRIDE, a))
        def loads(t):
            for i in range(2):
                for h in range(2):
                    self.lg("ds_read_b64_tr_b16 %s, v%d offset:%d" % (vr(FR[t % 4] + 4 * i + 2 * h, 2), a + (t // 8), ((t % 8) * 32 + h * 16) * W1_STRIDE + 32 * i), "cs%d" % t)
        for t in range(3): loads(t)
        for t in range(20):
            if t + 3 < 20: loads(t + 3)
            self.lg_wait("cs%d" % t)
            for i in range(2):
                c = vr(acc + 4 * i, 4) if t else "0"
                self("v_mfma_f32_16x16x32_bf16 %s, %s, %s, %s" % (vr(acc + 4 * i, 4), vr(FR[t % 4] + 4 * i, 4), vr(ones, 4), c))
        b = 144
        self("v_lshlrev_b32 v%d, 4, v%d" % (b, V_G))
        self("s_lshl_b32 s3, s%d, 7" % S_W)
        self("s_add_u32 s3, s3, %d" % LDS_CSX)
        self("v_add_u32 v%d, s3, v%d" % (b, b))
        self("v_cmp_eq_u32 vcc, 0, v%d" % V_L15)
        self("s_and_saveexec_b64 s[%d:%d], vcc" % (S_SAVE, S_SAVE + 1))
        self("ds_write_b128 v%d, %s" % (b, vr(acc, 4)))
        self("ds_write_b128 v%d, %s offset:64" % (b, vr(acc + 4, 4)))
        self.exec_restore()
        self.lg_wait_all()
    def colsum_fetch(self):
        b = 144
        self("v_lshlrev_b32 v%d, 4, v%d" % (b, V_G))
        self("v_add_u32 v%d, %d, v%d" % (b, LDS_CSX, b))
        for u in range(7):
            self.lg("ds_read_b128 %s, v%d offset:%d" % (vr(V_CS + 4 * u, 4), b, 64 * u), "cs")

    G1_ACC = 4; G1_AF = [60, 88]; G1_XR = 116; G1_DEPTH = 6; G1_LA = 172; G1_XA = 183; G1_ST = 174; G1_L16 = 182
    def g1_aloads(self, t, buf):
        l = []
        for i in range(7):
            for h in range(2):
                l.append(("lg", "ds_read_b64_tr_b16 %s, v%d offset:%d" % (vr(self.G1_AF[buf] + 4 * i + 2 * h, 2), self.G1_LA, h * 16 * W1_STRIDE + 32 * i), "a%d" % t))
        return l
    def g1_setup(self, xf_off, hf_off):
        self("s_lshl_b32 s3, s%d, 4" % S_G)
        self("s_lshl_b32 s%d, s%d, 3" % (S_T0, S_RT))
        self("s_add_u32 s3, s3, s%d" % S_T0)
        self("s_lshl_b32 s%d, s%d, 1" % (S_T0, S_W))
        self("s_add_u32 s%d, s3, s%d" % (S_RU0, S_T0))
        self("s_mul_i32 s3, s%d, %d" % (S_RU0, 20 * 1024))
        self("s_add_u32 s3, s3, s%d" % xf_off)
        self.addr_pair(S_XFB, P_WS, 0, 3)
        self.addr_pair(S_TMPQ, S_XFB, 20 * 1024)
        self("v_lshlrev_b32 v%d, 4, v%d" % (self.G1_XA, V_LANE))
        self("v_lshlrev_b32 v%d, 4, v%d" % (self.G1_L16, V_LANE))
        self("s_mul_i32 s%d, s%d, %d" % (S_T0 + 3, S_RU0, 54 * 1024))
        self("s_add_u32 s%d, s%d, %s" % (S_T0 + 3, S_T0 + 3, hf_off))
        for i in range(7):
            self("s_add_u32 s%d, s%d, %d" % (S_T0 + 1, S_UOFF, i))
            self("s_lshr_b32 s%d, s%d, 1" % (S_T0 + 2, S_T0 + 1))
            self("s_lshl_b32 s%d, s%d, 10" % (S_T0 + 2, S_T0 + 2))
            self("s_and_b32 s%d, s%d, 1" % (S_T0 + 1, S_T0 + 1))
            self("s_lshl_b32 s%d, s%d, 3" % (S_T0 + 1, S_T0 + 1))
            self("s_add_u32 s%d, s%d, s%d" % (S_T0 + 1, S_T0 + 1, S_T0 + 2))
            self("s_add_u32 s%d, s%d, s%d" % (S_T0 + 1, S_T0 + 1, S_T0 + 3))
            self("s_add_u32 s%d, s%d, s%d" % (72 + 2 * i, P_WS, S_T0 + 1))
            self("s_addc_u32 s%d, s%d, 0" % (73 + 2 * i, P_WS + 1))
        self.w1_lane_addr(self.G1_LA, 59)
        for x in self.g1_aloads(0, 0): self.lg(x[1], x[2])
        self("v_add_u32 v%d, 7168, v%d" % (self.G1_LA, self.G1_LA))
    def g1_main(self, statbuf, sb=None, w2range=None, ldf='', pretouch=False, hwt=False, main_only=False, neg=False, with_cs=False):
        ACC, AF, XR, DEPTH, la, xa, ST = self.G1_ACC, self.G1_AF, self.G1_XR, self.G1_DEPTH, self.G1_LA, self.G1_XA, self.G1_ST
        if with_cs:
            DEPTH = 5
            ONES = 156
            for i in range(4): self("v_mov_b32 v%d, 0x3f803f80" % (ONES + i))
        def xload(t):
            for rho in range(2):
                base = S_XFB if rho == 0 else S_TMPQ
                d = XR + ((t % DEPTH) * 2 + rho) * 4
                self.vm("global_load_dwordx4 %s, v%d, s[%d:%d] offset:%d %s" % (vr(d, 4), xa, base, base + 1, (t % 4) * 1024, ldf), "x%d" % t)
            if t % 4 == 3: self("v_add_u32 v%d, 4096, v%d" % (xa, xa))
        for t in range(3): xload(t)
        sa = 169
        self("s_lshl_b32 s3, s%d, 11" % S_RU0)
        self("s_add_u32 s3, s3, %d" % (WS_STAT + statbuf * STAT_SZ))
        self("v_lshlrev_b32 v%d, 7, v%d" % (sa, V_L15))
        self("v_lshl_add_u32 v%d, v%d, 5, v%d" % (sa, V_G, sa))
        self("v_add_u32 v%d, s3, v%d" % (sa, sa))
        self("s_add_u32 s101, s%d, %d" % (S_TAG, statbuf))
        retries = []
        def st_load(rho):
            return [("vm", "global_load_dwordx4 %s, v%d, s[%d:%d] offset:%d sc1" % (vr(ST + 4 * k, 4), sa, P_WS, P_WS + 1, 2048 * rho + 16 * k), "st%d" % rho) for k in range(2)]
        def st_check(rho):
            Lr, Lb = self.label("L_str"), self.label("L_stb")
            def emit():
                self.vm_wait("st%d" % rho)
                self("v_xor_b32 v170, s101, v%d" % (ST + 2))
                self("v_xor_b32 v171, s101, v%d" % (ST + 6))
                self("v_or_b32 v170, v170, v171")
                self("v_xor_b32 v171, v%d, v%d" % (ST + 2, ST + 3))
                self("v_xor_b32 v171, s%d, v171" % S_KX)
                self("v_or_b32 v170, v170, v171")
                self("v_xor_b32 v171, v%d, v%d" % (ST + 6, ST + 7))
                self("v_xor_b32 v171, s%d, v171" % S_KX)
                self("v_or_b32 v170, v170, v171")
                self("v_cmp_ne_u32 vcc, 0, v170")
                self("s_cbranch_vccnz %s ; nohaz" % Lr)
                self("%s: ; nohaz" % Lb)
            retries.append((Lr, Lb, rho))
            return [emit, "v_mov_b32 v%d, v%d" % (ST + 2, ST + 4), "v_mov_b32 v%d, v%d" % (ST + 3, ST + 5)]
        MR = [164, 166]
        def st_finish(rho):
            it = self.row_stats_finish_items(ST, MR[rho], MR[rho] + 1)
            if neg: it.append("v_xor_b32 v%d, 0x80000000, v%d" % (MR[rho] + 1, MR[rho] + 1))
            return it
        f0, f1 = st_finish(0), st_finish(1)
        n4 = -(-len(f0) // 4)
        stq = {2: st_load(0), 5: st_check(0), 10: st_load(1), 13: st_check(1)}
        for j in range(4):
            stq[6 + j] = f0[j * n4:(j + 1) * n4]
            stq[14 + j] = f1[j * n4:(j + 1) * n4]
        self._g1_retries = (retries, sa)
        for t in range(3, DEPTH): xload(t)
        if pretouch:
            self("s_mul_i32 s3, s%d, %d" % (S_RU0, 54 * 1024))
            self("s_lshr_b32 s%d, s%d, 1" % (S_T0, S_UOFF))
            self("s_lshl_b32 s%d, s%d, 10" % (S_T0, S_T0))
            self("s_add_u32 s3, s3, s%d" % S_T0)
            self("s_and_b32 s%d, s%d, 1" % (S_T0, S_UOFF))
            self("s_lshl_b32 s%d, s%d, 3" % (S_T0, S_T0))
            self("s_add_u32 s3, s3, s%d" % S_T0)
            self("s_add_u32 s3, s3, %d" % WS_HF1)
            self("v_lshrrev_b32 v57, 5, v%d" % V_LANE)
            self("v_mul_u32_u24 v57, %d, v57" % (54 * 1024))
            self("v_and_b32 v58, 31, v%d" % V_LANE)
            self("v_lshl_add_u32 v58, v58, 7, v57")
            self("v_add_u32 v58, s3, v58")
            Lp = self.label("L_pth")
            self("s_cmp_lg_u32 s%d, 0" % S_MODE)
            self("s_cbranch_scc1 %s" % Lp)
            self("global_store_dword v58, v58, s[%d:%d]" % (P_WS, P_WS + 1))
            self("%s:" % Lp)
        w2items = self.w2_items(w2range[0], w2range[1], self.G1_L16) if w2range else []
        nper = -(-len(w2items) // 16)
        for t in range(20):
            if t == 1 and sb: self.stamp(sb)
            buf = t & 1
            nxt = self.g1_aloads(t + 1, buf ^ 1) if t < 19 else []
            self.lg_wait_all()
            self.vm_wait("x%d" % t)
            self.bg_add(nxt)
            self.bg_add(stq.get(t, []))
            if t >= 1:
                self.bg_add(w2items[:nper]); w2items = w2items[nper:]
            nbg = len(self.bgq); done = 0
            k = 0
            for i in range(7):
                for rho in range(2):
                    acc = ACC + (rho * 7 + i) * 4
                    c = vr(acc, 4) if t else "0"
                    self("v_mfma_f32_16x16x32_bf16 %s, %s, %s, %s" % (vr(acc, 4), vr(AF[buf] + 4 * i, 4), vr(XR + ((t % DEPTH) * 2 + rho) * 4, 4), c))
                    k += 1
                    want = min(nbg, -(-nbg * k // (18 if with_cs else 13)))
                    self.bg_step(want - done); done = want
                if with_cs:
                    cs = V_CS + 4 * i
                    self("v_mfma_f32_16x16x32_bf16 %s, %s, %s, %s" % (vr(cs, 4), vr(AF[buf] + 4 * i, 4), vr(ONES, 4), vr(cs, 4) if t else "0"))
                    k += 1
                    want = min(nbg, -(-nbg * k // 18))
                    self.bg_step(want - done); done = want
            self.bg_flush()
            if t < 19: self("v_add_u32 v%d, 7168, v%d" % (la, la))
            if t + DEPTH < 20: xload(t + DEPTH)
        if sb: self.stamp(sb + 1)
        if main_only: return
        self.g1_epilogue(hwt, neg)
    def g1_epilogue(self, hwt=False, neg=False):
        ACC, ST = self.G1_ACC, self.G1_ST
        MR = [164, 166]
        if neg: self("s_mov_b32 s%d, 0x80008000" % S_T0)
        ha = 80
        self("v_add_u32 v%d, %d, v%d" % (ha, 54 * 1024, self.G1_L16))
        HA = [self.G1_L16, ha]
        O = 100
        def st(rho, i, n):
            return "global_store_dwordx%d v%d, %s, s[%d:%d]" % (n, HA[rho], vr(O + (rho * 7 + i) * 2, n), 72 + 2 * i, 73 + 2 * i)
        def compute(rho, i):
            acc = ACC + (rho * 7 + i) * 4
            for p in range(2):
                A = acc + 2 * p; C = V_CS + 4 * i + 2 * p
                self("v_pk_fma_f32 %s, %s, %s, %s op_sel_hi:[1,0,1] neg_lo:[0,1,0] neg_hi:[0,1,0]" % (vr(A, 2), vr(C, 2), vr(MR[rho], 2), vr(A, 2)))
                self("v_pk_mul_f32 %s, %s, %s op_sel:[0,1] op_sel_hi:[1,1]" % (vr(A, 2), vr(A, 2), vr(MR[rho], 2)))
                o = O + (rho * 7 + i) * 2 + p
                self("v_cvt_pk_bf16_f32 v%d, v%d, v%d" % (o, A, A + 1))
                if neg: self("v_pk_max_u16 v%d, v%d, s%d" % (o, o, S_T0))
                else: self("v_pk_max_i16 v%d, v%d, 0" % (o, o))
        Lo, Ld = self.label("L_ho"), self.label("L_hd")
        def path(odd, flag):
            for rho in range(2):
                seq = [(0, 2), (1, 4), (3, 4), (5, 4)] if odd else [(0, 4), (2, 4), (4, 4), (6, 2)]
                for (i, n) in seq:
                    for ii in range(i, i + n // 2): compute(rho, ii)
                    self(st(rho, i, n) + flag)
        Ls = [self.label("L_he") for _ in range(4)]
        self("s_and_b32 s3, s%d, 1" % S_UOFF)
        self("s_lshl_b32 s%d, s%d, 1" % (S_T0 + 1, S_MODE))
        self("s_or_b32 s3, s3, s%d" % (S_T0 + 1))
        for c in (1, 2, 3):
            self("s_cmp_eq_u32 s3, %d" % c)
            self("s_cbranch_scc1 %s" % Ls[c])
        for c in range(4):
            if c: self("%s:" % Ls[c])
            path(c & 1, " sc0 sc1" if (c >> 1 or hwt) else (" " + getattr(self, "fastflag", "")))
            if c < 3: self("s_branch %s" % Ld)
        self("%s:" % Ld)
        self.vmq.extend(["h"] * 8)
        retries, sa = self._g1_retries
        Lx = self.label("L_stx")
        self("s_branch %s" % Lx)
        for (Lr, Lb, rho) in retries:
            Li = self.label("L_sti")
            self("%s:" % Lr)
            self("s_mov_b32 s%d, %d" % (S_TMO, TIMEOUT))
            self("%s:" % Li)
            for k in range(2):
                self("global_load_dwordx4 %s, v%d, s[%d:%d] offset:%d sc1" % (vr(ST + 4 * k, 4), sa, P_WS, P_WS + 1, 2048 * rho + 16 * k))
            self("s_sub_u32 s%d, s%d, 1" % (S_TMO, S_TMO))
            self("s_cmp_eq_u32 s%d, 0" % S_TMO)
            self("s_cbranch_scc1 L_abort")
            self("s_waitcnt vmcnt(0)")
            self("v_xor_b32 v170, s101, v%d" % (ST + 2))
            self("v_xor_b32 v171, s101, v%d" % (ST + 6))
            self("v_or_b32 v170, v170, v171")
            self("v_xor_b32 v171, v%d, v%d" % (ST + 2, ST + 3))
            self("v_xor_b32 v171, s%d, v171" % S_KX)
            self("v_or_b32 v170, v170, v171")
            self("v_xor_b32 v171, v%d, v%d" % (ST + 6, ST + 7))
            self("v_xor_b32 v171, s%d, v171" % S_KX)
            self("v_or_b32 v170, v170, v171")
            self("v_cmp_ne_u32 vcc, 0, v170")
            self("s_cbranch_vccnz %s" % Li)
            self("s_branch %s" % Lb)
        self("%s:" % Lx)

    G2_ACC = [4, 24]; G2_HR = 44; G2_HA = 100; G2_RA = 104; G2_TMP = 108; G2_SUM = 128
    def g2_setup(self, hf_off):
        ha, ra = self.G2_HA, self.G2_RA
        for s in range(14):
            self("s_mul_i32 s3, s%d, 14" % S_W)
            self("s_add_u32 s3, s3, %d" % s)
            self("s_min_u32 s3, s3, 53")
            self("s_lshl_b32 s%d, s3, 10" % (S_HSTEP + s))
        self.srd(SRD_A, P_WS, 0x10000000 - self.o.get('wsbase', 0))
        for k in range(4):
            self("s_add_u32 s3, s%d, %d" % (S_W, 1 + k))
            self("s_and_b32 s3, s3, 3")
            self("s_mul_i32 s%d, s3, 5120" % (S_T0 + 1))
            self("s_lshl_b32 s%d, s%d, 4" % (S_T0, S_G))
            self("s_add_u32 s3, s3, s%d" % S_T0)
            self("s_lshl_b32 s%d, s%d, 2" % (S_T0, S_RB))
            self("s_add_u32 s3, s3, s%d" % S_T0)
            self("s_mul_i32 s3, s3, %d" % (54 * 1024))
            self("s_add_u32 s3, s3, %s" % hf_off)
            self("v_lshlrev_b32 v%d, 4, v%d" % (ha + k, V_LANE))
            self("v_add_u32 v%d, s3, v%d" % (ha + k, ha + k))
            self("v_lshlrev_b32 v%d, 4, v%d" % (ra + k, V_LANE))
            self("s_add_u32 s3, s%d, %d" % (S_T0 + 1, LDS_SCR))
            self("v_add_u32 v%d, s3, v%d" % (ra + k, ra + k))
    def g2_main(self, sb=None, ldf='', val=None, extra=()):
        ACC, HR, ha, ra, TMP, SUM = self.G2_ACC, self.G2_HR, self.G2_HA, self.G2_RA, self.G2_TMP, self.G2_SUM
        def hload(p):
            k, s = divmod(p, 14)
            if self.o.get("g2_noload") and p >= 14: return
            self.vm("buffer_load_dwordx4 %s, v%d, s[%d:%d], s%d offen %s" % (vr(HR + 4 * s, 4), ha + k, SRD_A, SRD_A + 3, S_HSTEP + s, ldf), "h%d" % p)
        CK = 148
        retry_blocks = []
        def bad_ops(regs):
            op = "v_or" if val == 1 else "v_and"
            l = []
            acc_ = regs[0]; rest = regs[1:]
            first = True
            while rest:
                if len(rest) >= 2 and val == 1:
                    l.append("v_or3_b32 v%d, v%d, v%d, v%d" % (CK, acc_, rest[0], rest[1])); rest = rest[2:]
                else:
                    l.append("%s_b32 v%d, v%d, v%d" % (op, CK, acc_, rest[0])); rest = rest[1:]
                acc_ = CK
            l.append(("v_cmp_gt_i32 vcc, 0, v%d" if val == 1 else "v_cmp_le_i32 vcc, 0, v%d") % CK)
            return l
        for p in range(14): hload(p)
        if val:
            Lsp, Lok = self.label("L_hsp"), self.label("L_hok")
            self.vm_wait("h0")
            for l in bad_ops([HR, HR + 2]): self(l)
            self("s_cbranch_vccz %s" % Lok)
            self("s_mov_b32 s%d, %d" % (S_TMO, TIMEOUT))
            self("%s:" % Lsp)
            self("buffer_load_dwordx4 %s, v%d, s[%d:%d], s%d offen %s" % (vr(HR, 4), ha, SRD_A, SRD_A + 3, S_HSTEP, ldf))
            self("s_sub_u32 s%d, s%d, 1" % (S_TMO, S_TMO))
            self("s_cmp_eq_u32 s%d, 0" % S_TMO)
            self("s_cbranch_scc1 L_abort")
            self("s_waitcnt vmcnt(0)")
            for l in bad_ops([HR, HR + 2]): self(l)
            self("s_cbranch_vccnz %s" % Lsp)
            self("%s:" % Lok)
            self.stamp(45 if val == 1 else 46)
        if sb: self.stamp(sb)
        late = []
        self.bg_add(list(extra))
        for k in range(4):
            acc = ACC[k & 1]; prev = ACC[(k & 1) ^ 1]
            for s in range(14):
                p = 14 * k + s
                if k > 0 and not self.o.get("g2_nobar"):
                    sA, sB = self.o.get("g2_sA", 7), self.o.get("g2_sB", 11)
                    w0 = self.o.get("g2_w0", 1)
                    X = self.o.get("g2_x", "wbra")
                    if w0 <= s < w0 + 5 and "w" in X:
                        i = s - w0
                        late.append(("lg", "ds_write_b128 v%d, %s offset:%d" % (ra + k - 1, vr(prev + 4 * i, 4), 1024 * i), "rw"))
                    if s == sA:
                        self.bg_flush()
                        if "b" in X: self.lg_wait_all(); self("s_barrier")
                        rd = [("lg", "ds_read_b128 %s, v%d offset:%d" % (vr((SUM if k == 1 else TMP) + 4 * i, 4), ra + 3, 1024 * i), "rr") for i in range(5)]
                        if "r" in X: self.bg_add(rd)
                    if s == sB:
                        self.bg_flush()
                        if "b" in X: self.lg_wait_all(); self("s_barrier")
                        if "a" not in X: pass
                        elif k > 1:
                            self.bg_add(["v_add_f32 v%d, v%d, v%d" % (SUM + j, SUM + j, TMP + j) for j in range(20)])
                chk = []
                if val:
                    pn = p + 1
                    if pn < 56:
                        self.vm_wait("h%d" % pn)
                        rn = HR + 4 * (pn % 14)
                        chk = bad_ops([rn, rn + 2])
                else:
                    self.vm_wait("h%d" % p)
                for i in range(5):
                    c = vr(acc + 4 * i, 4) if s > 0 else "0"
                    self("v_mfma_f32_16x16x32_bf16 %s, %s, %s, %s" % (vr(acc + 4 * i, 4), w2reg(s * 5 + i), vr(HR + 4 * s, 4), c))
                    if chk and i < 2:
                        self(chk[i])
                    elif i == 2 and late:
                        x = late.pop(0); self.lg(x[1], x[2])
                    else:
                        self.bg_step(2 if k >= 2 and s >= 11 else 1)
                if chk:
                    Lr, Lb = self.label("L_hr"), self.label("L_hb")
                    self("s_cbranch_vccnz %s ; nohaz" % Lr)
                    self("%s: ; nohaz" % Lb)
                    kn, sn = divmod(pn, 14)
                    retry_blocks.append((Lr, Lb, "buffer_load_dwordx4 %s, v%d, s[%d:%d], s%d offen %s" % (vr(HR + 4 * sn, 4), ha + kn, SRD_A, SRD_A + 3, S_HSTEP + sn, ldf), bad_ops([rn, rn + 2])))
                if p + 14 < 56: hload(p + 14)
            self.bg_flush()
        if retry_blocks:
            Lx = self.label("L_hx")
            self("s_branch %s" % Lx)
            for (Lr, Lb, ld, ops) in retry_blocks:
                Li = self.label("L_hi")
                self("%s:" % Lr)
                self("s_mov_b32 s%d, %d" % (S_TMO, TIMEOUT))
                self("%s:" % Li)
                self(ld)
                self("s_sub_u32 s%d, s%d, 1" % (S_TMO, S_TMO))
                self("s_cmp_eq_u32 s%d, 0" % S_TMO)
                self("s_cbranch_scc1 L_abort")
                self("s_waitcnt vmcnt(0)")
                for l in ops: self(l)
                self("s_cbranch_vccnz %s" % Li)
                self("s_branch %s" % Lb)
            self("%s:" % Lx)
        if sb: self.stamp(sb + 1)
        acc = ACC[1]
        for j in range(0, 20, 2):
            self("v_pk_add_f32 %s, %s, %s" % (vr(SUM + j, 2), vr(SUM + j, 2), vr(acc + j, 2)))
        return SUM

    def unpack_items(self, dst, src):
        it = []
        for i in range(10):
            it += ["v_lshlrev_b32 v%d, 16, v%d" % (dst + 2 * i, src + i), "v_and_b32 v%d, s%d, v%d" % (dst + 2 * i + 1, S_MASK, src + i)]
        return it
    def residual_add(self, RES, XF, neg=False, unpack_after=True):
        t = 180
        for i in range(10):
            if self.o.get("rnd_mlp", 1): self.rnd_pair(RES + 2 * i, t + (i & 1))
            self("v_pk_add_f32 %s, %s, %s %s" % (vr(XF + 2 * i, 2), vr(XF + 2 * i, 2), vr(RES + 2 * i, 2), "neg_lo:[0,1] neg_hi:[0,1]" if neg else ""))
            self("v_cvt_pk_bf16_f32 v%d, v%d, v%d" % (V_X + i, XF + 2 * i, XF + 2 * i + 1))
        if unpack_after:
            for i in range(10): self.unpack(XF + 2 * i, V_X + i)

    def out_addr_items(self, t2):
        g = Gen()
        g("s_lshl_b32 s97, s%d, 8" % S_G)
        g("s_lshl_b32 s100, s%d, 6" % S_RB)
        g("s_add_u32 s97, s97, s100")
        g("s_lshl_b32 s100, s%d, 4" % S_W)
        g("s_add_u32 s97, s97, s100")
        g("v_add_u32 v%d, s97, v%d" % (t2, V_L15))
        g("v_mul_u32_u24 v%d, 1280, v%d" % (t2, t2))
        g("s_mul_i32 s97, s%d, 160" % S_CS)
        g("v_lshlrev_b32 v%d, 3, v%d" % (t2 + 1, V_G))
        g("v_add3_u32 v%d, v%d, v%d, s97" % (t2, t2, t2 + 1))
        return [i.text.strip() for i in g.ins]
    def store_out(self, t2):
        for u in range(5):
            self.vm("global_store_dwordx2 v%d, %s, s[%d:%d] offset:%d %s" % (t2, vr(V_X + 2 * u, 2), P_OUT, P_OUT + 1, 32 * u, self.o.get("outf", "")), "out")

    def epoch_update(self):
        L = self.label("L_ep")
        self("s_add_u32 s3, s2, s%d" % S_W)
        self("s_cmp_lg_u32 s3, 0")
        self("s_cbranch_scc1 %s" % L)
        self("s_sub_u32 s3, s%d, 0x%x" % (S_TAG, TAG0))
        self("s_add_u32 s3, s3, 16")
        self("v_mov_b32 v176, s3")
        self("v_mov_b32 v177, %d" % WS_EPOCH)
        self.exec_set("1")
        self("global_store_dword v177, v176, s[%d:%d] sc0 sc1" % (P_WS, P_WS + 1))
        self.exec_restore()
        self("%s:" % L)

    def build(self):
        o = self.o
        self.prologue()
        if o.get("stamps"): self("v_mov_b32 v%d, 0" % V_STAMP)
        self.stamp(0)
        self.prep_loads()
        self.stamp(38)
        self.prep_compute()
        self.stamp(2)
        self.mode_check()
        self.lg_wait_all()
        self("s_barrier")
        self.mode_fetch()
        self.stamp(3)
        self.prep_store_ur()
        self.stamp(4)
        self.barrier_arrive(1, drain=False)
        self.build_kcopies()
        self.w1_stage_setup()
        self.w2_setup()
        self.stamp(5)
        self.barrier_wait(1)
        self.stamp(6)
        self.vmq = []; self.lgq = []
        self.conv()
        self.stamp(9)
        self.post_conv()
        self.stamp(13)
        if o.get("w1c2", 47) < 47:
            L = self.if_wave(3, eq=False)
            self.w1_dma(list(range(o.get("w1c2", 47), 47)))
            self.close(L)
        self.barrier_arrive(3)
        self.tile_stats(4, 1, 28)
        wcs = o.get("with_cs", 1)
        if not wcs:
            self.colsum()
            self("s_barrier")
            self.colsum_fetch()
        self.stamp(14)
        self.g1_setup(S_XO1, str(WS_HF1))
        self.lg_wait_all()
        nr = o.get("w2r", 0)
        na, nb = nr + o.get("w2a", 12), o.get("w2b", 48)
        L = self.if_wave(3, eq=False)
        q = list(self.vmq)
        self.bg_add(self.w2_items(nr, na, self.G1_L16)); self.bg_flush()
        self.vmq = q
        self.close(L)
        self.barrier_wait(3, wave=3)
        L = self.if_wave(3)
        self.bg_add(self.w2_items(nr, na, self.G1_L16)); self.bg_flush()
        self.vmq = q
        self.close(L)
        self.stamp(15)
        self.g1_main(1, 16, w2range=(na, nb), ldf='sc1', main_only=True, with_cs=bool(wcs))
        ne = min(70, nb + o.get("w2e", 0))
        self.bg_add(self.w2_items(nb, ne, self.G1_L16)); self.bg_flush()
        nb = ne
        self.g1_epilogue(hwt=o.get('hwt', 0))
        self.stamp(18)
        sv = o.get("selfval", 0)
        def slow_barrier(ph):
            L = self.label("L_sb")
            self("s_cmp_eq_u32 s%d, 0" % S_MODE)
            self("s_cbranch_scc1 %s" % L)
            q = (list(self.vmq), list(self.lgq))
            self.barrier_arrive(ph)
            self.barrier_wait(ph)
            self("%s:" % L)
            self.vmq, self.lgq = q
        self("v_lshlrev_b32 v163, 4, v%d" % V_LANE)
        if sv:
            self.bg_add(self.w2_items(nb, 70, 163)); self.bg_flush()
            self.g2_setup(str(WS_HF1))
            slow_barrier(4)
        else:
            self.barrier_arrive(4)
            self.bg_add(self.w2_items(nb, 70, 163)); self.bg_flush()
            self.g2_setup(str(WS_HF1))
            self.barrier_wait(4)
        self.stamp(21)
        XF, VA, VB = 150, 170, 171
        self.XA0 = 174
        extra = self.unpack_items(XF, V_X) + self.stats_addr_items(VA, VB) + self.xf_addr_items(S_XO3, 174)
        RES = self.g2_main(22, ldf='sc1' if sv else '', val=1 if sv else None, extra=extra)
        self.stamp(24)
        self.residual_add(RES, XF)
        self.tile_stats(XF, 2, 28, va=VA)
        self.row_stats_issue(2, 60, vb=VB)
        self.stamp(25)
        self.vm_wait("rs")
        self.row_stats_validate(2, 60)
        self.stamp(26)
        self.row_stats_finish(60, 24, 26)
        self.mixer_update(24, 26, XF, 28)
        self.xf_store()
        self.stamp(27)
        self.barrier_arrive(5)
        self.tile_stats(XF, 3, 28, va=VA)
        self.g1_setup(S_XO3, 's%d' % S_HO2)
        self.barrier_wait(5)
        self.stamp(28)
        self.g1_main(3, 29, ldf='sc1', neg=bool(sv))
        self.stamp(31)
        if sv:
            self.g2_setup('s%d' % S_HO2)
            slow_barrier(6)
        else:
            self.barrier_arrive(6)
            self.g2_setup('s%d' % S_HO2)
            self.barrier_wait(6)
        if o.get("wbl2"):
            L = self.label("L_wb")
            self("s_lshl_b32 s3, s%d, 2" % S_J)
            self("s_add_u32 s3, s3, s%d" % S_W)
            self("s_cmp_lg_u32 s3, %d" % o.get("wbl2_who", 1))
            self("s_cbranch_scc1 %s" % L)
            self("buffer_wbl2 sc1")
            self("%s:" % L)
        self.stamp(32)
        RES = self.g2_main(33, ldf='sc1', val=2 if sv else None, extra=self.unpack_items(XF, V_X) + self.out_addr_items(170))
        self.stamp(35)
        self.residual_add(RES, XF, neg=bool(sv), unpack_after=False)
        self.store_out(170)
        self.epoch_update()
        self.stamp(36)
        self("s_waitcnt vmcnt(0)")
        self.stamp(37)
        self.stamp_dump()
        if self.o.get("dbgtime"):
            L = self.label("L_dt")
            self("s_add_u32 s3, s%d, s%d" % (S_J, S_W))
            self("s_cmp_lg_u32 s3, 0")
            self("s_cbranch_scc1 %s" % L)
            self("s_memrealtime s[94:95]")
            self("s_memtime s[92:93]")
            self("s_waitcnt lgkmcnt(0)")
            self("s_sub_u32 s94, s94, s98")
            self("s_sub_u32 s92, s92, s100")
            self("v_mov_b32 v4, s94")
            self("v_mov_b32 v5, s92")
            self("s_lshl_b32 s3, s%d, 3" % S_G)
            self("v_mov_b32 v6, s3")
            self("s_mov_b64 exec, 1")
            self("global_store_dwordx2 v6, v[4:5], s[%d:%d]" % (P_DBG, P_DBG + 1))
            self("%s:" % L)
        self("s_waitcnt vmcnt(0)")
        self("s_branch L_end")
        self("L_abort:")
        self("L_end:")
        self("s_endpgm")

def make(opts):
    k = K(opts)
    k.build()
    body, added = k.text()
    hdr = open("interleave_layers__ssm_conv_h3__dense_activation_relu__prompt.s.ref").read().split("\n")
    head = [l for l in hdr if l.startswith(";") and "@launch" not in l and "Override launch" not in l and "grid=ceil" not in l][:13]
    txt = "\n".join(head) + "\n"
    txt += "; @launch grid=(256,1,1) block=(256,1,1) lds=%d\n" % LDS_TOTAL
    txt += '.amdgcn_target "amdgcn-amd-amdhsa--gfx950"\n.text\n.globl %s\n.p2align 8\n.type %s,@function\n%s:\n' % (KNAME, KNAME, KNAME)
    txt += body
    txt += """.section .rodata,"a"
.p2align 6
.amdhsa_kernel %s
  .amdhsa_next_free_vgpr 512
  .amdhsa_next_free_sgpr 102
  .amdhsa_accum_offset 256
  .amdhsa_group_segment_fixed_size 0
  .amdhsa_kernarg_size 96
  .amdhsa_user_sgpr_count 2
  .amdhsa_user_sgpr_kernarg_segment_ptr 1
  .amdhsa_system_sgpr_workgroup_id_x 1
.end_amdhsa_kernel
""" % KNAME
    return txt, added, len(k.ins)

if __name__ == "__main__":
    import argparse, json
    ap = argparse.ArgumentParser()
    ap.add_argument("-o", default="interleave_layers__ssm_conv_h3__dense_activation_relu__prompt.s")
    ap.add_argument("--opts", default="{}")
    a = ap.parse_args()
    txt, added, n = make(json.loads(a.opts))
    open(a.o, "w").write(txt)
    print("wrote", a.o, "instructions", n, "nop states added", added, "bytes", len(txt))
```

```python
import sys
sys.path.insert(0, "work")
from gen import *

KNAME = "interleave_layers__ssm_conv_h3__dense_activation_relu__prompt_kernel"

WS_EPOCH = 0x0
WS_XCCF  = 0x400
WS_LFLAG = 0x1000
WS_YFLAG = 0x2000
WS_PKFLAG = 0x3000
WS_STAT  = 0x100000
STAT_SZ  = 0x40000
WS_UR    = 0x200000
WS_YT    = 0x500000
WS_W1P   = 0x800000
WS_W2P   = 0xB00000
WP_SZ    = 2211840
WS_XF1   = 0xE00000
WS_XF3   = 0x1100000
WS_HF1   = 0x1400000
WS_HF2   = 0x1B00000
WS_STAMP = 0x2200000
KX = 0x5BD1E995
TAG0 = 0x9E3779B9

KC_STRIDE = 4160
SLOT = 8 * KC_STRIDE + 4608
U_OFF = 8 * KC_STRIDE
LDS_T = 3 * SLOT
T_STRIDE = 144
LDS_W1 = 0
W1_STRIDE = 224
LDS_SCR = 140 * 1024
LDS_TOTAL = 163840
LDS_MODE = LDS_TOTAL - 16
LDS_CSX = LDS_SCR + 16384
LDS_RP = LDS_T + 80 * T_STRIDE
LDS_Q = LDS_RP + 3 * 4096

S_G, S_J, S_W, S_MODE = 4, 5, 6, 7
SRD_A, SRD_B = 8, 12
P_Q, P_K, P_V, P_SK, P_SSM, P_D, P_W1 = 16, 18, 20, 22, 24, 26, 30
P_W2, P_OUT, P_DBG, P_WS = 32, 34, 36, 38
S_TAG = 28
S_KX = 29
S_RB, S_CS, S_RT, S_CT, S_UOFF = 40, 41, 42, 43, 44
S_MASK = 45
S_XCC = 46
S_CH = 47
S_HASCH = 48
S_DVAL = 49
S_T0 = 50
SRD_W2 = 56
S_W2B = 60
S_RU0 = 63
S_LFLAG = 64
S_TMPP = 66
S_TMPQ = 68
S_SLOT = 70
S_TMO = 71
S_HSTEP = 72
S_XFB = 86
S_M2 = 88
S_RET = 30
S_NEG = 27
S_XO1, S_XO3, S_HO2 = 90, 91, 96
S_SAVE = 92
S_TS = 94

V_TID, V_LANE, V_L15, V_G = 0, 1, 2, 3
V_STAMP = 173
V_CS = 184
V_Y = 212
V_X = 222
V_W2X = 232

def w2reg(f):
    return ar(4 * f, 4) if f < 64 else vr(V_W2X + 4 * (f - 64), 4)

TIMEOUT = 400000

class K(Gen):
    def __init__(self, opts):
        super().__init__()
        self.o = opts
        self.bgq = []

    def stamp(self, idx):
        if not self.o.get("stamps"): return
        self("s_memtime s[%d:%d]" % (S_TS, S_TS + 1))
        self("s_waitcnt lgkmcnt(0)")
        self("v_writelane_b32 v%d, s%d, %d" % (V_STAMP, S_TS, idx))
        self.lgq = []
    def stamp_dump(self):
        if not self.o.get("stamps"): return
        self("s_memrealtime s[%d:%d]" % (S_TS, S_TS + 1))
        self("s_waitcnt lgkmcnt(0)")
        self("v_writelane_b32 v%d, s%d, 63" % (V_STAMP, S_TS))
        self("v_writelane_b32 v%d, s98, 62" % V_STAMP)
        self("s_lshl_b32 s3, s2, 2")
        self("s_add_u32 s3, s3, s%d" % S_W)
        self("s_lshl_b32 s3, s3, 8")
        self("s_add_u32 s3, s3, %d" % WS_STAMP)
        self("v_lshlrev_b32 v180, 2, v%d" % V_LANE)
        self("v_add_u32 v180, s3, v180")
        self("global_store_dword v180, v%d, s[%d:%d]" % (V_STAMP, P_WS, P_WS + 1))
        if self.o.get("dbgstamps"):
            L = self.label("L_ds")
            self("s_lshl_b32 s3, s2, 2")
            self("s_add_u32 s3, s3, s%d" % S_W)
            self("s_cmp_lg_u32 s3, %d" % (self.o.get("dbgwave", 37)))
            self("s_cbranch_scc1 %s" % L)
            self("v_readlane_b32 s50, v%d, 0" % V_STAMP)
            self("v_mov_b32 v181, 0")
            for i, idx in enumerate(self.o["dbgstamps"]):
                self("v_readlane_b32 s51, v%d, %d" % (V_STAMP, idx))
                self("s_sub_u32 s51, s51, s50")
                self("v_writelane_b32 v181, s51, %d" % i)
            self("v_lshlrev_b32 v180, 2, v%d" % V_LANE)
            self("s_mov_b64 exec, 0xffff")
            self("global_store_dword v180, v181, s[%d:%d]" % (P_DBG, P_DBG + 1))
            self("s_mov_b64 exec, -1")
            self("%s:" % L)
    def bg_add(self, items): self.bgq.extend(items)
    def bg_step(self, n=1):
        q = self.bgq
        while n > 0 and q:
            it = q.pop(0)
            if callable(it): it()
            elif isinstance(it, tuple):
                kind, text, tag = it
                (self.vm if kind == "vm" else self.lg)(text, tag)
            else: self(it)
            n -= 1
    def bg_flush(self): self.bg_step(1 << 30)
    def if_wave(self, w, eq=True):
        L = self.label("L_iw")
        self("s_cmp_%s_u32 s%d, %d" % ("lg" if eq else "eq", S_W, w))
        self("s_cbranch_scc1 %s" % L)
        return L
    def close(self, L): self("%s:" % L)
    def exec_set(self, mask):
        self("s_mov_b64 s[%d:%d], exec" % (S_SAVE, S_SAVE + 1))
        self("s_mov_b64 exec, %s" % mask)
    def exec_restore(self): self("s_mov_b64 exec, s[%d:%d]" % (S_SAVE, S_SAVE + 1))
    def rnd_pair(self, p, t):
        self("v_cvt_pk_bf16_f32 v%d, v%d, v%d" % (t, p, p + 1))
        self("v_lshlrev_b32 v%d, 16, v%d" % (p, t))
        self("v_and_b32 v%d, s%d, v%d" % (p + 1, S_MASK, t))
    def unpack(self, dst, src):
        self("v_lshlrev_b32 v%d, 16, v%d" % (dst, src))
        self("v_and_b32 v%d, s%d, v%d" % (dst + 1, S_MASK, src))
    def unpack_tile(self, dst, src):
        for i in range(10): self.unpack(dst + 2 * i, src + i)
    def rnd1(self, r, t):
        self("v_cvt_pk_bf16_f32 v%d, v%d, v%d" % (t, r, r))
        self("v_lshlrev_b32 v%d, 16, v%d" % (r, t))
    def xg_sum(self, r, t):
        self("v_mov_b32 v%d, v%d" % (t, r))
        self("v_permlane16_swap_b32 v%d, v%d" % (r, t))
        self("v_add_f32 v%d, v%d, v%d" % (r, r, t))
        self("v_mov_b32 v%d, v%d" % (t, r))
        self("v_permlane32_swap_b32 v%d, v%d" % (r, t))
        self("v_add_f32 v%d, v%d, v%d" % (r, r, t))
    def srd(self, q, ptr, nbytes, const=0, add_sgpr=None):
        self("s_add_u32 s%d, s%d, %d" % (q, ptr, const))
        self("s_addc_u32 s%d, s%d, 0" % (q + 1, ptr + 1))
        if add_sgpr is not None:
            self("s_add_u32 s%d, s%d, s%d" % (q, q, add_sgpr))
            self("s_addc_u32 s%d, s%d, 0" % (q + 1, q + 1))
        self("s_and_b32 s%d, s%d, 0xffff" % (q + 1, q + 1))
        self("s_mov_b32 s%d, %d" % (q + 2, nbytes))
        self("s_mov_b32 s%d, 0x20000" % (q + 3))
    def addr_pair(self, dst, ptr, const=0, add_sgpr=None):
        self("s_add_u32 s%d, s%d, %d" % (dst, ptr, const))
        self("s_addc_u32 s%d, s%d, 0" % (dst + 1, ptr + 1))
        if add_sgpr is not None:
            self("s_add_u32 s%d, s%d, s%d" % (dst, dst, add_sgpr))
            self("s_addc_u32 s%d, s%d, 0" % (dst + 1, dst + 1))
    def handoff_stores(self, lines, tagname="st", record=True):
        Ls, Ld = self.label("L_slow"), self.label("L_sd")
        self("s_cmp_eq_u32 s%d, 0" % S_MODE)
        self("s_cbranch_scc0 %s" % Ls)
        for l in lines: self(l + " " + getattr(self, "fastflag", ""))
        self("s_branch %s" % Ld)
        self("%s:" % Ls)
        for l in lines: self(l + " sc0 sc1")
        self("%s:" % Ld)
        if record:
            for l in lines: self.vmq.append(tagname)
    def rowbase(self):
        self("s_lshl_b32 s3, s%d, 8" % S_G)
        self("s_lshl_b32 s%d, s%d, 6" % (S_T0, S_RB))
        self("s_add_u32 s3, s3, s%d" % S_T0)
        self("s_lshl_b32 s%d, s%d, 4" % (S_T0, S_W))
        self("s_add_u32 s3, s3, s%d" % S_T0)

    def flag_store(self, base_pair, off_sgpr, val, device, vt=176):
        if isinstance(val, int): self("s_add_u32 s3, s%d, %d" % (S_TAG, val))
        else: self("s_add_u32 s3, s%d, %s" % (S_TAG, val))
        self("v_mov_b32 v%d, s3" % vt)
        self("s_xor_b32 s3, s3, s%d" % S_KX)
        self("v_mov_b32 v%d, s3" % (vt + 1))
        self("v_mov_b32 v%d, s%d" % (vt + 2, off_sgpr))
        self.exec_set("1")
        line = "global_store_dwordx2 v%d, %s, s[%d:%d]" % (vt + 2, vr(vt, 2), base_pair, base_pair + 1)
        if device: self(line + " sc0 sc1")
        else: self.handoff_stores([line], record=False)
        self.exec_restore()
    def pair_bad(self, w0, w1, lo, span, t, acc=None):
        self("v_subrev_u32 v%d, s%d, v%d" % (t, lo, w0))
        self("v_cmp_lt_u32 vcc, %d, v%d" % (span, t))
        self("v_xor_b32 v%d, v%d, v%d" % (t, w0, w1))
        self("v_cmp_ne_u32 s[%d:%d], s%d, v%d" % (S_M2, S_M2 + 1, S_KX, t))
        self("s_or_b64 s[%d:%d], vcc, s[%d:%d]" % (S_M2, S_M2 + 1, S_M2, S_M2 + 1))
    def poll_pairs(self, base_pair, voff, lo, span, vt, npair=1, sleep=0):
        L = self.label("L_poll")
        self("s_add_u32 s%d, s%d, %d" % (S_T0 + 5, S_TAG, lo))
        self("s_mov_b32 s%d, %d" % (S_TMO, TIMEOUT))
        self("%s:" % L)
        if sleep: self("s_sleep %d" % sleep)
        if npair == 1:
            self("global_load_dwordx2 %s, v%d, s[%d:%d] sc1" % (vr(vt, 2), voff, base_pair, base_pair + 1))
        else:
            for k in range(npair // 2):
                self("global_load_dwordx4 %s, v%d, s[%d:%d] offset:%d sc1" % (vr(vt + 4 * k, 4), voff, base_pair, base_pair + 1, 16 * k))
        self("s_sub_u32 s%d, s%d, 1" % (S_TMO, S_TMO))
        self("s_cmp_eq_u32 s%d, 0" % S_TMO)
        self("s_cbranch_scc1 L_abort")
        self("s_waitcnt vmcnt(0)")
        for k in range(npair):
            self.pair_bad(vt + 2 * k, vt + 2 * k + 1, S_T0 + 5, span, vt + 2 * npair)
            self("s_cbranch_scc1 %s" % L)

    def barrier_arrive(self, phase, drain=True, wave=0):
        if drain: self.wait_all()
        self("s_barrier")
        L = self.if_wave(wave)
        self("s_lshl_b32 s%d, s%d, 3" % (S_T0, S_J))
        self.flag_store(S_LFLAG, S_T0, phase, device=False)
        self.close(L)
    def pk_wait(self):
        L = self.if_wave(3)
        self.addr_pair(S_TMPP, P_WS, WS_PKFLAG)
        self("v_lshlrev_b32 v174, 5, v%d" % V_LANE)
        self.poll_pairs(S_TMPP, 174, 1, 0, 4, npair=4)
        self.stamp(40)
        self.close(L)
    def barrier_wait(self, phase, wave=0, vt=176):
        L = self.if_wave(wave)
        self("v_and_b32 v%d, 31, v%d" % (vt + 4, V_LANE))
        self("v_lshlrev_b32 v%d, 3, v%d" % (vt + 4, vt + 4))
        self.poll_pairs(S_LFLAG, vt + 4, phase, 7 - phase, vt, sleep=self.o.get('bsleep', 0))
        self.close(L)
        self("s_barrier")

    def prologue(self):
        self("s_cmp_ge_u32 s2, 256")
        self("s_cbranch_scc1 L_end")
        if self.o.get("codepf", 1):
            self("s_getpc_b64 s[66:67]")
            self("L_pcref:")
            self("s_sub_u32 s66, s66, (L_pcref - %s)" % KNAME)
            self("s_subb_u32 s67, s67, 0")
            per = 20
            self("s_lshr_b32 s3, s2, 3")
            self("s_mul_i32 s3, s3, %d" % per)
            self("v_and_b32 v4, 63, v0")
            self("v_add_u32 v4, s3, v4")
            self("v_min_u32 v4, (L_end - %s) / 128, v4" % KNAME)
            self("v_lshlrev_b32 v4, 7, v4")
            self("v_cmp_gt_u32 vcc, %d, v0" % per)
            self("s_and_saveexec_b64 s[92:93], vcc")
            Lc = self.label("L_cpf")
            self("s_cbranch_execz %s" % Lc)
            self("global_load_dword a0, v4, s[66:67]")
            self("%s:" % Lc)
            self("s_mov_b64 exec, s[92:93]")
        if self.o.get("dbgtime") or self.o.get("stamps"):
            self("s_memrealtime s[98:99]")
            self("s_memtime s[100:101]")
        self("s_load_dwordx16 s[16:31], s[0:1], 0")
        self("s_load_dwordx8 s[32:39], s[0:1], 64")
        self("s_and_b32 s%d, s2, 7" % S_G)
        self("s_lshr_b32 s%d, s2, 3" % S_J)
        self("v_lshrrev_b32 v4, 6, v0")
        self("v_readfirstlane_b32 s%d, v4" % S_W)
        self("v_and_b32 v%d, 63, v0" % V_LANE)
        self("v_and_b32 v%d, 15, v0" % V_L15)
        self("v_bfe_u32 v%d, v0, 4, 2" % V_G)
        self("s_getreg_b32 s%d, hwreg(HW_REG_XCC_ID, 0, 4)" % S_XCC)
        self("s_mov_b32 s%d, 0xffff0000" % S_MASK)
        self("s_lshr_b32 s%d, s%d, 3" % (S_RB, S_J))
        self("s_and_b32 s%d, s%d, 7" % (S_CS, S_J))
        self("s_lshr_b32 s%d, s%d, 4" % (S_RT, S_J))
        self("s_and_b32 s%d, s%d, 15" % (S_CT, S_J))
        self("s_mul_i32 s3, s%d, %d" % (S_CT, 11 * 4370))
        self("s_lshr_b32 s3, s3, 16")
        self("s_mul_i32 s%d, s%d, 6" % (S_UOFF, S_CT))
        self("s_add_u32 s%d, s%d, s3" % (S_UOFF, S_UOFF))
        self("s_mov_b32 s%d, 0" % S_MODE)
        self("s_waitcnt lgkmcnt(0)")
        wsb = self.o.get("wsbase", 0)
        if wsb:
            self("s_add_u32 s%d, s%d, 0x%x" % (P_WS, P_WS, wsb))
            self("s_addc_u32 s%d, s%d, 0" % (P_WS + 1, P_WS + 1))
        self("s_load_dword s%d, s[%d:%d], %d" % (S_TAG, P_WS, P_WS + 1, WS_EPOCH))
        self("s_mov_b32 s%d, 0x%x" % (S_KX, KX))
        self("s_lshl_b32 s3, s%d, 8" % S_G)
        self.addr_pair(S_LFLAG, P_WS, WS_LFLAG, 3)

    def repack_issue(self):
        L = self.if_wave(3)
        row, ch, off = 100, 101, 102
        self("v_lshrrev_b32 v%d, 3, v%d" % (row, V_LANE))
        self("v_and_b32 v%d, 7, v%d" % (ch, V_LANE))
        self("v_lshlrev_b32 v%d, 4, v%d" % (ch, ch))
        self("v_mul_u32_u24 v%d, 1280, v%d" % (103, row))
        self("v_add_u32 v%d, v%d, v%d" % (103, 103, ch))
        for k in range(3):
            Lk = None
            if k == 2:
                Lk = self.label("L_rp3")
                self("s_cmp_ge_u32 s2, 28")
                self("s_cbranch_scc1 %s" % Lk)
            a, b = S_T0, S_T0 + 1
            self("s_add_u32 s%d, s2, %d" % (S_T0 + 3, 256 * k))
            self("s_mul_hi_u32 s%d, s%d, %d" % (a, S_T0 + 3, (1 << 32) // 10 + 1))
            self("s_mul_i32 s%d, s%d, 10" % (b, a))
            self("s_sub_u32 s%d, s%d, s%d" % (b, S_T0 + 3, b))
            self("s_mul_i32 s3, s%d, %d" % (a, 32 * 1280))
            self("s_lshl_b32 s%d, s%d, 7" % (S_T0 + 2, b))
            self("s_add_u32 s3, s3, s%d" % (S_T0 + 2))
            self.addr_pair(S_TMPP, P_W2, 0, 3)
            self("s_mul_i32 s3, s%d, 40" % a)
            self("s_lshl_b32 s%d, s%d, 2" % (b, b))
            self("s_add_u32 s3, s3, s%d" % b)
            self("s_lshl_b32 s3, s3, 10")
            self("s_add_u32 s%d, s3, %d" % (74 + k, WS_W2P))
            self("v_mov_b32 v%d, v103" % off)
            for r in range(4):
                self("s_mov_b32 m0, %d" % (LDS_RP + 4096 * k + 1024 * r))
                if r: self("v_add_u32 v%d, %d, v%d" % (off, 8 * 1280, off))
                self("global_load_lds_dwordx4 v%d, s[%d:%d] %s" % (off, S_TMPP, S_TMPP + 1, self.o.get("nt_w", "nt")))
            if Lk: self("%s:" % Lk)
        self("s_lshl_b32 s3, s%d, 8" % S_G)
        self("s_lshl_b32 s%d, s%d, 6" % (S_T0, S_RB))
        self("s_add_u32 s3, s3, s%d" % S_T0)
        self("s_mul_i32 s3, s3, 1280")
        self("s_mul_i32 s%d, s%d, 160" % (S_T0, S_CS))
        self("s_add_u32 s3, s3, s%d" % S_T0)
        self.addr_pair(S_TMPP, P_Q, 0, 3)
        self("s_mov_b32 s%d, %d" % (S_T0, (1 << 32) // 10 + 1))
        for i in range(10):
            self("v_add_u32 v%d, %d, v%d" % (off, 64 * i, V_LANE))
            self("v_mul_hi_u32 v%d, v%d, s%d" % (row, off, S_T0))
            self("v_mul_u32_u24 v%d, 10, v%d" % (ch, row))
            self("v_sub_u32 v%d, v%d, v%d" % (ch, off, ch))
            self("v_mul_u32_u24 v%d, 1280, v%d" % (row, row))
            self("v_lshl_add_u32 v%d, v%d, 4, v%d" % (off, ch, row))
            self("s_mov_b32 m0, %d" % (LDS_Q + 1024 * i))
            self("global_load_lds_dwordx4 v%d, s[%d:%d]" % (off, S_TMPP, S_TMPP + 1))
        self.close(L)
    def repack_finish(self):
        a, sa = 100, 101
        self("s_waitcnt vmcnt(0)")
        self("v_bfe_u32 v%d, v%d, 2, 2" % (a, V_LANE))
        self("v_lshl_add_u32 v%d, v%d, 2, v%d" % (a, V_G, a))
        self("v_lshlrev_b32 v%d, 7, v%d" % (a, a))
        self("v_and_b32 v%d, 3, v%d" % (sa, V_LANE))
        self("v_lshl_add_u32 v%d, v%d, 3, v%d" % (a, sa, a))
        self("v_add_u32 v%d, %d, v%d" % (a, LDS_RP, a))
        for k in range(3):
            Lk = None
            if k == 2:
                Lk = self.label("L_rf3")
                self("s_cmp_ge_u32 s2, 28")
                self("s_cbranch_scc1 %s" % Lk)
            F = 104 + 16 * k
            for u in range(4):
                for h in range(2):
                    self("ds_read_b64_tr_b16 %s, v%d offset:%d" % (vr(F + 4 * u + 2 * h, 2), a, 4096 * k + h * 2048 + 32 * u))
            self("v_lshlrev_b32 v%d, 4, v%d" % (sa, V_LANE))
            self("v_add_u32 v%d, s%d, v%d" % (sa, 74 + k, sa))
            self("s_waitcnt lgkmcnt(0)")
            for u in range(4):
                self("global_store_dwordx4 v%d, %s, s[%d:%d] offset:%d sc0 sc1" % (sa, vr(F + 4 * u, 4), P_WS, P_WS + 1, 1024 * u))
            if Lk: self("%s:" % Lk)

    def prep_loads(self):
        KR, VR, TAP, RAW = 4, 34, 46, 66
        self.KR, self.VR, self.TAP, self.RAW = KR, VR, TAP, RAW
        c10, rp, off = 110, 111, 112
        self("v_and_b32 v%d, 7, v0" % c10)
        self("v_lshrrev_b32 v%d, 3, v0" % rp)
        self("s_lshl_b32 s3, s%d, 6" % S_J)
        self("s_sub_u32 s3, s3, 3")
        self("v_lshlrev_b32 v%d, 1, v%d" % (off, rp))
        self("v_add_u32 v%d, s3, v%d" % (off, off))
        self("s_movk_i32 s%d, 1280" % S_T0)
        self("v_mul_lo_u32 v%d, v%d, s%d" % (off, off, S_T0))
        self("s_mul_i32 s3, s%d, 160" % S_G)
        self("v_mul_u32_u24 v%d, 20, v%d" % (off + 1, c10))
        self("v_add3_u32 v%d, v%d, v%d, s3" % (off, off, off + 1))
        self.srd(SRD_A, P_K, 2621440)
        self.srd(SRD_B, P_V, 2621440)
        nk = self.o.get("nt_kv", "")
        offs = [off]
        for r in range(1, 5):
            self("v_add_u32 v%d, %d, v%d" % (off + 1 + r, 1280 * r, off))
            offs.append(off + 1 + r)
        for r in range(5):
            self.vm("buffer_load_dwordx4 %s, v%d, s[%d:%d], 0 offen %s" % (vr(KR + 6 * r, 4), offs[r], SRD_A, SRD_A + 3, nk), "k")
            self.vm("buffer_load_dword v%d, v%d, s[%d:%d], 0 offen offset:16 %s" % (KR + 6 * r + 4, offs[r], SRD_A, SRD_A + 3, nk), "k")
        for r in range(2):
            self.vm("buffer_load_dwordx4 %s, v%d, s[%d:%d], 0 offen %s" % (vr(VR + 6 * r, 4), offs[3 + r], SRD_B, SRD_B + 3, nk), "v")
            self.vm("buffer_load_dword v%d, v%d, s[%d:%d], 0 offen offset:16 %s" % (VR + 6 * r + 4, offs[3 + r], SRD_B, SRD_B + 3, nk), "v")
        t = off + 7
        self("s_mul_i32 s3, s%d, 640" % S_G)
        self("v_mul_u32_u24 v%d, 80, v%d" % (t, c10))
        self("v_add_u32 v%d, s3, v%d" % (t, t))
        for i in range(5):
            self.vm("global_load_dwordx4 %s, v%d, s[%d:%d] offset:%d" % (vr(TAP + 4 * i, 4), t, P_SK, P_SK + 1, 16 * i), "tap")
        self("s_lshl_b32 s3, s%d, 5" % S_W)
        self("s_add_u32 s3, s3, s%d" % S_J)
        self("s_cmp_lt_u32 s3, 80")
        self("s_cselect_b32 s%d, 1, 0" % S_HASCH)
        self("s_cselect_b32 s3, s3, 0")
        self("s_mul_i32 s%d, s%d, 80" % (S_CH, S_G))
        self("s_add_u32 s%d, s%d, s3" % (S_CH, S_CH))
        self("s_mul_i32 s%d, s%d, %d" % (S_SLOT, S_W, SLOT))
        self("s_cmp_lt_u32 s%d, 3" % S_W)
        self("s_cselect_b32 s%d, s%d, 0" % (S_SLOT, S_SLOT))
        self("s_lshl_b32 s3, s%d, 1" % S_CH)
        self("s_and_b32 s3, s3, 0xfffffffc")
        self("s_load_dword s%d, s[%d:%d], s3" % (S_DVAL, P_D, P_D + 1))
        self("s_lshl_b32 s3, s%d, 12" % S_CH)
        self.srd(52, P_SSM, 4096, add_sgpr=3)
        a = off + 10
        defer = self.o.get("defer", 0)
        if not defer: self.prep_loads_b()
        if not defer: self.repack_issue()
        self("s_waitcnt lgkmcnt(0)")
        self("s_add_u32 s%d, s%d, 0x%x" % (S_TAG, S_TAG, TAG0))
        L = self.if_wave(0)
        self("s_lshl_b32 s%d, s%d, 8" % (S_T0, S_G))
        self("s_lshl_b32 s%d, s%d, 3" % (S_T0 + 1, S_J))
        self("s_add_u32 s%d, s%d, s%d" % (S_T0, S_T0, S_T0 + 1))
        self("s_add_u32 s%d, s%d, %d" % (S_T0, S_T0, WS_XCCF))
        self.flag_store(P_WS, S_T0, "s%d" % S_XCC, device=True)
        self.close(L)

    def prep_loads_b(self):
        RAW = self.RAW
        off = 112
        a = off + 10
        Lr = self.if_wave(3, eq=False)
        self("v_lshlrev_b32 v%d, 4, v%d" % (a, V_LANE))
        for r in range(4):
            self("v_add_u32 v%d, %d, v%d" % (a + 1, (1024 * r - 16) & 0xffffffff, a))
            self("buffer_load_dwordx4 %s, v%d, s[52:55], 0 offen %s" % (vr(RAW + 8 * r, 4), a + 1, self.o.get("nt_s", "")))
            self("buffer_load_dwordx4 %s, v%d, s[52:55], 0 offen offset:%d %s" % (vr(RAW + 8 * r + 4, 4), a, 1024 * r, self.o.get("nt_s", "")))
        self.close(Lr)
        La, Lb = self.label("L_pt"), self.label("L_ptd")
        self("s_cmp_ge_u32 s%d, 2" % S_W)
        self("s_cbranch_scc1 %s" % La)
        self("s_lshl_b32 s3, s%d, 6" % S_W)
        self("v_add_u32 v%d, s3, v%d" % (a, V_LANE))
        self("v_min_u32 v%d, 79, v%d" % (a, a))
        self("v_lshlrev_b32 v%d, 12, v%d" % (a, a))
        self("s_mul_i32 s3, s%d, %d" % (S_G, 80 * 4096))
        self("s_sub_u32 s%d, 31, s%d" % (S_T0, S_J))
        self("s_lshl_b32 s%d, s%d, 7" % (S_T0, S_T0))
        self("s_add_u32 s3, s3, s%d" % S_T0)
        self("s_add_u32 s3, s3, %d" % WS_UR)
        self("v_add_u32 v%d, s3, v%d" % (a, a))
        self("global_load_dword a0, v%d, s[%d:%d]" % (a, P_WS, P_WS + 1))
        self("s_branch %s" % Lb)
        self("%s:" % La)
        self("v_and_b32 v%d, 1, v%d" % (a, V_LANE))
        self("v_lshlrev_b32 v%d, 7, v%d" % (a, a))
        self("global_load_dword a0, v%d, s[%d:%d]" % (a, S_LFLAG, S_LFLAG + 1))
        self("%s:" % Lb)

    def window_stores(self):
        a = 160
        self("s_lshl_b32 s3, s%d, 8" % S_G)
        self("s_lshl_b32 s%d, s%d, 6" % (S_T0, S_RB))
        self("s_add_u32 s3, s3, s%d" % S_T0)
        self("s_lshl_b32 s%d, s%d, 3" % (S_T0, S_CS))
        self("s_add_u32 s3, s3, s%d" % S_T0)
        self("v_and_b32 v%d, 7, v%d" % (a, V_LANE))
        self("v_add_u32 v%d, s3, v%d" % (a, a))
        self("v_lshlrev_b32 v%d, 7, v%d" % (a, a))
        self("v_bfe_u32 v%d, v%d, 3, 2" % (a + 1, V_LANE))
        self("v_mul_u32_u24 v%d, %d, v%d" % (a + 1, STAT_SZ, a + 1))
        self("v_add_u32 v%d, v%d, v%d" % (a, a, a + 1))
        self("v_add_u32 v%d, %d, v%d" % (a, WS_STAT, a))
        self("global_load_dword a0, v%d, s[%d:%d]" % (a, P_WS, P_WS + 1))
        if not self.o.get("prewrite", 0): return
        for i in range(4): self("v_mov_b32 v%d, -1" % (164 + i))
        self("s_mul_i32 s3, s%d, %d" % (S_G, 16 * 54 * 1024))
        self("s_mul_i32 s%d, s%d, %d" % (S_T0, S_J, 27 * 1024))
        self("s_add_u32 s3, s3, s%d" % S_T0)
        self("s_add_u32 s3, s3, %d" % WS_HF1)
        self("v_lshlrev_b32 v%d, 4, v%d" % (a, V_LANE))
        self("v_add_u32 v%d, s3, v%d" % (a, a))
        for i in range(27):
            if i and i % 4 == 0: self("v_add_u32 v%d, 4096, v%d" % (a, a))
            self("global_store_dwordx4 v%d, v[164:167], s[%d:%d] offset:%d sc0 sc1" % (a, P_WS, P_WS + 1, 1024 * (i % 4)))

    def prep_compute(self):
        KR, VR, TAP = self.KR, self.VR, self.TAP
        Kp, Tp, Vp = 124, 134, 142
        A0, A1, P0, P1, t0, t1 = 146, 148, 150, 152, 154, 155
        O0, O1 = 156, 157
        lad = 158
        self("v_and_b32 v%d, 7, v0" % lad)
        self("v_mul_u32_u24 v%d, %d, v%d" % (lad, 10 * T_STRIDE, lad))
        self("v_lshrrev_b32 v%d, 3, v0" % (lad + 1))
        self("v_lshlrev_b32 v%d, 2, v%d" % (lad + 1, lad + 1))
        self("v_sub_u32 v%d, v%d, v%d" % (lad, lad, lad + 1))
        self("v_add_u32 v%d, %d, v%d" % (lad, LDS_T + 124, lad))
        L3, Ld = self.label("L_w3"), self.label("L_w3d")
        if not self.o.get("defer", 0):
            self("s_cmp_eq_u32 s%d, 3" % S_W)
            self("s_cbranch_scc1 %s" % L3)
        if self.o.get("defer", 0):
            self("s_cmp_ge_u32 s%d, 1" % S_W)
            self("s_cbranch_scc1 %s" % L3)
            self("s_waitcnt vmcnt(1)")
            self("s_branch %s" % Ld)
            self("%s:" % L3)
            self("s_waitcnt vmcnt(0)")
            self("%s:" % Ld)
            self.prep_loads_b()
            self.repack_issue()
        else:
            self("s_waitcnt vmcnt(8)")
            self("s_branch %s" % Ld)
            self("%s:" % L3)
            self("s_waitcnt vmcnt(18)")
            self("%s:" % Ld)
        self.vmq = []
        if self.o.get("mode_early"): self.mode_load()
        else:
            self("s_lshl_b32 s3, s%d, 8" % S_G)
            self.addr_pair(S_TMPQ, P_WS, WS_XCCF, 3)
            self("v_and_b32 v180, 31, v%d" % V_LANE)
            self("v_lshlrev_b32 v180, 3, v180")
        self.stamp(39)
        pk = lambda op, d, a, b: self("v_pk_%s_f32 %s, %s, %s" % (op, vr(d, 2), vr(a, 2), vr(b, 2)))
        for i in range(5):
            for r in range(5): self.unpack(Kp + 2 * r, KR + 6 * r + i)
            for t in range(4):
                s0 = TAP + 4 * i + (t >> 1); s1 = s0 + 2
                if t & 1:
                    self("v_and_b32 v%d, s%d, v%d" % (Tp + 2 * t, S_MASK, s0))
                    self("v_and_b32 v%d, s%d, v%d" % (Tp + 2 * t + 1, S_MASK, s1))
                else:
                    self("v_lshlrev_b32 v%d, 16, v%d" % (Tp + 2 * t, s0))
                    self("v_lshlrev_b32 v%d, 16, v%d" % (Tp + 2 * t + 1, s1))
            for r in range(2): self.unpack(Vp + 2 * r, VR + 6 * r + i)
            pk("mul", A0, Kp + 0, Tp + 6); pk("mul", A1, Kp + 2, Tp + 6)
            self.rnd_pair(A0, t0); self.rnd_pair(A1, t1)
            for step in range(1, 4):
                T = Tp + 2 * (3 - step)
                pk("mul", P0, Kp + 2 * step, T); pk("mul", P1, Kp + 2 * (step + 1), T)
                self.rnd_pair(P0, t0); self.rnd_pair(P1, t1)
                pk("add", A0, A0, P0); pk("add", A1, A1, P1)
                self.rnd_pair(A0, t0); self.rnd_pair(A1, t1)
            pk("mul", A0, A0, Vp + 0); pk("mul", A1, A1, Vp + 2)
            self("v_cvt_pk_bf16_f32 v%d, v%d, v%d" % (O0, A1, A0))
            self("v_cvt_pk_bf16_f32 v%d, v%d, v%d" % (O1, A1 + 1, A0 + 1))
            self.lg("ds_write_b32 v%d, v%d offset:%d" % (lad, O0, (2 * i) * T_STRIDE), "tw")
            self.lg("ds_write_b32 v%d, v%d offset:%d" % (lad, O1, (2 * i + 1) * T_STRIDE), "tw")

    def mode_load(self):
        self("s_lshl_b32 s3, s%d, 8" % S_G)
        self.addr_pair(S_TMPQ, P_WS, WS_XCCF, 3)
        self("v_and_b32 v180, 31, v%d" % V_LANE)
        self("v_lshlrev_b32 v180, 3, v180")
        L = self.if_wave(0)
        self("global_load_dwordx2 v[176:177], v180, s[%d:%d] sc1" % (S_TMPQ, S_TMPQ + 1))
        self.close(L)
    def mode_check(self, vt=176):
        L = self.if_wave(0)
        Lok = self.label("L_mok")
        if self.o.get("mode_early"):
            self("s_waitcnt vmcnt(0)")
            self("s_add_u32 s%d, s%d, 0" % (S_T0 + 5, S_TAG))
            self.pair_bad(vt, vt + 1, S_T0 + 5, 7, vt + 2)
            self("s_cbranch_scc0 %s" % Lok)
        self.poll_pairs(S_TMPQ, vt + 4, 0, 7, vt)
        self("%s:" % Lok)
        self("s_add_u32 s3, s%d, s%d" % (S_TAG, S_XCC))
        self("v_cmp_ne_u32 vcc, s3, v%d" % vt)
        self("s_nop 1")
        self("s_cmp_lg_u64 vcc, 0")
        self("s_cselect_b32 s%d, 1, 0" % S_MODE)
        if self.o.get("force_slow"): self("s_mov_b32 s%d, 1" % S_MODE)
        self("v_mov_b32 v%d, s%d" % (vt, S_MODE))
        self("v_mov_b32 v%d, %d" % (vt + 1, LDS_MODE))
        self("ds_write_b32 v%d, v%d" % (vt + 1, vt))
        self.close(L)
    def mode_fetch(self, vt=176):
        self("v_mov_b32 v%d, %d" % (vt + 1, LDS_MODE))
        self("ds_read_b32 v%d, v%d" % (vt, vt + 1))
        self("s_waitcnt lgkmcnt(0)")
        self("v_readfirstlane_b32 s%d, v%d" % (S_MODE, vt))
        self.lgq = []
        alias = self.o.get("alias", 1)
        self("s_mov_b32 s%d, %d" % (S_XO1, WS_UR if alias else WS_XF1))
        self("s_mov_b32 s%d, %d" % (S_XO3, WS_UR if alias else WS_XF3))
        self("s_mov_b32 s%d, %d" % (S_HO2, WS_HF1 if alias else WS_HF2))
        L = self.label("L_al")
        self("s_cmp_eq_u32 s%d, 0" % S_MODE)
        self("s_cbranch_scc1 %s" % L)
        self("s_mov_b32 s%d, %d" % (S_XO1, WS_XF1))
        self("s_mov_b32 s%d, %d" % (S_XO3, WS_XF3))
        self("s_mov_b32 s%d, %d" % (S_HO2, WS_HF2))
        self("%s:" % L)

    def stats_addr_items(self, va, vb):
        g = Gen()
        g("s_lshl_b32 s97, s%d, 8" % S_G)
        g("s_lshl_b32 s98, s%d, 6" % S_RB) if False else None
        g("s_lshl_b32 s100, s%d, 6" % S_RB)
        g("s_add_u32 s97, s97, s100")
        g("s_lshl_b32 s100, s%d, 4" % S_W)
        g("s_add_u32 s97, s97, s100")
        g("v_add_u32 v%d, s97, v%d" % (vb, V_L15))
        g("v_lshlrev_b32 v%d, 7, v%d" % (vb, vb))
        g("s_lshl_b32 s100, s%d, 4" % S_CS)
        g("v_add_u32 v%d, s100, v%d" % (va, vb))
        g("v_lshl_add_u32 v%d, v%d, 5, v%d" % (vb, V_G, vb))
        return [i.text.strip() for i in g.ins]
    def tile_stats(self, xf, buf, tmp, va=None):
        s, t = tmp, tmp + 4
        d = tmp + 6
        m2 = tmp + 26
        pk = lambda op, dd, a, b: self("v_pk_%s_f32 %s, %s, %s" % (op, vr(dd, 2), vr(a, 2), vr(b, 2)))
        pk("add", s, xf, xf + 2); pk("add", s + 2, xf + 4, xf + 6)
        for i in range(4, 10, 2):
            pk("add", s, s, xf + 2 * i); pk("add", s + 2, s + 2, xf + 2 * i + 2)
        pk("add", s, s, s + 2)
        self("v_add_f32 v%d, v%d, v%d" % (s, s, s + 1))
        self.xg_sum(s, t)
        self("v_mul_f32 v%d, 0x3c4ccccd, v%d" % (s, s))
        for i in range(10):
            self("v_pk_add_f32 %s, %s, %s op_sel_hi:[1,0] neg_lo:[0,1] neg_hi:[0,1]" % (vr(d + 2 * i, 2), vr(xf + 2 * i, 2), vr(s, 2)))
        pk("mul", m2, d, d); pk("mul", s + 2, d + 2, d + 2)
        for i in range(2, 10, 2):
            self("v_pk_fma_f32 %s, %s, %s, %s" % (vr(m2, 2), vr(d + 2 * i, 2), vr(d + 2 * i, 2), vr(m2, 2)))
            self("v_pk_fma_f32 %s, %s, %s, %s" % (vr(s + 2, 2), vr(d + 2 * i + 2, 2), vr(d + 2 * i + 2, 2), vr(s + 2, 2)))
        pk("add", m2, m2, s + 2)
        self("v_add_f32 v%d, v%d, v%d" % (s + 1, m2, m2 + 1))
        self("s_add_u32 s3, s%d, %d" % (S_TAG, buf))
        self("v_mov_b32 v%d, s3" % (s + 2))
        self.xg_sum(s + 1, t)
        self("s_xor_b32 s3, s3, s%d" % S_KX)
        self("v_mov_b32 v%d, s3" % (s + 3))
        if va is None:
            for l in self.stats_addr_items(t, t + 1): self(l)
            va = t
        self.addr_pair(S_TMPP, P_WS, WS_STAT + buf * STAT_SZ)
        self.exec_set("0xffff")
        self.handoff_stores(["global_store_dwordx4 v%d, %s, s[%d:%d]" % (va, vr(s, 4), S_TMPP, S_TMPP + 1)], "stat")
        self.exec_restore()
    def row_stats_issue(self, buf, tmp, vb=None):
        a = tmp + 8
        if vb is not None:
            self("v_add_u32 v%d, %d, v%d" % (a, WS_STAT + buf * STAT_SZ, vb))
        else:
            self.rowbase()
            self("s_lshl_b32 s3, s3, 7")
            self("s_add_u32 s3, s3, %d" % (WS_STAT + buf * STAT_SZ))
            self("v_lshlrev_b32 v%d, 7, v%d" % (a, V_L15))
            self("v_lshl_add_u32 v%d, v%d, 5, v%d" % (a, V_G, a))
            self("v_add_u32 v%d, s3, v%d" % (a, a))
        for k in range(2):
            self.vm("global_load_dwordx4 %s, v%d, s[%d:%d] offset:%d sc1" % (vr(tmp + 4 * k, 4), a, P_WS, P_WS + 1, 16 * k), "rs")
    def row_stats_validate(self, buf, tmp):
        Lr, Lo = self.label("L_rsr"), self.label("L_rso")
        self("s_add_u32 s%d, s%d, %d" % (S_T0 + 5, S_TAG, buf))
        self("s_mov_b32 s%d, %d" % (S_TMO, TIMEOUT))
        self("%s:" % Lr)
        self.pair_bad(tmp + 2, tmp + 3, S_T0 + 5, 0, tmp + 9)
        self("s_mov_b64 s[%d:%d], s[%d:%d]" % (S_TMPQ, S_TMPQ + 1, S_M2, S_M2 + 1))
        self.pair_bad(tmp + 6, tmp + 7, S_T0 + 5, 0, tmp + 9)
        self("s_or_b64 s[%d:%d], s[%d:%d], s[%d:%d]" % (S_M2, S_M2 + 1, S_M2, S_M2 + 1, S_TMPQ, S_TMPQ + 1))
        self("s_cbranch_scc0 %s" % Lo)
        self("s_sub_u32 s%d, s%d, 1" % (S_TMO, S_TMO))
        self("s_cmp_eq_u32 s%d, 0" % S_TMO)
        self("s_cbranch_scc1 L_abort")
        for k in range(2):
            self("global_load_dwordx4 %s, v%d, s[%d:%d] offset:%d sc1" % (vr(tmp + 4 * k, 4), tmp + 8, P_WS, P_WS + 1, 16 * k))
        self("s_waitcnt vmcnt(0)")
        self("s_branch %s" % Lr)
        self("%s:" % Lo)
        self("v_mov_b32 v%d, v%d" % (tmp + 2, tmp + 4))
        self("v_mov_b32 v%d, v%d" % (tmp + 3, tmp + 5))
    def row_stats_finish_items(self, tmp, out_m, out_rs):
        m0, q0, m1, q1 = tmp, tmp + 1, tmp + 2, tmp + 3
        s, t = tmp + 4, tmp + 5
        g = Gen()
        def xs(r):
            g("v_mov_b32 v%d, v%d" % (t, r)); g("v_permlane16_swap_b32 v%d, v%d" % (r, t)); g("v_add_f32 v%d, v%d, v%d" % (r, r, t))
            g("v_mov_b32 v%d, v%d" % (t, r)); g("v_permlane32_swap_b32 v%d, v%d" % (r, t)); g("v_add_f32 v%d, v%d, v%d" % (r, r, t))
        def r1(r):
            g("v_cvt_pk_bf16_f32 v%d, v%d, v%d" % (t, r, r)); g("v_lshlrev_b32 v%d, 16, v%d" % (r, t))
        g("v_add_f32 v%d, v%d, v%d" % (s, m0, m1)); xs(s)
        g("v_mul_f32 v%d, 0x3e000000, v%d" % (s, s))
        g("v_sub_f32 v%d, v%d, v%d" % (m0, m0, s)); g("v_sub_f32 v%d, v%d, v%d" % (m1, m1, s))
        g("v_mul_f32 v%d, v%d, v%d" % (m0, m0, m0)); g("v_fmac_f32 v%d, v%d, v%d" % (m0, m1, m1))
        g("v_add_f32 v%d, v%d, v%d" % (q0, q0, q1))
        g("v_mov_b32 v%d, 0x42a00000" % t); g("v_fmac_f32 v%d, v%d, v%d" % (q0, m0, t)); xs(q0)
        g("v_mul_f32 v%d, 0x3acccccd, v%d" % (q0, q0)); r1(q0)
        g("v_add_f32 v%d, 0x3727c5ac, v%d" % (q0, q0)); r1(q0)
        g("v_sqrt_f32 v%d, v%d" % (q0, q0)); g("s_nop 0"); r1(q0)
        g("v_rcp_f32 v%d, v%d" % (out_rs, q0)); r1(s)
        g("v_mov_b32 v%d, v%d" % (out_m, s))
        return [i.text.strip() for i in g.ins]
    def row_stats_finish(self, tmp, out_m, out_rs):
        for l in self.row_stats_finish_items(tmp, out_m, out_rs): self(l)

    def prep_store_ur(self):
        L3 = self.if_wave(3, eq=False)
        a, b = 100, 101
        self("v_lshrrev_b32 v%d, 3, v0" % a)
        self("v_and_b32 v%d, 7, v0" % b)
        self("v_lshlrev_b32 v%d, 4, v%d" % (b, b))
        self("v_mul_u32_u24 v%d, %d, v%d" % (102, T_STRIDE, a))
        self("v_add3_u32 v%d, v%d, v%d, 0" % (102, 102, b))
        self("v_add_u32 v%d, %d, v%d" % (102, LDS_T, 102))
        self("s_mul_i32 s3, s%d, %d" % (S_G, 80 * 4096))
        self("s_sub_u32 s%d, 31, s%d" % (S_T0, S_J))
        self("s_lshl_b32 s%d, s%d, 7" % (S_T0, S_T0))
        self("s_add_u32 s3, s3, s%d" % S_T0)
        self("s_add_u32 s3, s3, %d" % WS_UR)
        self("v_lshlrev_b32 v%d, 12, v%d" % (103, a))
        self("v_add3_u32 v%d, v%d, v%d, s3" % (103, 103, b))
        for r in range(3):
            self("ds_read_b128 %s, v102 offset:%d" % (vr(104 + 4 * r, 4), 24 * T_STRIDE * r))
        L = self.if_wave(0)
        self("ds_read_b128 v[116:119], v102 offset:%d" % (24 * T_STRIDE * 3))
        self.close(L)
        self("v_add_u32 v120, %d, v103" % (24 * 4096))
        self("v_add_u32 v121, %d, v103" % (48 * 4096))
        self("v_add_u32 v122, %d, v103" % (72 * 4096))
        self("s_waitcnt lgkmcnt(0)")
        p = "s[%d:%d]" % (P_WS, P_WS + 1)
        self.handoff_stores(["global_store_dwordx4 v103, v[104:107], " + p, "global_store_dwordx4 v120, v[108:111], " + p,
                             "global_store_dwordx4 v121, v[112:115], " + p], record=False)
        L = self.if_wave(0)
        self.handoff_stores(["global_store_dwordx4 v122, v[116:119], " + p], record=False)
        self.close(L)
        self("s_waitcnt vmcnt(0)")
        self.close(L3)
        self.lgq = []; self.vmq = []

    def build_kcopies(self):
        RAW = self.RAW
        SETS = [(110, 116, 122), (134, 140, 146)]
        ad, z = 128, 130
        L = self.label("L_kc")
        self("s_cmp_eq_u32 s%d, 0" % S_HASCH)
        self("s_cbranch_scc1 %s" % L)
        self("v_lshlrev_b32 v%d, 4, v%d" % (ad, V_LANE))
        self("s_add_u32 s3, s%d, 16" % S_SLOT)
        self("v_add_u32 v%d, s3, v%d" % (ad, ad))
        for r in range(4):
            R = RAW + 8 * r
            A, B, C = SETS[r & 1]
            if r >= 2: self("s_waitcnt lgkmcnt(8)")
            for i in range(6):
                self("v_alignbit_b32 v%d, v%d, v%d, 16" % (A + i, R + i + 1, R + i))
            for i in range(6):
                self("v_alignbit_b32 v%d, v%d, v%d, 16" % (B + i, R + i + 2, R + i + 1))
            for i in range(6):
                self("v_mov_b32 v%d, v%d" % (C + i, R + i + 1))
            src = {0: A, 1: C, 2: B, 3: R + 2, 4: A + 2, 5: C + 2, 6: B + 2, 7: R + 4}
            for c in range(8):
                self("ds_write_b128 v%d, %s offset:%d" % (ad, vr(src[c], 4), c * KC_STRIDE + 1024 * r))
        for i in range(4): self("v_mov_b32 v%d, 0" % (z + i))
        self("v_mul_u32_u24 v%d, %d, v%d" % (ad + 1, KC_STRIDE, V_LANE))
        self("v_add_u32 v%d, s%d, v%d" % (ad + 1, S_SLOT, ad + 1))
        self.exec_set("0xff")
        self("ds_write_b128 v%d, %s" % (ad + 1, vr(z, 4)))
        self("s_mov_b64 exec, 0x3fffffff")
        self("v_lshlrev_b32 v%d, 4, v%d" % (ad + 1, V_LANE))
        self("s_add_u32 s3, s%d, %d" % (S_SLOT, U_OFF + 4096))
        self("v_add_u32 v%d, s3, v%d" % (ad + 1, ad + 1))
        self("ds_write_b128 v%d, %s" % (ad + 1, vr(z, 4)))
        self.exec_restore()
        self("%s:" % L)
        self("s_waitcnt lgkmcnt(0)")
        self.lgq = []

    def conv(self):
        Lskip = self.label("L_conv_skip"); Ldone = self.label("L_conv_done")
        self("s_cmp_eq_u32 s%d, 0" % S_HASCH)
        self("s_cbranch_scc1 %s" % Lskip)
        self("s_lshl_b32 s3, s%d, 12" % S_CH)
        self.addr_pair(S_TMPP, P_WS, WS_UR, 3)
        a = 164
        self("v_lshlrev_b32 v%d, 4, v%d" % (a, V_LANE))
        for r in range(4):
            self("s_add_u32 m0, s%d, %d" % (S_SLOT, U_OFF + 1024 * r))
            self("v_add_u32 v%d, %d, v%d" % (a + 1, 1024 * r, a))
            self.vm("global_load_lds_dwordx4 v%d, s[%d:%d]" % (a + 1, S_TMPP, S_TMPP + 1), "u")
        self("s_and_b32 s3, s%d, 1" % S_CH)
        self("s_lshl_b32 s%d, s%d, 16" % (S_T0, S_DVAL))
        self("s_and_b32 s%d, s%d, 0xffff0000" % (S_DVAL, S_DVAL))
        self("s_cmp_eq_u32 s3, 0")
        self("s_cselect_b32 s%d, s%d, s%d" % (S_DVAL, S_T0, S_DVAL))
        vA, vB = 166, 167
        self("v_and_b32 v%d, 7, v%d" % (vA, V_L15))
        self("v_mul_u32_u24 v%d, %d, v%d" % (vA, KC_STRIDE, vA))
        self("v_lshrrev_b32 v%d, 3, v%d" % (168, V_L15))
        self("v_add_u32 v%d, v%d, v%d" % (168, 168, V_G))
        self("v_lshl_add_u32 v%d, v%d, 4, v%d" % (vA, 168, vA))
        self("v_add_u32 v%d, s%d, v%d" % (vA, S_SLOT, vA))
        self("v_lshlrev_b32 v%d, 5, v%d" % (vB, V_L15))
        self("v_lshlrev_b32 v%d, 4, v%d" % (168, V_G))
        self("v_sub_u32 v%d, v%d, v%d" % (vB, 168, vB))
        self("s_add_u32 s3, s%d, %d" % (S_SLOT, U_OFF + 4064 - 3584))
        self("v_add_u32 v%d, s3, v%d" % (vB, vB))
        ACC = 4; FA = [36, 100]; FB = [68, 132]
        def loadsA(tau, buf):
            return [("lg", "ds_read_b128 %s, v%d offset:%d" % (vr(FA[buf] + 4 * i, 4), vA, 64 * tau + 512 * i), "cA") for i in range(8)]
        def loadsB(tau, buf):
            return [("lg", "ds_read_b128 %s, v%d offset:%d" % (vr(FB[buf] + 4 * i, 4), vB, 3584 - 512 * i + 64 * tau), "cB") for i in range(8)]
        self.bg_add(loadsA(0, 0)); self.bg_flush()
        ua, sa = 168, 169
        self("v_lshlrev_b32 v%d, 5, v%d" % (sa, V_L15))
        self("v_lshl_add_u32 v%d, v%d, 3, v%d" % (sa, V_G, sa))
        self("s_add_u32 s3, s%d, %d" % (S_SLOT, U_OFF + 4088 - 3584))
        self("v_sub_u32 v%d, s3, v%d" % (ua, sa))
        self("s_lshl_b32 s3, s%d, 12" % S_CH)
        self("s_add_u32 s3, s3, %d" % WS_YT)
        self("v_and_b32 v%d, 1, v%d" % (170, V_G))
        self("v_lshlrev_b32 v%d, 9, v%d" % (170, 170))
        self("v_lshrrev_b32 v%d, 1, v%d" % (171, V_G))
        self("v_lshl_add_u32 v%d, v%d, 4, v%d" % (170, 171, 170))
        self("v_lshl_add_u32 v%d, v%d, 5, v%d" % (sa, V_L15, 170))
        self("v_add_u32 v%d, s3, v%d" % (sa, sa))
        self("v_mov_b32 v170, s%d" % S_DVAL)
        self("v_lshlrev_b32 v171, 4, v%d" % V_LANE)
        if self.o.get("prewrite", 0):
            self("s_lshl_b32 s3, s%d, 12" % S_CH)
            self("s_add_u32 s3, s3, %d" % WS_YT)
            self("v_add_u32 v172, s3, v171")
            for i in range(4): self("v_mov_b32 v%d, 0" % (4 + i))
            for i in range(4):
                self.vm("global_store_dwordx4 v172, v[4:7], s[%d:%d] offset:%d sc0 sc1" % (P_WS, P_WS + 1, 1024 * i), "ypw")
        self.vm_wait("u")
        self.stamp(7)
        self.bg_add(loadsB(0, 0)); self.bg_flush()
        for tau in range(8):
            buf = tau & 1
            self.lg_wait_all()
            if tau < 7:
                la, lb = loadsA(tau + 1, buf ^ 1), loadsB(tau + 1, buf ^ 1)
                for x, y in zip(la, lb): self.bg_add([x, y])

            pairs = sorted([(i, be - i) for be in range(8) for i in range(be + 1)])
            first = set()
            for kk, (i, m) in enumerate(pairs):
                be = i + m
                c = vr(ACC + 4 * be, 4) if (tau > 0 or be in first) else "0"
                first.add(be)
                self("v_mfma_f32_16x16x32_bf16 %s, %s, %s, %s" % (vr(ACC + 4 * be, 4), vr(FA[buf] + 4 * i, 4), vr(FB[buf] + 4 * m, 4), c))
                self.bg_step(1)
            self.bg_flush()
        self.stamp(8)
        UQ = 36
        for b in range(8):
            self.lg("ds_read_b64 %s, v%d offset:%d" % (vr(UQ + 2 * b, 2), ua, 3584 - 512 * b), "uq")
        self.lg_wait_all()
        U, t, O = 56, 60, 64
        for b in range(8):
            d0, d1 = UQ + 2 * b, UQ + 2 * b + 1
            A = ACC + 4 * b
            self("v_and_b32 v%d, s%d, v%d" % (U + 0, S_MASK, d1))
            self("v_lshlrev_b32 v%d, 16, v%d" % (U + 1, d1))
            self("v_and_b32 v%d, s%d, v%d" % (U + 2, S_MASK, d0))
            self("v_lshlrev_b32 v%d, 16, v%d" % (U + 3, d0))
            self("v_pk_mul_f32 %s, %s, v[170:171] op_sel_hi:[1,0]" % (vr(U, 2), vr(U, 2)))
            self("v_pk_mul_f32 %s, %s, v[170:171] op_sel_hi:[1,0]" % (vr(U + 2, 2), vr(U + 2, 2)))
            self.rnd_pair(U, t); self.rnd_pair(U + 2, t + 1)
            self.rnd_pair(A, t); self.rnd_pair(A + 2, t + 1)
            self("v_pk_add_f32 %s, %s, %s" % (vr(A, 2), vr(A, 2), vr(U, 2)))
            self("v_pk_add_f32 %s, %s, %s" % (vr(A + 2, 2), vr(A + 2, 2), vr(U + 2, 2)))
            o = O + 2 * b
            self("v_cvt_pk_bf16_f32 v%d, v%d, v%d" % (o, A, A + 1))
            self("v_cvt_pk_bf16_f32 v%d, v%d, v%d" % (o + 1, A + 2, A + 3))
            if b & 1:
                self("v_permlane16_swap_b32 v%d, v%d" % (o - 2, o))
                self("v_permlane16_swap_b32 v%d, v%d" % (o - 1, o + 1))
                self("global_store_dwordx4 v%d, %s, s[%d:%d] offset:%d sc0 sc1" % (sa, vr(o - 2, 4), P_WS, P_WS + 1, 512 * (b - 1)))
        self("s_branch %s" % Ldone)
        self("%s:" % Lskip)
        L2 = self.if_wave(3)
        self.repack_finish()
        self("s_waitcnt vmcnt(0)")
        self("s_lshl_b32 s%d, s%d, 8" % (S_T0, S_G))
        self("s_lshl_b32 s%d, s%d, 3" % (S_T0 + 1, S_J))
        self("s_add_u32 s%d, s%d, s%d" % (S_T0, S_T0, S_T0 + 1))
        self("s_add_u32 s%d, s%d, %d" % (S_T0, S_T0, WS_PKFLAG))
        self.flag_store(P_WS, S_T0, 1, device=True)
        self.stamp(42)
        self.window_stores()
        if self.o.get("st_pw"):
            self("s_waitcnt vmcnt(0)")
            self.stamp(43)
        npf = self.o.get("w1pf", 9)
        if npf:
            self.srd(SRD_A, P_W1, 640 * 3456)
            self("s_mul_i32 s3, s%d, 69120" % S_J)
            self("v_lshlrev_b32 v160, 7, v%d" % V_LANE)
            self("v_add_u32 v160, s3, v160")
            for i in range(npf):
                if i == 8: self.exec_set("0xfffffff")
                self("buffer_load_dword a0, v160, s[%d:%d], 0 offen" % (SRD_A, SRD_A + 3))
                if i < 8: self("v_add_u32 v160, 8192, v160")
            if npf == 9: self.exec_restore()
        if self.o.get("st_pw"):
            self("s_waitcnt vmcnt(0)")
            self.stamp(44)
        self.close(L2)
        self("%s:" % Ldone)
        self.vmq = []; self.lgq = []

    def weights_prefetch(self):
        a, d = 174, 190
        self.addr_pair(S_TMPP, P_WS, WS_PKFLAG)
        self("v_lshlrev_b32 v%d, 5, v%d" % (a, V_LANE))
        self.poll_pairs(S_TMPP, a, 1, 0, 176 + 0, npair=4) if False else None
        self.poll_pairs(S_TMPP, a, 1, 0, 4, npair=4)
        self.stamp(40)
        for base in (WS_W1P, WS_W2P):
            self.srd(SRD_A, P_WS, WP_SZ, const=base)
            self("s_mul_i32 s3, s%d, 69120" % S_J)
            self("v_lshlrev_b32 v%d, 7, v%d" % (a, V_LANE))
            self("v_add_u32 v%d, s3, v%d" % (a, a))
            for i in range(9):
                if i == 8: self.exec_set("0xfffffff")
                self("buffer_load_dword v%d, v%d, s[%d:%d], 0 offen" % (d, a, SRD_A, SRD_A + 3))
                if i < 8: self("v_add_u32 v%d, 8192, v%d" % (a, a))
            self.exec_restore()

    def w1_dma(self, its):
        self.srd(SRD_B, P_W1, 640 * 3456)
        c, row, cc, off = 160, 161, 162, 163
        self("s_lshl_b32 s3, s%d, 6" % S_W)
        self("s_add_u32 s3, s3, %d" % (192 * its[0]))
        self("v_add_u32 v%d, s3, v%d" % (c, V_LANE))
        self("s_mov_b32 s%d, %d" % (S_T0, (1 << 32) // 14 + 1))
        self("s_lshl_b32 s%d, s%d, 5" % (S_T0 + 1, S_UOFF))
        self("s_movk_i32 s%d, 3456" % (S_T0 + 2))
        self("s_lshl_b32 s%d, s%d, 10" % (S_T0 + 3, S_W))
        for it in its:
            L = None
            if it == 46:
                L = self.label("L_w1l")
                self("s_cmp_eq_u32 s%d, 2" % S_W)
                self("s_cbranch_scc1 %s" % L)
            self("v_mul_hi_u32 v%d, v%d, s%d" % (row, c, S_T0))
            self("v_mul_u32_u24 v%d, 14, v%d" % (cc, row))
            self("v_sub_u32 v%d, v%d, v%d" % (cc, c, cc))
            self("v_mul_lo_u32 v%d, v%d, s%d" % (off, row, S_T0 + 2))
            self("v_lshl_add_u32 v%d, v%d, 4, v%d" % (off, cc, off))
            self("s_add_u32 m0, s%d, %d" % (S_T0 + 3, LDS_W1 + 3072 * it))
            self("v_add_u32 v%d, 192, v%d" % (c, c))
            self("buffer_load_dwordx4 v%d, s[%d:%d], s%d offen lds" % (off, SRD_B, SRD_B + 3, S_T0 + 1))
            if L: self("%s:" % L)
    W1OFF = 174
    def w1_stage_setup(self):
        self.srd(SRD_B, P_W1, 640 * 3456)
        c, row, cc = 181, 182, 183
        self("s_lshl_b32 s3, s%d, 6" % S_W)
        self("v_add_u32 v%d, s3, v%d" % (c, V_LANE))
        self("s_mov_b32 s%d, %d" % (S_T0, (1 << 32) // 14 + 1))
        self("s_movk_i32 s%d, 3456" % (S_T0 + 2))
        for r in range(7):
            o = self.W1OFF + r
            self("v_mul_hi_u32 v%d, v%d, s%d" % (row, c, S_T0))
            self("v_mul_u32_u24 v%d, 14, v%d" % (cc, row))
            self("v_sub_u32 v%d, v%d, v%d" % (cc, c, cc))
            self("v_mul_lo_u32 v%d, v%d, s%d" % (o, row, S_T0 + 2))
            self("v_lshl_add_u32 v%d, v%d, 4, v%d" % (o, cc, o))
            self("v_add_u32 v%d, 256, v%d" % (c, c))
        self("s_lshl_b32 s62, s%d, 5" % S_UOFF)
    def w1_stage_items(self, it0, it1):
        items = []
        for it in range(it0, it1):
            q, r = divmod(it, 7)
            if r == 0 or it == it0:
                items.append("s_add_u32 s61, s62, %d" % (q * 128 * 3456))
            items.append(("vm", "buffer_load_dwordx4 %s, v%d, s[%d:%d], s61 offen" % (ar(4 * it, 4), self.W1OFF + r, SRD_B, SRD_B + 3), "w1"))
        return items
    def w1_stage_to_lds(self):
        b = 160
        self("v_lshlrev_b32 v%d, 4, v%d" % (b, V_LANE))
        self("s_lshl_b32 s3, s%d, 10" % S_W)
        self("v_add_u32 v%d, s3, v%d" % (b, b))
        self("v_add_u32 v%d, 65536, v%d" % (b + 1, b))
        self("v_add_u32 v%d, 131072, v%d" % (b + 2, b))
        for it in range(35):
            o = 4096 * it
            self.lg("ds_write_b128 v%d, %s offset:%d" % (b + o // 65536, ar(4 * it, 4), o % 65536), "w1w")
    def w2_setup(self):
        self.srd(SRD_W2, P_WS, WP_SZ, const=WS_W2P)
        self("s_mul_i32 s3, s%d, %d" % (S_W, 14 * 40))
        self("s_mul_i32 s%d, s%d, 5" % (S_T0, S_CS))
        self("s_add_u32 s3, s3, s%d" % S_T0)
        self("s_lshl_b32 s%d, s3, 10" % S_W2B)
    def w2_items(self, f0, f1, vlane16):
        it = []
        last = None
        for f in range(f0, f1):
            s, i = divmod(f, 5)
            key = (s, i == 4)
            if key != last:
                it.append("s_add_u32 s61, s%d, %d" % (S_W2B, s * 40 * 1024 + (4096 if i == 4 else 0)))
                last = key
            it.append(("vm", "buffer_load_dwordx4 %s, v%d, s[%d:%d], s61 offen offset:%d" % (w2reg(f), vlane16, SRD_W2, SRD_W2 + 3, 0 if i == 4 else 1024 * i), "w2"))
        return it

    def post_conv(self):
        QN = V_CS
        self("v_lshlrev_b32 v160, 4, v%d" % V_L15)
        self("s_lshl_b32 s3, s%d, 4" % S_W)
        self("v_add_u32 v160, s3, v%d" % V_L15)
        self("v_mul_u32_u24 v160, 160, v160")
        self("v_lshl_add_u32 v160, v%d, 3, v160" % V_G)
        self("v_add_u32 v160, %d, v160" % LDS_Q)
        for u in range(5):
            self.lg("ds_read_b64 %s, v160 offset:%d" % (vr(V_X + 2 * u, 2), 32 * u), "q")
        self.lg_wait_all()
        self.unpack_tile(124, V_X)
        self.tile_stats(124, 0, 144)
        self("s_waitcnt lgkmcnt(0)")
        L = self.if_wave(3, eq=False)
        self("s_waitcnt vmcnt(0)")
        self.close(L)
        self.vmq = []; self.lgq = []
        self("s_barrier")
        self.stamp(10)
        L = self.if_wave(0)
        self("s_lshl_b32 s%d, s%d, 3" % (S_T0, S_J))
        self.flag_store(S_LFLAG, S_T0, 2, device=False)
        self.close(L)
        self.row_stats_issue(0, 60)
        c1, c2 = self.o.get("w1c1", 47), 47
        L3, Ld = self.label("L_pc3"), self.label("L_pcd")
        self("s_cmp_eq_u32 s%d, 3" % S_W)
        self("s_cbranch_scc1 %s" % L3)
        L = self.if_wave(1)
        self.addr_pair(S_TMPP, P_WS, WS_PKFLAG)
        self("v_lshlrev_b32 v159, 5, v%d" % V_LANE)
        self.poll_pairs(S_TMPP, 159, 1, 0, 144, npair=4)
        self.stamp(40)
        self.close(L)
        self.w1_dma(list(range(0, c1)))
        self("s_waitcnt vmcnt(%d)" % c1)
        self("s_branch %s" % Ld)
        self("%s:" % L3)
        self("v_and_b32 v180, 31, v%d" % V_LANE)
        self("v_lshlrev_b32 v180, 3, v180")
        self.poll_pairs(S_LFLAG, 180, 2, 5, 176)
        Lm = self.label("L_ylead")
        self("s_cmp_lg_u32 s%d, 0" % S_J)
        self("s_cbranch_scc1 %s" % Lm)
        self("s_lshl_b32 s%d, s%d, 8" % (S_T0, S_G))
        self("s_add_u32 s%d, s%d, %d" % (S_T0, S_T0, WS_YFLAG))
        self.flag_store(P_WS, S_T0, 1, device=True)
        self("%s:" % Lm)
        self.stamp(44)
        self("%s:" % Ld)
        self.vmq = []
        self.stamp(11)
        self.row_stats_validate(0, 60)
        self.row_stats_finish(60, 24, 26)
        XF, d, t = 4, 28, 30
        self.unpack_tile(XF, V_X)
        for i in range(10):
            self("v_pk_add_f32 %s, %s, v[24:25] op_sel_hi:[1,0] neg_lo:[0,1] neg_hi:[0,1]" % (vr(d, 2), vr(XF + 2 * i, 2)))
            self.rnd_pair(d, t)
            self("v_pk_mul_f32 %s, %s, v[26:27] op_sel_hi:[1,0]" % (vr(d, 2), vr(d, 2)))
            self("v_cvt_pk_bf16_f32 v%d, v%d, v%d" % (QN + i, d, d + 1))
        Ly = self.if_wave(3)
        self("s_lshl_b32 s3, s%d, 8" % S_CS)
        self.addr_pair(S_TMPP, P_WS, WS_YFLAG, 3)
        self("v_mov_b32 v180, 0")
        self.poll_pairs(S_TMPP, 180, 1, 0, 176, sleep=self.o.get("ysleep", 0))
        self.stamp(41)
        self("s_mul_i32 s3, s%d, %d" % (S_CS, 80 * 4096))
        self("s_lshl_b32 s%d, s%d, 9" % (S_T0, S_G))
        self("s_add_u32 s3, s3, s%d" % S_T0)
        self("s_lshl_b32 s%d, s%d, 7" % (S_T0, S_RB))
        self("s_add_u32 s3, s3, s%d" % S_T0)
        self.addr_pair(S_TMPP, P_WS, WS_YT, 3)
        a, b = 164, 165
        self("v_lshrrev_b32 v%d, 3, v%d" % (a, V_LANE))
        self("v_lshlrev_b32 v%d, 12, v%d" % (a, a))
        self("v_and_b32 v%d, 7, v%d" % (b, V_LANE))
        self("v_lshl_add_u32 v%d, v%d, 4, v%d" % (a, b, a))
        for k in range(10):
            self("s_mov_b32 m0, %d" % (LDS_SCR + 1024 * k))
            self("v_add_u32 v%d, %d, v%d" % (b, 8 * 4096 * k, a))
            self("global_load_lds_dwordx4 v%d, s[%d:%d]" % (b, S_TMPP, S_TMPP + 1))
        self("s_waitcnt vmcnt(0)")
        self.close(Ly)
        self("s_barrier")
        self.stamp(12)
        if c2 > c1:
            L = self.if_wave(3, eq=False)
            self.w1_dma(list(range(c1, c2)))
            self.close(L)
        nr = self.o.get("w2r", 14)
        if nr:
            self("v_lshlrev_b32 v163, 4, v%d" % V_LANE)
            q = list(self.vmq)
            self.bg_add(self.w2_items(0, nr, 163)); self.bg_flush()
            self.vmq = q

        a, b = 164, 165
        self("v_bfe_u32 v%d, v%d, 2, 2" % (a, V_LANE))
        self("v_lshl_add_u32 v%d, v%d, 2, v%d" % (a, V_G, a))
        self("v_lshlrev_b32 v%d, 7, v%d" % (a, a))
        self("v_and_b32 v%d, 3, v%d" % (b, V_LANE))
        self("v_lshl_add_u32 v%d, v%d, 3, v%d" % (a, b, a))
        self("s_lshl_b32 s3, s%d, 5" % S_W)
        self("s_add_u32 s3, s3, %d" % LDS_SCR)
        self("v_add_u32 v%d, s3, v%d" % (a, a))
        for u in range(5):
            self.lg("ds_read_b64_tr_b16 %s, v%d offset:%d" % (vr(V_Y + 2 * u, 2), a, 16 * 128 * u), "ytr")
        self.xf_store_setup(S_XO1)
        yf, qf = 32, 34
        self.lg_wait_all()
        for i in range(10):
            self.unpack(yf, V_Y + i)
            self.unpack(qf, QN + i)
            self("v_pk_mul_f32 %s, %s, %s" % (vr(d, 2), vr(yf, 2), vr(qf, 2)))
            self.rnd_pair(d, t)
            self("v_pk_add_f32 %s, %s, %s" % (vr(XF + 2 * i, 2), vr(XF + 2 * i, 2), vr(d, 2)))
            self("v_cvt_pk_bf16_f32 v%d, v%d, v%d" % (V_X + i, XF + 2 * i, XF + 2 * i + 1))
            self.unpack(XF + 2 * i, V_X + i)
        self.xf_store()

    XA0 = 165
    def xf_addr_items(self, ws_off, base):
        g = Gen()
        a = base + 5
        g("s_lshl_b32 s97, s%d, 4" % S_G)
        g("s_lshl_b32 s100, s%d, 2" % S_RB)
        g("s_add_u32 s97, s97, s100")
        g("s_add_u32 s97, s97, s%d" % S_W)
        g("s_mul_i32 s97, s97, %d" % (20 * 1024))
        g("s_add_u32 s97, s97, s%d" % ws_off)
        g("v_lshlrev_b32 v%d, 4, v%d" % (a, V_LANE))
        g("v_add_u32 v%d, s97, v%d" % (a, a))
        g("s_mul_i32 s97, s%d, 5" % S_CS)
        for u in range(5):
            g("s_add_u32 s100, s97, %d" % u)
            g("s_lshr_b32 s101, s100, 1")
            g("s_lshl_b32 s101, s101, 10")
            g("s_and_b32 s100, s100, 1")
            g("s_lshl_b32 s100, s100, 3")
            g("s_add_u32 s100, s100, s101")
            g("v_add_u32 v%d, s100, v%d" % (base + u, a))
        return [i.text.strip() for i in g.ins]
    def xf_store_setup(self, ws_off):
        self.XA0 = 165
        for l in self.xf_addr_items(ws_off, 165): self(l)
    def xf_store(self):
        Lo, Ld = self.label("L_xo"), self.label("L_xd")
        p = "s[%d:%d]" % (P_WS, P_WS + 1)
        b = self.XA0
        x4 = lambda u: "global_store_dwordx4 v%d, %s, %s" % (b + u, vr(V_X + 2 * u, 4), p)
        x2 = lambda u: "global_store_dwordx2 v%d, %s, %s" % (b + u, vr(V_X + 2 * u, 2), p)
        self("s_bitcmp1_b32 s%d, 0" % S_CS)
        self("s_cbranch_scc1 %s" % Lo)
        self.handoff_stores([x4(0), x4(2), x2(4)], record=False)
        self("s_branch %s" % Ld)
        self("%s:" % Lo)
        self.handoff_stores([x2(0), x4(1), x4(3)], record=False)
        self("%s:" % Ld)
        self.vmq.extend(["xf"] * 3)

    def mixer_update(self, m, rs, xf, tmp):
        yf, d = tmp, tmp + 2
        for i in range(10):
            X = xf + 2 * i
            self.unpack(yf, V_Y + i)
            self("v_pk_add_f32 %s, %s, %s op_sel_hi:[1,0] neg_lo:[0,1] neg_hi:[0,1]" % (vr(d, 2), vr(X, 2), vr(m, 2)))
            self("v_pk_mul_f32 %s, %s, %s op_sel_hi:[1,0]" % (vr(d, 2), vr(d, 2), vr(rs, 2)))
            self("v_pk_fma_f32 %s, %s, %s, %s" % (vr(X, 2), vr(d, 2), vr(yf, 2), vr(X, 2)))
            self("v_cvt_pk_bf16_f32 v%d, v%d, v%d" % (V_X + i, X, X + 1))
            self.unpack(X, V_X + i)

    def w1_lane_addr(self, a, tmp):
        self("v_bfe_u32 v%d, v%d, 2, 2" % (a, V_LANE))
        self("v_lshl_add_u32 v%d, v%d, 2, v%d" % (a, V_G, a))
        self("v_mul_u32_u24 v%d, %d, v%d" % (a, W1_STRIDE, a))
        self("v_and_b32 v%d, 3, v%d" % (tmp, V_LANE))
        self("v_lshl_add_u32 v%d, v%d, 3, v%d" % (a, tmp, a))
    def colsum(self):
        a, ones, acc = 164, 100, 104
        FR = [112, 120, 128, 136]
        for i in range(4): self("v_mov_b32 v%d, 0x3f803f80" % (ones + i))
        self.w1_lane_addr(a, a + 1)
        self("s_lshl_b32 s3, s%d, 6" % S_W)
        self("v_add_u32 v%d, s3, v%d" % (a, a))
        self("v_add_u32 v%d, %d, v%d" % (a + 1, 8 * 32 * W1_STRIDE, a))
        self("v_add_u32 v%d, %d, v%d" % (a + 2, 16 * 32 * W1_STRIDE, a))
        def loads(t):
            for i in range(2):
                for h in range(2):
                    self.lg("ds_read_b64_tr_b16 %s, v%d offset:%d" % (vr(FR[t % 4] + 4 * i + 2 * h, 2), a + (t // 8), ((t % 8) * 32 + h * 16) * W1_STRIDE + 32 * i), "cs%d" % t)
        for t in range(3): loads(t)
        for t in range(20):
            if t + 3 < 20: loads(t + 3)
            self.lg_wait("cs%d" % t)
            for i in range(2):
                c = vr(acc + 4 * i, 4) if t else "0"
                self("v_mfma_f32_16x16x32_bf16 %s, %s, %s, %s" % (vr(acc + 4 * i, 4), vr(FR[t % 4] + 4 * i, 4), vr(ones, 4), c))
        b = 144
        self("v_lshlrev_b32 v%d, 4, v%d" % (b, V_G))
        self("s_lshl_b32 s3, s%d, 7" % S_W)
        self("s_add_u32 s3, s3, %d" % LDS_CSX)
        self("v_add_u32 v%d, s3, v%d" % (b, b))
        self("v_cmp_eq_u32 vcc, 0, v%d" % V_L15)
        self("s_and_saveexec_b64 s[%d:%d], vcc" % (S_SAVE, S_SAVE + 1))
        self("ds_write_b128 v%d, %s" % (b, vr(acc, 4)))
        self("ds_write_b128 v%d, %s offset:64" % (b, vr(acc + 4, 4)))
        self.exec_restore()
        self.lg_wait_all()
    def colsum_fetch(self):
        b = 144
        self("v_lshlrev_b32 v%d, 4, v%d" % (b, V_G))
        self("v_add_u32 v%d, %d, v%d" % (b, LDS_CSX, b))
        for u in range(7):
            self.lg("ds_read_b128 %s, v%d offset:%d" % (vr(V_CS + 4 * u, 4), b, 64 * u), "cs")

    G1_ACC = 4; G1_AF = [60, 88]; G1_XR = 116; G1_DEPTH = 6; G1_LA = 172; G1_XA = 183; G1_ST = 174; G1_L16 = 182
    def g1_aloads(self, t, buf):
        l = []
        for i in range(7):
            for h in range(2):
                l.append(("lg", "ds_read_b64_tr_b16 %s, v%d offset:%d" % (vr(self.G1_AF[buf] + 4 * i + 2 * h, 2), self.G1_LA, h * 16 * W1_STRIDE + 32 * i), "a%d" % t))
        return l
    def g1_setup(self, xf_off, hf_off):
        self("s_lshl_b32 s3, s%d, 4" % S_G)
        self("s_lshl_b32 s%d, s%d, 3" % (S_T0, S_RT))
        self("s_add_u32 s3, s3, s%d" % S_T0)
        self("s_lshl_b32 s%d, s%d, 1" % (S_T0, S_W))
        self("s_add_u32 s%d, s3, s%d" % (S_RU0, S_T0))
        self("s_mul_i32 s3, s%d, %d" % (S_RU0, 20 * 1024))
        self("s_add_u32 s3, s3, s%d" % xf_off)
        self.addr_pair(S_XFB, P_WS, 0, 3)
        self.addr_pair(S_TMPQ, S_XFB, 20 * 1024)
        self("v_lshlrev_b32 v%d, 4, v%d" % (self.G1_XA, V_LANE))
        self("v_lshlrev_b32 v%d, 4, v%d" % (self.G1_L16, V_LANE))
        self("s_mul_i32 s%d, s%d, %d" % (S_T0 + 3, S_RU0, 54 * 1024))
        self("s_add_u32 s%d, s%d, %s" % (S_T0 + 3, S_T0 + 3, hf_off))
        for i in range(7):
            self("s_add_u32 s%d, s%d, %d" % (S_T0 + 1, S_UOFF, i))
            self("s_lshr_b32 s%d, s%d, 1" % (S_T0 + 2, S_T0 + 1))
            self("s_lshl_b32 s%d, s%d, 10" % (S_T0 + 2, S_T0 + 2))
            self("s_and_b32 s%d, s%d, 1" % (S_T0 + 1, S_T0 + 1))
            self("s_lshl_b32 s%d, s%d, 3" % (S_T0 + 1, S_T0 + 1))
            self("s_add_u32 s%d, s%d, s%d" % (S_T0 + 1, S_T0 + 1, S_T0 + 2))
            self("s_add_u32 s%d, s%d, s%d" % (S_T0 + 1, S_T0 + 1, S_T0 + 3))
            self("s_add_u32 s%d, s%d, s%d" % (72 + 2 * i, P_WS, S_T0 + 1))
            self("s_addc_u32 s%d, s%d, 0" % (73 + 2 * i, P_WS + 1))
        self.w1_lane_addr(self.G1_LA, 59)
        for x in self.g1_aloads(0, 0): self.lg(x[1], x[2])
        self("v_add_u32 v%d, 7168, v%d" % (self.G1_LA, self.G1_LA))
    def g1_main(self, statbuf, sb=None, w2range=None, ldf='', pretouch=False, hwt=False, main_only=False, neg=False, with_cs=False):
        ACC, AF, XR, DEPTH, la, xa, ST = self.G1_ACC, self.G1_AF, self.G1_XR, self.G1_DEPTH, self.G1_LA, self.G1_XA, self.G1_ST
        if with_cs:
            DEPTH = 5
            ONES = 156
            for i in range(4): self("v_mov_b32 v%d, 0x3f803f80" % (ONES + i))
        def xload(t):
            for rho in range(2):
                base = S_XFB if rho == 0 else S_TMPQ
                d = XR + ((t % DEPTH) * 2 + rho) * 4
                self.vm("global_load_dwordx4 %s, v%d, s[%d:%d] offset:%d %s" % (vr(d, 4), xa, base, base + 1, (t % 4) * 1024, ldf), "x%d" % t)
            if t % 4 == 3: self("v_add_u32 v%d, 4096, v%d" % (xa, xa))
        for t in range(3): xload(t)
        sa = 169
        self("s_lshl_b32 s3, s%d, 11" % S_RU0)
        self("s_add_u32 s3, s3, %d" % (WS_STAT + statbuf * STAT_SZ))
        self("v_lshlrev_b32 v%d, 7, v%d" % (sa, V_L15))
        self("v_lshl_add_u32 v%d, v%d, 5, v%d" % (sa, V_G, sa))
        self("v_add_u32 v%d, s3, v%d" % (sa, sa))
        self("s_add_u32 s101, s%d, %d" % (S_TAG, statbuf))
        retries = []
        def st_load(rho):
            return [("vm", "global_load_dwordx4 %s, v%d, s[%d:%d] offset:%d sc1" % (vr(ST + 4 * k, 4), sa, P_WS, P_WS + 1, 2048 * rho + 16 * k), "st%d" % rho) for k in range(2)]
        def st_check(rho):
            Lr, Lb = self.label("L_str"), self.label("L_stb")
            def emit():
                self.vm_wait("st%d" % rho)
                self("v_xor_b32 v170, s101, v%d" % (ST + 2))
                self("v_xor_b32 v171, s101, v%d" % (ST + 6))
                self("v_or_b32 v170, v170, v171")
                self("v_xor_b32 v171, v%d, v%d" % (ST + 2, ST + 3))
                self("v_xor_b32 v171, s%d, v171" % S_KX)
                self("v_or_b32 v170, v170, v171")
                self("v_xor_b32 v171, v%d, v%d" % (ST + 6, ST + 7))
                self("v_xor_b32 v171, s%d, v171" % S_KX)
                self("v_or_b32 v170, v170, v171")
                self("v_cmp_ne_u32 vcc, 0, v170")
                self("s_cbranch_vccnz %s ; nohaz" % Lr)
                self("%s: ; nohaz" % Lb)
            retries.append((Lr, Lb, rho))
            return [emit, "v_mov_b32 v%d, v%d" % (ST + 2, ST + 4), "v_mov_b32 v%d, v%d" % (ST + 3, ST + 5)]
        MR = [164, 166]
        def st_finish(rho):
            it = self.row_stats_finish_items(ST, MR[rho], MR[rho] + 1)
            if neg: it.append("v_xor_b32 v%d, 0x80000000, v%d" % (MR[rho] + 1, MR[rho] + 1))
            return it
        f0, f1 = st_finish(0), st_finish(1)
        n4 = -(-len(f0) // 4)
        stq = {2: st_load(0), 5: st_check(0), 10: st_load(1), 13: st_check(1)}
        for j in range(4):
            stq[6 + j] = f0[j * n4:(j + 1) * n4]
            stq[14 + j] = f1[j * n4:(j + 1) * n4]
        self._g1_retries = (retries, sa)
        for t in range(3, DEPTH): xload(t)
        if pretouch:
            self("s_mul_i32 s3, s%d, %d" % (S_RU0, 54 * 1024))
            self("s_lshr_b32 s%d, s%d, 1" % (S_T0, S_UOFF))
            self("s_lshl_b32 s%d, s%d, 10" % (S_T0, S_T0))
            self("s_add_u32 s3, s3, s%d" % S_T0)
            self("s_and_b32 s%d, s%d, 1" % (S_T0, S_UOFF))
            self("s_lshl_b32 s%d, s%d, 3" % (S_T0, S_T0))
            self("s_add_u32 s3, s3, s%d" % S_T0)
            self("s_add_u32 s3, s3, %d" % WS_HF1)
            self("v_lshrrev_b32 v57, 5, v%d" % V_LANE)
            self("v_mul_u32_u24 v57, %d, v57" % (54 * 1024))
            self("v_and_b32 v58, 31, v%d" % V_LANE)
            self("v_lshl_add_u32 v58, v58, 7, v57")
            self("v_add_u32 v58, s3, v58")
            Lp = self.label("L_pth")
            self("s_cmp_lg_u32 s%d, 0" % S_MODE)
            self("s_cbranch_scc1 %s" % Lp)
            self("global_store_dword v58, v58, s[%d:%d]" % (P_WS, P_WS + 1))
            self("%s:" % Lp)
        w2items = self.w2_items(w2range[0], w2range[1], self.G1_L16) if w2range else []
        nper = -(-len(w2items) // 16)
        for t in range(20):
            if t == 1 and sb: self.stamp(sb)
            buf = t & 1
            nxt = self.g1_aloads(t + 1, buf ^ 1) if t < 19 else []
            self.lg_wait_all()
            self.vm_wait("x%d" % t)
            self.bg_add(nxt)
            self.bg_add(stq.get(t, []))
            if t >= 1:
                self.bg_add(w2items[:nper]); w2items = w2items[nper:]
            nbg = len(self.bgq); done = 0
            k = 0
            for i in range(7):
                for rho in range(2):
                    acc = ACC + (rho * 7 + i) * 4
                    c = vr(acc, 4) if t else "0"
                    self("v_mfma_f32_16x16x32_bf16 %s, %s, %s, %s" % (vr(acc, 4), vr(AF[buf] + 4 * i, 4), vr(XR + ((t % DEPTH) * 2 + rho) * 4, 4), c))
                    k += 1
                    want = min(nbg, -(-nbg * k // (18 if with_cs else 13)))
                    self.bg_step(want - done); done = want
                if with_cs:
                    cs = V_CS + 4 * i
                    self("v_mfma_f32_16x16x32_bf16 %s, %s, %s, %s" % (vr(cs, 4), vr(AF[buf] + 4 * i, 4), vr(ONES, 4), vr(cs, 4) if t else "0"))
                    k += 1
                    want = min(nbg, -(-nbg * k // 18))
                    self.bg_step(want - done); done = want
            self.bg_flush()
            if t < 19: self("v_add_u32 v%d, 7168, v%d" % (la, la))
            if t + DEPTH < 20: xload(t + DEPTH)
        if sb: self.stamp(sb + 1)
        if main_only: return
        self.g1_epilogue(hwt, neg)
    def g1_epilogue(self, hwt=False, neg=False):
        ACC, ST = self.G1_ACC, self.G1_ST
        self("s_mov_b32 s%d, %d" % (S_NEG, 1 if neg else 0))
        self("s_call_b64 s[%d:%d], L_g1epi" % (S_RET, S_RET + 1))
        self.vmq.extend(["h"] * 8)
        retries, sa = self._g1_retries
        Lx = self.label("L_stx")
        self("s_branch %s" % Lx)
        for (Lr, Lb, rho) in retries:
            Li = self.label("L_sti")
            self("%s:" % Lr)
            self("s_mov_b32 s%d, %d" % (S_TMO, TIMEOUT))
            self("%s:" % Li)
            for k in range(2):
                self("global_load_dwordx4 %s, v%d, s[%d:%d] offset:%d sc1" % (vr(ST + 4 * k, 4), sa, P_WS, P_WS + 1, 2048 * rho + 16 * k))
            self("s_sub_u32 s%d, s%d, 1" % (S_TMO, S_TMO))
            self("s_cmp_eq_u32 s%d, 0" % S_TMO)
            self("s_cbranch_scc1 L_abort")
            self("s_waitcnt vmcnt(0)")
            self("v_xor_b32 v170, s101, v%d" % (ST + 2))
            self("v_xor_b32 v171, s101, v%d" % (ST + 6))
            self("v_or_b32 v170, v170, v171")
            self("v_xor_b32 v171, v%d, v%d" % (ST + 2, ST + 3))
            self("v_xor_b32 v171, s%d, v171" % S_KX)
            self("v_or_b32 v170, v170, v171")
            self("v_xor_b32 v171, v%d, v%d" % (ST + 6, ST + 7))
            self("v_xor_b32 v171, s%d, v171" % S_KX)
            self("v_or_b32 v170, v170, v171")
            self("v_cmp_ne_u32 vcc, 0, v170")
            self("s_cbranch_vccnz %s" % Li)
            self("s_branch %s" % Lb)
        self("%s:" % Lx)

    def g1_epilogue_routine(self):
        ACC, ST = self.G1_ACC, self.G1_ST
        MR = [164, 166]
        self("L_g1epi:")
        ha = 80
        self("v_add_u32 v%d, %d, v%d" % (ha, 54 * 1024, self.G1_L16))
        HA = [self.G1_L16, ha]
        O = 100
        def st(rho, i, n):
            return "global_store_dwordx%d v%d, %s, s[%d:%d]" % (n, HA[rho], vr(O + (rho * 7 + i) * 2, n), 72 + 2 * i, 73 + 2 * i)
        def compute(rho, i, neg):
            acc = ACC + (rho * 7 + i) * 4
            for p in range(2):
                A = acc + 2 * p; C = V_CS + 4 * i + 2 * p
                self("v_pk_fma_f32 %s, %s, %s, %s op_sel_hi:[1,0,1] neg_lo:[0,1,0] neg_hi:[0,1,0]" % (vr(A, 2), vr(C, 2), vr(MR[rho], 2), vr(A, 2)))
                self("v_pk_mul_f32 %s, %s, %s op_sel:[0,1] op_sel_hi:[1,1]" % (vr(A, 2), vr(A, 2), vr(MR[rho], 2)))
                o = O + (rho * 7 + i) * 2 + p
                self("v_cvt_pk_bf16_f32 v%d, v%d, v%d" % (o, A, A + 1))
                if neg: self("v_pk_max_u16 v%d, v%d, s%d" % (o, o, S_T0))
                else: self("v_pk_max_i16 v%d, v%d, 0" % (o, o))
        Ld = self.label("L_hd")
        def path(odd, flag, neg):
            for rho in range(2):
                seq = [(0, 2), (1, 4), (3, 4), (5, 4)] if odd else [(0, 4), (2, 4), (4, 4), (6, 2)]
                for (i, n) in seq:
                    for ii in range(i, i + n // 2): compute(rho, ii, neg)
                    self(st(rho, i, n) + flag)
        sv = self.o.get("selfval2", 0)
        nvar = 8 if sv else 4
        Ls = [self.label("L_he") for _ in range(nvar)]
        self("s_and_b32 s3, s%d, 1" % S_UOFF)
        self("s_lshl_b32 s%d, s%d, 1" % (S_T0 + 1, S_MODE))
        self("s_or_b32 s3, s3, s%d" % (S_T0 + 1))
        if sv:
            self("s_lshl_b32 s%d, s%d, 2" % (S_T0 + 1, S_NEG))
            self("s_or_b32 s3, s3, s%d" % (S_T0 + 1))
            self("s_mov_b32 s%d, 0x80008000" % S_T0)
        for c in range(1, nvar):
            self("s_cmp_eq_u32 s3, %d" % c)
            self("s_cbranch_scc1 %s" % Ls[c])
        for c in range(nvar):
            if c: self("%s:" % Ls[c])
            path(c & 1, " sc0 sc1" if (c >> 1) & 1 else "", bool(c >> 2))
            if c < nvar - 1: self("s_branch %s" % Ld)
        self("%s:" % Ld)
        self("s_setpc_b64 s[%d:%d]" % (S_RET, S_RET + 1))

    G2_ACC = [4, 24]; G2_HR = 44; G2_HA = 100; G2_RA = 104; G2_TMP = 108; G2_SUM = 128
    def g2_setup(self, hf_off):
        ha, ra = self.G2_HA, self.G2_RA
        for s in range(14):
            self("s_mul_i32 s3, s%d, 14" % S_W)
            self("s_add_u32 s3, s3, %d" % s)
            self("s_min_u32 s3, s3, 53")
            self("s_lshl_b32 s%d, s3, 10" % (S_HSTEP + s))
        self.srd(SRD_A, P_WS, 0x10000000 - self.o.get('wsbase', 0))
        for k in range(4):
            self("s_add_u32 s3, s%d, %d" % (S_W, 1 + k))
            self("s_and_b32 s3, s3, 3")
            self("s_mul_i32 s%d, s3, 5120" % (S_T0 + 1))
            self("s_lshl_b32 s%d, s%d, 4" % (S_T0, S_G))
            self("s_add_u32 s3, s3, s%d" % S_T0)
            self("s_lshl_b32 s%d, s%d, 2" % (S_T0, S_RB))
            self("s_add_u32 s3, s3, s%d" % S_T0)
            self("s_mul_i32 s3, s3, %d" % (54 * 1024))
            self("s_add_u32 s3, s3, %s" % hf_off)
            self("v_lshlrev_b32 v%d, 4, v%d" % (ha + k, V_LANE))
            self("v_add_u32 v%d, s3, v%d" % (ha + k, ha + k))
            self("v_lshlrev_b32 v%d, 4, v%d" % (ra + k, V_LANE))
            self("s_add_u32 s3, s%d, %d" % (S_T0 + 1, LDS_SCR))
            self("v_add_u32 v%d, s3, v%d" % (ra + k, ra + k))
    def g2_main(self, sb=None, ldf='', val=None, extra=()):
        ACC, HR, ha, ra, TMP, SUM = self.G2_ACC, self.G2_HR, self.G2_HA, self.G2_RA, self.G2_TMP, self.G2_SUM
        def hload(p):
            k, s = divmod(p, 14)
            if self.o.get("g2_noload") and p >= 14: return
            self.vm("buffer_load_dwordx4 %s, v%d, s[%d:%d], s%d offen %s" % (vr(HR + 4 * s, 4), ha + k, SRD_A, SRD_A + 3, S_HSTEP + s, ldf), "h%d" % p)
        CK = 148
        retry_blocks = []
        def bad_ops(regs):
            op = "v_or" if val == 1 else "v_and"
            l = []
            acc_ = regs[0]; rest = regs[1:]
            first = True
            while rest:
                if len(rest) >= 2 and val == 1:
                    l.append("v_or3_b32 v%d, v%d, v%d, v%d" % (CK, acc_, rest[0], rest[1])); rest = rest[2:]
                else:
                    l.append("%s_b32 v%d, v%d, v%d" % (op, CK, acc_, rest[0])); rest = rest[1:]
                acc_ = CK
            l.append(("v_cmp_gt_i32 vcc, 0, v%d" if val == 1 else "v_cmp_le_i32 vcc, 0, v%d") % CK)
            return l
        for p in range(14): hload(p)
        if val:
            Lsp, Lok = self.label("L_hsp"), self.label("L_hok")
            self.vm_wait("h0")
            for l in bad_ops([HR, HR + 2]): self(l)
            self("s_cbranch_vccz %s" % Lok)
            self("s_mov_b32 s%d, %d" % (S_TMO, TIMEOUT))
            self("%s:" % Lsp)
            self("buffer_load_dwordx4 %s, v%d, s[%d:%d], s%d offen %s" % (vr(HR, 4), ha, SRD_A, SRD_A + 3, S_HSTEP, ldf))
            self("s_sub_u32 s%d, s%d, 1" % (S_TMO, S_TMO))
            self("s_cmp_eq_u32 s%d, 0" % S_TMO)
            self("s_cbranch_scc1 L_abort")
            self("s_waitcnt vmcnt(0)")
            for l in bad_ops([HR, HR + 2]): self(l)
            self("s_cbranch_vccnz %s" % Lsp)
            self("%s:" % Lok)
            self.stamp(45 if val == 1 else 46)
        if sb: self.stamp(sb)
        late = []
        self.bg_add(list(extra))
        for k in range(4):
            acc = ACC[k & 1]; prev = ACC[(k & 1) ^ 1]
            for s in range(14):
                p = 14 * k + s
                if k > 0 and not self.o.get("g2_nobar"):
                    sA, sB = self.o.get("g2_sA", 7), self.o.get("g2_sB", 11)
                    w0 = self.o.get("g2_w0", 1)
                    X = self.o.get("g2_x", "wbra")
                    if w0 <= s < w0 + 5 and "w" in X:
                        i = s - w0
                        late.append(("lg", "ds_write_b128 v%d, %s offset:%d" % (ra + k - 1, vr(prev + 4 * i, 4), 1024 * i), "rw"))
                    if s == sA:
                        self.bg_flush()
                        if "b" in X: self.lg_wait_all(); self("s_barrier")
                        rd = [("lg", "ds_read_b128 %s, v%d offset:%d" % (vr((SUM if k == 1 else TMP) + 4 * i, 4), ra + 3, 1024 * i), "rr") for i in range(5)]
                        if "r" in X: self.bg_add(rd)
                    if s == sB:
                        self.bg_flush()
                        if "b" in X: self.lg_wait_all(); self("s_barrier")
                        if "a" not in X: pass
                        elif k > 1:
                            self.bg_add(["v_add_f32 v%d, v%d, v%d" % (SUM + j, SUM + j, TMP + j) for j in range(20)])
                chk = []
                if val:
                    pn = p + 1
                    if pn < 56:
                        self.vm_wait("h%d" % pn)
                        rn = HR + 4 * (pn % 14)
                        chk = bad_ops([rn, rn + 2])
                else:
                    self.vm_wait("h%d" % p)
                for i in range(5):
                    c = vr(acc + 4 * i, 4) if s > 0 else "0"
                    self("v_mfma_f32_16x16x32_bf16 %s, %s, %s, %s" % (vr(acc + 4 * i, 4), w2reg(s * 5 + i), vr(HR + 4 * s, 4), c))
                    if chk and i < 2:
                        self(chk[i])
                    elif i == 2 and late:
                        x = late.pop(0); self.lg(x[1], x[2])
                    else:
                        self.bg_step(2 if k >= 2 and s >= 11 else 1)
                if chk:
                    Lr, Lb = self.label("L_hr"), self.label("L_hb")
                    self("s_cbranch_vccnz %s ; nohaz" % Lr)
                    self("%s: ; nohaz" % Lb)
                    kn, sn = divmod(pn, 14)
                    retry_blocks.append((Lr, Lb, "buffer_load_dwordx4 %s, v%d, s[%d:%d], s%d offen %s" % (vr(HR + 4 * sn, 4), ha + kn, SRD_A, SRD_A + 3, S_HSTEP + sn, ldf), bad_ops([rn, rn + 2])))
                if p + 14 < 56: hload(p + 14)
            self.bg_flush()
        if retry_blocks:
            Lx = self.label("L_hx")
            self("s_branch %s" % Lx)
            for (Lr, Lb, ld, ops) in retry_blocks:
                Li = self.label("L_hi")
                self("%s:" % Lr)
                self("s_mov_b32 s%d, %d" % (S_TMO, TIMEOUT))
                self("%s:" % Li)
                self(ld)
                self("s_sub_u32 s%d, s%d, 1" % (S_TMO, S_TMO))
                self("s_cmp_eq_u32 s%d, 0" % S_TMO)
                self("s_cbranch_scc1 L_abort")
                self("s_waitcnt vmcnt(0)")
                for l in ops: self(l)
                self("s_cbranch_vccnz %s" % Li)
                self("s_branch %s" % Lb)
            self("%s:" % Lx)
        if sb: self.stamp(sb + 1)
        acc = ACC[1]
        for j in range(0, 20, 2):
            self("v_pk_add_f32 %s, %s, %s" % (vr(SUM + j, 2), vr(SUM + j, 2), vr(acc + j, 2)))
        return SUM

    def unpack_items(self, dst, src):
        it = []
        for i in range(10):
            it += ["v_lshlrev_b32 v%d, 16, v%d" % (dst + 2 * i, src + i), "v_and_b32 v%d, s%d, v%d" % (dst + 2 * i + 1, S_MASK, src + i)]
        return it
    def residual_add(self, RES, XF, neg=False, unpack_after=True):
        t = 180
        for i in range(10):
            if self.o.get("rnd_mlp", 1): self.rnd_pair(RES + 2 * i, t + (i & 1))
            self("v_pk_add_f32 %s, %s, %s %s" % (vr(XF + 2 * i, 2), vr(XF + 2 * i, 2), vr(RES + 2 * i, 2), "neg_lo:[0,1] neg_hi:[0,1]" if neg else ""))
            self("v_cvt_pk_bf16_f32 v%d, v%d, v%d" % (V_X + i, XF + 2 * i, XF + 2 * i + 1))
        if unpack_after:
            for i in range(10): self.unpack(XF + 2 * i, V_X + i)

    def out_addr_items(self, t2):
        g = Gen()
        g("s_lshl_b32 s97, s%d, 8" % S_G)
        g("s_lshl_b32 s100, s%d, 6" % S_RB)
        g("s_add_u32 s97, s97, s100")
        g("s_lshl_b32 s100, s%d, 4" % S_W)
        g("s_add_u32 s97, s97, s100")
        g("v_add_u32 v%d, s97, v%d" % (t2, V_L15))
        g("v_mul_u32_u24 v%d, 1280, v%d" % (t2, t2))
        g("s_mul_i32 s97, s%d, 160" % S_CS)
        g("v_lshlrev_b32 v%d, 3, v%d" % (t2 + 1, V_G))
        g("v_add3_u32 v%d, v%d, v%d, s97" % (t2, t2, t2 + 1))
        return [i.text.strip() for i in g.ins]
    def store_out(self, t2):
        for u in range(5):
            self.vm("global_store_dwordx2 v%d, %s, s[%d:%d] offset:%d %s" % (t2, vr(V_X + 2 * u, 2), P_OUT, P_OUT + 1, 32 * u, self.o.get("outf", "")), "out")

    def epoch_update(self):
        L = self.label("L_ep")
        self("s_add_u32 s3, s2, s%d" % S_W)
        self("s_cmp_lg_u32 s3, 0")
        self("s_cbranch_scc1 %s" % L)
        self("s_sub_u32 s3, s%d, 0x%x" % (S_TAG, TAG0))
        self("s_add_u32 s3, s3, 16")
        self("v_mov_b32 v176, s3")
        self("v_mov_b32 v177, %d" % WS_EPOCH)
        self.exec_set("1")
        self("global_store_dword v177, v176, s[%d:%d] sc0 sc1" % (P_WS, P_WS + 1))
        self.exec_restore()
        self("%s:" % L)

    def build(self):
        o = self.o
        self.prologue()
        if o.get("stamps"): self("v_mov_b32 v%d, 0" % V_STAMP)
        self.stamp(0)
        self.prep_loads()
        self.stamp(38)
        self.prep_compute()
        self.stamp(2)
        self.mode_check()
        self.lg_wait_all()
        self("s_barrier")
        self.mode_fetch()
        self.stamp(3)
        self.prep_store_ur()
        self.stamp(4)
        self.barrier_arrive(1, drain=False)
        self.build_kcopies()
        self.w1_stage_setup()
        self.w2_setup()
        self.stamp(5)
        L = self.if_wave(3)
        self("s_waitcnt vmcnt(0)")
        self.close(L)
        self.barrier_wait(1)
        self.stamp(6)
        self.vmq = []; self.lgq = []
        self.conv()
        self.stamp(9)
        self.post_conv()
        self.stamp(13)
        if o.get("w1c2", 47) < 47:
            L = self.if_wave(3, eq=False)
            self.w1_dma(list(range(o.get("w1c2", 47), 47)))
            self.close(L)
        self.barrier_arrive(3)
        self.tile_stats(4, 1, 28)
        wcs = o.get("with_cs", 0)
        if not wcs:
            self.colsum()
            self("s_barrier")
            self.colsum_fetch()
        self.stamp(14)
        self.g1_setup(S_XO1, str(WS_HF1))
        self.lg_wait_all()
        nr = o.get("w2r", 14)
        na, nb = nr + o.get("w2a", 14), o.get("w2b", 52)
        L = self.if_wave(3, eq=False)
        q = list(self.vmq)
        self.bg_add(self.w2_items(nr, na, self.G1_L16)); self.bg_flush()
        self.vmq = q
        self.close(L)
        self.barrier_wait(3, wave=3)
        L = self.if_wave(3)
        self.bg_add(self.w2_items(nr, na, self.G1_L16)); self.bg_flush()
        self.vmq = q
        self.close(L)
        self.stamp(15)
        self.g1_main(1, 16, w2range=(na, nb), ldf='sc1', main_only=True, with_cs=bool(wcs))
        ne = min(70, nb + o.get("w2e", 10))
        self.bg_add(self.w2_items(nb, ne, self.G1_L16)); self.bg_flush()
        nb = ne
        self.g1_epilogue(hwt=o.get('hwt', 0))
        self.stamp(18)
        sv = 0
        sv2 = o.get("selfval2", 0)
        def slow_barrier(ph):
            L = self.label("L_sb")
            self("s_cmp_eq_u32 s%d, 0" % S_MODE)
            self("s_cbranch_scc1 %s" % L)
            q = (list(self.vmq), list(self.lgq))
            self.barrier_arrive(ph)
            self.barrier_wait(ph)
            self("%s:" % L)
            self.vmq, self.lgq = q
        self("v_lshlrev_b32 v163, 4, v%d" % V_LANE)
        if sv:
            self.bg_add(self.w2_items(nb, 70, 163)); self.bg_flush()
            self.g2_setup(str(WS_HF1))
            slow_barrier(4)
        else:
            self.barrier_arrive(4)
            self.bg_add(self.w2_items(nb, 70, 163)); self.bg_flush()
            self.g2_setup(str(WS_HF1))
            self.barrier_wait(4)
        self.stamp(21)
        XF, VA, VB = 150, 170, 171
        self.XA0 = 174
        extra = self.unpack_items(XF, V_X) + self.stats_addr_items(VA, VB) + self.xf_addr_items(S_XO3, 174)
        RES = self.g2_main(22, ldf='sc1' if sv else '', val=1 if sv else None, extra=extra)
        self.stamp(24)
        self.residual_add(RES, XF)
        self.tile_stats(XF, 2, 28, va=VA)
        self.row_stats_issue(2, 60, vb=VB)
        self.stamp(25)
        self.vm_wait("rs")
        self.row_stats_validate(2, 60)
        self.stamp(26)
        self.row_stats_finish(60, 24, 26)
        self.mixer_update(24, 26, XF, 28)
        self.xf_store()
        self.stamp(27)
        self.barrier_arrive(5)
        self.tile_stats(XF, 3, 28, va=VA)
        self.g1_setup(S_XO3, 's%d' % S_HO2)
        self.barrier_wait(5)
        self.stamp(28)
        self.g1_main(3, 29, ldf='sc1', neg=bool(sv2))
        self.stamp(31)
        if sv2:
            self.g2_setup('s%d' % S_HO2)
            slow_barrier(6)
        else:
            self.barrier_arrive(6)
            self.g2_setup('s%d' % S_HO2)
            self.barrier_wait(6)
        if o.get("wbl2"):
            L = self.label("L_wb")
            self("s_lshl_b32 s3, s%d, 2" % S_J)
            self("s_add_u32 s3, s3, s%d" % S_W)
            self("s_cmp_lg_u32 s3, %d" % o.get("wbl2_who", 1))
            self("s_cbranch_scc1 %s" % L)
            self("buffer_wbl2 sc1")
            self("%s:" % L)
        self.stamp(32)
        RES = self.g2_main(33, ldf='sc1', val=2 if sv2 else None, extra=self.unpack_items(XF, V_X) + self.out_addr_items(170))
        self.stamp(35)
        self.residual_add(RES, XF, neg=bool(sv2), unpack_after=False)
        self.store_out(170)
        self.epoch_update()
        self.stamp(36)
        self("s_waitcnt vmcnt(0)")
        self.stamp(37)
        self.stamp_dump()
        if self.o.get("dbgtime"):
            L = self.label("L_dt")
            self("s_add_u32 s3, s%d, s%d" % (S_J, S_W))
            self("s_cmp_lg_u32 s3, 0")
            self("s_cbranch_scc1 %s" % L)
            self("s_memrealtime s[94:95]")
            self("s_memtime s[92:93]")
            self("s_waitcnt lgkmcnt(0)")
            self("s_sub_u32 s94, s94, s98")
            self("s_sub_u32 s92, s92, s100")
            self("v_mov_b32 v4, s94")
            self("v_mov_b32 v5, s92")
            self("s_lshl_b32 s3, s%d, 3" % S_G)
            self("v_mov_b32 v6, s3")
            self("s_mov_b64 exec, 1")
            self("global_store_dwordx2 v6, v[4:5], s[%d:%d]" % (P_DBG, P_DBG + 1))
            self("%s:" % L)
        self("s_waitcnt vmcnt(0)")
        self("s_branch L_end")
        self.g1_epilogue_routine()
        self("L_abort:")
        self("L_end:")
        self("s_endpgm")

def make(opts):
    k = K(opts)
    k.build()
    body, added = k.text()
    hdr = open("interleave_layers__ssm_conv_h3__dense_activation_relu__prompt.s.ref").read().split("\n")
    head = [l for l in hdr if l.startswith(";") and "@launch" not in l and "Override launch" not in l and "grid=ceil" not in l][:13]
    txt = "\n".join(head) + "\n"
    txt += "; @launch grid=(256,1,1) block=(256,1,1) lds=%d\n" % LDS_TOTAL
    txt += '.amdgcn_target "amdgcn-amd-amdhsa--gfx950"\n.text\n.globl %s\n.p2align 8\n.type %s,@function\n%s:\n' % (KNAME, KNAME, KNAME)
    txt += body
    txt += """.section .rodata,"a"
.p2align 6
.amdhsa_kernel %s
  .amdhsa_next_free_vgpr 512
  .amdhsa_next_free_sgpr 102
  .amdhsa_accum_offset 256
  .amdhsa_group_segment_fixed_size 0
  .amdhsa_kernarg_size 96
  .amdhsa_user_sgpr_count 2
  .amdhsa_user_sgpr_kernarg_segment_ptr 1
  .amdhsa_system_sgpr_workgroup_id_x 1
.end_amdhsa_kernel
""" % KNAME
    return txt, added, len(k.ins)

if __name__ == "__main__":
    import argparse, json
    ap = argparse.ArgumentParser()
    ap.add_argument("-o", default="interleave_layers__ssm_conv_h3__dense_activation_relu__prompt.s")
    ap.add_argument("--opts", default="{}")
    a = ap.parse_args()
    txt, added, n = make(json.loads(a.opts))
    open(a.o, "w").write(txt)
    print("wrote", a.o, "instructions", n, "nop states added", added, "bytes", len(txt))
```

```python
import re

REG_RE = re.compile(r'\b([vas])(\d+)\b|\b([vas])\[(\d+):(\d+)\]|\b(vcc|exec|m0|scc)\b')

def regs_of(tok):
    out = []
    for m in REG_RE.finditer(tok):
        if m.group(1):
            out.append(m.group(1) + m.group(2))
        elif m.group(3):
            for i in range(int(m.group(4)), int(m.group(5)) + 1):
                out.append(m.group(3) + str(i))
        else:
            out.append(m.group(6))
    return out

TRANS = ("v_exp_", "v_log_", "v_rcp_", "v_rsq_", "v_sqrt_", "v_sin_", "v_cos_")

class Ins:
    __slots__ = ("nohaz", "text", "op", "kind", "wr", "rd", "mfma_c", "mfma_ab", "passes", "dpp", "nops", "is_label", "stdata", "lds_dma")
    def __init__(self, text):
        self.text = text
        self.is_label = False
        self.wr = set(); self.rd = set(); self.mfma_c = set(); self.mfma_ab = set()
        self.passes = 0; self.dpp = False; self.nops = 1; self.stdata = set(); self.lds_dma = False
        t = text.strip()
        nohaz = t.endswith("; nohaz")
        self.nohaz = nohaz
        if nohaz: t = t[:-len("; nohaz")].strip(); self.text = ("    " + t) if not t.endswith(":") else t
        if t.endswith(":") or t.startswith("."):
            self.is_label = t.endswith(":")
            self.op = ""; self.kind = "label" if self.is_label else "dir"; self.nops = 0
            return
        t = t.split(";")[0].strip()
        parts = t.split(None, 1)
        op = parts[0]; self.op = op
        rest = parts[1] if len(parts) > 1 else ""
        ops = []; depth = 0; cur = ""
        for ch in rest:
            if ch in "[(": depth += 1
            if ch in "])": depth -= 1
            if ch == "," and depth == 0:
                ops.append(cur.strip()); cur = ""
            else:
                cur += ch
        if cur.strip(): ops.append(cur.strip())
        R = lambda i: set(regs_of(ops[i].split()[0])) if i < len(ops) and ops[i] else set()
        allr = lambda i0: set(x for i in range(i0, len(ops)) for x in regs_of(ops[i].split()[0] if ops[i] else ""))
        if op == "s_nop":
            self.kind = "nop"; self.nops = int(ops[0], 0) + 1
        elif op.startswith("v_mfma"):
            self.kind = "mfma"
            self.wr = R(0); self.mfma_ab = R(1) | R(2); self.mfma_c = R(3)
            self.rd = self.mfma_ab | self.mfma_c
            self.passes = 8 if "32x32" in op else 4
        elif op.startswith("v_"):
            self.kind = "valu"
            self.dpp = ("_dpp" in op) or ("row_" in rest) or ("quad_perm" in rest) or ("wave_" in rest)
            if op.startswith("v_cmp"):
                self.wr = R(0); self.rd = allr(1)
                if op.startswith("v_cmpx"): self.wr |= {"exec"}
            elif op.startswith("v_permlane") and "swap" in op:
                self.wr = R(0) | R(1); self.rd = R(0) | R(1)
            elif op.startswith(("v_add_co", "v_sub_co", "v_subrev_co")):
                self.wr = R(0) | R(1); self.rd = allr(2)
            elif op.startswith(("v_addc_co", "v_subb_co")):
                self.wr = R(0) | R(1); self.rd = allr(2)
            elif op.startswith(("v_fmac", "v_mac", "v_dot2c", "v_pk_fmac")):
                self.wr = R(0); self.rd = allr(0)
            elif op.startswith("v_cndmask") and len(ops) == 3:
                self.wr = R(0); self.rd = allr(1) | {"vcc"}
            elif op.startswith("v_writelane"):
                self.wr = R(0); self.rd = allr(0)
            else:
                self.wr = R(0); self.rd = allr(1)
                if "dst_unused:UNUSED_PRESERVE" in rest or self.dpp: self.rd |= R(0)
            self.rd |= {"exec"}
        elif op.startswith("ds_"):
            self.kind = "ds"
            if op.startswith(("ds_read", "ds_bpermute", "ds_permute", "ds_swizzle")) or "_rtn" in op:
                self.wr = R(0); self.rd = allr(1)
            else:
                self.rd = allr(0); self.stdata = allr(1)
        elif op.startswith(("global_", "buffer_", "flat_")):
            self.kind = "vmem"
            is_lds = (" lds" in (" " + rest)) or "_lds_" in op
            self.lds_dma = is_lds
            if op in ("buffer_wbl2", "buffer_inv"):
                pass
            elif is_lds:
                self.rd = allr(0) | {"m0"}
            elif "load" in op:
                self.wr = R(0); self.rd = allr(1)
            elif "atomic" in op:
                if " sc0" in (" " + rest):
                    self.wr = R(0); self.rd = allr(1)
                else:
                    self.rd = allr(0)
            else:
                self.rd = allr(0)
                if op.startswith("global_"): data = R(1)
                else: data = R(0)
                self.stdata = data if ("x4" in op or "x3" in op) else set()
        elif op.startswith("s_"):
            self.kind = "salu"
            if op.startswith(("s_cmp", "s_bitcmp")):
                self.rd = allr(0); self.wr = {"scc"}
            elif op.startswith(("s_cbranch", "s_branch", "s_call", "s_setpc", "s_swappc")):
                self.kind = "branch"
            elif op in ("s_waitcnt", "s_barrier", "s_sleep", "s_setprio", "s_endpgm", "s_sethalt"):
                self.kind = "misc"
            elif op.startswith("s_load") or op.startswith("s_buffer_load") or op in ("s_memtime", "s_memrealtime"):
                self.kind = "smem"; self.wr = R(0); self.rd = allr(1)
            elif "saveexec" in op:
                self.wr = R(0) | {"exec"}; self.rd = allr(1) | {"exec"}
            else:
                self.wr = R(0); self.rd = allr(1)
        else:
            raise ValueError("unknown instruction: " + text)

def need_states(p, c):
    n = 0
    if p.kind == "valu":
        vw = set(r for r in p.wr if r[0] in "va" and r not in ("vcc",))
        sw = set(r for r in p.wr if (r[0] == "s" and r != "scc") or r == "vcc")
        if c.kind == "mfma" and vw & c.rd: n = max(n, 2)
        if c.kind == "vmem" and sw & c.rd: n = max(n, 5)
        if c.kind == "valu":
            if sw & c.rd:
                if c.op.startswith(("v_readlane", "v_writelane")): n = max(n, 4)
                else: n = max(n, 2)
            if c.op.startswith(("v_readlane", "v_readfirstlane")) and vw & c.rd: n = max(n, 1)
            if c.dpp and vw & c.rd: n = max(n, 2)
            if c.op.startswith("v_permlane") and vw & c.rd: n = max(n, 2)
            if p.op.startswith(TRANS) and vw & c.rd: n = max(n, 1)
            if ("sdwa" in p.op or "dst_sel" in p.text) and vw & (c.rd | c.wr): n = max(n, 1)
            if "exec" in p.wr: n = max(n, 4 if c.op.startswith(("v_readlane", "v_readfirstlane", "v_writelane", "v_permlane")) else (5 if c.dpp else 2))
        if c.kind == "mfma" and "exec" in p.wr: n = max(n, 4)
        if c.kind == "branch" and ("vcc" in p.wr) and "vcc" in c.op: n = max(n, 0)
    elif p.kind == "mfma":
        P = p.passes
        t_c_overlap = {4: 6, 8: 10}[P]; t_ab = {4: 8, 8: 12}[P]; t_war = {4: 3, 8: 7}[P]
        if c.kind == "mfma":
            if p.wr & c.mfma_ab: n = max(n, t_ab)
            if p.wr & c.mfma_c and not (p.wr == c.mfma_c and p.passes == c.passes): n = max(n, t_c_overlap)
            if p.wr & c.wr and not (p.wr == c.mfma_c): n = max(n, t_c_overlap)
        elif c.kind in ("valu", "vmem", "ds"):
            if p.wr & (c.rd | c.wr): n = max(n, t_ab)
            if c.kind == "valu" and p.mfma_c & c.wr: n = max(n, t_war)
    elif p.kind == "salu":
        if "m0" in p.wr and (c.lds_dma or "addtid" in c.op): n = max(n, 1)
        if "exec" in p.wr and c.kind == "valu" and c.dpp: n = max(n, 0)
    elif p.kind in ("vmem",):
        if p.stdata and c.kind == "valu" and p.stdata & c.wr: n = max(n, 2)
        if p.stdata and c.kind in ("vmem", "ds", "mfma") and p.stdata & c.wr: n = max(n, 1)
    elif p.kind == "ds":
        if p.stdata and len(p.stdata) >= 3 and c.kind == "valu" and p.stdata & c.wr: n = max(n, 2)
    return n

MAXW = 14
def fix_hazards(ins_list):
    out = []
    added = 0
    def pending_flush():
        need = 0; dist = 0
        for p in reversed(out):
            if p.kind in ("label", "dir"): continue
            w = 0
            if p.kind == "mfma": w = {4: 8, 8: 12}[p.passes]
            elif p.kind == "valu":
                if any((r[0] == "s" and r != "scc") or r == "vcc" for r in p.wr): w = 5
                else: w = 2
                if "exec" in p.wr: w = 5
            elif p.kind == "vmem" and p.stdata: w = 2
            elif p.kind == "salu" and "m0" in p.wr: w = 1
            need = max(need, w - dist)
            dist += p.nops
            if dist >= MAXW: break
        return need
    for c in ins_list:
        if c.kind in ("label", "branch"):
            nb = 0 if c.nohaz else pending_flush()
            while nb > 0:
                k = min(nb, 16); out.append(Ins("    s_nop %d" % (k - 1))); nb -= k; added += k
            out.append(c); continue
        if c.kind == "dir":
            out.append(c); continue
        need = 0; dist = 0; saw_mfma = False
        for p in reversed(out):
            if p.kind == "label":
                if p.nohaz: continue
                break
            if p.kind == "dir": continue
            n = need_states(p, c)
            if p.kind == "mfma": saw_mfma = True
            if saw_mfma and p.kind == "valu" and p.op.startswith("v_pk_") and "f32" in p.op and c.kind == "valu" and (p.wr & c.rd):
                n = max(n, 4)
            need = max(need, n - dist)
            dist += p.nops
            if dist >= MAXW: break
        while need > 0:
            k = min(need, 16); out.append(Ins("    s_nop %d" % (k - 1))); need -= k; added += k
        out.append(c)
    return out, added

class Gen:
    def __init__(self):
        self.ins = []
        self.uid = 0
        self.vmq = []
        self.lgq = []
    def __call__(self, s):
        for l in s.split("\n"):
            l = l.strip()
            if not l or l.startswith(";"): continue
            self.ins.append(Ins(l if (l.endswith(":") or l.endswith(": ; nohaz") or l.startswith(".")) else "    " + l))
    def label(self, base="L"):
        self.uid += 1
        return "%s_%d" % (base, self.uid)
    def vm(self, s, tag=None):
        self(s); self.vmq.append(tag)
    def lg(self, s, tag=None):
        self(s); self.lgq.append(tag)
    def _wait(self, q, tags, name, maxn):
        if not isinstance(tags, (list, tuple, set)): tags = [tags]
        last = -1
        for i, t in enumerate(q):
            if t in tags: last = i
        if last < 0: return
        n = len(q) - 1 - last
        n = min(n, maxn)
        self("s_waitcnt %s(%d)" % (name, n))
        del q[:len(q) - n]
    def vm_wait(self, tags): self._wait(self.vmq, tags, "vmcnt", 63)
    def lg_wait(self, tags): self._wait(self.lgq, tags, "lgkmcnt", 15)
    def vm_wait_all(self):
        self("s_waitcnt vmcnt(0)"); self.vmq = []
    def lg_wait_all(self):
        self("s_waitcnt lgkmcnt(0)"); self.lgq = []
    def wait_all(self):
        self("s_waitcnt vmcnt(0) lgkmcnt(0)"); self.vmq = []; self.lgq = []
    def text(self, fix=True):
        ins = self.ins
        added = 0
        if fix: ins, added = fix_hazards(ins)
        return "\n".join(i.text for i in ins) + "\n", added

def vr(b, n=1, k="v"):
    return "%s%d" % (k, b) if n == 1 else "%s[%d:%d]" % (k, b, b + n - 1)
def ar(b, n=1): return vr(b, n, "a")
def sr(b, n=1): return vr(b, n, "s")
```
